```python
import torch

def _softmax(x, axis=-1):
    return torch.softmax(x, dim=axis)

def _gelu(x):
    return torch.nn.functional.gelu(x, approximate='tanh')

def _silu(x):
    return torch.nn.functional.silu(x)

def _sigmoid(x):
    return torch.sigmoid(x)

def _layernorm(x, axis=-1, eps=1e-05):
    m = x.mean(dim=axis, keepdim=True)
    v = x.var(dim=axis, keepdim=True, unbiased=False)
    return (x - m) / torch.sqrt(v + eps)

def _scatter_add(tgt, idx, src, axis=0):
    return tgt.clone().index_add_(axis, idx, src)

def _segment_sum(src, seg, n):
    out = torch.zeros((n,) + src.shape[1:], dtype=src.dtype)
    return out.index_add_(0, seg, src)

def _pad(x, pw):
    flat = tuple((v for pair in reversed(pw) for v in pair))
    return torch.nn.functional.pad(x, flat)
kernel_name = 'interleave_layers__memory_aug_recurrent_mem_tr__softmax_full_mha__prompt'

def setup_inputs():

    _w = lambda a: (lambda t: t.to(torch.bfloat16) if t.is_floating_point() else t)(torch.as_tensor(a))

    def _A_setup():
        B, S, Dm = (1, 2048, 512)
        H, Dh = (32, 128)
        M, seg = (8, 32)
        seg = min(seg, S)
        S = S // seg * seg
        return {'x': _w((lambda *s: torch.randn(*s, dtype=torch.bfloat16) * 0.05)(B, S, Dm)), 'mem0': _w((lambda *s: torch.randn(*s, dtype=torch.bfloat16) * 0.2)(B, M, Dm)), 'Wq': _w((lambda *s: torch.randn(*s, dtype=torch.bfloat16) * 1.6)(Dm, H, Dh) * Dm ** (-0.5)), 'Wk': _w((lambda *s: torch.randn(*s, dtype=torch.bfloat16) * 1.6)(Dm, H, Dh) * Dm ** (-0.5)), 'Wv': _w((lambda *s: torch.randn(*s, dtype=torch.bfloat16) * 0.2)(Dm, H, Dh) * Dm ** (-0.5)), 'Wo': _w((lambda *s: torch.randn(*s, dtype=torch.bfloat16) * 0.2)(H, Dh, Dm) * (H * Dh) ** (-0.5)), 'seg_len': seg}
    _A_in = _A_setup()

    def _B_setup():
        B, S, D = (1, 2048, 512)
        return {'x': _w((lambda *s: torch.randn(*s, dtype=torch.bfloat16) * 0.05)(B, S, D)), 'wqkv': _w((lambda *s: torch.randn(*s, dtype=torch.bfloat16) * 0.05)(D, 3 * D)), 'wo': _w((lambda *s: torch.randn(*s, dtype=torch.bfloat16) * 0.05)(D, D))}
    _B_in = _B_setup()
    return {'A_x': _A_in['x'], 'A_mem0': _A_in['mem0'], 'A_Wq': _A_in['Wq'], 'A_Wk': _A_in['Wk'], 'A_Wv': _A_in['Wv'], 'A_Wo': _A_in['Wo'], 'A_seg_len': _A_in['seg_len'], 'B_x': _B_in['x'], 'B_wqkv': _B_in['wqkv'], 'B_wo': _B_in['wo']}

def reference(A_x, A_mem0, A_Wq, A_Wk, A_Wv, A_Wo, A_seg_len, B_x, B_wqkv, B_wo):

    def _A_ref(x, mem0, Wq, Wk, Wv, Wo, seg_len):
        B, S, Dm = x.shape
        H, Dh = (Wq.shape[1], Wq.shape[2])
        M = mem0.shape[1]
        scale = Dh ** (-0.5)
        n_seg = S // seg_len
        L = M + seg_len
        idx = torch.arange(L)
        mask = (idx[:, None] < M) | (idx[:, None] >= idx[None, :])
        mem = mem0
        outs = []
        for s in range(n_seg):
            xs = x[:, s * seg_len:(s + 1) * seg_len, :].clone()
            h = torch.concatenate([mem, xs], axis=1)
            q = torch.einsum('btd,dhe->bhte', h, Wq)
            k = torch.einsum('btd,dhe->bhte', h, Wk)
            v = torch.einsum('btd,dhe->bhte', h, Wv)
            scores = torch.einsum('bhqe,bhke->bhqk', q, k) * scale
            scores = torch.where(mask[None, None], scores, -1000000000.0)
            p = _softmax(scores, axis=-1)
            o = torch.einsum('bhqk,bhke->bhqe', p, v)
            o = torch.einsum('bhte,hed->btd', o, Wo)
            mem = o[:, :M, :].clone()
            outs.append(o[:, M:, :])
        return torch.concatenate(outs, axis=1)

    def _B_ref(x, wqkv, wo):
        B, S, D = x.shape
        H = 32
        Dh = D // H
        qkv = (lambda x, *d: x.permute(*d))((x @ wqkv).reshape(B, S, 3, H, Dh), 2, 0, 3, 1, 4)
        q, k, v = (qkv[0], qkv[1], qkv[2])
        scale = Dh ** (-0.5)
        scores = torch.einsum('bhqd,bhkd->bhqk', q, k) * scale
        p = _softmax(scores, axis=-1)
        o = torch.einsum('bhqk,bhkd->bhqd', p, v)
        return (lambda x, *d: x.permute(*d))(o, 0, 2, 1, 3).reshape(B, S, D) @ wo
    x = A_x
    x = x + _A_ref(_layernorm(x, axis=-1), A_mem0, A_Wq, A_Wk, A_Wv, A_Wo, A_seg_len)
    x = x + _B_ref(_layernorm(x, axis=-1), B_wqkv, B_wo)
    x = x + _A_ref(_layernorm(x, axis=-1), A_mem0, A_Wq, A_Wk, A_Wv, A_Wo, A_seg_len)
    x = x + _B_ref(_layernorm(x, axis=-1), B_wqkv, B_wo)
    return x
```

```python
import re

class Op:
    __slots__ = ('t', 'kind', 'tag')
    def __init__(self, t, kind=None, tag=None):
        self.t, self.kind, self.tag = t, kind, tag

def kind_of(t):
    m = t.split()[0]
    if m.startswith('ds_'): return 'ds'
    if m.startswith('buffer_') or m.startswith('global_'): return 'vm'
    return None

class S(list):
    def __call__(self, text, tag=None):
        for x in text.strip('\n').split('\n'):
            x = x.strip()
            if not x: continue
            self.append(Op(x, kind_of(x), tag))
        return self
    def W(self, kind, tag):
        self.append(Op(None, 'wait_' + kind, tag)); return self
    def nops(self, n):
        while n > 0:
            k = min(n, 16); self(f's_nop {k-1}'); n -= k
        return self

def resolve(stream, pre_vm=(), pre_ds=()):
    q = {'vm': list(pre_vm), 'ds': list(pre_ds)}
    mx = {'vm': 63, 'ds': 15}
    nm = {'vm': 'vmcnt', 'ds': 'lgkmcnt'}
    out = []
    for o in stream:
        if o.kind in ('wait_vm', 'wait_ds'):
            k = o.kind[5:]
            if o.tag == '*':
                out.append(f's_waitcnt {nm[k]}(0)'); q[k] = []; continue
            idx = [i for i, t in enumerate(q[k]) if t == o.tag]
            if not idx: continue
            n = len(q[k]) - 1 - idx[-1]
            n2 = min(n, mx[k])
            out.append(f's_waitcnt {nm[k]}({n2})')
            q[k] = q[k][len(q[k]) - n2:] if n2 else []
            continue
        out.append(o.t)
        if o.kind in q: q[o.kind].append(o.tag)
        if o.t.startswith('s_waitcnt'):
            for k in q:
                m = re.search(nm[k] + r'\((\d+)\)', o.t)
                if m:
                    n = int(m.group(1)); q[k] = q[k][len(q[k]) - n:] if n and n < len(q[k]) else (q[k] if n else [])
    return out, q

def is_mfma(o): return o.t is not None and (o.t.startswith('v_mfma') or o.t.startswith('v_smfmac'))
def is_vec(o): return o.t is not None and (o.t.startswith('v_') or o.kind in ('ds', 'vm'))

def merge(main, fill, per=2, start=0):
    out = S(); fi = 0; n = 0; pend = 0
    def pull(k):
        nonlocal fi
        while fi < len(fill) and k > 0:
            if fill[fi].kind in ('ds', 'vm'): break
            if is_vec(fill[fi]): k -= 1
            out.append(fill[fi]); fi += 1
    for i, o in enumerate(main):
        if pend and not (o.kind in ('ds', 'vm')):
            pull(pend); pend = 0
        out.append(o)
        if is_mfma(o):
            n += 1
            if n > start:
                pend = per(n) if callable(per) else per
                nxt = main[i+1] if i + 1 < len(main) else None
                if fi < len(fill) and fill[fi].kind in ('ds', 'vm') and not (nxt is not None and nxt.kind in ('ds', 'vm')):
                    out.append(fill[fi]); fi += 1
    out.extend(fill[fi:])
    return out

def vr(b, n=1, p='v'):
    return f'{p}{b}' if n == 1 else f'{p}[{b}:{b+n-1}]'
def R(r, n=1):
    if isinstance(r, tuple): return vr(r[1], n, 'a')
    return vr(r, n)
def radd(r, k):
    return ('a', r[1] + k) if isinstance(r, tuple) else r + k
```

```python
from asmlib import *
NAME = 'interleave_layers__memory_aug_recurrent_mem_tr__softmax_full_mha__prompt'
KA = dict(x=0, mem0=8, Wq=16, Wk=24, Wv=32, Wo=40, wqkv=64, wo=72, out=80, dbg=88, ws=96)
F_P, F_C, F_X1, F_X2, F_AL, F_X3, F_B, F_O = 0x0, 0x1000, 0x2000, 0x2200, 0x2400, 0x3000, 0x4000, 0x6000
CH_MEM, CH_IN = 0x10000, 0x40000
MB = 1 << 20
LB0, LSTR = MB, 84 * MB
O_QKV, O_KVM, O_O, O_X1, O_BQ, O_OB, O_X2 = 0, 48*MB, 56*MB, 72*MB, 74*MB, 80*MB, 82*MB
WS_BYTES = 256 * MB
WS, XIN, WSR, OUT = 's[8:11]', 's[12:15]', 's[16:19]', 's[20:23]'
sW, sROLE, sXCC, sSPIN = 's24', 's25', 's26', 's27'
sSEL0, sSEL1 = 's28', 's29'
SPIN_MAX = 200000
LOG2E = 1.4426950408889634
import struct
def f32(x): return hex(struct.unpack('<I', struct.pack('<f', x))[0])

_lbl = [0]
def L(p):
    _lbl[0] += 1
    return f'L_{p}_{_lbl[0]}'

def set_srd(s, srd_base, key, nbytes):
    s(f'''s_load_dwordx2 s[4:5], s[0:1], {KA[key]}
          s_waitcnt lgkmcnt(0)
          s_mov_b32 s{srd_base}, s4
          s_mov_b32 s{srd_base+1}, s5
          s_mov_b32 s{srd_base+2}, {nbytes}
          s_mov_b32 s{srd_base+3}, 0x20000''')

def poll(s, vaddr, soff, vtmp, target, fail, sleep=1):
    a, b = L('poll'), L('pollok')
    s(f'''s_mov_b32 {sSPIN}, 0
          {a}:
          buffer_load_dword v{vtmp}, v{vaddr}, {WS}, {soff} offen sc1
          s_waitcnt vmcnt(0)
          v_cmp_gt_u32 vcc, {target}, v{vtmp}
          s_cbranch_vccz {b}
          s_sleep {sleep}
          s_add_u32 {sSPIN}, {sSPIN}, 1
          s_cmp_lt_u32 {sSPIN}, {SPIN_MAX}
          s_cbranch_scc1 {a}
          s_branch {fail}
          {b}:''')

def wait_init(s, v0, v1, fail):
    a, b = L('wi'), L('wiok')
    s(f'''v_mov_b32 v{v0}, 0
          s_mov_b32 {sSPIN}, 0
          {a}:
          global_load_dword v{v1}, v{v0}, s[6:7] offset:192 sc1
          s_waitcnt vmcnt(0)
          v_cmp_gt_u32 vcc, 0x100, v{v1}
          s_cbranch_vccz {b}
          s_sleep 2
          s_add_u32 {sSPIN}, {sSPIN}, 1
          s_cmp_lt_u32 {sSPIN}, {SPIN_MAX}
          s_cbranch_scc1 {a}
          s_branch {fail}
          {b}:''')

def load_pairs(s, pairs, vA, vB, tmp, ntmp, ssoff='s30', post=None, lds=None):
    depth = min(ntmp // 2 - 1, 31)
    t0 = tmp + 2 * depth
    n = len(pairs)
    def issue(i):
        b = tmp + 2 * (i % depth)
        s(f's_mov_b32 {ssoff}, {pairs[i][0]}')
        s(f'buffer_load_dword v{b}, v{vA}, {WSR}, {ssoff} offen')
        s(f'buffer_load_dword v{b+1}, v{vB}, {WSR}, {ssoff} offen')
    for i in range(min(depth, n)): issue(i)
    for i in range(n):
        b = tmp + 2 * (i % depth)
        s(f's_waitcnt vmcnt({2 * (min(n, i + depth) - i - 1)})')
        for j, sel in ((0, sSEL0), (1, sSEL1)):
            d = pairs[i][1 + j]
            if isinstance(d, tuple):
                s(f'v_perm_b32 v{t0+j}, v{b+1}, v{b}, {sel}')
            else:
                s(f'v_perm_b32 v{d}, v{b+1}, v{b}, {sel}')
        for j in (0, 1):
            d = pairs[i][1 + j]
            if isinstance(d, tuple): s(f'v_accvgpr_write_b32 a{d[1]}, v{t0+j}')
        if i + depth < n: issue(i + depth)
        if post: post(i)

def xreduce(s, v, t, op='v_add_f32', dpp=(4, 8)):
    for r in dpp:
        s(f's_nop 1\n{op}_dpp v{v}, v{v}, v{v} row_ror:{r} row_mask:0xf bank_mask:0xf')
    for w in (16, 32):
        s(f'v_mov_b32 v{t}, v{v}\ns_nop 1\nv_permlane{w}_swap_b32 v{v}, v{t}\ns_nop 1\n{op} v{v}, v{v}, v{t}')

def ln_unpack(s, X, F):
    for i in range(16):
        s(f'v_lshlrev_b32 v{F+2*i}, 16, v{X+i}\nv_and_b32 v{F+2*i+1}, 0xffff0000, v{X+i}')

def ln_rest_np(s, F, T, vLW):
    for i in range(4): s(f'v_add_f32 v{T+i}, v{F+i}, v{F+4+i}')
    for i in range(8, 32): s(f'v_add_f32 v{T+i%4}, v{T+i%4}, v{F+i}')
    s(f'v_add_f32 v{T}, v{T}, v{T+1}\nv_add_f32 v{T+2}, v{T+2}, v{T+3}\nv_add_f32 v{T}, v{T}, v{T+2}')
    xreduce(s, T, T + 1)
    s(f'v_mul_f32 v{T}, {f32(-1.0/512)}, v{T}')
    for i in range(32): s(f'v_add_f32 v{F+i}, v{F+i}, v{T}')
    for i in range(32):
        s(f'v_mul_f32 v{T+2+i}, v{F+i}, v{F+i}' if i < 4 else f'v_fmac_f32 v{T+2+i%4}, v{F+i}, v{F+i}')
    s(f'v_add_f32 v{T}, v{T+2}, v{T+3}\nv_add_f32 v{T+4}, v{T+4}, v{T+5}\nv_add_f32 v{T}, v{T}, v{T+4}')
    xreduce(s, T, T + 1)
    s(f'v_mov_b32 v{T+1}, {f32(1e-5)}\nv_fmac_f32 v{T+1}, {f32(1.0/512)}, v{T}\nv_rsq_f32 v{T}, v{T+1}\ns_nop 0')
    for i in range(4):
        for j in range(8): s(f'v_mul_f32 v{F+8*i+j}, v{F+8*i+j}, v{T}')
        for j in range(4): s(f'v_cvt_pk_bf16_f32 v{F+8*i+j}, v{F+8*i+2*j}, v{F+8*i+2*j+1}')
        s(f'ds_write_b128 v{vLW}, v[{F+8*i}:{F+8*i+3}] offset:{4096*i}', 'lnw')

def ln_rest(s, F, T, vLW):
    s(f'v_pk_add_f32 v[{T}:{T+1}], v[{F}:{F+1}], v[{F+2}:{F+3}]')
    s(f'v_pk_add_f32 v[{T+2}:{T+3}], v[{F+4}:{F+5}], v[{F+6}:{F+7}]')
    for i in range(4, 16):
        t = T + 2 * (i & 1)
        s(f'v_pk_add_f32 v[{t}:{t+1}], v[{t}:{t+1}], v[{F+2*i}:{F+2*i+1}]')
    s(f'v_pk_add_f32 v[{T}:{T+1}], v[{T}:{T+1}], v[{T+2}:{T+3}]\nv_add_f32 v{T}, v{T}, v{T+1}')
    xreduce(s, T, T + 1)
    s(f'v_mul_f32 v{T}, {f32(-1.0/512)}, v{T}')
    for i in range(16):
        s(f'v_pk_add_f32 v[{F+2*i}:{F+2*i+1}], v[{F+2*i}:{F+2*i+1}], v[{T}:{T+1}] op_sel_hi:[1,0]')
    for i in range(16):
        t = T + 2 + 2 * (i & 1); f = f'v[{F+2*i}:{F+2*i+1}]'
        if i < 2: s(f'v_pk_mul_f32 v[{t}:{t+1}], {f}, {f}')
        else: s(f'v_pk_fma_f32 v[{t}:{t+1}], {f}, {f}, v[{t}:{t+1}]')
    s(f'v_pk_add_f32 v[{T}:{T+1}], v[{T+2}:{T+3}], v[{T+4}:{T+5}]\nv_add_f32 v{T}, v{T}, v{T+1}')
    xreduce(s, T, T + 1)
    s(f'v_mov_b32 v{T+1}, {f32(1e-5)}\nv_fmac_f32 v{T+1}, {f32(1.0/512)}, v{T}\nv_rsq_f32 v{T}, v{T+1}\ns_nop 0')
    for i in range(4):
        for j in range(4):
            f = F + 8 * i + 2 * j
            s(f'v_pk_mul_f32 v[{f}:{f+1}], v[{f}:{f+1}], v[{T}:{T+1}] op_sel_hi:[1,0]')
        for j in range(4):
            s(f'v_cvt_pk_bf16_f32 v{F+8*i+j}, v{F+8*i+2*j}, v{F+8*i+2*j+1}')
        s(f'ds_write_b128 v{vLW}, v[{F+8*i}:{F+8*i+3}] offset:{4096*i}', 'lnw')

def prologue(s):
    s(f'''
    s_cmp_ge_u32 s2, 0x100
    s_cbranch_scc0 L_start
    s_endpgm
    L_start:
    s_load_dwordx2 s[6:7], s[0:1], {KA['dbg']}
    s_load_dwordx2 s[4:5], s[0:1], {KA['ws']}
    s_getreg_b32 {sXCC}, hwreg(HW_REG_XCC_ID)
    s_and_b32 {sXCC}, {sXCC}, 7
    v_lshrrev_b32 v1, 6, v0
    v_and_b32 v0, 63, v0
    s_mov_b32 {sSEL0}, 0x05040100
    v_readfirstlane_b32 {sW}, v1
    s_mov_b32 {sSEL1}, 0x07060302
    s_waitcnt lgkmcnt(0)
    s_mov_b32 s8, s4
    s_mov_b32 s9, s5
    s_mov_b32 s10, {WS_BYTES}
    s_mov_b32 s11, 0x20000
    s_cmp_lg_u32 {sW}, 0
    s_cbranch_scc1 L_rank_done
    s_lshl_b32 s30, {sXCC}, 2
    s_add_u32 s30, s30, 128
    s_cmp_eq_u32 {sXCC}, 0
    s_cselect_b32 s30, 0, s30
    v_mov_b32 v2, s30
    v_mov_b32 v3, 1
    v_mov_b32 v5, 0
    v_lshlrev_b32 v6, 2, v0
    s_lshl_b32 s31, s2, 7
    s_mov_b64 exec, 1
    global_atomic_add v4, v2, v3, s[6:7] sc0
    s_mov_b32 exec_lo, -1
    buffer_store_dword v5, v6, {WS}, s31 offen sc1
    s_mov_b64 exec, 1
    s_waitcnt vmcnt(0)
    global_atomic_add v5, v3, s[6:7] offset:192
    v_readfirstlane_b32 s30, v4
    s_mov_b64 exec, -1
    s_lshl_b32 {sROLE}, {sXCC}, 5
    s_add_u32 {sROLE}, {sROLE}, s30
    s_cmp_lt_u32 s30, 32
    s_cbranch_scc1 L_rank_put
    ''')
    wait_init(s, 5, 4, 'L_exit')
    s(f'''
    s_mov_b64 exec, 1
    global_atomic_add v4, v5, v3, s[6:7] offset:196 sc0
    s_mov_b64 exec, -1
    v_lshlrev_b32 v6, 2, v0
    v_add_u32 v6, 128, v6
    v_cmp_eq_u32 vcc, 0, v0
    s_nop 1
    v_cndmask_b32 v6, v6, v5, vcc
    v_and_b32 v6, 0xbf, v6
    global_load_dword v7, v6, s[6:7] sc1
    s_waitcnt vmcnt(0)
    v_readfirstlane_b32 s30, v4
    s_mov_b32 s31, 0
    L_hole:
    s_nop 3
    v_readlane_b32 s32, v7, s31
    s_min_u32 s32, s32, 32
    s_sub_u32 s33, 32, s32
    s_lshl_b32 {sROLE}, s31, 5
    s_add_u32 {sROLE}, {sROLE}, s32
    s_add_u32 {sROLE}, {sROLE}, s30
    s_cmp_lt_u32 s30, s33
    s_cbranch_scc1 L_rank_put
    s_sub_u32 s30, s30, s33
    s_add_u32 s31, s31, 1
    s_cmp_lt_u32 s31, 8
    s_cbranch_scc1 L_hole
    s_mov_b32 {sROLE}, 0x100
    L_rank_put:
    v_mov_b32 v2, 0
    v_mov_b32 v3, {sROLE}
    ds_write_b32 v2, v3
    s_waitcnt lgkmcnt(0)
    L_rank_done:
    s_barrier
    v_mov_b32 v2, 0
    ds_read_b32 v3, v2
    s_waitcnt lgkmcnt(0)
    v_readfirstlane_b32 {sROLE}, v3
    s_barrier
    s_cmp_lt_u32 {sROLE}, 0x100
    s_cbranch_scc1 L_dispatch
    L_exit:
    s_endpgm
    L_dispatch:
    ''')

TRACE = 0x80000
def stamp(s, opts, idx, vt):
    if not opts.get('trace'): return
    s(f'''s_memrealtime s[98:99]
          s_lshl_b32 s100, {sROLE}, 2
          s_add_u32 s100, s100, {sW}
          s_lshl_b32 s100, s100, 7
          s_add_u32 s100, s100, {idx}
          s_lshl_b32 s100, s100, 2
          s_add_u32 s100, s100, {TRACE}
          s_waitcnt lgkmcnt(0)
          v_mov_b32 v{vt}, s98
          v_mov_b32 v{vt+1}, s100
          buffer_store_dword v{vt}, v{vt+1}, {WS}, 0 offen''')
```

```python
from common import *
LKB, LVB, LSC = 0, 65536, 131072
def role_batt(opts):
    s = S(); fail = 'L_b_fail'
    sH, sRP, sL, sT, sB, sNA, sNB, sFI, sX, sOB, sFB, sGL, sGH, sSL, sM3 = [f's{i}' for i in range(32, 47)]
    VMSK = 's[48:49]'; RET = 's[50:51]'
    vL16, vF, vTg, vFt, vIDX, vKR, vVR, vVB, vSW, vSR, vOB, vFB, vT = range(1, 14)
    KF, VL, VH, QT, S0, S1, TA, FI, ACC = 16, 20, 24, 28, 32, 48, 64, 80, 128
    QS = lambda i: f'a[{4*i}:{4*i+3}]'
    def sm(acc, v, p): return f'v_smfmac_f32_32x32x32_bf16 {vr(acc,16)}, {vr(v,4)}, {vr(p,8)}, v{vIDX}'
    def qk(d, q): return f'v_mfma_f32_32x32x16_bf16 {vr(d,16)}, {vr(KF,4)}, {q}, 0'
    def ex(t, b, lo, hi):
        for j in range(lo, hi): t(f'v_exp_f32 v{b+j}, v{b+j}')
    def rdv(t, reg, off, tag=None): t(f's_mov_b64 exec, {VMSK}\nds_read_b128 {vr(reg,4)}, v{vVR} offset:{off}\ns_mov_b64 exec, -1', tag)
    s(f'''L_role_batt:
    s_lshr_b32 s30, {sROLE}, 5
    s_sub_u32 s30, s30, 1
    s_lshl_b32 s30, s30, 3
    s_bfe_u32 s31, {sROLE}, 0x30001
    s_add_u32 {sH}, s30, s31
    s_and_b32 {sRP}, {sROLE}, 1
    v_lshlrev_b32 v{vL16}, 4, v0
    v_mov_b32 v{vIDX}, 0xdddddddd
    v_lshrrev_b32 v14, 5, v0
    v_and_b32 v15, 15, v0
    v_lshlrev_b32 v{vVB}, 8, v14
    v_lshl_add_u32 v{vVB}, v15, 4, v{vVB}
    v_bfe_u32 v14, v0, 4, 1
    v_lshl_add_u32 v{vOB}, v14, 14, v{vVB}
    s_lshl_b32 s30, {sH}, 9
    v_add_u32 v{vOB}, s30, v{vOB}
    v_add_u32 v{vVB}, {LVB}, v{vVB}
    s_mul_i32 s30, {sW}, 3072
    s_add_u32 s30, s30, {LSC}
    v_add_u32 v{vSW}, s30, v{vL16}
    v_add_u32 v{vSR}, {LSC}, v{vL16}
    v_lshlrev_b32 v{vFB}, 10, v0
    s_lshl_b32 {sFI}, {sH}, 7
    s_add_u32 {sFI}, {sFI}, {F_X3}
    s_lshl_b32 s30, {sW}, 1
    s_add_u32 s30, s30, {sRP}
    s_lshl_b32 s30, s30, 7
    s_lshl_b32 s31, {sH}, 2
    s_add_u32 {sFB}, s30, s31
    s_add_u32 {sFB}, {sFB}, {F_B}
    s_mov_b32 s48, 0xffff
    s_mov_b32 s49, 0xffff
    s_mov_b32 {sGL}, 0x17800000
    s_mov_b32 {sGH}, 0x50000000
    s_mov_b32 {sL}, 0
    s_mov_b32 {sM3}, 0''')
    for r in range(8): s(f'v_mov_b32 v{VL+r}, 0x3f803f80')
    wait_init(s, 14, 15, fail)
    s(f'''L_b_layer:
    s_mul_i32 s30, {sL}, {LSTR}
    s_mul_i32 {sB}, {sH}, {3*65536}
    s_add_u32 {sB}, {sB}, s30
    s_add_u32 {sB}, {sB}, {LB0 + O_BQ}
    s_lshl_b32 s31, {sW}, 1
    s_add_u32 s31, s31, {sRP}
    s_lshl_b32 {sOB}, s31, 15
    s_add_u32 {sOB}, {sOB}, s30
    s_add_u32 {sOB}, {sOB}, {LB0 + O_OB}
    s_mov_b32 {sT}, 0
    s_mov_b32 {sNA}, 0
    L_b_step:
    s_lshl_b32 s30, {sL}, 7
    s_lshl_b32 s31, {sT}, 1
    s_add_u32 s30, s30, s31
    s_add_u32 s30, s30, 1
    v_and_b32 v14, 1, v0
    v_add_u32 v{vTg}, s30, v14
    v_add_u32 v14, {sM3}, v14
    v_cmp_eq_u32 vcc, 3, v14
    v_lshlrev_b32 v{vF}, 2, v14
    s_add_u32 {sM3}, {sM3}, 2
    v_cndmask_b32 v{vF}, v{vF}, 0, vcc
    s_cmp_ge_u32 {sM3}, 3
    s_cselect_b32 s30, 3, 0
    s_sub_u32 {sM3}, {sM3}, s30
    s_lshl_b32 {sX}, {sT}, 10''')
    poll(s, vF, sFI, vFt, f'v{vTg}', fail)
    s(f'''s_add_u32 s30, {sB}, {sX}
    buffer_load_dwordx4 {vr(QT,4)}, v{vL16}, {WS}, s30 offen sc1
    s_cmp_ge_u32 {sW}, 2
    s_cbranch_scc1 L_b_nodma
    s_lshl_b32 s31, {sW}, 16
    s_add_u32 s30, s30, s31
    s_add_u32 s30, s30, 65536
    s_add_u32 m0, s31, {sX}
    s_nop 0
    buffer_load_dwordx4 v{vL16}, {WS}, s30 offen sc1 lds
    L_b_nodma:
    v_add_u32 v{vKR}, {sX}, v{vL16}
    v_add_u32 v{vVR}, {sX}, v{vVB}
    s_waitcnt vmcnt(0)
    s_barrier
    s_cmp_eq_u32 {sNA}, 0
    s_cbranch_scc1 L_b_adone
    ds_read_b128 {vr(KF,4)}, v{vKR}''')
    rdv(s, VL, 0); rdv(s, VH, 512)
    s(f's_waitcnt lgkmcnt(0)\n{qk(S0, QS(0))}\ns_nop 9')
    for i in range(8):
        c, o = (S0, S1) if i % 2 == 0 else (S1, S0)
        if i == 0: s('s_nop 1')
        ex(s, c, 0, 2)
        if i: s(sm(ACC+16*(i-1), VH, o+8))
        ex(s, c, 2, 6)
        if i < 7: s(qk(o, QS(i+1)))
        s(f's_cmp_eq_u32 {sNA}, {i+1}')
        ex(s, c, 6, 11); s(sm(ACC+16*i, VL, c)); ex(s, c, 11, 16)
        if i < 7: s(f's_cbranch_scc1 L_b_aend{i}')
    for i in range(7, -1, -1):
        c = S0 if i % 2 == 0 else S1
        s(f'L_b_aend{i}:\ns_nop 1\n{sm(ACC+16*i, VH, c+8)}')
        if i: s('s_branch L_b_adone')
    s('L_b_adone:')
    s(f's_cmp_eq_u32 {sT}, 63\ns_cbranch_scc1 L_b_fin\nL_b_finback:')
    s(f'''s_and_b32 s30, {sT}, 1
    s_cmp_lg_u32 s30, {sRP}
    s_cbranch_scc1 L_b_next''')
    for r in range(0, 10, 2): s(f'v_mov_b64 {vr(TA+r,2)}, 0')
    s(f'''s_cmp_lt_u32 {sT}, {sW}
    s_cbranch_scc1 L_b_bdone
    s_sub_u32 {sNB}, {sT}, {sW}
    s_lshr_b32 {sNB}, {sNB}, 2
    s_lshl_b32 s30, {sW}, 10
    v_add_u32 v{vKR}, s30, v{vL16}
    v_add_u32 v{vVR}, s30, v{vVB}
    ds_read_b128 {vr(KF,4)}, v{vKR}''')
    rdv(s, VL, 0)
    for r in range(0, 8, 2): s(f'v_mov_b64 {vr(S1+8+r,2)}, 0')
    s(f's_waitcnt lgkmcnt(0)\n{qk(S0, vr(QT,4))}\nds_read_b128 {vr(KF,4)}, v{vKR} offset:4096\ns_nop 10')
    s('L_b_bloop:')
    for i in range(2):
        c, o = (S0, S1) if i == 0 else (S1, S0)
        ex(s, c, 0, 2); s(sm(TA, VH, o+8)); rdv(s, VH, 4096*i + 512)
        ex(s, c, 2, 6); s(f's_waitcnt lgkmcnt(1)\n{qk(o, vr(QT,4))}\nds_read_b128 {vr(KF,4)}, v{vKR} offset:{4096*(i+2)}')
        s(f's_cmp_eq_u32 {sNB}, {i}')
        ex(s, c, 6, 11); s(sm(TA, VL, c)); rdv(s, VL, 4096*(i+1)); ex(s, c, 11, 16)
        s(f's_waitcnt lgkmcnt(2)\ns_cbranch_scc1 L_b_bend{i}')
    s(f'v_add_u32 v{vKR}, 0x2000, v{vKR}\nv_add_u32 v{vVR}, 0x2000, v{vVR}\ns_sub_u32 {sNB}, {sNB}, 2\ns_branch L_b_bloop')
    s(f'L_b_bend1:\n{sm(TA, VH, S1+8)}\ns_branch L_b_bdrain\nL_b_bend0:\n{sm(TA, VH, S0+8)}\nL_b_bdrain:\ns_nop 11')
    s(f'''L_b_bdone:
    ds_write_b128 v{vSW}, {vr(TA,4)}
    ds_write_b128 v{vSW}, {vr(TA+4,4)} offset:1024
    ds_write_b32 v{vSW}, v{TA+8} offset:2048
    s_waitcnt lgkmcnt(0)
    s_barrier
    s_bfe_u32 s30, {sT}, 0x20001
    s_cmp_lg_u32 s30, {sW}
    s_cbranch_scc1 L_b_next''')
    for j in range(4):
        s(f'ds_read_b128 {vr(S0+8*j,4)}, v{vSR} offset:{3072*j}\nds_read_b128 {vr(S0+8*j+4,4)}, v{vSR} offset:{3072*j+1024}\nds_read_b32 v{FI+j}, v{vSR} offset:{3072*j+2048}')
    s('s_waitcnt lgkmcnt(0)')
    for r in range(0, 8, 2):
        s(f'v_pk_add_f32 {vr(S0+r,2)}, {vr(S0+r,2)}, {vr(S0+8+r,2)}\nv_pk_add_f32 {vr(S0+16+r,2)}, {vr(S0+16+r,2)}, {vr(S0+24+r,2)}')
    s(f'v_pk_add_f32 {vr(FI,2)}, {vr(FI,2)}, {vr(FI+2,2)}')
    for i in range(7): s(f's_cmp_eq_u32 {sNA}, {i}\ns_cbranch_scc1 L_b_put{i}')
    for i in range(7, -1, -1):
        s(f'L_b_put{i}:')
        for r in range(0, 8, 2): s(f'v_pk_add_f32 {vr(ACC+16*i+r,2)}, {vr(S0+r,2)}, {vr(S0+16+r,2)}')
        s(f'v_add_f32 v{ACC+16*i+8}, v{FI}, v{FI+1}')
        for r in range(4): s(f'v_accvgpr_write_b32 a{4*i+r}, v{QT+r}')
        if i: s('s_branch L_b_putdone')
    s(f'''L_b_putdone:
    s_add_u32 {sNA}, {sNA}, 1
    s_cmp_eq_u32 {sT}, 63
    s_cbranch_scc0 L_b_next
    s_mov_b32 {sSL}, 7
    s_branch L_b_fin7
    L_b_next:''')
    if opts.get('trace'):
        s(f's_mul_i32 s69, {sL}, 40\ns_lshr_b32 s30, {sT}, 1\ns_add_u32 s69, s69, s30\ns_add_u32 s69, s69, 2'); stamp(s, opts, 's69', 14)
    s(f'''s_add_u32 {sT}, {sT}, 1
    s_cmp_lt_u32 {sT}, 64
    s_cbranch_scc1 L_b_step
    s_barrier
    s_add_u32 {sL}, {sL}, 1
    s_cmp_lt_u32 {sL}, {opts.get('nl', 2)}
    s_cbranch_scc1 L_b_layer
    {fail}:
    s_endpgm''')
    s(f'L_b_fin:\ns_mov_b32 {sSL}, 0\ns_nop 11')
    t = S()
    for i in range(8):
        a = ACC + 16*i; f = FI + 8 + 4*(i & 1)
        s(f'''L_b_fin{i}:
        v_subrev_u32 v{vT}, {sGL}, v{a+8}
        v_cmp_lt_u32 vcc, {sGH}, v{vT}
        s_cbranch_vccnz L_b_safe{i}
        L_b_fok{i}:
        v_rcp_f32 v{vT}, v{a+8}
        s_add_u32 s30, {sOB}, {8*32768*i}''')
        for r in range(8): s(f'v_mul_f32 v{FI+r}, v{vT}, v{a+r}')
        for r in range(4): s(f'v_cvt_pk_bf16_f32 v{f+r}, v{FI+2*r}, v{FI+2*r+1}')
        s(f'buffer_store_dwordx4 {vr(f,4)}, v{vOB}, {WS}, s30 offen sc1')
        if i == 6: s(f's_cmp_eq_u32 {sNA}, 7\ns_cbranch_scc1 L_b_findone')
        t(f'L_b_safe{i}:')
        for r in range(4): t(f'v_accvgpr_read_b32 v{FI+16+r}, a{4*i+r}')
        t(f's_getpc_b64 {RET}\ns_add_u32 s50, s50, 12\ns_addc_u32 s51, s51, 0\ns_branch L_b_exact')
        for r in range(9): t(f'v_mov_b32 v{a+r}, v{TA+r}')
        t(f's_branch L_b_fok{i}')
    s(f'''L_b_findone:
    s_add_u32 s30, {sL}, 1
    v_mov_b32 v{vT}, s30
    s_bfm_b64 exec, {sNA}, 0
    s_bfm_b64 s[30:31], {sSL}, 0
    s_andn2_b64 exec, exec, s[30:31]
    s_waitcnt vmcnt(0)
    buffer_store_dword v{vT}, v{vFB}, {WS}, {sFB} offen sc1
    s_mov_b64 exec, -1''')
    if opts.get('trace'):
        s(f's_mul_i32 s69, {sL}, 40\ns_add_u32 s69, s69, 34'); stamp(s, opts, 's69', 14)
    s(f's_cmp_eq_u32 {sSL}, 0\ns_cbranch_scc1 L_b_finback\ns_branch L_b_next')
    s.extend(t)
    q = vr(FI+16, 4); m = FI + 20
    s(f'L_b_exact:\nv_mov_b32 v{m}, {f32(-3e38)}\nv_mov_b32 v{vKR}, v{vL16}\ns_mov_b32 {sNB}, 0\nL_b_ex1:')
    s(f'ds_read_b128 {vr(KF,4)}, v{vKR}\nv_add_u32 v{vKR}, 0x400, v{vKR}\ns_waitcnt lgkmcnt(0)\n{qk(S0, q)}\ns_nop 11')
    for r in range(0, 16, 2): s(f'v_max3_f32 v{m}, v{m}, v{S0+r}, v{S0+r+1}')
    s(f's_add_u32 {sNB}, {sNB}, 1\ns_cmp_lt_u32 {sNB}, 64\ns_cbranch_scc1 L_b_ex1')
    s(f'v_mov_b32 v{m+1}, v{m}\ns_nop 1\nv_permlane32_swap_b32 v{m}, v{m+1}\ns_nop 1\nv_max_f32 v{m}, v{m}, v{m+1}')
    for r in range(0, 10, 2): s(f'v_mov_b64 {vr(TA+r,2)}, 0')
    s(f'v_mov_b32 v{vKR}, v{vL16}\nv_mov_b32 v{vVR}, v{vVB}\ns_mov_b32 {sNB}, 0\nL_b_ex2:\nds_read_b128 {vr(KF,4)}, v{vKR}')
    rdv(s, VL, 0); rdv(s, VH, 512)
    s(f'v_add_u32 v{vKR}, 0x400, v{vKR}\nv_add_u32 v{vVR}, 0x400, v{vVR}\ns_waitcnt lgkmcnt(0)\n{qk(S0, q)}\ns_nop 11')
    for r in range(16): s(f'v_sub_f32 v{S0+r}, v{S0+r}, v{m}')
    ex(s, S0, 0, 16)
    s(f's_nop 1\n{sm(TA, VL, S0)}\n{sm(TA, VH, S0+8)}\ns_add_u32 {sNB}, {sNB}, 1\ns_cmp_lt_u32 {sNB}, 64\ns_nop 7\ns_cbranch_scc1 L_b_ex2\ns_nop 7\ns_setpc_b64 {RET}')
    return resolve(s)[0]
```

```python
from common import *
LM, LQ, LK, LP, LSEL, LW = 0, 8192, 8192+2304, 8192+2304+2048, 8192+2304+3072, 16384
LO, LMX = LM, LM + 4096
WSTR = 18 * 2048
vIDX, vG16, vWL, vQW, vKW, vQR, vST, vPUB, vKX, vG8, vF8, vF32, vFV, vFP, vSEN = range(1, 16)
ONES, PM, KX, VX, MA, AQ, AK, AV, SX, SM, POOL = 16, 20, 24, 32, 40, 72, 80, 88, 96, 100, 104
QB, KA, PX, LL, OX = POOL, POOL+16, POOL+24, POOL+28, POOL+32
NWORK = 144
sH, sL, sS, sN, sTAG, sMS, sMC, sG1, sG2, sKV, sKM, sPT, sCV, sC, sFPO, sFCO, sALO, sAL, s4K = [f's{i}' for i in range(32, 51)]
sTCH = 's51'; sKN = 's56'; sMN = 's57'; CH_JUNK = 0x20000; vTC = vF32
sPUBX = 's[52:53]'; sGL, sGH = 's54', 's55'
LDS_Q = [(0,0),(0,1),(1,0),(1,1),(2,0)]
LDS_K = [(1,0),(1,1),(2,0),(2,1),(3,0)]
LDS_O = [(1,2),(1,3),(2,1),(2,2),(2,3),(3,1),(3,2),(3,3)]
home = {}
def _alloc():
    free = [NWORK + 8*i for i in range((256-NWORK)//8)] + [('a', 8*i) for i in range(32)]
    n = 0
    for m, ld in (('q', LDS_Q), ('k', LDS_K), ('v', [])):
        for t in range(8):
            for tau in range(2):
                if (t, tau) in ld: home[m, t, tau] = ('lds', n); n += 1
                else: home[m, t, tau] = free.pop()
    for u in range(4):
        for z in range(4):
            if (u, z) in LDS_O: home['o', u, z] = ('lds', 10 + LDS_O.index((u, z)))
            else: home['o', u, z] = free.pop()
    assert not free
_alloc()
def in_lds(k): return isinstance(home[k], tuple) and home[k][0] == 'lds'
def smf(d, a, b): return f'v_smfmac_f32_16x16x64_bf16 {vr(d,4)}, {vr(a,4)}, {R(b,8)}, v{vIDX}'
def stage(s, key, reg, half, tag):
    s(f'ds_read_b128 {vr(reg+4*half,4)}, v{vWL} offset:{home[key][1]*2048 + 1024*half}', tag)

def setup(s, opts, fail):
    s('L_role_chain:'); stamp(s, opts, 0, 126)
    s(f'''
    s_mov_b32 {sH}, {sROLE}
    v_lshrrev_b32 v120, 4, v0          ; g
    v_and_b32 v121, 15, v0             ; c
    v_lshlrev_b32 v{vG16}, 4, v0
    s_mul_i32 s30, {sW}, {WSTR}
    s_add_u32 s30, s30, {LW}
    v_add_u32 v{vWL}, s30, v{vG16}
    v_lshrrev_b32 v122, 1, v120
    v_and_b32 v123, 1, v120
    v_lshlrev_b32 v16, 19, v122
    v_lshl_add_u32 v16, v123, 17, v16
    v_lshl_add_u32 v16, v121, 2, v16
    s_lshl_b32 s30, {sH}, 8
    s_lshl_b32 s31, {sW}, 6
    s_add_u32 s30, s30, s31
    v_add_u32 v16, s30, v16
    v_add_u32 v17, 0x2000, v16
    ''')
    TL = 88
    for m, key in (('q', 'Wq'), ('k', 'Wk'), ('v', 'Wv')):
        set_srd(s, 16, key, 4*MB)
        pairs = []; posts = {}
        for t in range(8):
            for jr in range(8):
                row = 256*(t & 1) + 128*(jr >> 2) + 32*(jr & 1) + 8*((jr >> 1) & 1) + 2*(t >> 1)
                d = [TL + 16*(t & 1) + 8*tau + jr if in_lds((m, t, tau)) else radd(home[m, t, tau], jr) for tau in range(2)]
                pairs.append((row * 8192, d[0], d[1]))
            posts[len(pairs) - 1] = [(tau, home[m, t, tau][1], TL + 16*(t & 1) + 8*tau) for tau in range(2) if in_lds((m, t, tau))]
        def post(i):
            for tau, slot, r in posts.get(i, []):
                s(f'ds_write_b128 v{vWL}, {vr(r,4)} offset:{slot*2048}\nds_write_b128 v{vWL}, {vr(r+4,4)} offset:{slot*2048+1024}')
        load_pairs(s, pairs, 16, 17, 24, 64, post=post)
        s('s_waitcnt lgkmcnt(0)')
    set_srd(s, 16, 'Wo', 4*MB)
    s(f'''v_lshlrev_b32 v16, 12, v120
          v_lshl_add_u32 v16, v121, 4, v16
          s_lshl_b32 s30, {sH}, 17
          s_lshl_b32 s31, {sW}, 8
          s_add_u32 s30, s30, s31
          v_add_u32 v16, s30, v16''')
    def oissue(i):
        z, jp = i >> 2, i & 3; b = 24 + 8*(i % 8)
        s(f'''s_add_u32 s30, {sW}, {z}
              s_and_b32 s30, s30, 3
              s_lshl_b32 s30, s30, 15
              s_add_u32 s30, s30, {(16*(jp >> 1) + 2*(jp & 1)) * 1024}
              buffer_load_dwordx4 {vr(b,4)}, v16, {WSR}, s30 offen
              buffer_load_dwordx4 {vr(b+4,4)}, v16, {WSR}, s30 offen offset:1024''')
    for i in range(8): oissue(i)
    for i in range(16):
        z, jp = i >> 2, i & 3; b = 24 + 8*(i % 8)
        s(f's_waitcnt vmcnt({2*(min(16, i+8) - i - 1)})')
        if jp == 0: s('s_waitcnt lgkmcnt(0)')
        for u in range(4):
            for f, sel in ((0, sSEL0), (1, sSEL1)):
                d = TL + 8*u + 2*jp + f if in_lds(('o', u, z)) else radd(home['o', u, z], 2*jp + f)
                if isinstance(d, tuple): s(f'v_perm_b32 v{18+f}, v{b+4+u}, v{b+u}, {sel}\nv_accvgpr_write_b32 a{d[1]}, v{18+f}')
                else: s(f'v_perm_b32 v{d}, v{b+4+u}, v{b+u}, {sel}')
        if i + 8 < 16: oissue(i + 8)
        if jp == 3:
            for u in range(4):
                if in_lds(('o', u, z)):
                    slot = home['o', u, z][1]
                    s(f'ds_write_b128 v{vWL}, {vr(TL+8*u,4)} offset:{slot*2048}\nds_write_b128 v{vWL}, {vr(TL+8*u+4,4)} offset:{slot*2048+1024}')
    stamp(s, opts, 1, 126)
    s(f'''
    v_bfe_u32 v124, v0, 1, 1
    v_mov_b32 v{vIDX}, 0x44444444
    v_mov_b32 v125, 0xeeeeeeee
    v_cmp_eq_u32 vcc, 1, v124
    v_bfe_u32 v126, v0, 2, 1           ; (c>>2)&1
    v_bfe_u32 v127, v0, 3, 1           ; c>>3
    v_cndmask_b32 v{vIDX}, v{vIDX}, v125, vcc
    v_and_b32 v128, 1, v0              ; c&1
    v_and_b32 v129, 3, v0              ; c&3
    v_bfe_u32 v130, v0, 2, 2           ; c>>2
    ; q write: 576w + 144(2(c>>3) + ((c>>1)&1)) + 32g + 8(c&1) + 4((c>>2)&1)
    v_lshl_add_u32 v131, v127, 1, v124
    v_mul_u32_u24 v{vQW}, 144, v131
    v_lshl_add_u32 v{vQW}, v120, 5, v{vQW}
    v_lshl_add_u32 v{vQW}, v128, 3, v{vQW}
    v_lshl_add_u32 v{vQW}, v126, 2, v{vQW}
    s_mul_i32 s30, {sW}, 576
    s_add_u32 s30, s30, {LQ}
    v_add_u32 v{vQW}, s30, v{vQW}
    ; q read: 144g + 16(2(c>>2) + (c&1))
    v_lshl_add_u32 v132, v130, 1, v128          ; row r(c)
    v_mul_u32_u24 v{vQR}, 144, v120
    v_lshl_add_u32 v{vQR}, v132, 4, v{vQR}
    ; k write: 512w + 256(c>>3) + 64g + 32((c>>2)&1) + 4(c&3)
    v_lshlrev_b32 v{vKW}, 8, v127
    v_lshl_add_u32 v{vKW}, v120, 6, v{vKW}
    v_lshl_add_u32 v{vKW}, v126, 5, v{vKW}
    v_lshl_add_u32 v{vKW}, v129, 2, v{vKW}
    s_lshl_b32 s30, {sW}, 9
    s_add_u32 s30, s30, {LK}
    v_add_u32 v{vKW}, s30, v{vKW}
    v_lshrrev_b32 v131, 3, v0
    v_and_b32 v133, 7, v0
    v_lshlrev_b32 v{vST}, 13, v131
    v_lshl_add_u32 v{vST}, v133, 3, v{vST}
    s_lshl_b32 s30, {sW}, 16
    s_lshl_b32 s31, {sH}, 6
    s_add_u32 s30, s30, s31
    s_add_u32 s30, s30, {CH_IN}
    v_add_u32 v{vST}, s30, v{vST}
    v_lshlrev_b32 v{vPUB}, 5, v124
    v_lshl_add_u32 v{vPUB}, v123, 4, v{vPUB}
    v_lshl_add_u32 v{vPUB}, v128, 3, v{vPUB}
    v_lshl_add_u32 v{vPUB}, v122, 2, v{vPUB}
    s_lshr_b32 s30, {sH}, 3
    s_lshl_b32 s30, s30, 9
    s_and_b32 s31, {sH}, 1
    s_lshl_b32 s31, s31, 8
    s_add_u32 s30, s30, s31
    s_bfe_u32 s31, {sH}, 0x20001
    s_lshl_b32 s31, s31, 6
    s_add_u32 s30, s30, s31
    v_add_u32 v{vPUB}, s30, v{vPUB}
    v_lshlrev_b32 v{vKX}, 9, v120
    v_lshl_add_u32 v{vKX}, v124, 8, v{vKX}
    v_lshl_add_u32 v{vKX}, v130, 6, v{vKX}
    v_lshl_add_u32 v{vKX}, v128, 4, v{vKX}
    s_lshr_b32 s30, {sW}, 1
    s_lshl_b32 s30, s30, 12
    s_and_b32 s31, {sW}, 1
    s_lshl_b32 s31, s31, 5
    s_add_u32 s30, s30, s31
    s_add_u32 s30, s30, 8192
    v_add_u32 v{vKX}, s30, v{vKX}
    v_lshlrev_b32 v{vG8}, 3, v0
    v_lshlrev_b32 v{vF8}, 2, v133
    v_and_b32 v{vF32}, 31, v0
    v_lshlrev_b32 v{vF32}, 2, v{vF32}
    s_cmp_lt_u32 {sW}, 2
    s_cbranch_scc0 L_ch_notouch
    s_add_u32 s30, {sW}, 1
    s_lshl_b32 s30, s30, 13
    v_lshlrev_b32 v{vTC}, 7, v0
    v_add_u32 v{vTC}, s30, v{vTC}
    L_ch_notouch:
    v_mov_b32 v{vSEN}, -1
    v_lshlrev_b32 v0, 10, v132
    v_lshl_add_u32 v0, v120, 7, v0
    v_lshl_add_u32 v0, v124, 6, v0
    s_lshl_b32 s30, {sW}, 2
    v_add_u32 v0, s30, v0
    v_mov_b32 v134, 0x3f80
    v_lshlrev_b32 v135, 4, v129
    v_lshlrev_b32 v134, v135, v134
    v_cmp_gt_u32 vcc, 2, v129
    v_mov_b32 v135, 0
    s_nop 0
    v_cndmask_b32 v134, v135, v134, vcc
    ''')
    for r in range(4): s(f'v_cmp_eq_u32 vcc, {r}, v130\ns_nop 1\nv_cndmask_b32 v{136+r}, v135, v134, vcc')
    s(f'ds_write_b128 v{vG16}, v[136:139] offset:{LSEL}')
    for r in range(4): s(f'v_mov_b32 v{ONES+r}, 0x3f803f80\nv_mov_b32 v{PM+r}, 0\nv_mov_b32 v{136+r}, -1')
    s(f'''
    s_mov_b32 s52, 0x000f000f
    s_mov_b32 s53, 0x000f000f
    s_mov_b32 {sC}, {f32(128**-0.5 * LOG2E)}
    s_mov_b32 {s4K}, 4096
    s_mov_b32 {sGL}, 0x17800000
    s_mov_b32 {sGH}, 0x50000000
    s_lshl_b32 s30, {sW}, 11
    s_lshl_b32 {sG1}, {sH}, 13
    s_add_u32 {sG1}, {sG1}, s30
    s_add_u32 {sG1}, {sG1}, {CH_IN}
    s_add_u32 {sG2}, s30, {CH_MEM}
    s_lshl_b32 {sFPO}, {sH}, 7
    s_add_u32 {sFCO}, {sFPO}, {F_C}
    s_add_u32 {sFPO}, {sFPO}, {F_P}
    s_lshl_b32 {sALO}, {sH}, 2
    s_add_u32 {sALO}, {sALO}, {F_AL}
    s_mov_b32 {sAL}, {F_AL}
    s_mov_b32 {sN}, 0
    s_mov_b32 {sL}, 0
    s_mov_b32 {sCV}, 0
    ''')
    set_srd(s, 12, 'mem0', 8192)
    wait_init(s, 120, 121, fail)
    s(f'''global_load_dword v121, v120, s[6:7] sc1
          s_waitcnt vmcnt(0)
          v_readfirstlane_b32 s30, v121
          s_cmp_ge_u32 s30, 32
          s_cbranch_scc1 L_ch_initF
          s_branch L_ch_initS''')

def body(mode, opts, fail):
    st = 'sc1' if mode == 'S' else ''
    s = S()
    s(f'''L_ch_init{mode}:
    buffer_store_dwordx4 v[136:139], v{vG16}, {WS}, {sG1} offen {st}
    buffer_store_dwordx4 v[136:139], v{vG16}, {WS}, {sG1} offen offset:1024 {st}
    s_mov_b64 exec, {sPUBX}
    buffer_store_dword v{vSEN}, v{vPUB}, {WS}, {sG2} offen {st}
    s_add_u32 s30, {sG2}, 8192
    buffer_store_dword v{vSEN}, v{vPUB}, {WS}, s30 offen {st}
    s_mov_b64 exec, -1
    s_waitcnt vmcnt(0) lgkmcnt(0)
    ''')
    for w in range(3): s(f's_cmp_eq_u32 {sW}, {w}\ns_cbranch_scc1 L_ch_layer{mode}{w}')
    s(f's_branch L_ch_layer{mode}3')
    out = resolve(s)[0]
    for w in range(4): out += wave(mode, w, opts, fail, st)
    return out

def wave(mode, w, opts, fail, st):
    T = f'{mode}{w}'
    P1 = opts.get('p1', (40, 44, 48, 52))[w]; D2 = opts.get('d2', 20); AW = 3
    tail = S()
    pts = opts.get('tl') or []
    def P(s, k):
        if k in pts: s(f's_memtime s[{70+2*pts.index(k)}:{71+2*pts.index(k)}]')
        sp = opts.get('cstamp')
        if sp and sp[1] == k: s('s_memtime s[62:63]\ns_waitcnt lgkmcnt(0)\ns_sub_u32 s62, s62, s60\ns_add_u32 s64, s64, s62')
        if sp and sp[0] == k: s('s_memtime s[60:61]\ns_waitcnt lgkmcnt(0)')
    def cnt(s, r):
        if opts.get('trace'): s(f's_add_u32 {r}, {r}, 1')
    def zero(s, r, n):
        for i in range(0, n, 2): s(f'v_mov_b64 {vr(r+i,2)}, 0')
    def kvload(s):
        s(f'buffer_load_dwordx4 {vr(KX,4)}, v{vKX}, {WS}, {sKV} offen sc1\nbuffer_load_dwordx4 {vr(KX+4,4)}, v{vKX}, {WS}, {sKV} offen offset:2048 sc1', 'kx')
        s(f's_add_u32 s30, {sKV}, {16384 + 1024*w}\ns_add_u32 s31, s30, 4096')
        s(f'buffer_load_dwordx4 {vr(VX,4)}, v{vG16}, {WS}, s30 offen sc1\nbuffer_load_dwordx4 {vr(VX+4,4)}, v{vG16}, {WS}, s31 offen sc1', 'vx')
    def prestage(s):
        for i, (t, tau) in enumerate(LDS_Q):
            for hf in range(2): stage(s, ('q', t, tau), POOL + 8*i, hf, 'pre')
    def kvstore(s, kreg):
        if opts.get('nokv'): return
        if w >= 2: s(f'buffer_store_dwordx4 {vr(kreg,4)}, v{vG16}, {WS}, {sKM} offen offset:{1024*(w-2)} sc1', 'far')
        s(f'buffer_store_dwordx2 {vr(AV,2)}, v{vG8}, {WS}, {sKM} offen offset:{2048 + 512*w} sc1', 'far')
    def cflag(s):
        if w == 2: s(f's_mov_b64 exec, 1\nbuffer_store_dword v{vFV}, v{vF8}, {WS}, {sFCO} offen sc1\ns_mov_b64 exec, -1', 'far')
    def touchmask(s):
        if w < 2: s(f's_add_u32 s30, {sPT}, 1\nv_cmp_gt_u32 vcc, s30, v{vFP}\ns_nop 0\ns_cmp_eq_u64 vcc, 0\ns_cselect_b32 s30, {24*32*1024}, 0\ns_add_u32 {sTCH}, {sKV}, s30')
    def farloads(s):
        if w < 2 and not opts.get('notouch'): s(f'buffer_load_dword v{vFV}, v{vTC}, {WS}, {sTCH} offen sc1', 'far')
        if w < 2 and not opts.get('nofp'): s(f'buffer_load_dword v{vFP}, v{vF8}, {WS}, {sFPO} offen sc1', 'far')
        if opts.get('nofp'): s(f'v_mov_b32 v{vFP}, -1')
    x = S(); farloads(x); cflag(x); kvstore(x, 0); nfar = sum(o.kind == 'vm' for o in x)
    x = S(); farloads(x); nfl = sum(o.kind == 'vm' for o in x)
    def book(s):
        s(f"""s_add_u32 {sN}, {sN}, 1
              s_and_b32 {sTAG}, {sN}, 1
              s_xor_b32 {sTAG}, {sTAG}, 1
              s_add_u32 s30, {sN}, 3
              s_and_b32 s30, s30, 3
              s_lshl_b32 s30, s30, 13
              s_add_u32 {sMN}, s30, {sG2}
              s_xor_b32 s30, s30, 0x4000
              s_add_u32 {sMC}, s30, {sG2}""")
    s = S()
    s(f"""L_ch_layer{T}:
    s_mul_i32 s30, {sL}, {LSTR}
    s_mul_i32 {sKV}, {sH}, {24*1024}
    s_add_u32 {sKV}, {sKV}, s30
    s_add_u32 {sKV}, {sKV}, {LB0 + O_QKV}
    s_lshl_b32 {sKM}, {sH}, 12
    s_add_u32 {sKN}, {sKM}, s30
    s_add_u32 {sKN}, {sKN}, {LB0 + O_KVM}
    s_add_u32 {sKM}, {sKM}, {CH_JUNK}
    s_lshl_b32 {sPT}, {sL}, 7
    s_add_u32 {sPT}, {sPT}, 1
    s_mov_b32 {sS}, 0""")
    if opts.get('trace'): s('s_mov_b32 s64, 0\ns_mov_b32 s65, 0\ns_mov_b32 s66, 0\ns_mov_b32 s67, 0\ns_mov_b32 s68, 0')
    for i in range(8): s(f'buffer_load_dword v{MA+i}, v0, {XIN}, 0 offen offset:{512*(i >> 2) + 16*(i & 3)}')
    zero(s, AQ, 32); prestage(s)
    s(f's_waitcnt vmcnt(0)\nds_write_b128 v{vG16}, {vr(MA,4)} offset:{LM + 2048*w}\nds_write_b128 v{vG16}, {vr(MA+4,4)} offset:{LM + 2048*w + 1024}')
    poll(s, vF8, sFPO, vFP, sPT, fail)
    if opts.get('trace'): s(f's_lshl_b32 s69, {sL}, 4\ns_add_u32 s69, s69, 2')
    stamp(s, opts, 's69', MA)
    if opts.get('cstamp'): s('s_memtime s[60:61]\ns_waitcnt lgkmcnt(0)')
    kvload(s); touchmask(s); book(s)
    if w == 2: s(f'v_mov_b32 v{vFV}, {sCV}')
    s('s_waitcnt lgkmcnt(0)')
    pre = resolve(s)[0]
    s = S()
    s(f'L_ch_step{T}:'); P(s, 'b0in'); s('s_barrier'); P(s, 'b0')
    def rdma(t): s(f'ds_read_b128 {vr(MA+4*t,4)}, v{vG16} offset:{LM + 1024*t}', f'ma{t}')
    rdma(0); rdma(1); rdma(2)
    kvstore(s, AV+4); farloads(s); cflag(s)
    s(f's_mov_b32 {sKM}, {sKN}\ns_add_u32 {sKN}, {sKN}, {32*4096}\ns_mov_b32 {sMS}, {sMN}')
    def s1(m, i, tt=None):
        t, tau = tt or (i >> 1, i & 1); key = (m, t, tau)
        acc = {'q': AQ, 'k': AK, 'v': AV}[m] + 4*tau
        if in_lds(key):
            j = (LDS_Q if m == 'q' else LDS_K).index((t, tau)); b = POOL + 8*j
            if m == 'k': s.W('ds', f'k{j}')
        else: b = home[key]
        if m == 'q' and tau == 0: s.W('ds', f'ma{t}')
        s(smf(acc, MA + 4*t, b)); P(s, f'{m}{i}')
    for i in range(16):
        s1('q', i)
        if i < 5: rdma(i + 3)
        elif i < 15: stage(s, ('k',) + LDS_K[(i-5) >> 1], POOL + 8*((i-5) >> 1), (i-5) & 1, f'k{(i-5) >> 1}')
        if i == 1 and w == 2: s(f'v_mov_b32 v{vFV}, {sCV}')
        if i == 3: s(f's_add_u32 {sCV}, {sCV}, 1')
        if i == 5 and w == AW: s(f'v_mov_b32 v{vFV}, {sCV}')
        if i in (7, 9, 11, 13): zero(s, AV + i - 7, 2)
    P(s, 'qend')
    def add(d, j): return f'v_add_f32 v{d+j}, v{d+j}, v{d+2+j}'
    def mul(d): return f'v_mul_f32 v{d}, {sC}, v{d}'
    ob = [('o',) + x for x in LDS_O]
    sreg = [MA, MA+8, MA+16, MA+24, POOL, POOL+8, POOL+16, POOL+24]
    def so(j, hf): stage(s, ob[j], sreg[j], hf, f'o{j}')
    NQ = 4; PR = KX
    FLP = opts.get('flp', 'v10'); PRP = opts.get('prp', ['v15', 'd2', 'd4', 'd5'])
    def al(k):
        if w != AW: return
        if k == FLP: s(f's_mov_b64 exec, 1\nbuffer_store_dword v{vFV}, v{vF32}, {WS}, {sALO} offen {st}\ns_mov_b64 exec, -1')
        if k in PRP: r = PRP.index(k); s(f'buffer_load_dword v{PR+r}, v{vF32}, {WS}, {sAL} offen sc1', f'pr{r}')
    s1('k', 0); s(add(AQ, 0)); s(add(AQ, 1))
    s1('k', 1); s(add(AQ+4, 0)); s(add(AQ+4, 1))
    s1('k', 2); s(mul(AQ)); s(mul(AQ+4))
    s1('k', 3); s(mul(AQ+1)); s(mul(AQ+5))
    s1('k', 4); s(f'v_cvt_pk_bf16_f32 v{AQ}, v{AQ}, v{AQ+4}\nv_cvt_pk_bf16_f32 v{AQ+1}, v{AQ+1}, v{AQ+5}')
    s1('k', 5); s(f'ds_write2_b32 v{vQW}, v{AQ}, v{AQ+1} offset1:4', 'qw')
    s1('k', 6); zero(s, AQ+2, 2)
    s1('k', 7); zero(s, AQ+4, 2)
    s1('k', 8); zero(s, AQ+6, 2)
    s1('k', 9); s.W('ds', 'qw'); s('s_barrier'); P(s, 'b1')
    for j in range(4):
        s(f'ds_read_b128 {vr(QB+4*j,4)}, v{vQR} offset:{LQ + 576*j}', f'qb{j}')
        if j == 1: zero(s, AQ, 2)
        s1('k', 10 + j)
    s.W('vm', 'vx'); s(f'v_swap_b32 v{VX+2}, v{VX+4}')
    s1('k', 14); s(f'v_swap_b32 v{VX+3}, v{VX+5}')
    s1('k', 15)
    s.W('ds', 'qb1'); s(smf(SX, KX, QB)); s(add(AK, 0))
    s.W('ds', 'qb3'); s(smf(SX, KX+4, QB+8)); s(add(AK, 1)); s(add(AK+4, 0))
    s1('v', 0); s(add(AK+4, 1)); s(f'v_cvt_pk_bf16_f32 v{AK}, v{AK}, v{AK+4}\nv_cvt_pk_bf16_f32 v{AK+1}, v{AK+1}, v{AK+5}')
    s1('v', 1); s(f'ds_write2_b32 v{vKW}, v{AK}, v{AK+1} offset1:4', 'kw'); s(add(SX, 0)); s(add(SX, 1))
    s1('v', 2); s(f'v_exp_f32 v{SX+2}, v{SX}\nv_exp_f32 v{SX+3}, v{SX+1}\ns_nop 0\nv_cvt_pk_bf16_f32 v{SX+2}, v{SX+2}, v{SX+3}')
    s1('v', 3); s(f'ds_write_b32 v{vG16}, v{SX+2} offset:{LP + 4*w}', 'pw'); zero(s, AK+2, 2)
    s1('v', 4); al('v4'); so(0, 0); zero(s, AK+4, 2)
    s1('v', 5); al('v5'); so(0, 1); zero(s, AK+6, 2)
    s1('v', 6); al('v6'); zero(s, AK, 2)
    s1('v', 7); s.W('ds', 'pw'); s('s_barrier'); P(s, 'b2')
    s(f'ds_read_b128 {vr(KA,4)}, v{vG16} offset:{LK}', 'ka0')
    s1('v', 8); s(f'ds_read_b128 {vr(KA+4,4)}, v{vG16} offset:{LK + 1024}', 'ka1')
    s1('v', 9); s(f'ds_read_b128 {vr(PX,4)}, v{vG16} offset:{LP}', 'px'); al('v9')
    s1('v', 10); al('v10'); so(1, 0)
    s1('v', 11); al('v11'); so(1, 1)
    s.W('ds', 'ka0'); s(smf(SM, KA, QB)); so(2, 0)
    s.W('ds', 'ka1'); s(smf(SM, KA+4, QB+8)); so(2, 1)
    s.W('ds', 'px')
    s(f'v_mfma_f32_16x16x32_bf16 {vr(LL,4)}, {vr(ONES,4)}, {vr(PX,4)}, 0'); so(4, 0)
    s1('v', 12); al('v12'); so(4, 1); s(add(SM, 0)); s(add(SM, 1))
    s1('v', 13, (7, 0)); al('v13'); so(5, 0); s(f'v_exp_f32 v{SM+2}, v{SM}')
    s1('v', 14, (6, 1)); al('v14'); so(5, 1); s(f'v_exp_f32 v{SM+3}, v{SM+1}')
    s1('v', 15); al('v15'); so(6, 0); s(f'v_cvt_pk_bf16_f32 v{PM}, v{SM+2}, v{SM+3}')
    P(s, 'vend')
    s(f'v_mfma_f32_16x16x32_bf16 {vr(OX,4)}, {vr(VX,4)}, {vr(PX,4)}, 0')
    al('d0'); s(add(AV, 0)); s(add(AV, 1))
    s(f'v_mfma_f32_16x16x32_bf16 {vr(OX+4,4)}, {vr(VX+4,4)}, {vr(PX,4)}, 0')
    so(6, 1); s(add(AV+4, 0)); s(add(AV+4, 1))
    s(f'v_mfma_f32_16x16x16_bf16 {vr(LL,4)}, {vr(ONES,2)}, {vr(PM,2)}, {vr(LL,4)}')
    al('d2'); s(f's_cmp_eq_u32 {sS}, 63')
    s(f'v_cvt_pk_bf16_f32 v{AV}, v{AV}, v{AV+1}\nv_cvt_pk_bf16_f32 v{AV+1}, v{AV+4}, v{AV+5}\nv_mov_b32 v{PM+3}, v{PM}')
    s(f's_cbranch_scc1 L_ch_last{T}')
    s(f'v_mfma_f32_16x16x16_bf16 {vr(OX,4)}, {vr(AV,2)}, {vr(PM,2)}, {vr(OX,4)}')
    al('d3'); so(3, 0)
    s(f'v_mfma_f32_16x16x16_bf16 {vr(OX+4,4)}, {vr(AV,2)}, {vr(PM+2,2)}, {vr(OX+4,4)}')
    so(3, 1); al('d4')
    s(f'v_rcp_f32 v{LL+2}, v{LL}\nv_subrev_u32 v{LL+1}, {sGL}, v{LL}\nv_cmp_lt_u32 vcc, {sGH}, v{LL+1}\ns_nop 0')
    s(f'L_ch_norm{T}:'); P(s, 'norm')
    for r in range(4): s(f'v_mul_f32 v{OX+r}, v{LL+2}, v{OX+r}')
    for r in range(4): s(f'v_mul_f32 v{OX+4+r}, v{LL+2}, v{OX+4+r}')
    for r in range(4): s(f'v_cvt_pk_bf16_f32 v{OX+r}, v{OX+r}, v{OX+4+r}')
    s(f'ds_write_b128 v{vG16}, {vr(OX,4)} offset:{LO + 1024*w}', 'ow')
    P(s, 'ow'); al('d5')
    s(f's_cbranch_vccnz L_ch_safe{T}')
    AWO = AQ
    for u in range(4):
        s(smf(AWO + 4*u, OX, home['o', u, 0]))
        if u == opts.get('chk', 1) and w == AW: s.W('vm', 'pr0'); s(f'v_cmp_gt_u32 vcc, v{vFV}, v{PR}')
    if w == AW:
        s(f's_cbranch_vccnz L_ch_amiss{T}\nL_ch_aok{T}:')
        tail(f'L_ch_amiss{T}:\ns_mov_b32 {sSPIN}, 0\nL_ch_apoll{T}:')
        for r in list(range(1, NQ)) + [0]:
            cnt(tail, 's67')
            tail(f'buffer_load_dword v{PR+(r+NQ-1)%NQ}, v{vF32}, {WS}, {sAL} offen sc1\ns_waitcnt vmcnt({NQ-1})\nv_cmp_gt_u32 vcc, v{vFV}, v{PR+r}\ns_cbranch_vccz L_ch_aok{T}')
        tail(f's_add_u32 {sSPIN}, {sSPIN}, 1\ns_cmp_lt_u32 {sSPIN}, {SPIN_MAX}\ns_cbranch_scc1 L_ch_apoll{T}\ns_branch {fail}')
    P(s, 'own'); s.W('ds', 'ow'); s('s_barrier'); P(s, 'b3')
    OA = [OX, OX+4, SX, SM]
    for z in (1, 2, 3): s(f'ds_read_b128 {vr(OA[z],4)}, v{vG16} offset:{LO + 1024*((w+z) & 3)}', f'oa{z}')
    def epi(u, part):
        d = AWO + 4*u
        if part == 0: s(f'v_cvt_pk_bf16_f32 v{d}, v{d}, v{d+2}\nv_cvt_pk_bf16_f32 v{d+1}, v{d+1}, v{d+3}\nv_and_or_b32 v{d}, v{d}, -2, {sTAG}')
        else: s(f'buffer_store_dwordx2 {vr(d,2)}, v{vST}, {WS}, {"0" if u < 2 else s4K} offen offset:{2048*(u & 1)} {st}')
    late = [(7, 0), (7, 1)]
    for u in range(4):
        for z in (1, 2, 3):
            key = ('o', u, z)
            if u == 0: s.W('ds', f'oa{z}')
            if in_lds(key): j = ob.index(key); s.W('ds', f'o{j}'); b = sreg[j]
            else: b = home[key]
            s(smf(AWO + 4*u, OA[z], b)); P(s, f'o{u}{z}')
            if late and (u, z) > (0, 2): so(*late.pop(0))
            if u > 0 and z == 2: epi(u-1, 0)
            if u > 0 and z == 3: epi(u-1, 1)
    SEL, RA = OX, OX+4
    s(f'ds_read_b128 {vr(SEL,4)}, v{vG16} offset:{LSEL}', 'sel')
    s('s_nop 5')
    epi(3, 0); epi(3, 1); P(s, 'st3')
    s(f's_add_u32 {sPT}, {sPT}, 1\ns_add_u32 {sKV}, {sKV}, {0 if opts.get("samekv") else 24*32*1024}')
    if w >= 2: s(f'ds_read_b128 {vr(AV+4,4)}, v{vG16} offset:{LK + 1024*(w-2)}', 'kre')
    zero(s, AQ, 12); zero(s, SX, 8); zero(s, AQ+12, 4)
    P(s, 'zer'); s.nops(max(0, P1 - 14 - (w >= 2)))
    G = [MA, MA+8, MA+16]
    def h1l(t, r): t(f'buffer_load_dwordx4 {vr(G[r],4)}, v{vG16}, {WS}, {sG1} offen sc1\nbuffer_load_dwordx4 {vr(G[r]+4,4)}, v{vG16}, {WS}, {sG1} offen offset:1024 sc1')
    def h2l(t, r): t(f'buffer_load_dwordx4 {vr(G[r],4)}, v{vG16}, {WS}, {sMS} offen sc1\nbuffer_load_dwordx4 {vr(G[r]+4,4)}, v{vG16}, {WS}, {sMS} offen offset:1024 sc1')
    TM = MA + 30
    def h1f(t, r, out):
        b = G[r]
        t(f'''s_waitcnt vmcnt({out+1})
              v_mfma_f32_16x16x32_bf16 {vr(RA,4)}, {vr(SEL,4)}, {vr(b,4)}, 0
              v_bitop3_b32 v{TM}, v{b}, v{b+2}, {sTAG} bitop3:0x7e
              s_waitcnt vmcnt({out})
              v_mfma_f32_16x16x32_bf16 {vr(RA,4)}, {vr(SEL,4)}, {vr(b+4,4)}, {vr(RA,4)}
              v_bitop3_b32 v{TM+1}, v{b+4}, v{b+6}, {sTAG} bitop3:0x7e
              v_bitop3_b32 v{TM}, v{TM}, v{TM+1}, 1 bitop3:0xa8
              v_cmp_ne_u32 vcc, 0, v{TM}''')
    def h2f(t, r, out):
        b = G[r]
        t(f'''s_waitcnt vmcnt({out+1})
              ds_write_b128 v{vG16}, {vr(b,4)} offset:{LM + 2048*w}
              v_max3_u32 v{TM+1}, v{b}, v{b+1}, v{b+2}
              s_waitcnt vmcnt({out})
              ds_write_b128 v{vG16}, {vr(b+4,4)} offset:{LM + 2048*w + 1024}
              v_max3_u32 v{TM+1}, v{TM+1}, v{b+3}, v{b+4}
              v_max3_u32 v{TM+1}, v{TM+1}, v{b+5}, v{b+6}
              v_max_u32 v{TM+1}, v{TM+1}, v{b+7}
              v_cmp_eq_u32 vcc, -1, v{TM+1}''')
    def retry(tag, ld, fin, c):
        tail(f'L_ch_miss{tag}{T}:\ns_mov_b32 {sSPIN}, 0'); cnt(tail, c)
        for r in range(2): ld(tail, r); tail('s_nop 9')
        tail(f'L_ch_poll{tag}{T}:')
        for r in range(3):
            ld(tail, (r+2) % 3); fin(tail, r, 4); tail(f's_cbranch_vccz L_ch_got{tag}{T}')
        tail(f's_add_u32 {sSPIN}, {sSPIN}, 1\ns_cmp_lt_u32 {sSPIN}, {SPIN_MAX}\ns_cbranch_scc1 L_ch_poll{tag}{T}\ns_branch {fail}')
        tail(f'L_ch_got{tag}{T}:')
        tail('s_waitcnt vmcnt(0)' if tag == 'b' else 's_nop 2')
        tail(f's_branch L_ch_ok{tag}{T}')
    P(s, 'h1'); h1l(s, 0)
    s('s_waitcnt lgkmcnt(0)')
    h1f(s, 0, 0); s(f's_nop 3\ns_cbranch_vccnz L_ch_missa{T}\nL_ch_oka{T}:'); retry('a', h1l, h1f, 's65')
    P(s, 'h1ok')
    s(f'''v_add_f32_dpp v{RA}, v{RA}, v{RA} row_ror:4 row_mask:0xf bank_mask:0xf
          v_add_f32_dpp v{RA+1}, v{RA+1}, v{RA+1} row_ror:4 row_mask:0xf bank_mask:0xf
          {f'v_cmp_gt_u32 vcc, {sPT}, v{vFP}' if w == 0 else 's_nop 0'}
          v_add_f32_dpp v{RA}, v{RA}, v{RA} row_ror:8 row_mask:0xf bank_mask:0xf
          v_add_f32_dpp v{RA+1}, v{RA+1}, v{RA+1} row_ror:8 row_mask:0xf bank_mask:0xf
          s_mov_b64 exec, {sPUBX}
          v_cvt_pk_bf16_f32 v{TM}, v{RA}, v{RA+1}
          v_min_u32 v{TM}, -2, v{TM}
          buffer_store_dword v{TM}, v{vPUB}, {WS}, {sMS} offen {st}''')
    if w == 0:
        s(f's_cbranch_vccnz L_ch_pwait{T}\nL_ch_pok{T}:')
        tail(f'L_ch_pwait{T}:\ns_mov_b64 exec, -1'); cnt(tail, 's68'); poll(tail, vF8, sFPO, vFP, sPT, fail, sleep=0); tail(f's_mov_b64 exec, {sPUBX}\ns_branch L_ch_pok{T}')
    s(f'''s_barrier
          buffer_store_dword v{vSEN}, v{vPUB}, {WS}, {sMC} offen {st}
          s_mov_b64 exec, -1''')
    P(s, 'xb')
    prestage(s)
    s.nops(max(0, D2 - 14))
    P(s, 'h2'); h2l(s, 0)
    touchmask(s)
    s.nops(opts.get('d3', 10))
    kvload(s); s(f's_add_u32 {sS}, {sS}, 1'); book(s)
    P(s, 'kvl')
    h2f(s, 0, 4); s(f's_cbranch_vccnz L_ch_missb{T}\nL_ch_okb{T}:'); retry('b', h2l, h2f, 's66')
    P(s, 'h2ok')
    P(s, 'end')
    if opts.get('trace'):
        s(f's_cmp_eq_u32 {sS}, 13\ns_cbranch_scc1 L_ch_m0{T}\ns_cmp_eq_u32 {sS}, 63\ns_cbranch_scc1 L_ch_m1{T}\nL_ch_mb{T}:')
        tail(f'L_ch_m0{T}:\ns_memtime s[58:59]\ns_mov_b32 s65, 0\ns_mov_b32 s66, 0\ns_mov_b32 s67, 0\ns_branch L_ch_mb{T}')
        tail(f'L_ch_m1{T}:\ns_memtime s[62:63]\ns_waitcnt lgkmcnt(0)\ns_sub_u32 s64, s62, s58\ns_branch L_ch_mb{T}')
    s('s_waitcnt lgkmcnt(0)')
    if pts:
        s(f's_cmp_eq_u32 {sS}, {opts.get("tls", 41)}\ns_cbranch_scc0 L_ch_step{T}')
        s(f's_lshl_b32 s100, {sROLE}, 2\ns_add_u32 s100, s100, {sW}\ns_lshl_b32 s100, s100, 9\ns_add_u32 s100, s100, {TRACE+256}\nv_mov_b32 v{TM}, s100')
        for i in range(len(pts)): s(f'v_mov_b32 v{TM+1}, s{70+2*i}\nbuffer_store_dword v{TM+1}, v{TM}, {WS}, 0 offen offset:{4*i}\ns_waitcnt vmcnt(0)')
    s(f's_branch L_ch_step{T}')
    step = resolve(s, pre_vm=['kx']*2 + ['vx']*2)[0]
    t = tail
    t(f'L_ch_last{T}:')
    if w >= 2: t(f'ds_read_b128 {vr(AV+4,4)}, v{vG16} offset:{LK + 1024*(w-2)}\ns_waitcnt lgkmcnt(0)')
    kvstore(t, AV+4)
    t(f'v_mov_b32 v{vFV}, {sCV}\ns_sub_u32 {sN}, {sN}, 1\ns_waitcnt vmcnt(0)\ns_barrier')
    cflag(t)
    if opts.get('trace'): t('s_add_u32 s69, s69, 1')
    stamp(t, opts, 's69', MA)
    if opts.get('trace'):
        for i, r in enumerate(('s64', 's65', 's66', 's67', 's68')):
            t(f'v_mov_b32 v{MA}, {r}\nv_add_u32 v{MA+1}, 4, v{MA+1}\nbuffer_store_dword v{MA}, v{MA+1}, {WS}, 0 offen\ns_nop 1')
    t(f'''s_waitcnt vmcnt(0) lgkmcnt(0)
          s_barrier
          s_add_u32 {sL}, {sL}, 1
          s_cmp_lt_u32 {sL}, {opts.get('nl', 2)}
          s_cbranch_scc1 L_ch_layer{T}
          s_endpgm''')
    m, m2 = LL + 1, LL + 3
    t(f'L_ch_safe{T}:\nv_max3_f32 v{m}, v{SX}, v{SX+1}, v{SM}\nv_max_f32 v{m}, v{m}, v{SM+1}')
    xreduce(t, m, m2, 'v_max_f32', dpp=())
    t(f'''ds_write_b32 v{vG16}, v{m} offset:{LMX + 4*w}
          s_waitcnt lgkmcnt(0)
          s_barrier
          ds_read_b128 {vr(PX,4)}, v{vG16} offset:{LMX}
          s_waitcnt lgkmcnt(0)
          v_max3_f32 v{m}, v{PX}, v{PX+1}, v{PX+2}
          v_max_f32 v{m}, v{m}, v{PX+3}''')
    for b in (SX, SM):
        for r in range(2): t(f'v_sub_f32 v{b+2+r}, v{b+r}, v{m}\nv_exp_f32 v{b+2+r}, v{b+2+r}')
    t(f'''s_nop 0
          v_cvt_pk_bf16_f32 v{SX+2}, v{SX+2}, v{SX+3}
          v_cvt_pk_bf16_f32 v{PM}, v{SM+2}, v{SM+3}
          v_cvt_pk_bf16_f32 v{PM+3}, v{SM+2}, v{SM+3}
          ds_write_b32 v{vG16}, v{SX+2} offset:{LP + 4*w}
          s_waitcnt lgkmcnt(0)
          s_barrier
          ds_read_b128 {vr(PX,4)}, v{vG16} offset:{LP}
          s_waitcnt lgkmcnt(0)
          v_mfma_f32_16x16x32_bf16 {vr(LL,4)}, {vr(ONES,4)}, {vr(PX,4)}, 0
          v_mfma_f32_16x16x32_bf16 {vr(OX,4)}, {vr(VX,4)}, {vr(PX,4)}, 0
          v_mfma_f32_16x16x32_bf16 {vr(OX+4,4)}, {vr(VX+4,4)}, {vr(PX,4)}, 0
          s_nop 7
          v_mfma_f32_16x16x16_bf16 {vr(LL,4)}, {vr(ONES,2)}, {vr(PM,2)}, {vr(LL,4)}
          v_mfma_f32_16x16x16_bf16 {vr(OX,4)}, {vr(AV,2)}, {vr(PM,2)}, {vr(OX,4)}
          v_mfma_f32_16x16x16_bf16 {vr(OX+4,4)}, {vr(AV,2)}, {vr(PM+2,2)}, {vr(OX+4,4)}
          s_nop 7
          v_rcp_f32 v{LL+2}, v{LL}
          s_mov_b64 vcc, 0
          s_branch L_ch_norm{T}''')
    return pre + step + resolve(tail)[0]

def role_chain(opts):
    fail = 'L_ch_fail'
    s = S(); setup(s, opts, fail)
    return resolve(s)[0] + body('F', opts, fail) + [f'{fail}:', 's_endpgm'] + body('S', opts, fail)
```

```python
from common import *

def dense_pairs(nks, rowbytes, dst, krow=lambda ks, jr: 32*ks + 2*jr):
    return [(krow(ks, jr) * rowbytes, dst(0, ks, jr), dst(1, ks, jr)) for ks in range(nks) for jr in range(4)]

def role_p(after, opts):
    s = S()
    fail = 'L_p_fail'
    sH, sU, sL, sS, sO, sT, sIN, sSTR, sFL, sC = 's32', 's33', 's34', 's35', 's36', 's37', 's38', 's39', 's40', 's41'
    sX = ['s42', 's43', 's44', 's45']
    sFO = 's46'; sFV = 's47'
    vL16, vXa, vLW, vLR, vFo, vFp, vFt, vA, vB = 1, 2, 3, 4, 5, 6, 7, 8, 9
    X, F, T, AF, aK, aV, aQ, PK = 16, 32, 64, 72, 88, 96, 104, 112
    WK = lambda t, ks, jr=0: ('a', 8*ks + 4*t + jr)
    WV = lambda t, ks, jr=0: ('a', 128 + 8*ks + 4*t + jr)
    WQ = lambda t, ks, jr=0: 128 + 8*ks + 4*t + jr
    s(f'''L_role_p:
    s_lshr_b32 s30, {sROLE}, 5
    s_sub_u32 s30, s30, 1
    s_lshl_b32 s30, s30, 3
    s_bfe_u32 s31, {sROLE}, 0x30001
    s_add_u32 {sH}, s30, s31
    s_and_b32 {sU}, {sROLE}, 1
    v_lshlrev_b32 v{vL16}, 4, v0
    v_lshrrev_b32 v10, 4, v0
    v_and_b32 v11, 15, v0
    v_lshlrev_b32 v{vA}, 16, v10
    v_lshl_add_u32 v{vA}, v11, 2, v{vA}
    s_lshl_b32 s30, {sH}, 8
    s_lshl_b32 s31, {sW}, 6
    s_add_u32 s30, s30, s31
    v_add_u32 v{vA}, s30, v{vA}
    v_add_u32 v{vB}, 0x2000, v{vA}
    ''')
    for key, dst in (('Wk', WK), ('Wv', WV), ('Wq', WQ)):
        set_srd(s, 16, key, 4*MB)
        load_pairs(s, dense_pairs(16, 8192, dst), vA, vB, 16, 64)
    set_srd(s, 12, 'x', 2*MB)
    stamp(s, opts, 0, 10)
    wait_init(s, 10, 11, fail)
    s(f'''
    v_lshrrev_b32 v10, 2, v0
    v_and_b32 v11, 3, v0
    s_lshl_b32 s30, {sW}, 6
    v_lshlrev_b32 v{vLW}, 8, v10
    v_lshl_add_u32 v{vLW}, v11, 4, v{vLW}
    v_add_u32 v{vLW}, s30, v{vLW}
    s_lshl_b32 s30, {sW}, 12
    v_lshlrev_b32 v{vXa}, 10, v11
    v_lshl_add_u32 v{vXa}, v10, 4, v{vXa}
    v_add_u32 v{vXa}, s30, v{vXa}
    v_mov_b32 v{vLR}, v{vL16}
    v_and_b32 v{vFo}, 7, v0
    v_lshlrev_b32 v{vFo}, 2, v{vFo}
    s_lshl_b32 s30, {sH}, 7
    s_lshl_b32 s31, {sU}, 4
    s_add_u32 s30, s30, s31
    s_lshl_b32 s31, {sW}, 2
    s_add_u32 s30, s30, s31
    s_add_u32 s30, s30, {F_P}
    v_mov_b32 v{vFp}, s30
    s_mov_b32 {sC}, {f32(128**-0.5 * LOG2E)}
    s_mov_b32 {sL}, 0
    s_lshl_b32 {sIN}, {sU}, 14
    s_mov_b32 {sSTR}, 256
    L_p_layer:
    s_mul_i32 {sO}, {sH}, 24
    s_lshl_b32 s30, {sU}, 2
    s_add_u32 {sO}, {sO}, s30
    s_add_u32 {sO}, {sO}, {sW}
    s_lshl_b32 {sO}, {sO}, 10
    s_mul_i32 s30, {sL}, {LSTR}
    s_add_u32 {sO}, {sO}, s30
    s_add_u32 {sO}, {sO}, {LB0 + O_QKV}
    s_lshl_b32 {sFV}, {sL}, 7
    s_mov_b32 {sS}, 0
    ''')
    def seg_offsets(t, k):
        t(f'''s_add_u32 s30, {sS}, {k}
              s_min_u32 s30, s30, 63
              s_lshl_b32 {sX[0]}, s30, 15
              s_add_u32 {sX[0]}, {sX[0]}, {sIN}
              s_add_u32 {sX[1]}, {sX[0]}, {sSTR}
              s_add_u32 {sX[2]}, {sX[1]}, {sSTR}
              s_add_u32 {sX[3]}, {sX[2]}, {sSTR}''')
    def flag_offset(t, k):
        t(f'''s_add_u32 s30, {sS}, {k}
              s_min_u32 s30, s30, 63
              s_lshl_b32 s30, s30, 1
              s_add_u32 s30, s30, {sU}
              s_lshl_b32 {sFO}, s30, 5
              s_add_u32 {sFO}, {sFO}, {F_O}''')
    def xloads(t):
        for i in range(4): t(f'buffer_load_dwordx4 v[{X+4*i}:{X+4*i+3}], v{vXa}, {XIN}, {sX[i]} offen sc1', 'x')
    def fill(f, k, slow, back, rest):
        f.W('vm', 'fl')
        f(f'v_cmp_gt_u32 vcc, {sL}, v{vFt}')
        ln_unpack(f, X, F)
        f(f's_cbranch_vccnz {slow}\n{back}:')
        seg_offsets(f, k); xloads(f); flag_offset(f, k + 1)
        f(f'buffer_load_dword v{vFt}, v{vFo}, {WS}, {sFO} offen sc1', 'fl')
        rest(f, F, T, vLW)
    flag_offset(s, 0); poll(s, vFo, sFO, vFt, sL, fail); seg_offsets(s, 0); xloads(s)
    flag_offset(s, 1)
    s(f'buffer_load_dword v{vFt}, v{vFo}, {WS}, {sFO} offen sc1', 'fl')
    fill(s, 1, 'L_p_slow0', 'L_p_back0', ln_rest)
    if opts.get('trace'): s(f's_add_u32 s69, {sL}, 1')
    stamp(s, opts, 's69', 10)
    s(f'buffer_load_dword v10, v{vFo}, {WS}, {sFO} offen sc1\nbuffer_load_dword v11, v{vFo}, {WS}, {sFO} offen sc1')
    pre, _ = resolve(s)
    m = S(); f = S()
    def rd(ks, tag): m(f'ds_read_b128 v[{AF+4*(ks%4)}:{AF+4*(ks%4)+3}], v{vLR} offset:{1024*(ks%16)}', tag)
    m(f'L_p_loop:\nv_xor_b32 v{vLW}, 0x4000, v{vLW}\ns_waitcnt lgkmcnt(0)\ns_barrier')
    rd(0, 'a0'); rd(1, 'a1'); rd(2, 'a2')
    for i in range(32):
        ks = i % 16
        if i + 3 < 32: pass
        m.W('ds', f'a{i}')
        a = vr(AF + 4*(i % 4), 4)
        if i < 16:
            for t in range(2): m(f'v_mfma_f32_16x16x32_bf16 {vr(aK+4*t,4)}, {R(WK(t,ks),4)}, {a}, {"0" if ks == 0 else vr(aK+4*t,4)}')
            if i + 3 < 32: rd(i + 3, f'a{i+3}')
            for t in range(2): m(f'v_mfma_f32_16x16x32_bf16 {vr(aV+4*t,4)}, {a}, {R(WV(t,ks),4)}, {"0" if ks == 0 else vr(aV+4*t,4)}')
        else:
            m(f'v_mfma_f32_16x16x32_bf16 {vr(aQ,4)}, {R(WQ(0,ks),4)}, {a}, {"0" if ks == 0 else vr(aQ,4)}')
            if i + 3 < 32: rd(i + 3, f'a{i+3}')
            m(f'v_mfma_f32_16x16x32_bf16 {vr(aQ+4,4)}, {R(WQ(1,ks),4)}, {a}, {"0" if ks == 0 else vr(aQ+4,4)}')
            if ks == 2:
                for r in range(4): m(f'v_cvt_pk_bf16_f32 v{PK+r}, v{aK+r}, v{aK+4+r}')
                m(f's_add_u32 s31, {sO}, 8192\nbuffer_store_dwordx4 v[{PK}:{PK+3}], v{vL16}, {WS}, s31 offen sc1', 'kv')
            if ks == 3:
                for r in range(4): m(f'v_cvt_pk_bf16_f32 v{PK+4+r}, v{aV+2*r}, v{aV+2*r+1}')
                m(f's_add_u32 s31, {sO}, 16384\nbuffer_store_dwordx4 v[{PK+4}:{PK+7}], v{vL16}, {WS}, s31 offen sc1', 'kv')
    fill(f, 2, 'L_p_slow', 'L_p_back', ln_rest_np)
    b = merge(m, f, per=lambda n: 3 if n % 3 == 0 else 2, start=4)
    b(f'v_xor_b32 v{vLR}, 0x4000, v{vLR}\ns_add_u32 {sFV}, {sFV}, 1\nv_mov_b32 v12, {sFV}\ns_nop 4')
    for r in range(8): b(f'v_mul_f32 v{aQ+r}, {sC}, v{aQ+r}')
    for r in range(4): b(f'v_cvt_pk_bf16_f32 v{PK+8+r}, v{aQ+r}, v{aQ+4+r}')
    b(f'buffer_store_dwordx4 v[{PK+8}:{PK+11}], v{vL16}, {WS}, {sO} offen sc1', 'q')
    b.W('vm', 'kv')
    b(f's_mov_b64 exec, 1\nbuffer_store_dword v12, v{vFp}, {WS}, 0 offen sc1\ns_mov_b64 exec, -1', 'flag')
    b(f'''s_add_u32 {sO}, {sO}, {24*32*1024}
          s_add_u32 {sS}, {sS}, 1
          s_cmp_lt_u32 {sS}, 64
          s_cbranch_scc1 L_p_loop''')
    body, q = resolve(b, pre_vm=['x']*4 + ['fl', 'q', 'flag'])
    e = S()
    if opts.get('trace'): e(f's_add_u32 s69, {sL}, 3')
    stamp(e, opts, 's69', 10)
    e(f'''s_add_u32 {sFV}, {sFV}, 1
          v_mov_b32 v10, {sFV}
          s_waitcnt vmcnt(0) lgkmcnt(0)
          s_mov_b64 exec, 1
          buffer_store_dword v10, v{vFp}, {WS}, 0 offen sc1
          s_mov_b64 exec, -1
          s_barrier
          s_cmp_eq_u32 {sL}, {opts.get('nl', 2) - 1}
          s_cbranch_scc1 {after}
          s_mov_b32 {sL}, 1
          s_mov_b32 s12, s8
          s_mov_b32 s13, s9
          s_mov_b32 s14, s10
          v_and_b32 v{vXa}, 0x3fff, v{vLW}
          s_add_u32 {sIN}, {sIN}, {LB0 + O_X2}
          s_mov_b32 {sSTR}, 4096
          s_branch L_p_layer
          L_p_slow:''')
    poll(e, vFo, sFO, vFt, sL, fail)
    e('s_branch L_p_back\nL_p_slow0:')
    poll(e, vFo, sFO, vFt, sL, fail)
    e(f's_branch L_p_back0\n{fail}:\ns_endpgm')
    return pre + body + resolve(e)[0]
```

```python
from common import *
from role_p import dense_pairs

def rep_rank(s, sR, sI, base):
    s(f's_lshr_b32 {sR}, {sROLE}, 5\ns_sub_u32 {sR}, {sR}, 5\ns_and_b32 {sI}, {sROLE}, 31\ns_sub_u32 {sI}, {sI}, {base}')
def layer_base(s, sHS, sLB, sHL):
    s(f's_lshr_b32 s30, {sHS}, 7\ns_mul_i32 {sLB}, s30, {LSTR}\ns_add_u32 {sLB}, {sLB}, {LB0}\ns_and_b32 {sHL}, {sHS}, 127')
def flag(s, vval, val, vzero, soff):
    s(f'v_mov_b32 v{vval}, {val}\ns_mov_b64 exec, 1\nbuffer_store_dword v{vval}, v{vzero}, {WS}, {soff} offen sc1\ns_mov_b64 exec, -1')
def tstamp(s, opts, sHS, vt, k=0):
    if opts.get('trace'):
        s(f's_mul_i32 s69, {sHS}, 21846\ns_lshr_b32 s69, s69, 16\ns_add_u32 s69, s69, 2'); stamp(s, opts, 's69', vt)

def role_x2(opts):
    s = S(); fail = 'L_x2_fail'
    sR, sNB, sHS, sLB, sHL, sO, sT, sFI, sFO, sX = [f's{i}' for i in range(32, 42)]
    vL16, vF, vFt, vA, vB, vRes, vLW, vLR = range(1, 9)
    AC, RS, PT, OB = 12, 20, 24, 128
    s('L_role_x2:'); rep_rank(s, sR, sNB, 0)
    s(f'''v_lshlrev_b32 v{vL16}, 4, v0
    v_lshrrev_b32 v10, 4, v0
    v_and_b32 v11, 15, v0
    v_lshlrev_b32 v{vA}, 13, v10
    v_lshl_add_u32 v{vA}, v11, 2, v{vA}
    s_lshl_b32 s30, {sW}, 20
    s_lshl_b32 s31, {sNB}, 6
    s_add_u32 s30, s30, s31
    v_add_u32 v{vA}, s30, v{vA}
    v_add_u32 v{vB}, 0x400, v{vA}
    v_lshlrev_b32 v{vRes}, 10, v11
    v_lshl_add_u32 v{vRes}, v10, 4, v{vRes}
    v_add_u32 v{vRes}, s31, v{vRes}
    s_lshl_b32 s30, {sW}, 11
    v_add_u32 v{vLW}, s30, v{vL16}
    v_mov_b32 v{vLR}, v{vL16}
    v_and_b32 v{vF}, 7, v0
    v_lshlrev_b32 v{vF}, 2, v{vF}
    s_lshl_b32 s30, {sR}, 7
    s_lshl_b32 s31, {sW}, 5
    s_add_u32 {sFI}, s30, s31
    s_add_u32 {sFI}, {sFI}, {F_X1}
    s_lshl_b32 s31, {sNB}, 2
    s_add_u32 {sFO}, s30, s31
    s_add_u32 {sFO}, {sFO}, {F_X2}
    s_mov_b32 {sHS}, {sR}''')
    set_srd(s, 16, 'Wo', 4*MB)
    load_pairs(s, dense_pairs(32, 1024, lambda t, ks, jr: ('a', 8*ks + 4*t + jr)), vA, vB, 16, 64)
    set_srd(s, 12, 'x', 2*MB)
    wait_init(s, 10, 11, fail)
    s('L_x2_loop:'); layer_base(s, sHS, sLB, sHL)
    s(f'''s_lshl_b32 {sO}, {sHL}, 17
    s_lshl_b32 s30, {sW}, 15
    s_add_u32 {sO}, {sO}, s30
    s_add_u32 {sO}, {sO}, {sLB}
    s_add_u32 {sO}, {sO}, {O_O}
    s_add_u32 {sT}, {sHS}, 1
    s_lshl_b32 {sX}, {sHL}, 14''')
    poll(s, vF, sFI, vFt, sT, fail)
    for ks in range(32):
        s(f'buffer_load_dwordx4 {vr(OB+4*ks,4)}, v{vL16}, {WS}, {sO} offen offset:{1024*(ks & 3)} sc1', f'o{ks}')
        if ks & 3 == 3: s(f's_add_u32 {sO}, {sO}, 4096')
    s(f'''s_cmp_ge_u32 {sHS}, 128
    s_cbranch_scc1 L_x2_r1
    buffer_load_dwordx4 {vr(RS,4)}, v{vRes}, {XIN}, {sX} offen
    s_branch L_x2_r2
    L_x2_r1:
    s_lshl_b32 s30, {sNB}, 10
    s_add_u32 s30, s30, {sX}
    s_add_u32 s30, s30, {LB0 + O_X2}''')
    s.append(Op(f'buffer_load_dwordx4 {vr(RS,4)}, v{vL16}, {WS}, s30 offen sc1'))
    s('L_x2_r2:')
    for ks in range(32):
        s.W('vm', f'o{ks}')
        for t in range(2): s(f'v_mfma_f32_16x16x32_bf16 {vr(AC+4*t,4)}, a[{8*ks+4*t}:{8*ks+4*t+3}], {vr(OB+4*ks,4)}, {"0" if ks == 0 else vr(AC+4*t,4)}')
    s(f'''s_nop 7
    ds_write_b128 v{vLW}, {vr(AC,4)}
    ds_write_b128 v{vLW}, {vr(AC+4,4)} offset:1024
    s_waitcnt lgkmcnt(0)
    s_barrier
    s_cmp_lg_u32 {sW}, 0
    s_cbranch_scc1 L_x2_next''')
    for i in range(6): s(f'ds_read_b128 {vr(PT+4*i,4)}, v{vLR} offset:{2048 + 1024*i}', f'p{i}')
    s('s_waitcnt vmcnt(0)')
    for r in range(4):
        s(f'v_lshlrev_b32 v10, 16, v{RS+r}\nv_and_b32 v11, 0xffff0000, v{RS+r}\nv_add_f32 v{AC+r}, v{AC+r}, v10\nv_add_f32 v{AC+4+r}, v{AC+4+r}, v11')
    for i in range(6):
        s.W('ds', f'p{i}')
        for r in (0, 2): s(f'v_pk_add_f32 {vr(AC+4*(i&1)+r,2)}, {vr(AC+4*(i&1)+r,2)}, {vr(PT+4*i+r,2)}')
    for r in range(4): s(f'v_cvt_pk_bf16_f32 v{RS+r}, v{AC+r}, v{AC+4+r}')
    s(f'''s_lshl_b32 s30, {sNB}, 10
    s_add_u32 s30, s30, {sX}
    s_add_u32 s30, s30, {sLB}
    s_add_u32 s30, s30, {O_X1}
    buffer_store_dwordx4 {vr(RS,4)}, v{vL16}, {WS}, s30 offen sc1
    s_waitcnt vmcnt(0)''')
    flag(s, 10, sT, vF, sFO); tstamp(s, opts, sHS, 10)
    s(f'''L_x2_next:
    v_xor_b32 v{vLW}, 0x2000, v{vLW}
    v_xor_b32 v{vLR}, 0x2000, v{vLR}
    s_add_u32 {sHS}, {sHS}, 3
    s_cmp_lt_u32 {sHS}, {128*opts.get('nl', 2)}
    s_cbranch_scc1 L_x2_loop
    {fail}:
    s_endpgm''')
    return resolve(s)[0]

def role_x3(opts):
    s = S(); fail = 'L_x3_fail'
    sR, sNB, sHS, sLB, sHL, sO, sT, sFI, sFO, sH, sC = [f's{i}' for i in range(32, 43)]
    sX = ['s44', 's45', 's46', 's47']
    vF, vFt, vA, vB, vLW, vLR, vXa, vQK, vV = range(1, 10)
    X, F, T, AF, AC = 16, 32, 64, 72, 88
    s('L_role_x3:'); rep_rank(s, sR, sNB, 16)
    s(f'''s_lshl_b32 {sH}, {sNB}, 2
    s_add_u32 {sH}, {sH}, {sW}
    v_lshrrev_b32 v10, 4, v0
    v_and_b32 v11, 15, v0
    v_mul_u32_u24 v{vA}, {8*3072}, v10
    v_lshl_add_u32 v{vA}, v11, 1, v{vA}
    s_lshl_b32 s30, {sH}, 5
    v_add_u32 v{vA}, s30, v{vA}
    v_lshrrev_b32 v12, 1, v10
    v_and_b32 v13, 1, v10
    v_lshlrev_b32 v14, 4, v11
    v_lshl_add_u32 v14, v13, 3, v14
    v_lshl_add_u32 v{vQK}, v12, 9, v14
    v_lshl_add_u32 v{vV}, v12, 8, v14
    v_lshlrev_b32 v{vF}, 2, v11
    v_lshrrev_b32 v10, 2, v0
    v_and_b32 v11, 3, v0
    s_lshl_b32 s30, {sW}, 6
    v_lshlrev_b32 v{vLW}, 8, v10
    v_lshl_add_u32 v{vLW}, v11, 4, v{vLW}
    v_add_u32 v{vLW}, s30, v{vLW}
    v_mov_b32 v{vXa}, v{vLW}
    v_lshlrev_b32 v{vLR}, 4, v0
    s_lshl_b32 {sFI}, {sR}, 7
    s_add_u32 {sFI}, {sFI}, {F_X2}
    s_lshl_b32 {sFO}, {sH}, 7
    s_lshl_b32 s30, {sR}, 2
    s_add_u32 {sFO}, {sFO}, s30
    s_add_u32 {sFO}, {sFO}, {F_X3}
    s_mov_b32 {sC}, {f32(0.25 * LOG2E)}
    s_mov_b32 {sHS}, {sR}''')
    set_srd(s, 16, 'wqkv', 512*3072)
    items = [((32*ks + 2*jr)*3072 + 1024*m, 64*m + 4*ks + jr) for m in range(3) for ks in range(16) for jr in range(4)]
    D = 30
    def issue(i):
        b = 16 + 2*(i % D)
        s(f's_mov_b32 s30, {items[i][0]}\nbuffer_load_ushort v{b}, v{vA}, {WSR}, s30 offen\nbuffer_load_ushort v{b+1}, v{vA}, {WSR}, s30 offen offset:3072')
    for i in range(D): issue(i)
    for i in range(len(items)):
        b = 16 + 2*(i % D)
        s(f's_waitcnt vmcnt({2*(min(len(items), i+D) - i - 1)})\nv_perm_b32 v10, v{b+1}, v{b}, {sSEL0}\nv_accvgpr_write_b32 a{items[i][1]}, v10')
        if i + D < len(items): issue(i + D)
    wait_init(s, 10, 11, fail)
    s('L_x3_loop:'); layer_base(s, sHS, sLB, sHL)
    s(f'''s_lshl_b32 {sX[0]}, {sHL}, 14
    s_add_u32 {sX[0]}, {sX[0]}, {sLB}
    s_add_u32 {sX[0]}, {sX[0]}, {O_X1}
    s_add_u32 {sX[1]}, {sX[0]}, 4096
    s_add_u32 {sX[2]}, {sX[1]}, 4096
    s_add_u32 {sX[3]}, {sX[2]}, 4096
    s_add_u32 {sT}, {sHS}, 1
    s_mul_i32 {sO}, {sH}, {3*65536}
    s_add_u32 {sO}, {sO}, {sLB}
    s_add_u32 {sO}, {sO}, {O_BQ}
    s_lshr_b32 s30, {sHL}, 1
    s_lshl_b32 s30, s30, 10
    s_add_u32 {sO}, {sO}, s30''')
    poll(s, vF, sFI, vFt, sT, fail)
    for i in range(4): s(f'buffer_load_dwordx4 {vr(X+4*i,4)}, v{vXa}, {WS}, {sX[i]} offen sc1')
    s(f'''s_and_b32 s31, {sHL}, 1
    s_lshl_b32 s30, s31, 8
    s_add_u32 {sX[0]}, {sO}, s30
    s_add_u32 {sX[1]}, {sX[0]}, 65536
    s_add_u32 {sX[2]}, {sX[1]}, 65536
    s_add_u32 {sX[2]}, {sX[2]}, s30
    s_waitcnt vmcnt(0)''')
    ln_unpack(s, X, F); ln_rest(s, F, T, vLW)
    s('s_waitcnt lgkmcnt(0)\ns_barrier')
    def rd(ks): s(f'ds_read_b128 {vr(AF+4*(ks%4),4)}, v{vLR} offset:{1024*ks}', f'a{ks}')
    rd(0); rd(1); rd(2)
    for ks in range(16):
        s.W('ds', f'a{ks}'); a = vr(AF+4*(ks%4), 4)
        for m in range(3):
            wv = f'a[{64*m+4*ks}:{64*m+4*ks+3}]'; c = "0" if ks == 0 else vr(AC+4*m, 4)
            s(f'v_mfma_f32_16x16x32_bf16 {vr(AC+4*m,4)}, {wv if m < 2 else a}, {a if m < 2 else wv}, {c}')
            if m == 0 and ks + 3 < 16: rd(ks + 3)
    s(f'v_xor_b32 v{vLW}, 0x4000, v{vLW}\nv_xor_b32 v{vLR}, 0x4000, v{vLR}\ns_nop 3')
    for r in range(4): s(f'v_mul_f32 v{AC+r}, {sC}, v{AC+r}')
    for m in range(3):
        s(f'v_cvt_pk_bf16_f32 v{AC+4*m}, v{AC+4*m}, v{AC+4*m+1}\nv_cvt_pk_bf16_f32 v{AC+4*m+1}, v{AC+4*m+2}, v{AC+4*m+3}')
        s(f'buffer_store_dwordx2 {vr(AC+4*m,2)}, v{vQK if m < 2 else vV}, {WS}, {sX[m]} offen sc1')
    s('s_waitcnt vmcnt(0)')
    flag(s, 10, sT, vF, sFO); tstamp(s, opts, sHS, 10)
    s(f'''s_add_u32 {sHS}, {sHS}, 3
    s_cmp_lt_u32 {sHS}, {128*opts.get('nl', 2)}
    s_cbranch_scc1 L_x3_loop
    {fail}:
    s_endpgm''')
    return resolve(s)[0]

sBI, sBN, sBC, sBL = 's60', 's61', 's62', 's63'
def load_wo(s):
    s(f'''v_lshrrev_b32 v10, 4, v0
    v_and_b32 v11, 15, v0
    v_lshrrev_b32 v12, 1, v10
    v_and_b32 v13, 1, v10
    v_lshlrev_b32 v14, 14, v12
    v_lshl_add_u32 v14, v13, 12, v14
    v_lshl_add_u32 v14, v11, 2, v14
    s_lshl_b32 s30, {sBC}, 9
    s_lshl_b32 s31, {sW}, 7
    s_add_u32 s30, s30, s31
    v_add_u32 v14, s30, v14
    v_add_u32 v15, 0x400, v14''')
    set_srd(s, 16, 'wo', 512*1024)
    pairs = [((32*ks + 8*(jr >> 1) + 2*(jr & 1))*1024 + 64*p, ('a', 16*ks + 8*p + jr), ('a', 16*ks + 8*p + 4 + jr)) for ks in range(16) for p in range(2) for jr in range(4)]
    load_pairs(s, pairs, 14, 15, 16, 64)

def role_bo(opts):
    s = S(); fail = 'L_bo_fail'
    sHS, sLB, sA, sX, sT, sF, sM = 's64', 's65', 's66', 's67', 's68', 's70', 's71'
    vL16, vF, vFt, vLR, vOut = 240, 241, 242, 243, 244
    AF, AC, RS = 200, 216, 232
    s(f'''L_bo_p:
    s_and_b32 {sBC}, {sROLE}, 1
    s_lshr_b32 s30, {sROLE}, 5
    s_sub_u32 s30, s30, 1
    s_lshl_b32 s30, s30, 3
    s_bfe_u32 s31, {sROLE}, 0x30001
    s_add_u32 {sBI}, s30, s31
    s_add_u32 {sBI}, {sBI}, 12
    s_mov_b32 {sBL}, 1''')
    load_wo(s)
    s(f'''L_bo:
    s_cmp_eq_u32 {sBL}, 0
    s_cselect_b32 {sBN}, 12, 44
    v_lshlrev_b32 v{vL16}, 4, v0
    v_mov_b32 v{vLR}, v{vL16}
    v_and_b32 v{vF}, 31, v0
    v_lshlrev_b32 v{vF}, 2, v{vF}
    v_lshrrev_b32 v{vFt}, 4, v0
    v_and_b32 v{vOut}, 15, v0
    v_lshlrev_b32 v{vOut}, 10, v{vOut}
    v_lshl_add_u32 v{vOut}, v{vFt}, 4, v{vOut}
    s_mul_i32 {sLB}, {sBL}, {LSTR}
    s_add_u32 {sLB}, {sLB}, {LB0}
    s_add_u32 {sT}, {sBL}, 1
    s_lshl_b32 {sM}, {sW}, 12
    s_mov_b32 {sHS}, {sBI}''')
    set_srd(s, 20, 'out', 2*MB)
    s(f'''L_bo_loop:
    s_lshr_b32 {sF}, {sHS}, 1
    s_lshl_b32 {sF}, {sF}, 7
    s_add_u32 {sF}, {sF}, {F_B}
    s_lshl_b32 s30, {sHS}, 14
    s_add_u32 s30, s30, {sLB}
    s_lshl_b32 s31, {sW}, 12
    s_add_u32 {sA}, s30, s31
    s_add_u32 {sA}, {sA}, {O_OB}
    s_lshl_b32 s31, {sBC}, 13
    s_add_u32 {sX}, s30, s31
    s_lshl_b32 s31, {sW}, 11
    s_add_u32 {sX}, {sX}, s31''')
    poll(s, vF, sF, vFt, sT, fail)
    s(f's_mov_b32 m0, {sM}\ns_add_u32 s30, {sX}, {O_X1}')
    for i in range(4): s(f'buffer_load_dwordx4 v{vL16}, {WS}, {sA} offen offset:{1024*i} sc1 lds')
    for p in range(2): s(f'buffer_load_dwordx4 {vr(RS+4*p,4)}, v{vL16}, {WS}, s30 offen offset:{1024*p} sc1')
    s('s_waitcnt vmcnt(2)\ns_barrier')
    def rd(ks): s(f'ds_read_b128 {vr(AF+4*(ks%4),4)}, v{vLR} offset:{1024*ks}', f'a{ks}')
    rd(0); rd(1); rd(2)
    for ks in range(16):
        s.W('ds', f'a{ks}')
        for t in range(4):
            s(f'v_mfma_f32_16x16x32_bf16 {vr(AC+4*t,4)}, a[{16*ks+4*t}:{16*ks+4*t+3}], {vr(AF+4*(ks%4),4)}, {"0" if ks == 0 else vr(AC+4*t,4)}')
            if t == 0 and ks + 3 < 16: rd(ks + 3)
    s(f'v_xor_b32 v{vLR}, 0x4000, v{vLR}\ns_xor_b32 {sM}, {sM}, 0x4000\ns_waitcnt vmcnt(0)\ns_nop 2')
    for p in range(2):
        for r in range(4):
            a0, a1, x = AC+8*p+r, AC+8*p+4+r, RS+4*p+r
            s(f'v_lshlrev_b32 v{AF}, 16, v{x}\nv_and_b32 v{AF+1}, 0xffff0000, v{x}\nv_add_f32 v{a0}, v{a0}, v{AF}\nv_add_f32 v{a1}, v{a1}, v{AF+1}\nv_cvt_pk_bf16_f32 v{x}, v{a0}, v{a1}')
    s(f'''s_cmp_eq_u32 {sBL}, 0
    s_cbranch_scc1 L_bo_mid
    s_lshl_b32 s30, {sHS}, 14
    s_lshl_b32 s31, {sBC}, 9
    s_add_u32 s30, s30, s31
    s_lshl_b32 s31, {sW}, 7
    s_add_u32 s30, s30, s31
    buffer_store_dwordx4 {vr(RS,4)}, v{vOut}, {OUT}, s30 offen
    buffer_store_dwordx4 {vr(RS+4,4)}, v{vOut}, {OUT}, s30 offen offset:64
    s_branch L_bo_next
    L_bo_mid:
    s_add_u32 s30, {sX}, {O_X2}
    buffer_store_dwordx4 {vr(RS,4)}, v{vL16}, {WS}, s30 offen sc1
    buffer_store_dwordx4 {vr(RS+4,4)}, v{vL16}, {WS}, s30 offen offset:1024 sc1
    s_lshl_b32 s30, {sHS}, 5
    s_lshl_b32 s31, {sBC}, 4
    s_add_u32 s30, s30, s31
    s_lshl_b32 s31, {sW}, 2
    s_add_u32 s30, s30, s31
    s_add_u32 s30, s30, {F_O}
    s_waitcnt vmcnt(0)''')
    flag(s, AF, 1, vF, 's30')
    s('L_bo_next:')
    if opts.get('trace'):
        s(f's_cmp_eq_u32 {sHS}, {sBI}\ns_cselect_b32 s69, 0, 1\ns_add_u32 s69, s69, 100\ns_lshl_b32 s30, {sBL}, 1\ns_add_u32 s69, s69, s30'); stamp(s, opts, 's69', AF)
    s(f'''s_add_u32 {sHS}, {sHS}, {sBN}
    s_cmp_lt_u32 {sHS}, 128
    s_cbranch_scc1 L_bo_loop
    s_cmp_lt_u32 {sBL}, {opts.get('nl', 2) - 1}
    s_cbranch_scc0 {fail}
    s_mov_b32 {sBL}, 1
    s_branch L_x1_layer
    {fail}:
    s_endpgm''')
    return resolve(s)[0]

def role_x1(with_bo, opts):
    s = S(); fail = 'L_x1_fail'
    sR, sJ, sHS, sLB, sHL, sH, sQ, sKM, sO, sT, sFP, sFC, sFO, sPT, sCT, sEND, sPF = [f's{i}' for i in range(32, 49)]
    MK = [f's[{50+2*r}:{51+2*r}]' for r in range(4)]
    vL16, vL8, vF, vZ, vFt, vFP, vKM, vNEG = range(1, 9)
    Q = [16, 32]; V = [48, 80]; K = 112; KM = 144; VM = 160; SD, SP, SMm = 168, 172, 176; PB, PMm = 180, 184; AC = 192; TT = 10
    s('L_role_x1:'); rep_rank(s, sR, sJ, 24)
    s(f'''s_lshl_b32 {sH}, {sJ}, 2
    s_add_u32 {sH}, {sH}, {sW}
    s_lshl_b32 s30, {sR}, 3
    s_add_u32 s30, s30, {sJ}
    s_and_b32 {sBC}, s30, 1
    s_lshr_b32 {sBI}, s30, 1
    s_mov_b32 {sBL}, 0''')
    if with_bo: load_wo(s)
    wait_init(s, 10, 11, fail)
    s(f'''v_lshlrev_b32 v{vL16}, 4, v0
    v_lshlrev_b32 v{vL8}, 3, v0
    v_and_b32 v{vF}, 7, v0
    v_lshlrev_b32 v{vF}, 2, v{vF}
    v_mov_b32 v{vZ}, 0
    v_mov_b32 v{vNEG}, {f32(-1e30)}
    v_lshrrev_b32 v10, 4, v0
    v_and_b32 v11, 15, v0
    v_lshrrev_b32 v12, 1, v10
    v_and_b32 v13, 1, v10
    v_lshrrev_b32 v14, 2, v11
    v_and_b32 v15, 1, v11
    v_lshlrev_b32 v{vKM}, 8, v12
    v_lshl_add_u32 v{vKM}, v13, 5, v{vKM}
    v_lshl_add_u32 v{vKM}, v14, 6, v{vKM}
    v_lshl_add_u32 v{vKM}, v15, 4, v{vKM}
    v_lshlrev_b32 v10, 2, v10''')
    for r in range(4): s(f'v_add_u32 v12, {r}, v10\nv_cmp_le_u32 {MK[r]}, v12, v11')
    s(f'''s_lshl_b32 s30, {sH}, 7
    s_add_u32 {sFP}, s30, {F_P}
    s_add_u32 {sFC}, s30, {F_C}
    s_lshl_b32 s30, {sR}, 7
    s_lshl_b32 s31, {sH}, 2
    s_add_u32 {sFO}, s30, s31
    s_add_u32 {sFO}, {sFO}, {F_X1}
    s_mov_b32 {sHS}, {sR}
    L_x1_layer:
    v_mov_b32 v{PMm+1}, 0
    v_mov_b32 v{PMm+2}, 0
    s_and_b32 {sEND}, {sHS}, 128
    s_add_u32 {sEND}, {sEND}, 128''')
    def qaddr(t, hs):
        t(f'''s_lshr_b32 s30, {hs}, 7
              s_mul_i32 {sQ}, s30, {LSTR}
              s_lshl_b32 {sPT}, s30, 7
              s_bfe_u32 s30, {hs}, 0x60001
              s_add_u32 {sPT}, {sPT}, s30
              s_add_u32 {sPT}, {sPT}, 2
              s_lshl_b32 s30, s30, 5
              s_add_u32 s30, s30, {sH}
              s_mul_i32 s30, s30, {24*1024}
              s_add_u32 {sQ}, {sQ}, s30
              s_add_u32 {sQ}, {sQ}, {LB0 + O_QKV}''')
    def loads(t, u):
        def four(reg, off, step=4):
            t(f's_add_u32 s30, {sQ}, {off}')
            for i in range(4): t(f'buffer_load_dwordx4 {vr(reg+step*i,4)}, v{vL16}, {WS}, s30 offen offset:{1024*i} sc1', 'pf')
        four(Q[u], 4096*u); four(K, 8192 + 4096*u)
        if u: four(K+16, 8192); four(V[u], 16384, 8); four(V[u]+4, 16384 + 4096, 8)
        else: four(V[u], 16384)
    s('L_x1_pro:'); qaddr(s, sHS); poll(s, vF, sFP, vFP, sPT, fail)
    s(f's_bitcmp1_b32 {sHS}, 0\ns_cbranch_scc1 L_x1_pro1')
    loads(s, 0); s('s_waitcnt vmcnt(0)\ns_branch L_x1_task0\nL_x1_pro1:'); loads(s, 1); s('s_waitcnt vmcnt(0)\ns_branch L_x1_task1')
    out = resolve(s)[0]
    for u in range(2):
        s = S()
        s(f'L_x1_task{u}:')
        for ks in range(4):
            s(f'v_mfma_f32_16x16x32_bf16 {vr(SD,4)}, {vr(K+4*ks,4)}, {vr(Q[u]+4*ks,4)}, {"0" if ks == 0 else vr(SD,4)}')
            if u:
                s(f'v_mfma_f32_16x16x32_bf16 {vr(SP,4)}, {vr(K+16+4*ks,4)}, {vr(Q[u]+4*ks,4)}, {"0" if ks == 0 else vr(SP,4)}')
                s(f'v_swap_b32 v{V[u]+8*ks+2}, v{V[u]+8*ks+4}\nv_swap_b32 v{V[u]+8*ks+3}, v{V[u]+8*ks+5}')
        layer_base(s, sHS, sLB, sHL)
        s(f'''s_lshr_b32 {sCT}, {sHS}, 1
        s_add_u32 {sCT}, {sCT}, 1
        s_lshr_b32 s30, {sHL}, 1
        s_lshl_b32 s30, s30, 5
        s_add_u32 s30, s30, {sH}
        s_lshl_b32 {sKM}, s30, 12
        s_add_u32 {sKM}, {sKM}, {sLB}
        s_add_u32 {sKM}, {sKM}, {O_KVM}
        s_lshl_b32 {sO}, {sHL}, 17
        s_lshl_b32 s30, {sH}, 12
        s_add_u32 {sO}, {sO}, s30
        s_add_u32 {sO}, {sO}, {sLB}
        s_add_u32 {sO}, {sO}, {O_O}
        s_add_u32 {sT}, {sHS}, 1
        s_add_u32 {sHS}, {sHS}, 3''')
        qaddr(s, sHS)
        for r in range(4): s(f'v_cndmask_b32 v{SD+r}, v{vNEG}, v{SD+r}, {MK[r]}')
        m = TT
        s(f'v_max3_f32 v{m}, v{SD}, v{SD+1}, v{SD+2}\nv_max_f32 v{m}, v{m}, v{SD+3}')
        if u: s(f'v_max3_f32 v{m}, v{m}, v{SP}, v{SP+1}\nv_max3_f32 v{m}, v{m}, v{SP+2}, v{SP+3}')
        s(f'buffer_load_dword v{vFP}, v{vF}, {WS}, {sFP} offen sc1')
        poll(s, vZ, sFC, vFt, sCT, fail)
        for ks in range(4): s(f'buffer_load_dwordx4 {vr(KM+4*ks,4)}, v{vKM}, {WS}, {sKM} offen offset:{512*ks} sc1', f'km{ks}')
        for i in range(4): s(f'buffer_load_dwordx2 {vr(VM+2*i,2)}, v{vL8}, {WS}, {sKM} offen offset:{2048 + 512*i} sc1', 'vm')
        s(f'''v_cmp_gt_u32 vcc, {sPT}, v{vFP}
        s_mov_b32 {sPF}, 1
        s_cmp_lt_u32 {sHS}, {sEND}
        s_cbranch_scc0 L_x1_nopf{u}
        s_cbranch_vccnz L_x1_nopf{u}''')
        loads(s, 1 - u)
        s(f'L_x1_go{u}:')
        for ks in range(4):
            s.W('vm', f'km{ks}')
            s(f'v_mfma_f32_16x16x32_bf16 {vr(SMm,4)}, {vr(KM+4*ks,4)}, {vr(Q[u]+4*ks,4)}, {"0" if ks == 0 else vr(SMm,4)}')
        s(f's_nop 7\nv_max3_f32 v{m}, v{m}, v{SMm}, v{SMm+1}')
        xreduce(s, m, m+1, 'v_max_f32', dpp=())
        regs = [SMm, SMm+1] + list(range(SD, SD+4)) + (list(range(SP, SP+4)) if u else [])
        for r in regs: s(f'v_sub_f32 v{r}, v{r}, v{m}')
        for r in regs: s(f'v_exp_f32 v{r}, v{r}')
        s(f'v_cvt_pk_bf16_f32 v{PMm}, v{SMm}, v{SMm+1}\nv_cvt_pk_bf16_f32 v{PMm+3}, v{SMm}, v{SMm+1}')
        s(f'v_cvt_pk_bf16_f32 v{PB+2}, v{SD}, v{SD+1}\nv_cvt_pk_bf16_f32 v{PB+3}, v{SD+2}, v{SD+3}')
        if u: s(f'v_cvt_pk_bf16_f32 v{PB}, v{SP}, v{SP+1}\nv_cvt_pk_bf16_f32 v{PB+1}, v{SP+2}, v{SP+3}')
        s.W('vm', 'vm'); s('s_nop 0')
        mm = S(); f = S()
        for i in range(8):
            if u: mm(f'v_mfma_f32_16x16x32_bf16 {vr(AC+4*i,4)}, {vr(V[u]+4*i,4)}, {vr(PB,4)}, 0')
            else: mm(f'v_mfma_f32_16x16x16_bf16 {vr(AC+4*i,4)}, {vr(V[u]+2*i,2)}, {vr(PB+2,2)}, 0')
        for i in range(8):
            mm(f'v_mfma_f32_16x16x16_bf16 {vr(AC+4*i,4)}, {vr(VM+2*(i>>1),2)}, {vr(PMm+2*(i&1),2)}, {vr(AC+4*i,4)}')
        f(f'v_add_f32 v{m}, v{regs[0]}, v{regs[1]}')
        for r in regs[2:]: f(f'v_add_f32 v{m}, v{m}, v{r}')
        xreduce(f, m, m+1, 'v_add_f32', dpp=())
        f(f'v_rcp_f32 v{m}, v{m}')
        s.extend(merge(mm, f, 2))
        for b in range(4):
            if b == 0: s('s_nop 1')
            for r in range(8): s(f'v_mul_f32 v{AC+8*b+r}, v{m}, v{AC+8*b+r}')
            for r in range(4): s(f'v_cvt_pk_bf16_f32 v{AC+8*b+r}, v{AC+8*b+r}, v{AC+8*b+4+r}')
            s(f'buffer_store_dwordx4 {vr(AC+8*b,4)}, v{vL16}, {WS}, {sO} offen offset:{1024*b} sc1')
        s('s_waitcnt vmcnt(0)')
        flag(s, TT, sT, vZ, sFO)
        if opts.get('trace'): s(f's_sub_u32 s31, {sHS}, 3'); tstamp(s, opts, 's31', TT)
        s(f'''s_cmp_eq_u32 {sPF}, 1
        s_cbranch_scc1 L_x1_task{1-u}
        s_cmp_lt_u32 {sHS}, {sEND}
        s_cbranch_scc1 L_x1_pro
        s_branch {"L_bo" if with_bo else fail}
        L_x1_nopf{u}:
        s_mov_b32 {sPF}, 0''')
        s.append(Op('s_waitcnt vmcnt(0)')); s(f's_branch L_x1_go{u}')
        out += resolve(s)[0]
    return out + [f'{fail}:', 's_endpgm']
```

```python
import sys
from common import *
import role_p
def build(roles=('p',), opts=None):
    opts = opts or {}
    s = S(); prologue(s)
    def go(cond, name):
        l = L('d'); s(f'{cond}\ns_cbranch_scc0 {l}\ns_branch {"L_role_" + name if name in roles else "L_exit"}\n{l}:')
    go(f's_cmp_lt_u32 {sROLE}, 32', 'chain')
    s(f's_and_b32 s30, {sROLE}, 31')
    l = L('d'); s(f's_cmp_lt_u32 {sROLE}, 160\ns_cbranch_scc0 {l}')
    go('s_cmp_lt_u32 s30, 16', 'p')
    s(f's_branch {"L_role_batt" if "batt" in roles else "L_exit"}\n{l}:')
    go('s_cmp_lt_u32 s30, 16', 'x2')
    go('s_cmp_lt_u32 s30, 24', 'x3')
    s(f's_branch {"L_role_x1" if "x1" in roles else "L_exit"}')
    lines = resolve(s)[0]
    if 'chain' in roles:
        import role_chain; lines += role_chain.role_chain(opts)
    if 'p' in roles: lines += role_p.role_p('L_bo_p' if 'bo' in roles and opts.get('nl', 2) == 2 else 'L_p_fail', opts)
    if 'x1' in roles:
        import role_x; lines += role_x.role_x1('bo' in roles, opts)
    if 'bo' in roles:
        import role_x; lines += role_x.role_bo(opts)
    if 'x2' in roles:
        import role_x; lines += role_x.role_x2(opts)
    if 'x3' in roles:
        import role_x; lines += role_x.role_x3(opts)
    if 'batt' in roles:
        import role_b; lines += role_b.role_batt(opts)
    ref = open(f'cdna_kernels/{NAME}.s.ref').read().split('\n')
    head = [x for x in ref[:ref.index('.text')] if x.startswith(';') and '@launch' not in x]
    body = '\n'.join(x if x.endswith(':') else '    ' + x for x in lines)
    return '\n'.join(head) + f'''
; @launch grid=(256,1,1) block=(256,1,1) lds=163840
.amdgcn_target "amdgcn-amd-amdhsa--gfx950"
.text
.globl {NAME}_kernel
.p2align 8
.type {NAME}_kernel,@function
{NAME}_kernel:
{body}
    s_endpgm
.section .rodata,"a"
.p2align 6
.amdhsa_kernel {NAME}_kernel
  .amdhsa_next_free_vgpr 512
  .amdhsa_next_free_sgpr 102
  .amdhsa_accum_offset 256
  .amdhsa_group_segment_fixed_size 0
  .amdhsa_kernarg_size 104
  .amdhsa_user_sgpr_count 2
  .amdhsa_user_sgpr_kernarg_segment_ptr 1
  .amdhsa_system_sgpr_workgroup_id_x 1
.end_amdhsa_kernel
'''
if __name__ == '__main__':
    out = sys.argv[1]; roles = sys.argv[2].split(',')
    opts = dict(eval(sys.argv[3])) if len(sys.argv) > 3 else {}
    open(out, 'w').write(build(roles, opts))
```

```python
from asmlib import *
NAME = 'interleave_layers__memory_aug_recurrent_mem_tr__softmax_full_mha__prompt'
KA = dict(x=0, mem0=8, Wq=16, Wk=24, Wv=32, Wo=40, wqkv=64, wo=72, out=80, dbg=88, ws=96)
F_P, F_C, F_X1, F_X2, F_AL, F_X3, F_B, F_O = 0x0, 0x1000, 0x2000, 0x2200, 0x2400, 0x3000, 0x4000, 0x6000
CH_MEM, CH_IN = 0x10000, 0x40000
MB = 1 << 20
LB0, LSTR = MB, 86 * MB
O_QKV, O_KVM, O_O, O_X1, O_BQ, O_OB, O_X2, O_X1L = 0, 48*MB, 56*MB, 72*MB, 74*MB, 80*MB, 82*MB, 84*MB
WS_BYTES = 256 * MB
WS, XIN, WSR, OUT = 's[8:11]', 's[12:15]', 's[16:19]', 's[20:23]'
sW, sROLE, sXCC, sSPIN = 's24', 's25', 's26', 's27'
sSEL0, sSEL1 = 's28', 's29'
SPIN_MAX = 200000
LOG2E = 1.4426950408889634
import struct
def f32(x): return hex(struct.unpack('<I', struct.pack('<f', x))[0])

_lbl = [0]
def L(p):
    _lbl[0] += 1
    return f'L_{p}_{_lbl[0]}'

def set_srd(s, srd_base, key, nbytes):
    s(f'''s_load_dwordx2 s[4:5], s[0:1], {KA[key]}
          s_waitcnt lgkmcnt(0)
          s_mov_b32 s{srd_base}, s4
          s_mov_b32 s{srd_base+1}, s5
          s_mov_b32 s{srd_base+2}, {nbytes}
          s_mov_b32 s{srd_base+3}, 0x20000''')

def poll(s, vaddr, soff, vtmp, target, fail, sleep=1):
    a, b = L('poll'), L('pollok')
    s(f'''s_mov_b32 {sSPIN}, 0
          {a}:
          buffer_load_dword v{vtmp}, v{vaddr}, {WS}, {soff} offen sc1
          s_waitcnt vmcnt(0)
          v_cmp_gt_u32 vcc, {target}, v{vtmp}
          s_cbranch_vccz {b}
          s_sleep {sleep}
          s_add_u32 {sSPIN}, {sSPIN}, 1
          s_cmp_lt_u32 {sSPIN}, {SPIN_MAX}
          s_cbranch_scc1 {a}
          s_branch {fail}
          {b}:''')

def wait_init(s, v0, v1, fail):
    a, b = L('wi'), L('wiok')
    s(f'''v_mov_b32 v{v0}, 0
          s_mov_b32 {sSPIN}, 0
          {a}:
          global_load_dword v{v1}, v{v0}, s[6:7] offset:192 sc1
          s_waitcnt vmcnt(0)
          v_cmp_gt_u32 vcc, 0x100, v{v1}
          s_cbranch_vccz {b}
          s_sleep 2
          s_add_u32 {sSPIN}, {sSPIN}, 1
          s_cmp_lt_u32 {sSPIN}, {SPIN_MAX}
          s_cbranch_scc1 {a}
          s_branch {fail}
          {b}:''')

def load_pairs(s, pairs, vA, vB, tmp, ntmp, ssoff='s30', post=None, lds=None):
    depth = min(ntmp // 2 - 1, 31)
    t0 = tmp + 2 * depth
    n = len(pairs)
    def issue(i):
        b = tmp + 2 * (i % depth)
        s(f's_mov_b32 {ssoff}, {pairs[i][0]}')
        s(f'buffer_load_dword v{b}, v{vA}, {WSR}, {ssoff} offen')
        s(f'buffer_load_dword v{b+1}, v{vB}, {WSR}, {ssoff} offen')
    for i in range(min(depth, n)): issue(i)
    for i in range(n):
        b = tmp + 2 * (i % depth)
        s(f's_waitcnt vmcnt({2 * (min(n, i + depth) - i - 1)})')
        for j, sel in ((0, sSEL0), (1, sSEL1)):
            d = pairs[i][1 + j]
            if isinstance(d, tuple):
                s(f'v_perm_b32 v{t0+j}, v{b+1}, v{b}, {sel}')
            else:
                s(f'v_perm_b32 v{d}, v{b+1}, v{b}, {sel}')
        for j in (0, 1):
            d = pairs[i][1 + j]
            if isinstance(d, tuple): s(f'v_accvgpr_write_b32 a{d[1]}, v{t0+j}')
        if i + depth < n: issue(i + depth)
        if post: post(i)

def xreduce(s, v, t, op='v_add_f32', dpp=(4, 8)):
    for r in dpp:
        s(f's_nop 1\n{op}_dpp v{v}, v{v}, v{v} row_ror:{r} row_mask:0xf bank_mask:0xf')
    for w in (16, 32):
        s(f'v_mov_b32 v{t}, v{v}\ns_nop 1\nv_permlane{w}_swap_b32 v{v}, v{t}\ns_nop 1\n{op} v{v}, v{v}, v{t}')

def ln_unpack(s, X, F):
    for i in range(16):
        s(f'v_lshlrev_b32 v{F+2*i}, 16, v{X+i}\nv_and_b32 v{F+2*i+1}, 0xffff0000, v{X+i}')

def ln_rest_np(s, F, T, vLW):
    for i in range(4): s(f'v_add_f32 v{T+i}, v{F+i}, v{F+4+i}')
    for i in range(8, 32): s(f'v_add_f32 v{T+i%4}, v{T+i%4}, v{F+i}')
    s(f'v_add_f32 v{T}, v{T}, v{T+1}\nv_add_f32 v{T+2}, v{T+2}, v{T+3}\nv_add_f32 v{T}, v{T}, v{T+2}')
    xreduce(s, T, T + 1)
    s(f'v_mul_f32 v{T}, {f32(-1.0/512)}, v{T}')
    for i in range(32): s(f'v_add_f32 v{F+i}, v{F+i}, v{T}')
    for i in range(32):
        s(f'v_mul_f32 v{T+2+i}, v{F+i}, v{F+i}' if i < 4 else f'v_fmac_f32 v{T+2+i%4}, v{F+i}, v{F+i}')
    s(f'v_add_f32 v{T}, v{T+2}, v{T+3}\nv_add_f32 v{T+4}, v{T+4}, v{T+5}\nv_add_f32 v{T}, v{T}, v{T+4}')
    xreduce(s, T, T + 1)
    s(f'v_mov_b32 v{T+1}, {f32(1e-5)}\nv_fmac_f32 v{T+1}, {f32(1.0/512)}, v{T}\nv_rsq_f32 v{T}, v{T+1}\ns_nop 0')
    for i in range(4):
        for j in range(8): s(f'v_mul_f32 v{F+8*i+j}, v{F+8*i+j}, v{T}')
        for j in range(4): s(f'v_cvt_pk_bf16_f32 v{F+8*i+j}, v{F+8*i+2*j}, v{F+8*i+2*j+1}')
        s(f'ds_write_b128 v{vLW}, v[{F+8*i}:{F+8*i+3}] offset:{4096*i}', 'lnw')

def ln_rest(s, F, T, vLW):
    s(f'v_pk_add_f32 v[{T}:{T+1}], v[{F}:{F+1}], v[{F+2}:{F+3}]')
    s(f'v_pk_add_f32 v[{T+2}:{T+3}], v[{F+4}:{F+5}], v[{F+6}:{F+7}]')
    for i in range(4, 16):
        t = T + 2 * (i & 1)
        s(f'v_pk_add_f32 v[{t}:{t+1}], v[{t}:{t+1}], v[{F+2*i}:{F+2*i+1}]')
    s(f'v_pk_add_f32 v[{T}:{T+1}], v[{T}:{T+1}], v[{T+2}:{T+3}]\nv_add_f32 v{T}, v{T}, v{T+1}')
    xreduce(s, T, T + 1)
    s(f'v_mul_f32 v{T}, {f32(-1.0/512)}, v{T}')
    for i in range(16):
        s(f'v_pk_add_f32 v[{F+2*i}:{F+2*i+1}], v[{F+2*i}:{F+2*i+1}], v[{T}:{T+1}] op_sel_hi:[1,0]')
    for i in range(16):
        t = T + 2 + 2 * (i & 1); f = f'v[{F+2*i}:{F+2*i+1}]'
        if i < 2: s(f'v_pk_mul_f32 v[{t}:{t+1}], {f}, {f}')
        else: s(f'v_pk_fma_f32 v[{t}:{t+1}], {f}, {f}, v[{t}:{t+1}]')
    s(f'v_pk_add_f32 v[{T}:{T+1}], v[{T+2}:{T+3}], v[{T+4}:{T+5}]\nv_add_f32 v{T}, v{T}, v{T+1}')
    xreduce(s, T, T + 1)
    s(f'v_mov_b32 v{T+1}, {f32(1e-5)}\nv_fmac_f32 v{T+1}, {f32(1.0/512)}, v{T}\nv_rsq_f32 v{T}, v{T+1}\ns_nop 0')
    for i in range(4):
        for j in range(4):
            f = F + 8 * i + 2 * j
            s(f'v_pk_mul_f32 v[{f}:{f+1}], v[{f}:{f+1}], v[{T}:{T+1}] op_sel_hi:[1,0]')
        for j in range(4):
            s(f'v_cvt_pk_bf16_f32 v{F+8*i+j}, v{F+8*i+2*j}, v{F+8*i+2*j+1}')
        s(f'ds_write_b128 v{vLW}, v[{F+8*i}:{F+8*i+3}] offset:{4096*i}', 'lnw')

def prologue(s):
    s(f'''
    s_cmp_ge_u32 s2, 0x100
    s_cbranch_scc0 L_start
    s_endpgm
    L_start:
    s_load_dwordx2 s[6:7], s[0:1], {KA['dbg']}
    s_load_dwordx2 s[4:5], s[0:1], {KA['ws']}
    s_getreg_b32 {sXCC}, hwreg(HW_REG_XCC_ID)
    s_and_b32 {sXCC}, {sXCC}, 7
    v_lshrrev_b32 v1, 6, v0
    v_and_b32 v0, 63, v0
    s_mov_b32 {sSEL0}, 0x05040100
    v_readfirstlane_b32 {sW}, v1
    s_mov_b32 {sSEL1}, 0x07060302
    s_waitcnt lgkmcnt(0)
    s_mov_b32 s8, s4
    s_mov_b32 s9, s5
    s_mov_b32 s10, {WS_BYTES}
    s_mov_b32 s11, 0x20000
    s_cmp_lg_u32 {sW}, 0
    s_cbranch_scc1 L_rank_done
    s_lshl_b32 s30, {sXCC}, 2
    s_add_u32 s30, s30, 128
    s_cmp_eq_u32 {sXCC}, 0
    s_cselect_b32 s30, 0, s30
    v_mov_b32 v2, s30
    v_mov_b32 v3, 1
    v_mov_b32 v5, 0
    v_lshlrev_b32 v6, 2, v0
    s_lshl_b32 s31, s2, 7
    s_mov_b64 exec, 1
    global_atomic_add v4, v2, v3, s[6:7] sc0
    s_mov_b32 exec_lo, -1
    buffer_store_dword v5, v6, {WS}, s31 offen sc1
    s_mov_b64 exec, 1
    s_waitcnt vmcnt(0)
    global_atomic_add v5, v3, s[6:7] offset:192
    v_readfirstlane_b32 s30, v4
    s_mov_b64 exec, -1
    s_lshl_b32 {sROLE}, {sXCC}, 5
    s_add_u32 {sROLE}, {sROLE}, s30
    s_cmp_lt_u32 s30, 32
    s_cbranch_scc1 L_rank_put
    ''')
    wait_init(s, 5, 4, 'L_exit')
    s(f'''
    s_mov_b64 exec, 1
    global_atomic_add v4, v5, v3, s[6:7] offset:196 sc0
    s_mov_b64 exec, -1
    v_lshlrev_b32 v6, 2, v0
    v_add_u32 v6, 128, v6
    v_cmp_eq_u32 vcc, 0, v0
    s_nop 1
    v_cndmask_b32 v6, v6, v5, vcc
    v_and_b32 v6, 0xbf, v6
    global_load_dword v7, v6, s[6:7] sc1
    s_waitcnt vmcnt(0)
    v_readfirstlane_b32 s30, v4
    s_mov_b32 s31, 0
    L_hole:
    s_nop 3
    v_readlane_b32 s32, v7, s31
    s_min_u32 s32, s32, 32
    s_sub_u32 s33, 32, s32
    s_lshl_b32 {sROLE}, s31, 5
    s_add_u32 {sROLE}, {sROLE}, s32
    s_add_u32 {sROLE}, {sROLE}, s30
    s_cmp_lt_u32 s30, s33
    s_cbranch_scc1 L_rank_put
    s_sub_u32 s30, s30, s33
    s_add_u32 s31, s31, 1
    s_cmp_lt_u32 s31, 8
    s_cbranch_scc1 L_hole
    s_mov_b32 {sROLE}, 0x100
    L_rank_put:
    v_mov_b32 v2, 0
    v_mov_b32 v3, {sROLE}
    ds_write_b32 v2, v3
    s_waitcnt lgkmcnt(0)
    L_rank_done:
    s_barrier
    v_mov_b32 v2, 0
    ds_read_b32 v3, v2
    s_waitcnt lgkmcnt(0)
    v_readfirstlane_b32 {sROLE}, v3
    s_barrier
    s_cmp_lt_u32 {sROLE}, 0x100
    s_cbranch_scc1 L_dispatch
    L_exit:
    s_endpgm
    L_dispatch:
    ''')

TRACE = 0x80000
def stamp(s, opts, idx, vt):
    if not opts.get('trace'): return
    s(f'''s_memrealtime s[98:99]
          s_lshl_b32 s100, {sROLE}, 2
          s_add_u32 s100, s100, {sW}
          s_lshl_b32 s100, s100, 7
          s_add_u32 s100, s100, {idx}
          s_lshl_b32 s100, s100, 2
          s_add_u32 s100, s100, {TRACE}
          s_waitcnt lgkmcnt(0)
          v_mov_b32 v{vt}, s98
          v_mov_b32 v{vt+1}, s100
          buffer_store_dword v{vt}, v{vt+1}, {WS}, 0 offen''')

class TL:
    def __init__(self, opts, role):
        self.pts = list(opts.get('tl_' + role) or [])
    def __call__(self, s, k):
        if k in self.pts: s(f's_memtime s[{72+2*self.pts.index(k)}:{73+2*self.pts.index(k)}]')
    def dump(self, s, cond, vt):
        if not self.pts: return
        l = L('tl')
        s(f's_waitcnt lgkmcnt(0)\n{cond}\ns_cbranch_scc0 {l}')
        s(f's_lshl_b32 s100, {sROLE}, 2\ns_add_u32 s100, s100, {sW}\ns_lshl_b32 s100, s100, 9\ns_add_u32 s100, s100, {TRACE+4*108}\nv_mov_b32 v{vt}, s100')
        for i in range(len(self.pts)):
            s.append(Op(f'v_mov_b32 v{vt+1}, s{72+2*i}')); s.append(Op(f'buffer_store_dword v{vt+1}, v{vt}, {WS}, 0 offen offset:{4*i}')); s.append(Op('s_nop 1'))
        s(f'{l}:')

class Stats:
    def __init__(self, vSF, SF, GM, ONES, vSW, vSR, vBP, ST, masks):
        self.__dict__.update(locals())
        self.RS, self.NM, self.RSr, self.NMr = ST, ST+1, ST+2, ST+6
    def setup(self, s, lds_off, t0):
        m = self.masks
        s(f'''v_and_b32 v{t0}, 15, v0
              v_lshrrev_b32 v{t0+1}, 4, v0
              v_lshlrev_b32 v{self.vSR}, 5, v{t0}
              v_add_u32 v{self.vSR}, {lds_off}, v{self.vSR}
              s_lshl_b32 s30, {sW}, 3
              v_add_u32 v{self.vSW}, s30, v{self.vSR}
              v_mul_u32_u24 v{self.vBP}, 80, v{t0+1}
              v_lshrrev_b32 v{t0+2}, 2, v{t0}
              v_cmp_eq_u32 s[{m}:{m+1}], v{t0+2}, v{t0+1}
              v_and_b32 v{t0+2}, 3, v{t0}''')
        for r in (1, 2, 3): s(f'v_cmp_eq_u32 s[{m+2*r}:{m+2*r+1}], {r}, v{t0+2}')
        for r in range(4): s(f'v_mov_b32 v{self.ONES+r}, 0x3f803f80')
    def reads(self, s):
        for i in range(4): s(f'ds_read_b128 {vr(self.SF+4*i,4)}, v{self.vSF} offset:{1024*i}', f'sf{i}')
    def mfmas(self, s, after=None):
        G, M = self.GM + 4, self.GM
        for i in range(4):
            s.W('ds', f'sf{i}'); a = vr(self.SF+4*i, 4)
            s(f'v_mfma_f32_16x16x32_bf16 {vr(G,4)}, {a}, {a}, {"0" if i == 0 else vr(G,4)}')
            if after: after(i)
            s(f'v_mfma_f32_16x16x32_bf16 {vr(M,4)}, {vr(self.ONES,4)}, {a}, {"0" if i == 0 else vr(M,4)}')
    def part1(self, f):
        G, M, m = self.GM + 4, self.GM, self.masks
        for r in (1, 2, 3): f(f'v_cndmask_b32 v{M+1 if r == 3 else G}, v{G}, v{G+r}, s[{m+2*r}:{m+2*r+1}]')
        f(f's_mov_b64 exec, s[{m}:{m+1}]'); f(f'ds_write_b64 v{self.vSW}, {vr(M,2)}', 'sw'); f('s_mov_b64 exec, -1')
    def part2(self, f):
        T = self.SF; RS, NM = self.RS, self.NM
        f(f'ds_read_b128 {vr(T,4)}, v{self.vSR}', 'sr0'); f(f'ds_read_b128 {vr(T+4,4)}, v{self.vSR} offset:16', 'sr1')
    def part3(self, f):
        T = self.SF; RS, NM = self.RS, self.NM
        f.W('ds', 'sr1')
        for r in range(4): f(f'v_add_f32 v{T+r}, v{T+r}, v{T+4+r}')
        f(f'''v_add_f32 v{T}, v{T}, v{T+2}
              v_add_f32 v{T+1}, v{T+1}, v{T+3}
              v_mul_f32 v{T}, {f32(-1.0/512)}, v{T}
              v_mul_f32 v{T+1}, {f32(1.0/512)}, v{T+1}
              v_fma_f32 v{T+1}, -v{T}, v{T}, v{T+1}
              v_max_f32 v{T+1}, 0, v{T+1}
              v_add_f32 v{T+1}, {f32(1e-5)}, v{T+1}
              v_rsq_f32 v{RS}, v{T+1}
              s_nop 0
              v_mul_f32 v{NM}, v{T}, v{RS}''')
        for r in range(4):
            f(f'ds_bpermute_b32 v{self.RSr+r}, v{self.vBP}, v{RS} offset:{4*r}', 'bp'); f(f'ds_bpermute_b32 v{self.NMr+r}, v{self.vBP}, v{NM} offset:{4*r}', 'bp')

sMODE = 's31'
def die_mode(s, sM, v0, v1):
    s(f"""s_lshr_b32 s30, {sROLE}, 5
          s_lshl_b32 s30, s30, 2
          s_add_u32 s30, s30, 128
          v_mov_b32 v{v0}, s30
          global_load_dword v{v1}, v{v0}, s[6:7] sc1
          s_waitcnt vmcnt(0)
          v_readfirstlane_b32 s30, v{v1}
          s_cmp_ge_u32 s30, 32
          s_cselect_b32 {sM}, 1, 0""")
def dual(s, sM, tail, lines, tag=None):
    a, b = L('far'), L('join')
    s(f's_cmp_eq_u32 {sM}, 0\ns_cbranch_scc1 {a}')
    s(lines.replace('@', ''), tag); s(f'{b}:')
    tail(f'{a}:'); tail(lines.replace('@', 'sc1')); tail(f's_branch {b}')
```

```python
from common import *
LKB, LVB, VG = 0, 65536, 4112
LSC = LVB + 16*VG
def tree(s, reg, lo, hi, lab):
    if lo == hi: s(f's_branch {lab(lo)}'); return
    mid = (lo + hi) // 2
    if hi == mid + 1:
        s(f's_cmp_gt_u32 {reg}, {mid}\ns_cbranch_scc1 {lab(hi)}'); tree(s, reg, lo, mid, lab); return
    l = L('tr'); s(f's_cmp_gt_u32 {reg}, {mid}\ns_cbranch_scc1 {l}'); tree(s, reg, lo, mid, lab); s(f'{l}:'); tree(s, reg, mid + 1, hi, lab)

def role_batt(opts):
    s = S(); fail = 'L_b_fail'; tl = TL(opts, 'b')
    sH, sRP, sL, sT, sB, sNA, sNB, sFI, sX, sOB, sFB, sGL, sGH, sY, sHV, sV = [f's{i}' for i in range(32, 48)]
    RET = 's[50:51]'
    vL16, vF, vTg, vFt, vIDX, vKW, vVL, vVH, vSW, vSR, vOB, vFB, vT, vCR, vMK = range(1, 16)
    KF, VH, QT, S0, S1, TA, FI, ACC = 16, 24, 28, 32, 48, 64, 80, 128
    VLs = [20, 104]; vA0, vA1, vA2, vVB = 108, 109, 110, 111
    SS = [S0, S1]
    QS = lambda i: f'a[{4*i}:{4*i+3}]'
    def sm(acc, v, p): return f'v_smfmac_f32_32x32x32_bf16 {vr(acc,16)}, {vr(v,4)}, {vr(p,8)}, v{vIDX}'
    def qk(d, q): return f'v_mfma_f32_32x32x16_bf16 {vr(d,16)}, {vr(KF,4)}, {q}, 0'
    def ex(t, b, lo, hi):
        for j in range(lo, hi): t(f'v_exp_f32 v{b+j}, v{b+j}')
    def rd(t, reg, a, off=0): t(f'ds_read_b128 {vr(reg,4)}, v{a} offset:{off}')
    def voff(t, dst, blk): t(f's_lshr_b32 s30, {blk}, 2\ns_lshl_b32 s30, s30, 4\ns_lshl_b32 {dst}, {blk}, 10\ns_add_u32 {dst}, {dst}, s30')
    def vaddr(t, off):
        t(f'v_and_b32 v{vA1}, {off}, v{vMK}\nv_add_u32 v{vA1}, v{vA1}, v{vVB}\nv_and_b32 v{vA2}, 0x200, v{vMK}\nv_add_u32 v{vA2}, v{vA2}, v{vA1}')
    s(f'''L_role_batt:
    s_lshr_b32 s30, {sROLE}, 5
    s_sub_u32 s30, s30, 1
    s_lshl_b32 s30, s30, 3
    s_bfe_u32 s31, {sROLE}, 0x30001
    s_add_u32 {sH}, s30, s31
    s_and_b32 {sRP}, {sROLE}, 1
    v_lshlrev_b32 v{vL16}, 4, v0
    v_mov_b32 v{vIDX}, 0xdddddddd
    v_lshrrev_b32 v16, 5, v0
    v_and_b32 v17, 15, v0
    v_lshlrev_b32 v{vVB}, 8, v16
    v_lshl_add_u32 v{vVB}, v17, 4, v{vVB}
    v_bfe_u32 v16, v0, 4, 1
    v_lshl_add_u32 v{vOB}, v16, 14, v{vVB}
    s_lshl_b32 s30, {sH}, 9
    v_add_u32 v{vOB}, s30, v{vOB}
    v_add_u32 v{vMK}, -1, v16
    v_and_b32 v{vVB}, v{vVB}, v{vMK}
    v_lshl_add_u32 v{vVB}, v16, 12, v{vVB}
    v_add_u32 v{vVB}, {LVB}, v{vVB}
    s_lshl_b32 s31, {sW}, 10
    v_add_u32 v{vKW}, s31, v{vL16}''')
    vaddr(s, 's31')
    s(f'''v_mov_b32 v{vVL}, v{vA1}
    v_mov_b32 v{vVH}, v{vA2}
    s_mul_i32 s30, {sW}, 3072
    s_add_u32 s30, s30, {LSC}
    v_add_u32 v{vSW}, s30, v{vL16}
    v_add_u32 v{vSR}, {LSC}, v{vL16}
    v_lshlrev_b32 v{vFB}, 10, v0
    v_min_u32 v{vF}, 2, v0
    v_cmp_gt_u32 vcc, 2, v0
    v_lshlrev_b32 v{vF}, 2, v{vF}
    s_lshl_b32 {sFI}, {sH}, 7
    v_cndmask_b32 v{vCR}, 0, 1, vcc
    s_add_u32 {sFI}, {sFI}, {F_X3}
    s_lshl_b32 s30, {sW}, 1
    s_add_u32 s30, s30, {sRP}
    s_lshl_b32 s30, s30, 7
    s_lshl_b32 s31, {sH}, 2
    s_add_u32 {sFB}, s30, s31
    s_add_u32 {sFB}, {sFB}, {F_B}
    s_mov_b32 {sGL}, 0x17800000
    s_mov_b32 {sGH}, 0x50000000
    s_mov_b32 {sL}, 0
    s_mov_b32 {sY}, 0
    v_mul_u32_u24 v16, {VG}, v17
    v_add_u32 v16, {LVB + 4096}, v16''')
    for r in range(4): s(f'v_mov_b32 v{VH+r}, 0x3f803f80')
    s(f'ds_write_b128 v16, {vr(VH,4)}\ns_waitcnt lgkmcnt(0)')
    wait_init(s, 16, 17, fail)
    def loads(t, blk, tag):
        a, b = L('bl'), L('bl')
        t(f'''s_lshl_b32 s31, {blk}, 10
        s_add_u32 {sX}, {sB}, s31
        s_xor_b32 s30, {blk}, {sRP}
        s_bitcmp1_b32 s30, 0
        s_cbranch_scc1 {a}
        buffer_load_dwordx4 {vr(QT,4)}, v{vL16}, {WS}, {sX} offen sc1
        {a}:
        s_cmp_ge_u32 {sW}, 2
        s_cbranch_scc1 {b}
        s_lshr_b32 s30, {blk}, 2
        s_lshl_b32 s30, s30, 4
        s_add_u32 s30, s30, {LVB}
        s_mul_i32 s30, s30, {sW}
        s_add_u32 m0, s30, s31
        s_add_u32 s30, {sW}, 1
        s_lshl_b32 s30, s30, 16
        s_add_u32 {sX}, {sX}, s30
        buffer_load_dwordx4 v{vL16}, {WS}, {sX} offen sc1 lds
        {b}:''')
    s(f'''L_b_layer:
    s_mul_i32 s30, {sL}, {LSTR}
    s_mul_i32 {sB}, {sH}, {3*65536}
    s_add_u32 {sB}, {sB}, s30
    s_add_u32 {sB}, {sB}, {LB0 + O_BQ}
    s_lshl_b32 s31, {sW}, 1
    s_add_u32 s31, s31, {sRP}
    s_lshl_b32 {sOB}, s31, 15
    s_add_u32 {sOB}, {sOB}, s30
    s_add_u32 {sOB}, {sOB}, {LB0 + O_OB}
    s_mov_b32 {sT}, 0
    s_mov_b32 {sNA}, 0
    s_mov_b32 {sHV}, 0
    L_b_step:''')
    tl(s, 'top')
    s(f's_cmp_eq_u32 {sHV}, 1\ns_cbranch_scc1 L_b_have\nv_max_u32 v{vTg}, {sY}, v{vCR}')
    poll(s, vF, sFI, vFt, f'v{vTg}', fail); loads(s, sT, 'a')
    s('L_b_have:'); tl(s, 'poll')
    voff(s, sV, sT); vaddr(s, sV)
    s(f'''s_lshl_b32 s31, {sT}, 10
    v_add_u32 v{vA0}, s31, v{vL16}
    s_add_u32 {sY}, {sY}, 2
    s_waitcnt vmcnt(0)
    v_cmp_gt_u32 vcc, {sY}, v{vFt}
    s_barrier''')
    rd(s, KF, vA0); rd(s, VLs[0], vA1); rd(s, VH, vA2)
    tl(s, 'bar')
    s(f'''s_mov_b32 {sHV}, 0
    s_cmp_eq_u32 {sT}, 63
    s_cbranch_scc1 L_b_fin
    s_cbranch_vccnz L_b_nopf
    s_mov_b32 {sHV}, 1
    s_add_u32 {sV}, {sT}, 1''')
    loads(s, sV, 'b')
    s(f'buffer_load_dword v{vFt}, v{vF}, {WS}, {sFI} offen sc1\nL_b_nopf:\ns_waitcnt lgkmcnt(0)')
    tree(s, sNA, 0, 8, lambda i: f'L_b_ain{i-1}' if i else 'L_b_adone')
    for i in range(7, -1, -1):
        s(f'L_b_ain{i}:\n{qk(SS[i&1], QS(i))}\ns_nop 11'); ex(s, SS[i&1], 0, 2)
        s(f's_branch L_b_a{i}')
    for i in range(7, -1, -1):
        c, o = SS[i&1], SS[1-(i&1)]
        if i < 7: ex(s, c, 0, 2); s(sm(ACC+16*(i+1), VH, o+8))
        s(f'L_b_a{i}:'); ex(s, c, 2, 5)
        if i: s(qk(o, QS(i-1)))
        ex(s, c, 5, 11); s(sm(ACC+16*i, VLs[0], c)); ex(s, c, 11, 16)
    s(f's_nop 1\n{sm(ACC, VH, S0+8)}')
    s('L_b_adone:'); tl(s, 'a')
    s(f'''s_xor_b32 s30, {sT}, {sRP}
    s_bitcmp1_b32 s30, 0
    s_cbranch_scc1 L_b_next''')
    for r in range(0, 10, 2): s(f'v_mov_b64 {vr(TA+r,2)}, 0')
    s(f'''s_cmp_lt_u32 {sT}, {sW}
    s_cbranch_scc1 L_b_bdone
    s_sub_u32 {sNB}, {sT}, {sW}
    s_lshr_b32 {sNB}, {sNB}, 2''')
    tree(s, sNB, 0, 15, lambda i: f'L_b_bin{i}')
    for b in range(15, -1, -1):
        s(f'L_b_bin{b}:'); rd(s, KF, vKW, 4096*b); rd(s, VLs[b&1], vVL, VG*b)
        s(f's_waitcnt lgkmcnt(1)\n{qk(SS[b&1], vr(QT,4))}')
        if b: rd(s, KF, vKW, 4096*(b-1))
        s(f's_nop {9 if b else 10}\ns_waitcnt lgkmcnt(0)'); ex(s, SS[b&1], 0, 2); s(f's_branch L_b_b{b}')
    for b in range(15, -1, -1):
        c, o = SS[b&1], SS[1-(b&1)]
        if b < 15: ex(s, c, 0, 2); s(sm(TA, VH, o+8))
        s(f'L_b_b{b}:'); rd(s, VH, vVH, VG*b)
        if b: rd(s, VLs[1-(b&1)], vVL, VG*(b-1))
        ex(s, c, 2, 5)
        if b: s(qk(o, vr(QT,4)))
        if b > 1: rd(s, KF, vKW, 4096*(b-2))
        ex(s, c, 5, 13); s(sm(TA, VLs[b&1], c)); s('s_waitcnt lgkmcnt(0)'); ex(s, c, 13, 16)
    s(f's_nop 1\n{sm(TA, VH, S0+8)}\ns_nop 11')
    s('L_b_bdone:'); tl(s, 'b')
    s(f'''
    ds_write_b128 v{vSW}, {vr(TA,4)}
    ds_write_b128 v{vSW}, {vr(TA+4,4)} offset:1024
    ds_write_b32 v{vSW}, v{TA+8} offset:2048
    s_bfe_u32 s30, {sT}, 0x20001
    s_cmp_lg_u32 s30, {sW}
    s_waitcnt lgkmcnt(0)
    s_barrier
    s_cbranch_scc1 L_b_next''')
    for j in range(4):
        s(f'ds_read_b128 {vr(S0+8*j,4)}, v{vSR} offset:{3072*j}\nds_read_b128 {vr(S0+8*j+4,4)}, v{vSR} offset:{3072*j+1024}\nds_read_b32 v{FI+j}, v{vSR} offset:{3072*j+2048}')
    tree(s, sNA, 0, 7, lambda i: f'L_b_put{i}')
    for i in range(7, -1, -1):
        s(f'L_b_put{i}:')
        for r in range(4): s(f'v_accvgpr_write_b32 a{4*i+r}, v{QT+r}')
        s('s_waitcnt lgkmcnt(6)')
        for r in range(0, 8, 2): s(f'v_pk_add_f32 {vr(S0+r,2)}, {vr(S0+r,2)}, {vr(S0+8+r,2)}')
        s('s_waitcnt lgkmcnt(0)')
        for r in range(0, 8, 2): s(f'v_pk_add_f32 {vr(S0+16+r,2)}, {vr(S0+16+r,2)}, {vr(S0+24+r,2)}')
        s(f'v_pk_add_f32 {vr(FI,2)}, {vr(FI,2)}, {vr(FI+2,2)}')
        for r in range(0, 8, 2): s(f'v_pk_add_f32 {vr(ACC+16*i+r,2)}, {vr(S0+r,2)}, {vr(S0+16+r,2)}')
        s(f'v_add_f32 v{ACC+16*i+8}, v{FI}, v{FI+1}')
        if i: s('s_branch L_b_putdone')
    s(f'''L_b_putdone:
    s_add_u32 {sNA}, {sNA}, 1
    s_cmp_eq_u32 {sT}, 63
    s_cbranch_scc1 L_b_fin7
    L_b_next:'''); tl(s, 'end'); tl.dump(s, f's_sub_u32 s30, {sT}, {sRP}\ns_cmp_eq_u32 s30, 56', 112)
    if opts.get('trace') == 2:
        s(f's_mul_i32 s69, {sL}, 40\ns_lshr_b32 s30, {sT}, 1\ns_add_u32 s69, s69, s30\ns_add_u32 s69, s69, 2'); stamp(s, opts, 's69', 112)
    s(f'''s_add_u32 {sT}, {sT}, 1
    s_cmp_lt_u32 {sT}, 64
    s_cbranch_scc1 L_b_step
    s_barrier
    s_add_u32 {sL}, {sL}, 1
    s_cmp_lt_u32 {sL}, {opts.get('nl', 2)}
    s_cbranch_scc1 L_b_layer
    {fail}:
    s_endpgm''')
    t = S()
    def fin(i):
        a = ACC + 16*i; f = FI + 8 + 4*(i & 1); u = L('f')
        s(f'''v_subrev_u32 v{vT}, {sGL}, v{a+8}
        v_cmp_lt_u32 vcc, {sGH}, v{vT}
        {u}r:
        v_rcp_f32 v{vT}, v{a+8}
        s_add_u32 s30, {sOB}, {8*32768*i}''')
        for r in range(8): s(f'v_mul_f32 v{FI+r}, v{vT}, v{a+r}')
        s(f's_cbranch_vccnz {u}s')
        for r in range(4): s(f'v_cvt_pk_bf16_f32 v{f+r}, v{FI+2*r}, v{FI+2*r+1}')
        s(f'buffer_store_dwordx4 {vr(f,4)}, v{vOB}, {WS}, s30 offen sc1')
        t(f'{u}s:')
        for r in range(4): t(f'v_accvgpr_read_b32 v{FI+16+r}, a{4*i+r}')
        t(f's_getpc_b64 {RET}\ns_add_u32 s50, s50, 12\ns_addc_u32 s51, s51, 0\ns_branch L_b_exact')
        for r in range(9): t(f'v_mov_b32 v{a+r}, v{TA+r}')
        t(f's_mov_b64 vcc, 0\ns_branch {u}r')
    def flags(mask, n, k):
        s(f's_mov_b64 exec, {mask}\ns_waitcnt vmcnt({n})\nbuffer_store_dword v{vTg}, v{vFB}, {WS}, {sFB} offen sc1\ns_mov_b64 exec, -1')
        if opts.get('trace'): s(f's_mul_i32 s69, {sL}, 40\ns_add_u32 s69, s69, {k}'); stamp(s, opts, 's69', 102)
    s(f'L_b_fin:\ns_add_u32 s30, {sL}, 1\nv_mov_b32 v{vTg}, s30')
    if opts.get('trace'): s(f's_mul_i32 s69, {sL}, 40\ns_add_u32 s69, s69, 34'); stamp(s, opts, 's69', 102)
    s(f's_waitcnt lgkmcnt(0)\n{qk(S0, QS(0))}\ns_nop 11')
    for i in range(8):
        c, o = SS[i&1], SS[1-(i&1)]
        ex(s, c, 0, 2)
        if i: s(sm(ACC+16*(i-1), VH, o+8))
        ex(s, c, 2, 5)
        if i < 7: s(qk(o, QS(i+1)))
        ex(s, c, 5, 11); s(sm(ACC+16*i, VLs[0], c)); ex(s, c, 11, 16)
        if i: fin(i-1)
        if i == 4: flags(1, 3, 35)
        if i == 6: s(f's_cmp_eq_u32 {sNA}, 7\ns_cbranch_scc1 L_b_fin6')
    s(f's_nop 1\n{sm(ACC+16*7, VH, S1+8)}\ns_nop 11'); fin(7); flags(0xfe, 0, 36); s('s_branch L_b_adone')
    s(f'L_b_fin6:\n{sm(ACC+16*6, VH, S0+8)}\ns_nop 11'); fin(6); flags(0x7e, 0, 36); s('s_branch L_b_adone')
    s('L_b_fin7:'); fin(7); flags(0x80, 0, 37); s('s_branch L_b_next')
    s.extend(t)
    q = vr(FI+16, 4); m = FI + 20; X = 112; K2 = FI; V2 = FI + 4; V3 = VLs[1]
    def qk2(): return f'v_mfma_f32_32x32x16_bf16 {vr(X,16)}, {vr(K2,4)}, {q}, 0'
    s(f'L_b_exact:\nv_mov_b32 v{m}, {f32(-3e38)}\nv_mov_b32 v{vA0}, v{vL16}\ns_mov_b32 {sNB}, 0\nL_b_ex1:')
    s(f'ds_read_b128 {vr(K2,4)}, v{vA0}\nv_add_u32 v{vA0}, 0x400, v{vA0}\ns_waitcnt lgkmcnt(0)\n{qk2()}\ns_nop 11')
    for r in range(0, 16, 2): s(f'v_max3_f32 v{m}, v{m}, v{X+r}, v{X+r+1}')
    s(f's_add_u32 {sNB}, {sNB}, 1\ns_cmp_lt_u32 {sNB}, 64\ns_cbranch_scc1 L_b_ex1')
    s(f'v_mov_b32 v{m+1}, v{m}\ns_nop 1\nv_permlane32_swap_b32 v{m}, v{m+1}\ns_nop 1\nv_max_f32 v{m}, v{m}, v{m+1}')
    for r in range(0, 10, 2): s(f'v_mov_b64 {vr(TA+r,2)}, 0')
    s(f'v_mov_b32 v{vA0}, v{vL16}\ns_mov_b32 {sNB}, 0\nL_b_ex2:')
    voff(s, sV, sNB); vaddr(s, sV); rd(s, K2, vA0); rd(s, V2, vA1); rd(s, V3, vA2)
    s(f'v_add_u32 v{vA0}, 0x400, v{vA0}\ns_waitcnt lgkmcnt(0)\n{qk2()}\ns_nop 11')
    for r in range(16): s(f'v_sub_f32 v{X+r}, v{X+r}, v{m}')
    ex(s, X, 0, 16)
    s(f's_nop 1\n{sm(TA, V2, X)}\n{sm(TA, V3, X+8)}\ns_add_u32 {sNB}, {sNB}, 1\ns_cmp_lt_u32 {sNB}, 64\ns_nop 7\ns_cbranch_scc1 L_b_ex2\ns_nop 7\ns_setpc_b64 {RET}')
    return resolve(s)[0]
```

```python
from common import *
LM, LQ, LK, LP, LSEL, LW = 0, 8192, 8192+2304, 8192+2304+2048, 8192+2304+3072, 16384
LO, LMX = LM, LM + 4096
WSTR = 18 * 2048
vIDX, vG16, vWL, vQW, vKW, vQR, vST, vPUB, vKX, vG8, vF8, vF32, vFV, vFP, vSEN = range(1, 16)
ONES, PM, KX, VX, MA, AQ, AK, AV, SX, SM, POOL = 16, 20, 24, 32, 40, 72, 80, 88, 96, 100, 104
QB, KA, PX, LL, OX = POOL, POOL+16, POOL+24, POOL+28, POOL+32
NWORK = 144
sH, sL, sS, sN, sTAG, sMS, sMC, sG1, sG2, sKV, sKM, sPT, sCV, sC, sFPO, sFCO, sALO, sAL, s4K = [f's{i}' for i in range(32, 51)]
sTCH = 's51'; sKN = 's56'; sMN = 's57'; CH_JUNK = 0x20000; vTC = vF32
sPUBX = 's[52:53]'; sGL, sGH = 's54', 's55'
LDS_Q = [(0,0),(0,1),(1,0),(1,1),(2,0)]
LDS_K = [(1,0),(1,1),(2,0),(2,1),(3,0)]
LDS_O = [(1,2),(1,3),(2,1),(2,2),(2,3),(3,1),(3,2),(3,3)]
home = {}
def _alloc():
    free = [NWORK + 8*i for i in range((256-NWORK)//8)] + [('a', 8*i) for i in range(32)]
    n = 0
    for m, ld in (('q', LDS_Q), ('k', LDS_K), ('v', [])):
        for t in range(8):
            for tau in range(2):
                if (t, tau) in ld: home[m, t, tau] = ('lds', n); n += 1
                else: home[m, t, tau] = free.pop()
    for u in range(4):
        for z in range(4):
            if (u, z) in LDS_O: home['o', u, z] = ('lds', 10 + LDS_O.index((u, z)))
            else: home['o', u, z] = free.pop()
    assert not free
_alloc()
def in_lds(k): return isinstance(home[k], tuple) and home[k][0] == 'lds'
def smf(d, a, b): return f'v_smfmac_f32_16x16x64_bf16 {vr(d,4)}, {vr(a,4)}, {R(b,8)}, v{vIDX}'
def stage(s, key, reg, half, tag):
    s(f'ds_read_b128 {vr(reg+4*half,4)}, v{vWL} offset:{home[key][1]*2048 + 1024*half}', tag)

def setup(s, opts, fail):
    s('L_role_chain:'); stamp(s, opts, 0, 126)
    s(f'''
    s_mov_b32 {sH}, {sROLE}
    v_lshrrev_b32 v120, 4, v0          ; g
    v_and_b32 v121, 15, v0             ; c
    v_lshlrev_b32 v{vG16}, 4, v0
    s_mul_i32 s30, {sW}, {WSTR}
    s_add_u32 s30, s30, {LW}
    v_add_u32 v{vWL}, s30, v{vG16}
    v_lshrrev_b32 v122, 1, v120
    v_and_b32 v123, 1, v120
    v_lshlrev_b32 v16, 19, v122
    v_lshl_add_u32 v16, v123, 17, v16
    v_lshl_add_u32 v16, v121, 2, v16
    s_lshl_b32 s30, {sH}, 8
    s_lshl_b32 s31, {sW}, 6
    s_add_u32 s30, s30, s31
    v_add_u32 v16, s30, v16
    v_add_u32 v17, 0x2000, v16
    ''')
    TL = 88
    for m, key in (('q', 'Wq'), ('k', 'Wk'), ('v', 'Wv')):
        set_srd(s, 16, key, 4*MB)
        pairs = []; posts = {}
        for t in range(8):
            for jr in range(8):
                row = 256*(t & 1) + 128*(jr >> 2) + 32*(jr & 1) + 8*((jr >> 1) & 1) + 2*(t >> 1)
                d = [TL + 16*(t & 1) + 8*tau + jr if in_lds((m, t, tau)) else radd(home[m, t, tau], jr) for tau in range(2)]
                pairs.append((row * 8192, d[0], d[1]))
            posts[len(pairs) - 1] = [(tau, home[m, t, tau][1], TL + 16*(t & 1) + 8*tau) for tau in range(2) if in_lds((m, t, tau))]
        def post(i):
            for tau, slot, r in posts.get(i, []):
                s(f'ds_write_b128 v{vWL}, {vr(r,4)} offset:{slot*2048}\nds_write_b128 v{vWL}, {vr(r+4,4)} offset:{slot*2048+1024}')
        load_pairs(s, pairs, 16, 17, 24, 64, post=post)
        s('s_waitcnt lgkmcnt(0)')
    set_srd(s, 16, 'Wo', 4*MB)
    s(f'''v_lshlrev_b32 v16, 12, v120
          v_lshl_add_u32 v16, v121, 4, v16
          s_lshl_b32 s30, {sH}, 17
          s_lshl_b32 s31, {sW}, 8
          s_add_u32 s30, s30, s31
          v_add_u32 v16, s30, v16''')
    def oissue(i):
        z, jp = i >> 2, i & 3; b = 24 + 8*(i % 8)
        s(f'''s_add_u32 s30, {sW}, {z}
              s_and_b32 s30, s30, 3
              s_lshl_b32 s30, s30, 15
              s_add_u32 s30, s30, {(16*(jp >> 1) + 2*(jp & 1)) * 1024}
              buffer_load_dwordx4 {vr(b,4)}, v16, {WSR}, s30 offen
              buffer_load_dwordx4 {vr(b+4,4)}, v16, {WSR}, s30 offen offset:1024''')
    for i in range(8): oissue(i)
    for i in range(16):
        z, jp = i >> 2, i & 3; b = 24 + 8*(i % 8)
        s(f's_waitcnt vmcnt({2*(min(16, i+8) - i - 1)})')
        if jp == 0: s('s_waitcnt lgkmcnt(0)')
        for u in range(4):
            for f, sel in ((0, sSEL0), (1, sSEL1)):
                d = TL + 8*u + 2*jp + f if in_lds(('o', u, z)) else radd(home['o', u, z], 2*jp + f)
                if isinstance(d, tuple): s(f'v_perm_b32 v{18+f}, v{b+4+u}, v{b+u}, {sel}\nv_accvgpr_write_b32 a{d[1]}, v{18+f}')
                else: s(f'v_perm_b32 v{d}, v{b+4+u}, v{b+u}, {sel}')
        if i + 8 < 16: oissue(i + 8)
        if jp == 3:
            for u in range(4):
                if in_lds(('o', u, z)):
                    slot = home['o', u, z][1]
                    s(f'ds_write_b128 v{vWL}, {vr(TL+8*u,4)} offset:{slot*2048}\nds_write_b128 v{vWL}, {vr(TL+8*u+4,4)} offset:{slot*2048+1024}')
    stamp(s, opts, 1, 126)
    s(f'''
    v_bfe_u32 v124, v0, 1, 1
    v_mov_b32 v{vIDX}, 0x44444444
    v_mov_b32 v125, 0xeeeeeeee
    v_cmp_eq_u32 vcc, 1, v124
    v_bfe_u32 v126, v0, 2, 1           ; (c>>2)&1
    v_bfe_u32 v127, v0, 3, 1           ; c>>3
    v_cndmask_b32 v{vIDX}, v{vIDX}, v125, vcc
    v_and_b32 v128, 1, v0              ; c&1
    v_and_b32 v129, 3, v0              ; c&3
    v_bfe_u32 v130, v0, 2, 2           ; c>>2
    ; q write: 576w + 144(2(c>>3) + ((c>>1)&1)) + 32g + 8(c&1) + 4((c>>2)&1)
    v_lshl_add_u32 v131, v127, 1, v124
    v_mul_u32_u24 v{vQW}, 144, v131
    v_lshl_add_u32 v{vQW}, v120, 5, v{vQW}
    v_lshl_add_u32 v{vQW}, v128, 3, v{vQW}
    v_lshl_add_u32 v{vQW}, v126, 2, v{vQW}
    s_mul_i32 s30, {sW}, 576
    s_add_u32 s30, s30, {LQ}
    v_add_u32 v{vQW}, s30, v{vQW}
    ; q read: 144g + 16(2(c>>2) + (c&1))
    v_lshl_add_u32 v132, v130, 1, v128          ; row r(c)
    v_mul_u32_u24 v{vQR}, 144, v120
    v_lshl_add_u32 v{vQR}, v132, 4, v{vQR}
    ; k write: 512w + 256(c>>3) + 64g + 32((c>>2)&1) + 4(c&3)
    v_lshlrev_b32 v{vKW}, 8, v127
    v_lshl_add_u32 v{vKW}, v120, 6, v{vKW}
    v_lshl_add_u32 v{vKW}, v126, 5, v{vKW}
    v_lshl_add_u32 v{vKW}, v129, 2, v{vKW}
    s_lshl_b32 s30, {sW}, 9
    s_add_u32 s30, s30, {LK}
    v_add_u32 v{vKW}, s30, v{vKW}
    v_lshrrev_b32 v131, 3, v0
    v_and_b32 v133, 7, v0
    v_lshlrev_b32 v{vST}, 13, v131
    v_lshl_add_u32 v{vST}, v133, 3, v{vST}
    s_lshl_b32 s30, {sW}, 16
    s_lshl_b32 s31, {sH}, 6
    s_add_u32 s30, s30, s31
    s_add_u32 s30, s30, {CH_IN}
    v_add_u32 v{vST}, s30, v{vST}
    v_lshlrev_b32 v{vPUB}, 5, v124
    v_lshl_add_u32 v{vPUB}, v123, 4, v{vPUB}
    v_lshl_add_u32 v{vPUB}, v128, 3, v{vPUB}
    v_lshl_add_u32 v{vPUB}, v122, 2, v{vPUB}
    s_lshr_b32 s30, {sH}, 3
    s_lshl_b32 s30, s30, 9
    s_and_b32 s31, {sH}, 1
    s_lshl_b32 s31, s31, 8
    s_add_u32 s30, s30, s31
    s_bfe_u32 s31, {sH}, 0x20001
    s_lshl_b32 s31, s31, 6
    s_add_u32 s30, s30, s31
    v_add_u32 v{vPUB}, s30, v{vPUB}
    v_lshlrev_b32 v{vKX}, 9, v120
    v_lshl_add_u32 v{vKX}, v124, 8, v{vKX}
    v_lshl_add_u32 v{vKX}, v130, 6, v{vKX}
    v_lshl_add_u32 v{vKX}, v128, 4, v{vKX}
    s_lshr_b32 s30, {sW}, 1
    s_lshl_b32 s30, s30, 12
    s_and_b32 s31, {sW}, 1
    s_lshl_b32 s31, s31, 5
    s_add_u32 s30, s30, s31
    s_add_u32 s30, s30, 8192
    v_add_u32 v{vKX}, s30, v{vKX}
    v_lshlrev_b32 v{vG8}, 3, v0
    v_lshlrev_b32 v{vF8}, 2, v133
    v_and_b32 v{vF32}, 31, v0
    v_lshlrev_b32 v{vF32}, 2, v{vF32}
    s_cmp_lt_u32 {sW}, 2
    s_cbranch_scc0 L_ch_notouch
    s_add_u32 s30, {sW}, 1
    s_lshl_b32 s30, s30, 13
    v_lshlrev_b32 v{vTC}, 7, v0
    v_add_u32 v{vTC}, s30, v{vTC}
    L_ch_notouch:
    v_mov_b32 v{vSEN}, -1
    v_lshlrev_b32 v0, 10, v132
    v_lshl_add_u32 v0, v120, 7, v0
    v_lshl_add_u32 v0, v124, 6, v0
    s_lshl_b32 s30, {sW}, 2
    v_add_u32 v0, s30, v0
    v_mov_b32 v134, 0x3f80
    v_lshlrev_b32 v135, 4, v129
    v_lshlrev_b32 v134, v135, v134
    v_cmp_gt_u32 vcc, 2, v129
    v_mov_b32 v135, 0
    s_nop 0
    v_cndmask_b32 v134, v135, v134, vcc
    ''')
    for r in range(4): s(f'v_cmp_eq_u32 vcc, {r}, v130\ns_nop 1\nv_cndmask_b32 v{136+r}, v135, v134, vcc')
    s(f'ds_write_b128 v{vG16}, v[136:139] offset:{LSEL}')
    for r in range(4): s(f'v_mov_b32 v{ONES+r}, 0x3f803f80\nv_mov_b32 v{PM+r}, 0\nv_mov_b32 v{136+r}, -1')
    s(f'''
    s_mov_b32 s52, 0x000f000f
    s_mov_b32 s53, 0x000f000f
    s_mov_b32 {sC}, {f32(128**-0.5 * LOG2E)}
    s_mov_b32 {s4K}, 4096
    s_mov_b32 {sGL}, 0x17800000
    s_mov_b32 {sGH}, 0x50000000
    s_lshl_b32 s30, {sW}, 11
    s_lshl_b32 {sG1}, {sH}, 13
    s_add_u32 {sG1}, {sG1}, s30
    s_add_u32 {sG1}, {sG1}, {CH_IN}
    s_add_u32 {sG2}, s30, {CH_MEM}
    s_lshl_b32 {sFPO}, {sH}, 7
    s_add_u32 {sFCO}, {sFPO}, {F_C}
    s_add_u32 {sFPO}, {sFPO}, {F_P}
    s_lshl_b32 {sALO}, {sH}, 2
    s_add_u32 {sALO}, {sALO}, {F_AL}
    s_mov_b32 {sAL}, {F_AL}
    s_mov_b32 {sN}, 0
    s_mov_b32 {sL}, 0
    s_mov_b32 {sCV}, 0
    ''')
    set_srd(s, 12, 'mem0', 8192)
    wait_init(s, 120, 121, fail)
    s(f'''global_load_dword v121, v120, s[6:7] sc1
          s_waitcnt vmcnt(0)
          v_readfirstlane_b32 s30, v121
          s_cmp_ge_u32 s30, 32
          s_cbranch_scc1 L_ch_initF
          s_branch L_ch_initS''')

def body(mode, opts, fail):
    st = 'sc1' if mode == 'S' else ''
    s = S()
    s(f'L_ch_init{mode}:')
    for i in range(2): s(f'buffer_load_dwordx4 v[120:123], v{vG16}, {WS}, {sG1} offen offset:{1024*i} sc1')
    for i in range(4): s(f's_add_u32 s30, {sG2}, {8192*i}\nbuffer_load_dwordx4 v[120:123], v{vG16}, {WS}, s30 offen sc1\nbuffer_load_dwordx4 v[120:123], v{vG16}, {WS}, s30 offen offset:1024 sc1')
    s(f'''buffer_load_dword v120, v{vF8}, {WS}, {sAL} offen sc1
    buffer_store_dwordx4 v[136:139], v{vG16}, {WS}, {sG1} offen {st}
    buffer_store_dwordx4 v[136:139], v{vG16}, {WS}, {sG1} offen offset:1024 {st}
    s_mov_b64 exec, {sPUBX}
    buffer_store_dword v{vSEN}, v{vPUB}, {WS}, {sG2} offen {st}
    s_add_u32 s30, {sG2}, 8192
    buffer_store_dword v{vSEN}, v{vPUB}, {WS}, s30 offen {st}
    s_mov_b64 exec, -1
    s_waitcnt vmcnt(0) lgkmcnt(0)
    ''')
    for w in range(3): s(f's_cmp_eq_u32 {sW}, {w}\ns_cbranch_scc1 L_ch_layer{mode}{w}')
    s(f's_branch L_ch_layer{mode}3')
    out = resolve(s)[0]
    for w in range(4): out += wave(mode, w, opts, fail, st)
    return out

def wave(mode, w, opts, fail, st):
    T = f'{mode}{w}'
    P1 = opts.get('p1', (40, 44, 48, 52))[w]; D2 = opts.get('d2', 20); AW = 3
    tail = S()
    pts = opts.get('tl') or []
    def P(s, k):
        if k in pts: s(f's_memtime s[{70+2*pts.index(k)}:{71+2*pts.index(k)}]')
        sp = opts.get('cstamp')
        if sp and sp[1] == k: s('s_memtime s[62:63]\ns_waitcnt lgkmcnt(0)\ns_sub_u32 s62, s62, s60\ns_add_u32 s64, s64, s62')
        if sp and sp[0] == k: s('s_memtime s[60:61]\ns_waitcnt lgkmcnt(0)')
    def cnt(s, r):
        if opts.get('trace'): s(f's_add_u32 {r}, {r}, 1')
    def zero(s, r, n):
        for i in range(0, n, 2): s(f'v_mov_b64 {vr(r+i,2)}, 0')
    def kvload(s):
        s(f'buffer_load_dwordx4 {vr(KX,4)}, v{vKX}, {WS}, {sKV} offen sc1\nbuffer_load_dwordx4 {vr(KX+4,4)}, v{vKX}, {WS}, {sKV} offen offset:2048 sc1', 'kx')
        s(f's_add_u32 s30, {sKV}, {16384 + 1024*w}\ns_add_u32 s31, s30, 4096')
        s(f'buffer_load_dwordx4 {vr(VX,4)}, v{vG16}, {WS}, s30 offen sc1\nbuffer_load_dwordx4 {vr(VX+4,4)}, v{vG16}, {WS}, s31 offen sc1', 'vx')
    def prestage(s):
        for i, (t, tau) in enumerate(LDS_Q):
            for hf in range(2): stage(s, ('q', t, tau), POOL + 8*i, hf, 'pre')
    def kvstore(s, kreg):
        if opts.get('nokv'): return
        if w >= 2: s(f'buffer_store_dwordx4 {vr(kreg,4)}, v{vG16}, {WS}, {sKM} offen offset:{1024*(w-2)} sc1', 'far')
        s(f'buffer_store_dwordx2 {vr(AV,2)}, v{vG8}, {WS}, {sKM} offen offset:{2048 + 512*w} sc1', 'far')
    def cflag(s):
        if w == 2: s(f's_mov_b64 exec, 1\nbuffer_store_dword v{vFV}, v{vF8}, {WS}, {sFCO} offen sc1\ns_mov_b64 exec, -1', 'far')
    def touchmask(s):
        if w < 2: s(f's_add_u32 s30, {sPT}, 1\nv_cmp_gt_u32 vcc, s30, v{vFP}\ns_nop 0\ns_cmp_eq_u64 vcc, 0\ns_cselect_b32 s30, {24*32*1024}, 0\ns_add_u32 {sTCH}, {sKV}, s30')
    def farloads(s):
        if w < 2 and not opts.get('notouch'): s(f'buffer_load_dword v{vFV}, v{vTC}, {WS}, {sTCH} offen sc1', 'far')
        if w < 2 and not opts.get('nofp'): s(f'buffer_load_dword v{vFP}, v{vF8}, {WS}, {sFPO} offen sc1', 'far')
        if opts.get('nofp'): s(f'v_mov_b32 v{vFP}, -1')
    x = S(); farloads(x); cflag(x); kvstore(x, 0); nfar = sum(o.kind == 'vm' for o in x)
    x = S(); farloads(x); nfl = sum(o.kind == 'vm' for o in x)
    def book(s):
        s(f"""s_add_u32 {sN}, {sN}, 1
              s_and_b32 {sTAG}, {sN}, 1
              s_xor_b32 {sTAG}, {sTAG}, 1
              s_add_u32 s30, {sN}, 3
              s_and_b32 s30, s30, 3
              s_lshl_b32 s30, s30, 13
              s_add_u32 {sMN}, s30, {sG2}
              s_xor_b32 s30, s30, 0x4000
              s_add_u32 {sMC}, s30, {sG2}""")
    s = S()
    s(f"""L_ch_layer{T}:
    s_mul_i32 s30, {sL}, {LSTR}
    s_mul_i32 {sKV}, {sH}, {24*1024}
    s_add_u32 {sKV}, {sKV}, s30
    s_add_u32 {sKV}, {sKV}, {LB0 + O_QKV}
    s_lshl_b32 {sKM}, {sH}, 12
    s_add_u32 {sKN}, {sKM}, s30
    s_add_u32 {sKN}, {sKN}, {LB0 + O_KVM}
    s_add_u32 {sKM}, {sKM}, {CH_JUNK}
    s_lshl_b32 {sPT}, {sL}, 7
    s_add_u32 {sPT}, {sPT}, 1
    s_mov_b32 {sS}, 0""")
    if opts.get('trace'): s('s_mov_b32 s64, 0\ns_mov_b32 s65, 0\ns_mov_b32 s66, 0\ns_mov_b32 s67, 0\ns_mov_b32 s68, 0')
    for i in range(8): s(f'buffer_load_dword v{MA+i}, v0, {XIN}, 0 offen offset:{512*(i >> 2) + 16*(i & 3)}')
    zero(s, AQ, 32); prestage(s)
    s(f's_waitcnt vmcnt(0)\nds_write_b128 v{vG16}, {vr(MA,4)} offset:{LM + 2048*w}\nds_write_b128 v{vG16}, {vr(MA+4,4)} offset:{LM + 2048*w + 1024}')
    poll(s, vF8, sFPO, vFP, sPT, fail)
    if opts.get('trace'): s(f's_lshl_b32 s69, {sL}, 4\ns_add_u32 s69, s69, 2')
    stamp(s, opts, 's69', MA)
    if opts.get('cstamp'): s('s_memtime s[60:61]\ns_waitcnt lgkmcnt(0)')
    kvload(s); touchmask(s); book(s)
    if w == 2: s(f'v_mov_b32 v{vFV}, {sCV}')
    s('s_waitcnt lgkmcnt(0)')
    pre = resolve(s)[0]
    s = S()
    s(f'L_ch_step{T}:'); P(s, 'b0in'); s('s_barrier'); P(s, 'b0')
    def rdma(t): s(f'ds_read_b128 {vr(MA+4*t,4)}, v{vG16} offset:{LM + 1024*t}', f'ma{t}')
    rdma(0); rdma(1); rdma(2)
    kvstore(s, AV+4); farloads(s); cflag(s)
    s(f's_mov_b32 {sKM}, {sKN}\ns_add_u32 {sKN}, {sKN}, {32*4096}\ns_mov_b32 {sMS}, {sMN}')
    def s1(m, i, tt=None):
        t, tau = tt or (i >> 1, i & 1); key = (m, t, tau)
        acc = {'q': AQ, 'k': AK, 'v': AV}[m] + 4*tau
        if in_lds(key):
            j = (LDS_Q if m == 'q' else LDS_K).index((t, tau)); b = POOL + 8*j
            if m == 'k': s.W('ds', f'k{j}')
        else: b = home[key]
        if m == 'q' and tau == 0: s.W('ds', f'ma{t}')
        s(smf(acc, MA + 4*t, b)); P(s, f'{m}{i}')
    for i in range(16):
        s1('q', i)
        if i < 5: rdma(i + 3)
        elif i < 15: stage(s, ('k',) + LDS_K[(i-5) >> 1], POOL + 8*((i-5) >> 1), (i-5) & 1, f'k{(i-5) >> 1}')
        if i == 1 and w == 2: s(f'v_mov_b32 v{vFV}, {sCV}')
        if i == 3: s(f's_add_u32 {sCV}, {sCV}, 1')
        if i == 5 and w == AW: s(f'v_mov_b32 v{vFV}, {sCV}')
        if i in (7, 9, 11, 13): zero(s, AV + i - 7, 2)
    P(s, 'qend')
    def add(d, j): return f'v_add_f32 v{d+j}, v{d+j}, v{d+2+j}'
    def mul(d): return f'v_mul_f32 v{d}, {sC}, v{d}'
    ob = [('o',) + x for x in LDS_O]
    sreg = [MA, MA+8, MA+16, MA+24, POOL, POOL+8, POOL+16, POOL+24]
    def so(j, hf): stage(s, ob[j], sreg[j], hf, f'o{j}')
    NQ = 4; PR = KX
    FLP = opts.get('flp', 'v10'); PRP = opts.get('prp', ['v15', 'd2', 'd4', 'd5'])
    def al(k):
        if w != AW: return
        if k == FLP: s(f's_mov_b64 exec, 1\nbuffer_store_dword v{vFV}, v{vF32}, {WS}, {sALO} offen {st}\ns_mov_b64 exec, -1')
        if k in PRP: r = PRP.index(k); s(f'buffer_load_dword v{PR+r}, v{vF32}, {WS}, {sAL} offen sc1', f'pr{r}')
    s1('k', 0); s(add(AQ, 0)); s(add(AQ, 1))
    s1('k', 1); s(add(AQ+4, 0)); s(add(AQ+4, 1))
    s1('k', 2); s(mul(AQ)); s(mul(AQ+4))
    s1('k', 3); s(mul(AQ+1)); s(mul(AQ+5))
    s1('k', 4); s(f'v_cvt_pk_bf16_f32 v{AQ}, v{AQ}, v{AQ+4}\nv_cvt_pk_bf16_f32 v{AQ+1}, v{AQ+1}, v{AQ+5}')
    s1('k', 5); s(f'ds_write2_b32 v{vQW}, v{AQ}, v{AQ+1} offset1:4', 'qw')
    s1('k', 6); zero(s, AQ+2, 2)
    s1('k', 7); zero(s, AQ+4, 2)
    s1('k', 8); zero(s, AQ+6, 2)
    s1('k', 9); s.W('ds', 'qw'); s('s_barrier'); P(s, 'b1')
    for j in range(4):
        s(f'ds_read_b128 {vr(QB+4*j,4)}, v{vQR} offset:{LQ + 576*j}', f'qb{j}')
        if j == 1: zero(s, AQ, 2)
        s1('k', 10 + j)
    s.W('vm', 'vx'); s(f'v_swap_b32 v{VX+2}, v{VX+4}')
    s1('k', 14); s(f'v_swap_b32 v{VX+3}, v{VX+5}')
    s1('k', 15)
    s.W('ds', 'qb1'); s(smf(SX, KX, QB)); s(add(AK, 0))
    s.W('ds', 'qb3'); s(smf(SX, KX+4, QB+8)); s(add(AK, 1)); s(add(AK+4, 0))
    s1('v', 0); s(add(AK+4, 1)); s(f'v_cvt_pk_bf16_f32 v{AK}, v{AK}, v{AK+4}\nv_cvt_pk_bf16_f32 v{AK+1}, v{AK+1}, v{AK+5}')
    s1('v', 1); s(f'ds_write2_b32 v{vKW}, v{AK}, v{AK+1} offset1:4', 'kw'); s(add(SX, 0)); s(add(SX, 1))
    s1('v', 2); s(f'v_exp_f32 v{SX+2}, v{SX}\nv_exp_f32 v{SX+3}, v{SX+1}\ns_nop 0\nv_cvt_pk_bf16_f32 v{SX+2}, v{SX+2}, v{SX+3}')
    s1('v', 3); s(f'ds_write_b32 v{vG16}, v{SX+2} offset:{LP + 4*w}', 'pw'); zero(s, AK+2, 2)
    s1('v', 4); al('v4'); so(0, 0); zero(s, AK+4, 2)
    s1('v', 5); al('v5'); so(0, 1); zero(s, AK+6, 2)
    s1('v', 6); al('v6'); zero(s, AK, 2)
    s1('v', 7); s.W('ds', 'pw'); s('s_barrier'); P(s, 'b2')
    s(f'ds_read_b128 {vr(KA,4)}, v{vG16} offset:{LK}', 'ka0')
    s1('v', 8); s(f'ds_read_b128 {vr(KA+4,4)}, v{vG16} offset:{LK + 1024}', 'ka1')
    s1('v', 9); s(f'ds_read_b128 {vr(PX,4)}, v{vG16} offset:{LP}', 'px'); al('v9')
    s1('v', 10); al('v10'); so(1, 0)
    s1('v', 11); al('v11'); so(1, 1)
    s.W('ds', 'ka0'); s(smf(SM, KA, QB)); so(2, 0)
    s.W('ds', 'ka1'); s(smf(SM, KA+4, QB+8)); so(2, 1)
    s.W('ds', 'px')
    s(f'v_mfma_f32_16x16x32_bf16 {vr(LL,4)}, {vr(ONES,4)}, {vr(PX,4)}, 0'); so(4, 0)
    s1('v', 12); al('v12'); so(4, 1); s(add(SM, 0)); s(add(SM, 1))
    s1('v', 13, (7, 0)); al('v13'); so(5, 0); s(f'v_exp_f32 v{SM+2}, v{SM}')
    s1('v', 14, (6, 1)); al('v14'); so(5, 1); s(f'v_exp_f32 v{SM+3}, v{SM+1}')
    s1('v', 15); al('v15'); so(6, 0); s(f'v_cvt_pk_bf16_f32 v{PM}, v{SM+2}, v{SM+3}')
    P(s, 'vend')
    s(f'v_mfma_f32_16x16x32_bf16 {vr(OX,4)}, {vr(VX,4)}, {vr(PX,4)}, 0')
    al('d0'); s(add(AV, 0)); s(add(AV, 1))
    s(f'v_mfma_f32_16x16x32_bf16 {vr(OX+4,4)}, {vr(VX+4,4)}, {vr(PX,4)}, 0')
    so(6, 1); s(add(AV+4, 0)); s(add(AV+4, 1))
    s(f'v_mfma_f32_16x16x16_bf16 {vr(LL,4)}, {vr(ONES,2)}, {vr(PM,2)}, {vr(LL,4)}')
    al('d2'); s(f's_cmp_eq_u32 {sS}, 63')
    s(f'v_cvt_pk_bf16_f32 v{AV}, v{AV}, v{AV+1}\nv_cvt_pk_bf16_f32 v{AV+1}, v{AV+4}, v{AV+5}\nv_mov_b32 v{PM+3}, v{PM}')
    s(f's_cbranch_scc1 L_ch_last{T}')
    s(f'v_mfma_f32_16x16x16_bf16 {vr(OX,4)}, {vr(AV,2)}, {vr(PM,2)}, {vr(OX,4)}')
    al('d3'); so(3, 0)
    s(f'v_mfma_f32_16x16x16_bf16 {vr(OX+4,4)}, {vr(AV,2)}, {vr(PM+2,2)}, {vr(OX+4,4)}')
    so(3, 1); al('d4')
    s(f'v_rcp_f32 v{LL+2}, v{LL}\nv_subrev_u32 v{LL+1}, {sGL}, v{LL}\nv_cmp_lt_u32 vcc, {sGH}, v{LL+1}\ns_nop 0')
    s(f'L_ch_norm{T}:'); P(s, 'norm')
    for r in range(4): s(f'v_mul_f32 v{OX+r}, v{LL+2}, v{OX+r}')
    for r in range(4): s(f'v_mul_f32 v{OX+4+r}, v{LL+2}, v{OX+4+r}')
    for r in range(4): s(f'v_cvt_pk_bf16_f32 v{OX+r}, v{OX+r}, v{OX+4+r}')
    s(f'ds_write_b128 v{vG16}, {vr(OX,4)} offset:{LO + 1024*w}', 'ow')
    P(s, 'ow'); al('d5')
    s(f's_cbranch_vccnz L_ch_safe{T}')
    AWO = AQ
    for u in range(4):
        s(smf(AWO + 4*u, OX, home['o', u, 0]))
        if u == opts.get('chk', 1) and w == AW: s.W('vm', 'pr0'); s(f'v_cmp_gt_u32 vcc, v{vFV}, v{PR}')
    if w == AW:
        s(f's_cbranch_vccnz L_ch_amiss{T}\nL_ch_aok{T}:')
        tail(f'L_ch_amiss{T}:\ns_mov_b32 {sSPIN}, 0\nL_ch_apoll{T}:')
        for r in list(range(1, NQ)) + [0]:
            cnt(tail, 's67')
            tail(f'buffer_load_dword v{PR+(r+NQ-1)%NQ}, v{vF32}, {WS}, {sAL} offen sc1\ns_waitcnt vmcnt({NQ-1})\nv_cmp_gt_u32 vcc, v{vFV}, v{PR+r}\ns_cbranch_vccz L_ch_aok{T}')
        tail(f's_add_u32 {sSPIN}, {sSPIN}, 1\ns_cmp_lt_u32 {sSPIN}, {SPIN_MAX}\ns_cbranch_scc1 L_ch_apoll{T}\ns_branch {fail}')
    P(s, 'own'); s.W('ds', 'ow'); s('s_barrier'); P(s, 'b3')
    OA = [OX, OX+4, SX, SM]
    for z in (1, 2, 3): s(f'ds_read_b128 {vr(OA[z],4)}, v{vG16} offset:{LO + 1024*((w+z) & 3)}', f'oa{z}')
    def epi(u, part):
        d = AWO + 4*u
        if part == 0: s(f'v_cvt_pk_bf16_f32 v{d}, v{d}, v{d+2}\nv_cvt_pk_bf16_f32 v{d+1}, v{d+1}, v{d+3}\nv_and_or_b32 v{d}, v{d}, -2, {sTAG}')
        else: s(f'buffer_store_dwordx2 {vr(d,2)}, v{vST}, {WS}, {"0" if u < 2 else s4K} offen offset:{2048*(u & 1)} {st}')
    late = [(7, 0), (7, 1)]
    for u in range(4):
        for z in (1, 2, 3):
            key = ('o', u, z)
            if u == 0: s.W('ds', f'oa{z}')
            if in_lds(key): j = ob.index(key); s.W('ds', f'o{j}'); b = sreg[j]
            else: b = home[key]
            s(smf(AWO + 4*u, OA[z], b)); P(s, f'o{u}{z}')
            if late and (u, z) > (0, 2): so(*late.pop(0))
            if u > 0 and z == 2: epi(u-1, 0)
            if u > 0 and z == 3: epi(u-1, 1)
    SEL, RA = OX, OX+4
    s(f'ds_read_b128 {vr(SEL,4)}, v{vG16} offset:{LSEL}', 'sel')
    s('s_nop 5')
    epi(3, 0); epi(3, 1); P(s, 'st3')
    s(f's_add_u32 {sPT}, {sPT}, 1\ns_add_u32 {sKV}, {sKV}, {0 if opts.get("samekv") else 24*32*1024}')
    if w >= 2: s(f'ds_read_b128 {vr(AV+4,4)}, v{vG16} offset:{LK + 1024*(w-2)}', 'kre')
    zero(s, AQ, 12); zero(s, SX, 8); zero(s, AQ+12, 4)
    P(s, 'zer'); s.nops(max(0, P1 - 14 - (w >= 2)))
    G = [MA, MA+8, MA+16]
    def h1l(t, r): t(f'buffer_load_dwordx4 {vr(G[r],4)}, v{vG16}, {WS}, {sG1} offen sc1\nbuffer_load_dwordx4 {vr(G[r]+4,4)}, v{vG16}, {WS}, {sG1} offen offset:1024 sc1')
    def h2l(t, r): t(f'buffer_load_dwordx4 {vr(G[r],4)}, v{vG16}, {WS}, {sMS} offen sc1\nbuffer_load_dwordx4 {vr(G[r]+4,4)}, v{vG16}, {WS}, {sMS} offen offset:1024 sc1')
    TM = MA + 30
    def h1f(t, r, out):
        b = G[r]
        t(f'''s_waitcnt vmcnt({out+1})
              v_mfma_f32_16x16x32_bf16 {vr(RA,4)}, {vr(SEL,4)}, {vr(b,4)}, 0
              v_bitop3_b32 v{TM}, v{b}, v{b+2}, {sTAG} bitop3:0x7e
              s_waitcnt vmcnt({out})
              v_mfma_f32_16x16x32_bf16 {vr(RA,4)}, {vr(SEL,4)}, {vr(b+4,4)}, {vr(RA,4)}
              v_bitop3_b32 v{TM+1}, v{b+4}, v{b+6}, {sTAG} bitop3:0x7e
              v_bitop3_b32 v{TM}, v{TM}, v{TM+1}, 1 bitop3:0xa8
              v_cmp_ne_u32 vcc, 0, v{TM}''')
    def h2f(t, r, out):
        b = G[r]
        t(f'''s_waitcnt vmcnt({out+1})
              ds_write_b128 v{vG16}, {vr(b,4)} offset:{LM + 2048*w}
              v_max3_u32 v{TM+1}, v{b}, v{b+1}, v{b+2}
              s_waitcnt vmcnt({out})
              ds_write_b128 v{vG16}, {vr(b+4,4)} offset:{LM + 2048*w + 1024}
              v_max3_u32 v{TM+1}, v{TM+1}, v{b+3}, v{b+4}
              v_max3_u32 v{TM+1}, v{TM+1}, v{b+5}, v{b+6}
              v_max_u32 v{TM+1}, v{TM+1}, v{b+7}
              v_cmp_eq_u32 vcc, -1, v{TM+1}''')
    def retry(tag, ld, fin, c):
        tail(f'L_ch_miss{tag}{T}:\ns_mov_b32 {sSPIN}, 0'); cnt(tail, c)
        for r in range(2): ld(tail, r); tail('s_nop 9')
        tail(f'L_ch_poll{tag}{T}:')
        for r in range(3):
            ld(tail, (r+2) % 3); fin(tail, r, 4); tail(f's_cbranch_vccz L_ch_got{tag}{T}')
        tail(f's_add_u32 {sSPIN}, {sSPIN}, 1\ns_cmp_lt_u32 {sSPIN}, {SPIN_MAX}\ns_cbranch_scc1 L_ch_poll{tag}{T}\ns_branch {fail}')
        tail(f'L_ch_got{tag}{T}:')
        tail('s_waitcnt vmcnt(0)' if tag == 'b' else 's_nop 2')
        tail(f's_branch L_ch_ok{tag}{T}')
    P(s, 'h1'); h1l(s, 0)
    s('s_waitcnt lgkmcnt(0)')
    h1f(s, 0, 0); s(f's_nop 3\ns_cbranch_vccnz L_ch_missa{T}\nL_ch_oka{T}:'); retry('a', h1l, h1f, 's65')
    P(s, 'h1ok')
    s(f'''v_add_f32_dpp v{RA}, v{RA}, v{RA} row_ror:4 row_mask:0xf bank_mask:0xf
          v_add_f32_dpp v{RA+1}, v{RA+1}, v{RA+1} row_ror:4 row_mask:0xf bank_mask:0xf
          {f'v_cmp_gt_u32 vcc, {sPT}, v{vFP}' if w == 0 else 's_nop 0'}
          v_add_f32_dpp v{RA}, v{RA}, v{RA} row_ror:8 row_mask:0xf bank_mask:0xf
          v_add_f32_dpp v{RA+1}, v{RA+1}, v{RA+1} row_ror:8 row_mask:0xf bank_mask:0xf
          s_mov_b64 exec, {sPUBX}
          v_cvt_pk_bf16_f32 v{TM}, v{RA}, v{RA+1}
          v_min_u32 v{TM}, -2, v{TM}
          buffer_store_dword v{TM}, v{vPUB}, {WS}, {sMS} offen {st}''')
    if w == 0:
        s(f's_cbranch_vccnz L_ch_pwait{T}\nL_ch_pok{T}:')
        tail(f'L_ch_pwait{T}:\ns_mov_b64 exec, -1'); cnt(tail, 's68'); poll(tail, vF8, sFPO, vFP, sPT, fail, sleep=0); tail(f's_mov_b64 exec, {sPUBX}\ns_branch L_ch_pok{T}')
    s(f'''s_barrier
          buffer_store_dword v{vSEN}, v{vPUB}, {WS}, {sMC} offen {st}
          s_mov_b64 exec, -1''')
    P(s, 'xb')
    prestage(s)
    s.nops(max(0, D2 - 14))
    P(s, 'h2'); h2l(s, 0)
    touchmask(s)
    s.nops(opts.get('d3', 10))
    kvload(s); s(f's_add_u32 {sS}, {sS}, 1'); book(s)
    P(s, 'kvl')
    h2f(s, 0, 4); s(f's_cbranch_vccnz L_ch_missb{T}\nL_ch_okb{T}:'); retry('b', h2l, h2f, 's66')
    P(s, 'h2ok')
    P(s, 'end')
    if opts.get('trace'):
        s(f's_cmp_eq_u32 {sS}, 13\ns_cbranch_scc1 L_ch_m0{T}\ns_cmp_eq_u32 {sS}, 63\ns_cbranch_scc1 L_ch_m1{T}\nL_ch_mb{T}:')
        tail(f'L_ch_m0{T}:\ns_memtime s[58:59]\ns_memrealtime s[60:61]\ns_mov_b32 s65, 0\ns_mov_b32 s66, 0\ns_mov_b32 s67, 0\ns_branch L_ch_mb{T}')
        tail(f'L_ch_m1{T}:\ns_memtime s[62:63]\ns_memrealtime s[98:99]\ns_waitcnt lgkmcnt(0)\ns_sub_u32 s64, s62, s58\ns_sub_u32 s60, s98, s60\ns_branch L_ch_mb{T}')
    s('s_waitcnt lgkmcnt(0)')
    if pts:
        s(f's_cmp_eq_u32 {sS}, {opts.get("tls", 41)}\ns_cbranch_scc0 L_ch_step{T}')
        s(f's_lshl_b32 s100, {sROLE}, 2\ns_add_u32 s100, s100, {sW}\ns_lshl_b32 s100, s100, 9\ns_add_u32 s100, s100, {TRACE+256}\nv_mov_b32 v{TM}, s100')
        for i in range(len(pts)): s(f'v_mov_b32 v{TM+1}, s{70+2*i}\nbuffer_store_dword v{TM+1}, v{TM}, {WS}, 0 offen offset:{4*i}\ns_waitcnt vmcnt(0)')
    s(f's_branch L_ch_step{T}')
    step = resolve(s, pre_vm=['kx']*2 + ['vx']*2)[0]
    t = tail
    t(f'L_ch_last{T}:')
    if w >= 2: t(f'ds_read_b128 {vr(AV+4,4)}, v{vG16} offset:{LK + 1024*(w-2)}\ns_waitcnt lgkmcnt(0)')
    kvstore(t, AV+4)
    t(f's_waitcnt vmcnt({0 if opts.get("nokv") else 2 if w >= 2 else 1})\ns_barrier'); cflag(t)
    t(f's_sub_u32 {sN}, {sN}, 1\ns_waitcnt vmcnt({1 if w == 2 else 0})\nv_mov_b32 v{vFV}, {sCV}\ns_barrier')
    cflag(t)
    if opts.get('trace'): t('s_add_u32 s69, s69, 1')
    stamp(t, opts, 's69', MA)
    if opts.get('trace'):
        for i, r in enumerate(('s64', 's65', 's66', 's67', 's68', 's60')):
            t(f'v_mov_b32 v{MA}, {r}\nv_add_u32 v{MA+1}, 4, v{MA+1}\nbuffer_store_dword v{MA}, v{MA+1}, {WS}, 0 offen\ns_nop 1')
    t(f'''s_waitcnt vmcnt(0) lgkmcnt(0)
          s_barrier
          s_add_u32 {sL}, {sL}, 1
          s_cmp_lt_u32 {sL}, {opts.get('nl', 2)}
          s_cbranch_scc1 L_ch_layer{T}
          s_endpgm''')
    m, m2 = LL + 1, LL + 3
    t(f'L_ch_safe{T}:\nv_max3_f32 v{m}, v{SX}, v{SX+1}, v{SM}\nv_max_f32 v{m}, v{m}, v{SM+1}')
    xreduce(t, m, m2, 'v_max_f32', dpp=())
    t(f'''ds_write_b32 v{vG16}, v{m} offset:{LMX + 4*w}
          s_waitcnt lgkmcnt(0)
          s_barrier
          ds_read_b128 {vr(PX,4)}, v{vG16} offset:{LMX}
          s_waitcnt lgkmcnt(0)
          v_max3_f32 v{m}, v{PX}, v{PX+1}, v{PX+2}
          v_max_f32 v{m}, v{m}, v{PX+3}''')
    for b in (SX, SM):
        for r in range(2): t(f'v_sub_f32 v{b+2+r}, v{b+r}, v{m}\nv_exp_f32 v{b+2+r}, v{b+2+r}')
    t(f'''s_nop 0
          v_cvt_pk_bf16_f32 v{SX+2}, v{SX+2}, v{SX+3}
          v_cvt_pk_bf16_f32 v{PM}, v{SM+2}, v{SM+3}
          v_cvt_pk_bf16_f32 v{PM+3}, v{SM+2}, v{SM+3}
          ds_write_b32 v{vG16}, v{SX+2} offset:{LP + 4*w}
          s_waitcnt lgkmcnt(0)
          s_barrier
          ds_read_b128 {vr(PX,4)}, v{vG16} offset:{LP}
          s_waitcnt lgkmcnt(0)
          v_mfma_f32_16x16x32_bf16 {vr(LL,4)}, {vr(ONES,4)}, {vr(PX,4)}, 0
          v_mfma_f32_16x16x32_bf16 {vr(OX,4)}, {vr(VX,4)}, {vr(PX,4)}, 0
          v_mfma_f32_16x16x32_bf16 {vr(OX+4,4)}, {vr(VX+4,4)}, {vr(PX,4)}, 0
          s_nop 7
          v_mfma_f32_16x16x16_bf16 {vr(LL,4)}, {vr(ONES,2)}, {vr(PM,2)}, {vr(LL,4)}
          v_mfma_f32_16x16x16_bf16 {vr(OX,4)}, {vr(AV,2)}, {vr(PM,2)}, {vr(OX,4)}
          v_mfma_f32_16x16x16_bf16 {vr(OX+4,4)}, {vr(AV,2)}, {vr(PM+2,2)}, {vr(OX+4,4)}
          s_nop 7
          v_rcp_f32 v{LL+2}, v{LL}
          s_mov_b64 vcc, 0
          s_branch L_ch_norm{T}''')
    return pre + step + resolve(tail)[0]

def role_chain(opts):
    fail = 'L_ch_fail'
    s = S(); setup(s, opts, fail)
    return resolve(s)[0] + body('F', opts, fail) + [f'{fail}:', 's_endpgm'] + body('S', opts, fail)
```

```python
from common import *

def dense_pairs(nks, rowbytes, dst, krow=lambda ks, jr: 32*ks + 2*jr):
    return [(krow(ks, jr) * rowbytes, dst(0, ks, jr), dst(1, ks, jr)) for ks in range(nks) for jr in range(4)]

def role_p(after, opts):
    s = S()
    fail = 'L_p_fail'; tl = TL(opts, 'p')
    sH, sU, sL, sS, sO, sIN, sSTR, sC, sFO, sFV, sRB, sWB, sW4 = [f's{i}' for i in range(32, 45)]
    sX = ['s46', 's47', 's48', 's49']
    vL16, vXa, vLR, vFo, vFp, vFt, vSF, vSW, vSR, vBP = range(1, 11)
    vA, vB = 12, 13
    AF, SF, GM, ONES, aK, aV, aQ, CS, ST = 16, 32, 48, 56, 60, 68, 76, 84, 108
    U = SF; RQ, NQ = 118, 119
    st = Stats(vSF, SF, GM, ONES, vSW, vSR, vBP, ST, 50)
    WK = lambda t, ks, jr=0: ('a', 8*ks + 4*t + jr)
    WV = lambda t, ks, jr=0: ('a', 128 + 8*ks + 4*t + jr)
    WQ = lambda t, ks, jr=0: 128 + 8*ks + 4*t + jr
    def mk(d, t, ks, a): return f'v_mfma_f32_16x16x32_bf16 {vr(d+4*t,4)}, {R(WK(t,ks),4)}, {a}, {"0" if ks == 0 else vr(d+4*t,4)}'
    def mv(d, t, ks, a): return f'v_mfma_f32_16x16x32_bf16 {vr(d+4*t,4)}, {a}, {R(WV(t,ks),4)}, {"0" if ks == 0 else vr(d+4*t,4)}'
    def mq(d, t, ks, a): return f'v_mfma_f32_16x16x32_bf16 {vr(d+4*t,4)}, {R(WQ(t,ks),4)}, {a}, {"0" if ks == 0 else vr(d+4*t,4)}'
    s(f'''L_role_p:
    s_lshr_b32 s30, {sROLE}, 5
    s_sub_u32 s30, s30, 1
    s_lshl_b32 s30, s30, 3
    s_bfe_u32 s31, {sROLE}, 0x30001
    s_add_u32 {sH}, s30, s31
    s_and_b32 {sU}, {sROLE}, 1
    v_lshlrev_b32 v{vL16}, 4, v0
    v_lshrrev_b32 v14, 4, v0
    v_and_b32 v15, 15, v0
    v_lshlrev_b32 v{vA}, 16, v14
    v_lshl_add_u32 v{vA}, v15, 2, v{vA}
    s_lshl_b32 s30, {sH}, 8
    s_lshl_b32 s31, {sW}, 6
    s_add_u32 s30, s30, s31
    v_add_u32 v{vA}, s30, v{vA}
    v_add_u32 v{vB}, 0x2000, v{vA}
    v_lshlrev_b32 v{vXa}, 10, v15
    v_lshl_add_u32 v{vXa}, v14, 4, v{vXa}
    s_lshl_b32 s30, {sW}, 8
    v_add_u32 v{vXa}, s30, v{vXa}
    ''')
    for key, dst in (('Wk', WK), ('Wv', WV), ('Wq', WQ)):
        set_srd(s, 16, key, 4*MB)
        load_pairs(s, dense_pairs(16, 8192, dst), vA, vB, 16, 64)
    set_srd(s, 12, 'x', 2*MB)
    st.setup(s, 49152, 12)
    s('s_nop 1')
    for ks in range(16):
        for t in range(2): s(mk(CS, t, ks, vr(ONES,4))); s(mv(CS+8, t, ks, vr(ONES,4))); s(mq(CS+16, t, ks, vr(ONES,4)))
    stamp(s, opts, 0, 12)
    wait_init(s, 12, 13, fail)
    s(f'''
    v_and_b32 v{vFo}, 7, v0
    v_lshlrev_b32 v{vFo}, 2, v{vFo}
    s_lshl_b32 s30, {sH}, 7
    s_lshl_b32 s31, {sU}, 4
    s_add_u32 s30, s30, s31
    s_lshl_b32 s31, {sW}, 2
    s_add_u32 s30, s30, s31
    s_add_u32 s30, s30, {F_P}
    v_mov_b32 v{vFp}, s30
    s_mov_b32 {sC}, {f32(128**-0.5 * LOG2E)}
    s_mov_b32 {sL}, 0
    s_lshl_b32 {sIN}, {sU}, 14
    s_mov_b32 {sSTR}, 64
    s_lshl_b32 {sW4}, {sW}, 12
    L_p_layer:
    s_mul_i32 {sO}, {sH}, 24
    s_lshl_b32 s30, {sU}, 2
    s_add_u32 {sO}, {sO}, s30
    s_add_u32 {sO}, {sO}, {sW}
    s_lshl_b32 {sO}, {sO}, 10
    s_mul_i32 s30, {sL}, {LSTR}
    s_add_u32 {sO}, {sO}, s30
    s_add_u32 {sO}, {sO}, {LB0 + O_QKV}
    s_lshl_b32 {sFV}, {sL}, 7
    s_mov_b32 {sS}, 0
    s_mov_b32 {sRB}, 0
    s_mov_b32 {sWB}, 0
    ''')
    def flag_offset(t, k):
        t(f'''s_add_u32 s30, {sS}, {k}
              s_min_u32 s30, s30, 63
              s_lshl_b32 s30, s30, 1
              s_add_u32 s30, s30, {sU}
              s_lshl_b32 {sFO}, s30, 5
              s_add_u32 {sFO}, {sFO}, {F_O}''')
    def ring(t, r): t(f's_add_u32 {r}, {r}, 0x4000\ns_cmp_eq_u32 {r}, 0xc000\ns_cselect_b32 {r}, 0, {r}')
    def dma(t, k):
        t(f'''s_add_u32 s30, {sS}, {k}
              s_min_u32 s30, s30, 63
              s_lshl_b32 s30, s30, 15
              s_add_u32 s30, s30, {sIN}
              s_add_u32 m0, {sWB}, {sW4}''')
        for i in range(4):
            if i: t(f's_add_u32 m0, m0, 1024\ns_add_u32 s30, s30, {sSTR}')
            else: t('s_nop 0')
            t(f'buffer_load_dwordx4 v{vXa}, {XIN}, s30 offen sc1 lds', 'x')
        ring(t, sWB)
    def flagload(t, k):
        flag_offset(t, k); t(f'buffer_load_dword v{vFt}, v{vFo}, {WS}, {sFO} offen sc1', 'fl')
    flag_offset(s, 0); poll(s, vFo, sFO, vFt, sL, fail); dma(s, 0); flagload(s, 1)
    s(f's_waitcnt vmcnt(0)\nv_cmp_gt_u32 vcc, {sL}, v{vFt}\ns_cbranch_vccnz L_p_slow0\nL_p_back0:')
    dma(s, 1); flagload(s, 2)
    if opts.get('trace'): s(f's_add_u32 s69, {sL}, 1')
    stamp(s, opts, 's69', 12)
    s(f'buffer_load_dword v12, v{vFo}, {WS}, {sFO} offen sc1\nbuffer_load_dword v13, v{vFo}, {WS}, {sFO} offen sc1')
    pre, _ = resolve(s)
    m = S(); f = S()
    def rd(ks, tag): m(f'ds_read_b128 v[{AF+4*(ks%4)}:{AF+4*(ks%4)+3}], v{vLR} offset:{1024*(ks%16)}', tag)
    m(f'L_p_loop:\ns_add_u32 s30, {sRB}, {sW4}\nv_add_u32 v{vSF}, s30, v{vL16}\nv_add_u32 v{vLR}, {sRB}, v{vL16}\ns_barrier')
    tl(m, 'bar'); st.reads(m); ring(m, sRB)
    st.mfmas(m, after=lambda i: rd(i, f'a{i}') if i < 3 else None)
    for i in range(32):
        ks = i % 16
        tl(m, f'i{i}'); m.W('ds', f'a{i}')
        a = vr(AF + 4*(i % 4), 4)
        if i < 16:
            m(mk(aK, 0, ks, a))
            if i + 3 < 32: rd(i + 3, f'a{i+3}')
            m(mk(aK, 1, ks, a)); m(mv(aV, 0, ks, a)); m(mv(aV, 1, ks, a))
            if i == 0: st.part1(m)
            if i == 2: m.W('ds', 'sw'); m('s_barrier'); st.part2(m)
            if i == 3:
                m(f's_cmp_eq_u32 {sS}, 0\ns_cbranch_scc1 L_p_nofl'); tl(m, 'qst'); m.W('vm', 'kv'); tl(m, 'ack')
                m(f's_mov_b64 exec, 1\nbuffer_store_dword v11, v{vFp}, {WS}, 0 offen sc1\ns_mov_b64 exec, -1', 'flag'); m('L_p_nofl:')
        else:
            m(mq(aQ, 0, ks, a))
            if i + 3 < 32: rd(i + 3, f'a{i+3}')
            m(mq(aQ, 1, ks, a))
    st.part3(f)
    for r in range(8): f(f'v_mul_f32 v{U+r}, v{st.NM}, v{CS+r}')
    f(f'v_mul_f32 v{RQ}, {sC}, v{st.RS}\nv_mul_f32 v{NQ}, {sC}, v{st.NM}')
    f.W('ds', 'bp')
    for r in range(8): f(f'v_mul_f32 v{U+8+r}, v{st.NMr + (r & 3)}, v{CS+8+r}')
    f('s_waitcnt vmcnt(2)'); f(f'v_cmp_gt_u32 vcc, {sL}, v{vFt}\ns_add_u32 {sFV}, {sFV}, 1\nv_mov_b32 v11, {sFV}\ns_cbranch_vccnz L_p_slow\nL_p_back:')
    dma(f, 2); flagload(f, 3)
    g = S()
    for r in range(8): g(f'v_fmac_f32 v{U+r}, v{st.RS}, v{aK+r}')
    for r in range(4): g(f'v_cvt_pk_bf16_f32 v{aK+r}, v{U+r}, v{U+4+r}')
    g(f's_add_u32 s31, {sO}, 8192\nbuffer_store_dwordx4 {vr(aK,4)}, v{vL16}, {WS}, s31 offen sc1', 'kv')
    for r in range(8): g(f'v_fmac_f32 v{U+8+r}, v{st.RSr + (r & 3)}, v{aV+r}')
    for r in range(4): g(f'v_cvt_pk_bf16_f32 v{aV+r}, v{U+8+2*r}, v{U+8+2*r+1}')
    g(f's_add_u32 s31, {sO}, 16384\nbuffer_store_dwordx4 {vr(aV,4)}, v{vL16}, {WS}, s31 offen sc1', 'kv')
    for r in range(8): g(f'v_mul_f32 v{U+r}, v{NQ}, v{CS+16+r}')
    cut = [i for i, o in enumerate(m) if is_mfma(o)][8 + 64]
    b = merge(S(m[:cut]), f, per=2, start=8 + 17)
    b.extend(merge(S(m[cut:]), g, per=3, start=0))
    tl(b, 'mend'); b('s_nop 6')
    for r in range(8): b(f'v_fmac_f32 v{U+r}, v{RQ}, v{aQ+r}')
    for r in range(4): b(f'v_cvt_pk_bf16_f32 v{aQ+r}, v{U+r}, v{U+4+r}')
    b(f'buffer_store_dwordx4 {vr(aQ,4)}, v{vL16}, {WS}, {sO} offen sc1', 'q')
    tl(b, 'end'); tl.dump(b, f's_cmp_eq_u32 {sS}, 40', 12)
    b(f'''s_add_u32 {sO}, {sO}, {24*32*1024}
          s_add_u32 {sS}, {sS}, 1
          s_cmp_lt_u32 {sS}, 64
          s_cbranch_scc1 L_p_loop''')
    body, q = resolve(b, pre_vm=['x']*4 + ['fl', 'kv', 'kv', 'q'])
    e = S()
    if opts.get('trace'): e(f's_add_u32 s69, {sL}, 3')
    stamp(e, opts, 's69', 12)
    e(f'''s_add_u32 {sFV}, {sFV}, 1
          v_mov_b32 v11, {sFV}
          s_waitcnt vmcnt(0) lgkmcnt(0)
          s_mov_b64 exec, 1
          buffer_store_dword v11, v{vFp}, {WS}, 0 offen sc1
          s_mov_b64 exec, -1
          s_barrier
          s_cmp_eq_u32 {sL}, {opts.get('nl', 2) - 1}
          s_cbranch_scc1 {after}
          s_mov_b32 {sL}, 1
          s_mov_b32 s12, s8
          s_mov_b32 s13, s9
          s_mov_b32 s14, s10
          v_add_u32 v{vXa}, {sW4}, v{vL16}
          s_add_u32 {sIN}, {sIN}, {LB0 + O_X2}
          s_mov_b32 {sSTR}, 1024
          s_branch L_p_layer
          L_p_slow:''')
    poll(e, vFo, sFO, vFt, sL, fail)
    e('s_branch L_p_back\nL_p_slow0:')
    poll(e, vFo, sFO, vFt, sL, fail)
    e(f's_branch L_p_back0\n{fail}:\ns_endpgm')
    return pre + body + resolve(e)[0]
```

```python
from common import *
from role_p import dense_pairs

def rep_rank(s, sR, sI, base):
    s(f's_lshr_b32 {sR}, {sROLE}, 5\ns_sub_u32 {sR}, {sR}, 5\ns_and_b32 {sI}, {sROLE}, 31\ns_sub_u32 {sI}, {sI}, {base}')
def layer_base(s, sHS, sLB, sHL):
    s(f's_lshr_b32 s30, {sHS}, 7\ns_mul_i32 {sLB}, s30, {LSTR}\ns_add_u32 {sLB}, {sLB}, {LB0}\ns_and_b32 {sHL}, {sHS}, 127')
def flag(s, vval, val, vzero, soff):
    s(f'v_mov_b32 v{vval}, {val}\ns_mov_b64 exec, 1\nbuffer_store_dword v{vval}, v{vzero}, {WS}, {soff} offen sc1\ns_mov_b64 exec, -1')
def lflag(s, sM, tail, vval, val, vzero, soff):
    s(f'v_mov_b32 v{vval}, {val}\ns_mov_b64 exec, 1'); dual(s, sM, tail, f'buffer_store_dword v{vval}, v{vzero}, {WS}, {soff} offen @'); s('s_mov_b64 exec, -1')
def tstamp(s, opts, sHS, vt, k=0):
    if opts.get('trace'):
        s(f's_mul_i32 s69, {sHS}, 21846\ns_lshr_b32 s69, s69, 16\ns_add_u32 s69, s69, 2'); stamp(s, opts, 's69', vt)

def role_x2(opts):
    s = S(); fail = 'L_x2_fail'; tl = TL(opts, 'x2')
    sR, sNB, sHS, sLB, sHL, sO, sT, sFI, sFO, sX, sM = [f's{i}' for i in range(32, 43)]; tail = S()
    vL16, vF, vFt, vA, vB, vRes, vLW, vLR = range(1, 9)
    AC, RS, PT, OB = 12, 20, 24, 128
    s('L_role_x2:'); rep_rank(s, sR, sNB, 0)
    s(f'''v_lshlrev_b32 v{vL16}, 4, v0
    v_lshrrev_b32 v10, 4, v0
    v_and_b32 v11, 15, v0
    v_lshlrev_b32 v{vA}, 13, v10
    v_lshl_add_u32 v{vA}, v11, 2, v{vA}
    s_lshl_b32 s30, {sW}, 20
    s_lshl_b32 s31, {sNB}, 6
    s_add_u32 s30, s30, s31
    v_add_u32 v{vA}, s30, v{vA}
    v_add_u32 v{vB}, 0x400, v{vA}
    v_lshlrev_b32 v{vRes}, 10, v11
    v_lshl_add_u32 v{vRes}, v10, 4, v{vRes}
    v_add_u32 v{vRes}, s31, v{vRes}
    s_lshl_b32 s30, {sW}, 11
    v_add_u32 v{vLW}, s30, v{vL16}
    v_mov_b32 v{vLR}, v{vL16}
    v_and_b32 v{vF}, 7, v0
    v_lshlrev_b32 v{vF}, 2, v{vF}
    s_lshl_b32 s30, {sR}, 7
    s_lshl_b32 s31, {sW}, 5
    s_add_u32 {sFI}, s30, s31
    s_add_u32 {sFI}, {sFI}, {F_X1}
    s_lshl_b32 s31, {sNB}, 2
    s_add_u32 {sFO}, s30, s31
    s_add_u32 {sFO}, {sFO}, {F_X2}
    s_mov_b32 {sHS}, {sR}''')
    set_srd(s, 16, 'Wo', 4*MB)
    load_pairs(s, dense_pairs(32, 1024, lambda t, ks, jr: ('a', 8*ks + 4*t + jr)), vA, vB, 16, 64)
    set_srd(s, 12, 'x', 2*MB)
    wait_init(s, 10, 11, fail); die_mode(s, sM, 10, 11)
    s('L_x2_loop:'); layer_base(s, sHS, sLB, sHL)
    s(f'''s_lshl_b32 {sO}, {sHL}, 17
    s_lshl_b32 s30, {sW}, 15
    s_add_u32 {sO}, {sO}, s30
    s_add_u32 {sO}, {sO}, {sLB}
    s_add_u32 {sO}, {sO}, {O_O}
    s_add_u32 {sT}, {sHS}, 1
    s_lshl_b32 {sX}, {sHL}, 14''')
    s(f'''s_cmp_lg_u32 {sW}, 0
    s_cbranch_scc1 L_x2_r2
    s_cmp_ge_u32 {sHS}, 128
    s_cbranch_scc1 L_x2_r1
    buffer_load_dwordx4 {vr(RS,4)}, v{vRes}, {XIN}, {sX} offen
    L_x2_r2:''')
    tail(f'L_x2_r1:\ns_lshl_b32 s31, {sHL}, 5\ns_add_u32 s31, s31, {F_O}'); poll(tail, vF, 's31', vFt, 1, fail)
    tail(f'''s_lshl_b32 s30, {sNB}, 10
    s_add_u32 s30, s30, {sX}
    s_add_u32 s30, s30, {LB0 + O_X2}
    buffer_load_dwordx4 {vr(RS,4)}, v{vL16}, {WS}, s30 offen sc1
    s_branch L_x2_r2''')
    tl(s, 'top'); poll(s, vF, sFI, vFt, sT, fail, sleep=0); tl(s, 'poll')
    AH = opts.get('x2ah', 6)
    def ld(ks):
        if ks and ks & 3 == 0: s(f's_add_u32 {sO}, {sO}, 4096')
        s(f'buffer_load_dwordx4 {vr(OB+4*ks,4)}, v{vL16}, {WS}, {sO} offen offset:{1024*(ks & 3)} sc1', f'o{ks}')
    for ks in range(AH): ld(ks)
    for ks in range(32):
        tl(s, f'w{ks}'); s.W('vm', f'o{ks}'); tl(s, f'g{ks}')
        for t in range(2):
            s(f'v_mfma_f32_16x16x32_bf16 {vr(AC+4*t,4)}, a[{8*ks+4*t}:{8*ks+4*t+3}], {vr(OB+4*ks,4)}, {"0" if ks == 0 else vr(AC+4*t,4)}')
            if t == 0 and ks + AH < 32: ld(ks + AH)
    s(f'''s_nop 7
    ds_write_b128 v{vLW}, {vr(AC,4)}
    ds_write_b128 v{vLW}, {vr(AC+4,4)} offset:1024
    s_waitcnt lgkmcnt(0)
    s_barrier
    s_cmp_lg_u32 {sW}, 0
    s_cbranch_scc1 L_x2_next''')
    tl(s, 'bar')
    for i in range(6): s(f'ds_read_b128 {vr(PT+4*i,4)}, v{vLR} offset:{2048 + 1024*i}', f'p{i}')
    s('s_waitcnt vmcnt(0)')
    for r in range(4):
        s(f'v_lshlrev_b32 v10, 16, v{RS+r}\nv_and_b32 v11, 0xffff0000, v{RS+r}\nv_add_f32 v{AC+r}, v{AC+r}, v10\nv_add_f32 v{AC+4+r}, v{AC+4+r}, v11')
    for i in range(6):
        s.W('ds', f'p{i}')
        for r in (0, 2): s(f'v_pk_add_f32 {vr(AC+4*(i&1)+r,2)}, {vr(AC+4*(i&1)+r,2)}, {vr(PT+4*i+r,2)}')
    for r in range(4): s(f'v_cvt_pk_bf16_f32 v{RS+r}, v{AC+r}, v{AC+4+r}')
    s(f'''s_lshl_b32 s30, {sNB}, 10
    s_add_u32 s30, s30, {sX}
    s_add_u32 s30, s30, {sLB}
    s_add_u32 s30, s30, {O_X1L}''')
    dual(s, sM, tail, f'buffer_store_dwordx4 {vr(RS,4)}, v{vL16}, {WS}, s30 offen @')
    s('s_waitcnt vmcnt(0)')
    tl(s, 'ack'); lflag(s, sM, tail, 10, sT, vF, sFO); tstamp(s, opts, sHS, 10)
    s('L_x2_next:'); tl.dump(s, f's_sub_u32 s30, {sHS}, {sR}\ns_cmp_eq_u32 s30, 60', 10)
    s(f'''
    v_xor_b32 v{vLW}, 0x2000, v{vLW}
    v_xor_b32 v{vLR}, 0x2000, v{vLR}
    s_add_u32 {sHS}, {sHS}, 3
    s_cmp_lt_u32 {sHS}, {128*opts.get('nl', 2)}
    s_cbranch_scc1 L_x2_loop
    {fail}:
    s_endpgm''')
    return resolve(s)[0] + resolve(tail)[0]

def role_x3(opts):
    s = S(); fail = 'L_x3_fail'; tl = TL(opts, 'x3')
    sR, sNB, sHS, sLB, sHL, sO, sT, sFI, sFO, sH, sC, sB, sW4, sG = [f's{i}' for i in range(32, 46)]
    sX = ['s46', 's47', 's48']
    vF, vFt, vA, vL16, vLR, vSF, vSW, vSR, vBP, vQK, vV, vCP = range(1, 13); vTA, vTS, vTT = 122, 123, 124
    AF, SF, GM, ONES, AC, CS, ST, CP = 16, 32, 48, 56, 60, 84, 108, 120
    U = SF; RQ, NQ = 118, 119
    st = Stats(vSF, SF, GM, ONES, vSW, vSR, vBP, ST, 50)
    def mm(d, m, ks, a):
        wv = f'a[{64*m+4*ks}:{64*m+4*ks+3}]'
        return f'v_mfma_f32_16x16x32_bf16 {vr(d+4*m,4)}, {wv if m < 2 else a}, {a if m < 2 else wv}, {"0" if ks == 0 else vr(d+4*m,4)}'
    s('L_role_x3:'); rep_rank(s, sR, sNB, 16)
    s(f"""s_lshl_b32 {sH}, {sNB}, 2
    s_add_u32 {sH}, {sH}, {sW}
    v_lshrrev_b32 v13, 4, v0
    v_and_b32 v14, 15, v0
    v_mul_u32_u24 v{vA}, {8*3072}, v13
    v_lshl_add_u32 v{vA}, v14, 1, v{vA}
    s_lshl_b32 s30, {sH}, 5
    v_add_u32 v{vA}, s30, v{vA}
    v_lshlrev_b32 v{vF}, 2, v14
    v_lshlrev_b32 v14, 4, v14
    v_and_b32 v15, 1, v13
    v_lshl_add_u32 v14, v15, 3, v14
    v_lshrrev_b32 v13, 1, v13
    v_lshl_add_u32 v{vQK}, v13, 9, v14
    v_lshl_add_u32 v{vV}, v13, 8, v14
    v_lshlrev_b32 v{vL16}, 4, v0
    s_lshl_b32 {sFI}, {sR}, 7
    s_add_u32 {sFI}, {sFI}, {F_X2}
    s_lshl_b32 {sFO}, {sH}, 7
    s_lshl_b32 s30, {sR}, 2
    s_add_u32 {sFO}, {sFO}, s30
    s_add_u32 {sFO}, {sFO}, {F_X3}
    s_mov_b32 {sC}, {f32(0.25 * LOG2E)}
    s_lshl_b32 {sW4}, {sW}, 12
    s_mov_b32 {sB}, 0
    s_mov_b32 {sHS}, {sR}""")
    set_srd(s, 16, 'wqkv', 512*3072)
    items = [((32*ks + 2*jr)*3072 + 1024*m, 64*m + 4*ks + jr) for m in range(3) for ks in range(16) for jr in range(4)]
    D = 30
    def issue(i):
        b = 16 + 2*(i % D)
        s(f's_mov_b32 s30, {items[i][0]}\nbuffer_load_ushort v{b}, v{vA}, {WSR}, s30 offen\nbuffer_load_ushort v{b+1}, v{vA}, {WSR}, s30 offen offset:3072')
    for i in range(D): issue(i)
    for i in range(len(items)):
        b = 16 + 2*(i % D)
        s(f's_waitcnt vmcnt({2*(min(len(items), i+D) - i - 1)})\nv_perm_b32 v13, v{b+1}, v{b}, {sSEL0}\nv_accvgpr_write_b32 a{items[i][1]}, v13')
        if i + D < len(items): issue(i + D)
    st.setup(s, 32768, 13); s('s_nop 1')
    for ks in range(16):
        for m in range(3): s(mm(CS, m, ks, vr(ONES, 4)))
    s(f"""v_cmp_gt_u32 vcc, 32, v0
    v_lshlrev_b32 v13, 7, v0
    s_lshl_b32 s30, {sH}, 12
    s_add_u32 s30, s30, {LB0 + O_O}
    v_add_u32 v13, s30, v13
    v_and_b32 v14, 3, v0
    v_lshlrev_b32 v14, 7, v14
    s_lshl_b32 s30, {sH}, 9
    s_add_u32 s30, s30, {LB0 + O_X1L}
    v_add_u32 v14, s30, v14
    v_cndmask_b32 v{vTA}, v14, v13, vcc
    v_mov_b32 v13, 14
    v_cndmask_b32 v{vTS}, v13, 17, vcc""")
    def touch(t, k):
        t(f"""s_add_u32 s30, {sHS}, {k}
        s_min_u32 s30, s30, 255
        s_and_b32 s31, s30, 127
        v_lshlrev_b32 v{vTT}, v{vTS}, s31
        v_add_u32 v{vTT}, v{vTA}, v{vTT}
        s_lshr_b32 s30, s30, 7
        s_mul_i32 s30, s30, {LSTR}
        buffer_load_dword v{vTT}, v{vTT}, {WS}, s30 offen sc1""")
    for k in (0, 3, 6): touch(s, k); s('s_waitcnt vmcnt(0)')
    wait_init(s, 13, 14, fail)
    s('L_x3_loop:'); layer_base(s, sHS, sLB, sHL)
    s(f"""s_lshl_b32 s30, {sHL}, 14
    s_add_u32 s30, s30, {sLB}
    s_lshl_b32 s31, {sH}, 9
    s_add_u32 {sG}, s30, s31
    s_add_u32 {sG}, {sG}, {O_X1}
    s_add_u32 s31, s31, {sB}
    v_lshrrev_b32 v{vCP}, 1, v{vL16}
    v_add_u32 v{vCP}, s31, v{vCP}
    s_add_u32 s30, s30, {sW4}
    s_add_u32 {sLB}, {sLB}, {O_BQ}
    s_add_u32 {sO}, s30, {O_X1L}
    s_add_u32 {sT}, {sHS}, 1
    s_mul_i32 s30, {sH}, {3*65536}
    s_add_u32 s30, s30, {sLB}
    s_lshr_b32 s31, {sHL}, 1
    s_lshl_b32 s31, s31, 10
    s_add_u32 s30, s30, s31
    s_and_b32 s31, {sHL}, 1
    s_lshl_b32 s31, s31, 8
    s_add_u32 {sX[0]}, s30, s31
    s_add_u32 {sX[1]}, {sX[0]}, 65536
    s_add_u32 {sX[2]}, {sX[1]}, 65536
    s_add_u32 {sX[2]}, {sX[2]}, s31
    s_add_u32 m0, {sB}, {sW4}
    v_add_u32 v{vSF}, m0, v{vL16}
    v_add_u32 v{vLR}, {sB}, v{vL16}
    s_xor_b32 {sB}, {sB}, 0x4000""")
    tl(s, 'top'); poll(s, vF, sFI, vFt, sT, fail, sleep=0); tl(s, 'poll')
    for i in range(4): s(f'buffer_load_dwordx4 v{vL16}, {WS}, {sO} offen offset:{1024*i} sc1 lds')
    s('s_waitcnt vmcnt(0)'); tl(s, 'ld'); s('s_barrier'); tl(s, 'bar')
    m = S(); f = S()
    def rd(ks): m(f'ds_read_b128 {vr(AF+4*(ks%4),4)}, v{vLR} offset:{1024*ks}', f'a{ks}')
    st.reads(m); touch(m, 9); st.mfmas(m, after=lambda i: rd(i) if i < 3 else m(f'ds_read_b64 {vr(CP,2)}, v{vCP}', 'cp'))
    for ks in range(16):
        m.W('ds', f'a{ks}'); a = vr(AF+4*(ks%4), 4)
        for t in range(3):
            m(mm(AC, t, ks, a))
            if t == 0 and ks + 3 < 16: rd(ks + 3)
        if ks == 0: st.part1(m)
        if ks == 1:
            m.W('ds', 'cp'); m(f'v_lshrrev_b32 v{vCP}, 1, v{vL16}\nbuffer_store_dwordx2 {vr(CP,2)}, v{vCP}, {WS}, {sG} offen sc1')
        if ks == 2: m.W('ds', 'sw'); m('s_barrier'); st.part2(m)
    st.part3(f)
    f(f'v_mul_f32 v{RQ}, {sC}, v{st.RS}\nv_mul_f32 v{NQ}, {sC}, v{st.NM}')
    for r in range(4): f(f'v_mul_f32 v{U+r}, v{NQ}, v{CS+r}\nv_mul_f32 v{U+4+r}, v{st.NM}, v{CS+4+r}')
    f.W('ds', 'bp')
    for r in range(4): f(f'v_mul_f32 v{U+8+r}, v{st.NMr+r}, v{CS+8+r}')
    s.extend(merge(m, f, per=2, start=8 + 13))
    s('s_nop 5')
    for t in range(3):
        for r in range(4): s(f'v_fmac_f32 v{U+4*t+r}, v{(RQ, st.RS, st.RSr+r)[t]}, v{AC+4*t+r}')
        s(f'v_cvt_pk_bf16_f32 v{AC+4*t}, v{U+4*t}, v{U+4*t+1}\nv_cvt_pk_bf16_f32 v{AC+4*t+1}, v{U+4*t+2}, v{U+4*t+3}')
        s(f'buffer_store_dwordx2 {vr(AC+4*t,2)}, v{vQK if t < 2 else vV}, {WS}, {sX[t]} offen sc1')
    tl(s, 'st'); s('s_waitcnt vmcnt(0)'); tl(s, 'ack')
    flag(s, 13, sT, vF, sFO); tstamp(s, opts, sHS, 13); tl.dump(s, f's_sub_u32 s30, {sHS}, {sR}\ns_cmp_eq_u32 s30, 60', 13)
    s(f"""s_add_u32 {sHS}, {sHS}, 3
    s_cmp_lt_u32 {sHS}, {128*opts.get('nl', 2)}
    s_cbranch_scc1 L_x3_loop
    {fail}:
    s_endpgm""")
    return resolve(s)[0]

sBI, sBN, sBC, sBL = 's60', 's61', 's62', 's63'
def load_wo(s):
    s(f'''v_lshrrev_b32 v10, 4, v0
    v_and_b32 v11, 15, v0
    v_lshrrev_b32 v12, 1, v10
    v_and_b32 v13, 1, v10
    v_lshlrev_b32 v14, 14, v12
    v_lshl_add_u32 v14, v13, 12, v14
    v_lshl_add_u32 v14, v11, 2, v14
    s_lshl_b32 s30, {sBC}, 9
    s_lshl_b32 s31, {sW}, 7
    s_add_u32 s30, s30, s31
    v_add_u32 v14, s30, v14
    v_add_u32 v15, 0x400, v14''')
    set_srd(s, 16, 'wo', 512*1024)
    pairs = [((32*ks + 8*(jr >> 1) + 2*(jr & 1))*1024 + 64*p, ('a', 16*ks + 8*p + jr), ('a', 16*ks + 8*p + 4 + jr)) for ks in range(16) for p in range(2) for jr in range(4)]
    load_pairs(s, pairs, 14, 15, 16, 64)

def role_bo(opts):
    s = S(); fail = 'L_bo_fail'
    sHS, sLB, sA, sX, sT, sF, sM = 's64', 's65', 's66', 's67', 's68', 's70', 's71'
    vL16, vF, vFt, vLR, vOut = 240, 241, 242, 243, 244
    AF, AC, RS = 200, 216, 232
    s(f'''L_bo_p:
    s_and_b32 {sBC}, {sROLE}, 1
    s_lshr_b32 s30, {sROLE}, 5
    s_sub_u32 s30, s30, 1
    s_lshl_b32 s30, s30, 3
    s_bfe_u32 s31, {sROLE}, 0x30001
    s_add_u32 {sBI}, s30, s31
    s_add_u32 {sBI}, {sBI}, 12
    s_mov_b32 {sBL}, 1''')
    load_wo(s)
    s(f'''L_bo:
    s_cmp_eq_u32 {sBL}, 0
    s_cselect_b32 {sBN}, 12, 44
    v_lshlrev_b32 v{vL16}, 4, v0
    v_mov_b32 v{vLR}, v{vL16}
    v_and_b32 v{vF}, 31, v0
    v_lshlrev_b32 v{vF}, 2, v{vF}
    v_lshrrev_b32 v{vFt}, 4, v0
    v_and_b32 v{vOut}, 15, v0
    v_lshlrev_b32 v{vOut}, 10, v{vOut}
    v_lshl_add_u32 v{vOut}, v{vFt}, 4, v{vOut}
    s_mul_i32 {sLB}, {sBL}, {LSTR}
    s_add_u32 {sLB}, {sLB}, {LB0}
    s_add_u32 {sT}, {sBL}, 1
    s_lshl_b32 {sM}, {sW}, 12
    s_mov_b32 {sHS}, {sBI}''')
    set_srd(s, 20, 'out', 2*MB)
    s(f'''L_bo_loop:
    s_lshr_b32 {sF}, {sHS}, 1
    s_lshl_b32 {sF}, {sF}, 7
    s_add_u32 {sF}, {sF}, {F_B}
    s_lshl_b32 s30, {sHS}, 14
    s_add_u32 s30, s30, {sLB}
    s_lshl_b32 s31, {sW}, 12
    s_add_u32 {sA}, s30, s31
    s_add_u32 {sA}, {sA}, {O_OB}
    s_lshl_b32 s31, {sBC}, 13
    s_add_u32 {sX}, s30, s31
    s_lshl_b32 s31, {sW}, 11
    s_add_u32 {sX}, {sX}, s31''')
    poll(s, vF, sF, vFt, sT, fail)
    s(f's_mov_b32 m0, {sM}\ns_add_u32 s30, {sX}, {O_X1}')
    for i in range(4): s(f'buffer_load_dwordx4 v{vL16}, {WS}, {sA} offen offset:{1024*i} sc1 lds')
    for p in range(2): s(f'buffer_load_dwordx4 {vr(RS+4*p,4)}, v{vL16}, {WS}, s30 offen offset:{1024*p} sc1')
    s('s_waitcnt vmcnt(2)\ns_barrier')
    def rd(ks): s(f'ds_read_b128 {vr(AF+4*(ks%4),4)}, v{vLR} offset:{1024*ks}', f'a{ks}')
    rd(0); rd(1); rd(2)
    for ks in range(16):
        s.W('ds', f'a{ks}')
        for t in range(4):
            s(f'v_mfma_f32_16x16x32_bf16 {vr(AC+4*t,4)}, a[{16*ks+4*t}:{16*ks+4*t+3}], {vr(AF+4*(ks%4),4)}, {"0" if ks == 0 else vr(AC+4*t,4)}')
            if t == 0 and ks + 3 < 16: rd(ks + 3)
    s(f'v_xor_b32 v{vLR}, 0x4000, v{vLR}\ns_xor_b32 {sM}, {sM}, 0x4000\ns_waitcnt vmcnt(0)\ns_nop 2')
    for p in range(2):
        for r in range(4):
            a0, a1, x = AC+8*p+r, AC+8*p+4+r, RS+4*p+r
            s(f'v_lshlrev_b32 v{AF}, 16, v{x}\nv_and_b32 v{AF+1}, 0xffff0000, v{x}\nv_add_f32 v{a0}, v{a0}, v{AF}\nv_add_f32 v{a1}, v{a1}, v{AF+1}\nv_cvt_pk_bf16_f32 v{x}, v{a0}, v{a1}')
    s(f'''s_cmp_eq_u32 {sBL}, 0
    s_cbranch_scc1 L_bo_mid
    s_lshl_b32 s30, {sHS}, 14
    s_lshl_b32 s31, {sBC}, 9
    s_add_u32 s30, s30, s31
    s_lshl_b32 s31, {sW}, 7
    s_add_u32 s30, s30, s31
    buffer_store_dwordx4 {vr(RS,4)}, v{vOut}, {OUT}, s30 offen
    buffer_store_dwordx4 {vr(RS+4,4)}, v{vOut}, {OUT}, s30 offen offset:64
    s_branch L_bo_next
    L_bo_mid:
    s_add_u32 s30, {sX}, {O_X2}
    buffer_store_dwordx4 {vr(RS,4)}, v{vL16}, {WS}, s30 offen sc1
    buffer_store_dwordx4 {vr(RS+4,4)}, v{vL16}, {WS}, s30 offen offset:1024 sc1
    s_lshl_b32 s30, {sHS}, 5
    s_lshl_b32 s31, {sBC}, 4
    s_add_u32 s30, s30, s31
    s_lshl_b32 s31, {sW}, 2
    s_add_u32 s30, s30, s31
    s_add_u32 s30, s30, {F_O}
    s_waitcnt vmcnt(0)''')
    flag(s, AF, 1, vF, 's30')
    s('L_bo_next:')
    if opts.get('trace'):
        s(f's_cmp_eq_u32 {sHS}, {sBI}\ns_cselect_b32 s69, 0, 1\ns_add_u32 s69, s69, 100\ns_lshl_b32 s30, {sBL}, 1\ns_add_u32 s69, s69, s30'); stamp(s, opts, 's69', AF)
    s(f'''s_add_u32 {sHS}, {sHS}, {sBN}
    s_cmp_lt_u32 {sHS}, 128
    s_cbranch_scc1 L_bo_loop
    s_cmp_lt_u32 {sBL}, {opts.get('nl', 2) - 1}
    s_cbranch_scc0 {fail}
    s_mov_b32 {sBL}, 1
    s_branch L_x1_layer
    {fail}:
    s_endpgm''')
    return resolve(s)[0]

def role_x1(with_bo, opts):
    s = S(); fail = 'L_x1_fail'; tl = TL(opts, 'x1')
    sR, sJ, sHS, sLB, sHL, sH, sQ, sKM, sO, sT, sFP, sFC, sFO, sPT, sCT, sEND, sPF, sM = [f's{i}' for i in range(32, 50)]; tail = S()
    MK = [f's[{50+2*r}:{51+2*r}]' for r in range(4)]
    vL16, vL8, vF, vZ, vFt, vFP, vKM, vNEG = range(1, 9)
    Q = [16, 32]; V = [48, 80]; K = 112; KM = 144; VM = 160; SD, SP, SMm = 168, 172, 176; PB, PMm = 180, 184; AC = 192; TT = 10
    s('L_role_x1:'); rep_rank(s, sR, sJ, 24)
    s(f'''s_lshl_b32 {sH}, {sJ}, 2
    s_add_u32 {sH}, {sH}, {sW}
    s_lshl_b32 s30, {sR}, 3
    s_add_u32 s30, s30, {sJ}
    s_and_b32 {sBC}, s30, 1
    s_lshr_b32 {sBI}, s30, 1
    s_mov_b32 {sBL}, 0''')
    if with_bo: load_wo(s)
    wait_init(s, 10, 11, fail); die_mode(s, sM, 10, 11)
    s(f'''v_lshlrev_b32 v{vL16}, 4, v0
    v_lshlrev_b32 v{vL8}, 3, v0
    v_and_b32 v{vF}, 7, v0
    v_lshlrev_b32 v{vF}, 2, v{vF}
    v_mov_b32 v{vZ}, 0
    v_mov_b32 v{vNEG}, {f32(-1e30)}
    v_lshrrev_b32 v10, 4, v0
    v_and_b32 v11, 15, v0
    v_lshrrev_b32 v12, 1, v10
    v_and_b32 v13, 1, v10
    v_lshrrev_b32 v14, 2, v11
    v_and_b32 v15, 1, v11
    v_lshlrev_b32 v{vKM}, 8, v12
    v_lshl_add_u32 v{vKM}, v13, 5, v{vKM}
    v_lshl_add_u32 v{vKM}, v14, 6, v{vKM}
    v_lshl_add_u32 v{vKM}, v15, 4, v{vKM}
    v_lshlrev_b32 v10, 2, v10''')
    for r in range(4): s(f'v_add_u32 v12, {r}, v10\nv_cmp_le_u32 {MK[r]}, v12, v11')
    s(f'''s_lshl_b32 s30, {sH}, 7
    s_add_u32 {sFP}, s30, {F_P}
    s_add_u32 {sFC}, s30, {F_C}
    s_lshl_b32 s30, {sR}, 7
    s_lshl_b32 s31, {sH}, 2
    s_add_u32 {sFO}, s30, s31
    s_add_u32 {sFO}, {sFO}, {F_X1}
    s_mov_b32 {sHS}, {sR}
    L_x1_layer:
    v_mov_b32 v{PMm+1}, 0
    v_mov_b32 v{PMm+2}, 0
    s_and_b32 {sEND}, {sHS}, 128
    s_add_u32 {sEND}, {sEND}, 128''')
    def qaddr(t, hs):
        t(f'''s_lshr_b32 s30, {hs}, 7
              s_mul_i32 {sQ}, s30, {LSTR}
              s_lshl_b32 {sPT}, s30, 7
              s_bfe_u32 s30, {hs}, 0x60001
              s_add_u32 {sPT}, {sPT}, s30
              s_add_u32 {sPT}, {sPT}, 2
              s_lshl_b32 s30, s30, 5
              s_add_u32 s30, s30, {sH}
              s_mul_i32 s30, s30, {24*1024}
              s_add_u32 {sQ}, {sQ}, s30
              s_add_u32 {sQ}, {sQ}, {LB0 + O_QKV}''')
    def loads(t, u):
        def four(reg, off, step=4):
            t(f's_add_u32 s30, {sQ}, {off}')
            for i in range(4): t(f'buffer_load_dwordx4 {vr(reg+step*i,4)}, v{vL16}, {WS}, s30 offen offset:{1024*i} sc1', 'pf')
        four(Q[u], 4096*u); four(K, 8192 + 4096*u)
        if u: four(K+16, 8192); four(V[u], 16384, 8); four(V[u]+4, 16384 + 4096, 8)
        else: four(V[u], 16384)
    s('L_x1_pro:'); qaddr(s, sHS); poll(s, vF, sFP, vFP, sPT, fail)
    s(f's_bitcmp1_b32 {sHS}, 0\ns_cbranch_scc1 L_x1_pro1\nL_x1_pro0:')
    loads(s, 0); s('s_waitcnt vmcnt(0)\ns_branch L_x1_task0\nL_x1_pro1:'); loads(s, 1); s('s_waitcnt vmcnt(0)\ns_branch L_x1_task1')
    out = resolve(s)[0]
    for u in range(2):
        s = S()
        s(f'L_x1_task{u}:'); tl(s, 'top')
        for ks in range(4):
            s(f'v_mfma_f32_16x16x32_bf16 {vr(SD,4)}, {vr(K+4*ks,4)}, {vr(Q[u]+4*ks,4)}, {"0" if ks == 0 else vr(SD,4)}')
            if u:
                s(f'v_mfma_f32_16x16x32_bf16 {vr(SP,4)}, {vr(K+16+4*ks,4)}, {vr(Q[u]+4*ks,4)}, {"0" if ks == 0 else vr(SP,4)}')
                s(f'v_swap_b32 v{V[u]+8*ks+2}, v{V[u]+8*ks+4}\nv_swap_b32 v{V[u]+8*ks+3}, v{V[u]+8*ks+5}')
        layer_base(s, sHS, sLB, sHL)
        s(f'''s_lshr_b32 {sCT}, {sHS}, 1
        s_add_u32 {sCT}, {sCT}, 1
        s_lshr_b32 s30, {sHL}, 1
        s_lshl_b32 s30, s30, 5
        s_add_u32 s30, s30, {sH}
        s_lshl_b32 {sKM}, s30, 12
        s_add_u32 {sKM}, {sKM}, {sLB}
        s_add_u32 {sKM}, {sKM}, {O_KVM}
        s_lshl_b32 {sO}, {sHL}, 17
        s_lshl_b32 s30, {sH}, 12
        s_add_u32 {sO}, {sO}, s30
        s_add_u32 {sO}, {sO}, {sLB}
        s_add_u32 {sO}, {sO}, {O_O}
        s_add_u32 {sT}, {sHS}, 1
        s_add_u32 {sHS}, {sHS}, 3''')
        qaddr(s, sHS)
        for r in range(4): s(f'v_cndmask_b32 v{SD+r}, v{vNEG}, v{SD+r}, {MK[r]}')
        m = TT
        s(f'v_max3_f32 v{m}, v{SD}, v{SD+1}, v{SD+2}\nv_max_f32 v{m}, v{m}, v{SD+3}')
        if u: s(f'v_max3_f32 v{m}, v{m}, v{SP}, v{SP+1}\nv_max3_f32 v{m}, v{m}, v{SP+2}, v{SP+3}')
        s(f'''v_cmp_gt_u32 vcc, {sPT}, v{vFP}
        s_mov_b32 {sPF}, 0
        s_cmp_lt_u32 {sHS}, {sEND}
        s_cbranch_scc0 L_x1_nopf{u}
        s_cbranch_vccnz L_x1_nopf{u}
        s_mov_b32 {sPF}, 1''')
        loads(s, 1 - u)
        s(f'L_x1_nopf{u}:')
        tl(s, 'pre'); poll(s, vZ, sFC, vFt, sCT, fail); tl(s, 'poll')
        for ks in range(4): s(f'buffer_load_dwordx4 {vr(KM+4*ks,4)}, v{vKM}, {WS}, {sKM} offen offset:{512*ks} sc1', f'km{ks}')
        for i in range(4): s(f'buffer_load_dwordx2 {vr(VM+2*i,2)}, v{vL8}, {WS}, {sKM} offen offset:{2048 + 512*i} sc1', 'vm')
        s(f'buffer_load_dword v{vFP}, v{vF}, {WS}, {sFP} offen sc1'); tl(s, 'go')
        for ks in range(4):
            s.W('vm', f'km{ks}')
            s(f'v_mfma_f32_16x16x32_bf16 {vr(SMm,4)}, {vr(KM+4*ks,4)}, {vr(Q[u]+4*ks,4)}, {"0" if ks == 0 else vr(SMm,4)}')
        tl(s, 'km'); s(f's_nop 7\nv_max3_f32 v{m}, v{m}, v{SMm}, v{SMm+1}')
        xreduce(s, m, m+1, 'v_max_f32', dpp=())
        regs = [SMm, SMm+1] + list(range(SD, SD+4)) + (list(range(SP, SP+4)) if u else [])
        for r in regs: s(f'v_sub_f32 v{r}, v{r}, v{m}')
        for r in regs: s(f'v_exp_f32 v{r}, v{r}')
        s(f'v_cvt_pk_bf16_f32 v{PMm}, v{SMm}, v{SMm+1}\nv_cvt_pk_bf16_f32 v{PMm+3}, v{SMm}, v{SMm+1}')
        s(f'v_cvt_pk_bf16_f32 v{PB+2}, v{SD}, v{SD+1}\nv_cvt_pk_bf16_f32 v{PB+3}, v{SD+2}, v{SD+3}')
        if u: s(f'v_cvt_pk_bf16_f32 v{PB}, v{SP}, v{SP+1}\nv_cvt_pk_bf16_f32 v{PB+1}, v{SP+2}, v{SP+3}')
        s.W('vm', 'vm'); s('s_nop 0')
        mm = S(); f = S()
        for i in range(8):
            if u: mm(f'v_mfma_f32_16x16x32_bf16 {vr(AC+4*i,4)}, {vr(V[u]+4*i,4)}, {vr(PB,4)}, 0')
            else: mm(f'v_mfma_f32_16x16x16_bf16 {vr(AC+4*i,4)}, {vr(V[u]+2*i,2)}, {vr(PB+2,2)}, 0')
        for i in range(8):
            mm(f'v_mfma_f32_16x16x16_bf16 {vr(AC+4*i,4)}, {vr(VM+2*(i>>1),2)}, {vr(PMm+2*(i&1),2)}, {vr(AC+4*i,4)}')
        f(f'v_add_f32 v{m}, v{regs[0]}, v{regs[1]}')
        for r in regs[2:]: f(f'v_add_f32 v{m}, v{m}, v{r}')
        xreduce(f, m, m+1, 'v_add_f32', dpp=())
        f(f'v_rcp_f32 v{m}, v{m}')
        s.extend(merge(mm, f, 2))
        for b in range(4):
            if b == 0: s('s_nop 1')
            for r in range(8): s(f'v_mul_f32 v{AC+8*b+r}, v{m}, v{AC+8*b+r}')
            for r in range(4): s(f'v_cvt_pk_bf16_f32 v{AC+8*b+r}, v{AC+8*b+r}, v{AC+8*b+4+r}')
            dual(s, sM, tail, f'buffer_store_dwordx4 {vr(AC+8*b,4)}, v{vL16}, {WS}, {sO} offen offset:{1024*b} @')
        tl(s, 'st'); s('s_waitcnt vmcnt(0)'); tl(s, 'ack')
        lflag(s, sM, tail, TT, sT, vZ, sFO); tl.dump(s, f's_sub_u32 s30, {sHS}, {sR}\ns_cmp_eq_u32 s30, 63', TT)
        if opts.get('trace'): s(f's_sub_u32 s31, {sHS}, 3'); tstamp(s, opts, 's31', TT)
        s(f'''s_cmp_eq_u32 {sPF}, 1
        s_cbranch_scc1 L_x1_task{1-u}
        s_cmp_lt_u32 {sHS}, {sEND}
        s_cbranch_scc1 L_x1_pro
        s_branch {"L_bo" if with_bo else fail}''')
        out += resolve(s)[0]
    return out + [f'{fail}:', 's_endpgm'] + resolve(tail)[0]
```

```python
import sys
from common import *
import role_p
def build(roles=('p',), opts=None):
    opts = opts or {}
    s = S()
    if opts.get('trace'): s('s_memrealtime s[96:97]')
    prologue(s)
    if opts.get('trace'):
        stamp(s, opts, 126, 2); s(f'v_mov_b32 v2, s96\nbuffer_store_dword v2, v3, {WS}, 0 offen offset:4')
    def go(cond, name):
        l = L('d'); s(f'{cond}\ns_cbranch_scc0 {l}\ns_branch {"L_role_" + name if name in roles else "L_exit"}\n{l}:')
    go(f's_cmp_lt_u32 {sROLE}, 32', 'chain')
    s(f's_and_b32 s30, {sROLE}, 31')
    l = L('d'); s(f's_cmp_lt_u32 {sROLE}, 160\ns_cbranch_scc0 {l}')
    go('s_cmp_lt_u32 s30, 16', 'p')
    s(f's_branch {"L_role_batt" if "batt" in roles else "L_exit"}\n{l}:')
    go('s_cmp_lt_u32 s30, 16', 'x2')
    go('s_cmp_lt_u32 s30, 24', 'x3')
    s(f's_branch {"L_role_x1" if "x1" in roles else "L_exit"}')
    lines = resolve(s)[0]
    if 'chain' in roles:
        import role_chain; lines += role_chain.role_chain(opts)
    if 'p' in roles: lines += role_p.role_p('L_bo_p' if 'bo' in roles and opts.get('nl', 2) == 2 else 'L_p_fail', opts)
    if 'x1' in roles:
        import role_x; lines += role_x.role_x1('bo' in roles, opts)
    if 'bo' in roles:
        import role_x; lines += role_x.role_bo(opts)
    if 'x2' in roles:
        import role_x; lines += role_x.role_x2(opts)
    if 'x3' in roles:
        import role_x; lines += role_x.role_x3(opts)
    if 'batt' in roles:
        import role_b; lines += role_b.role_batt(opts)
    ref = open(f'cdna_kernels/{NAME}.s.ref').read().split('\n')
    head = [x for x in ref[:ref.index('.text')] if x.startswith(';') and '@launch' not in x]
    body = '\n'.join(x if x.endswith(':') else '    ' + x for x in lines)
    return '\n'.join(head) + f'''
; @launch grid=(256,1,1) block=(256,1,1) lds=163840
.amdgcn_target "amdgcn-amd-amdhsa--gfx950"
.text
.globl {NAME}_kernel
.p2align 8
.type {NAME}_kernel,@function
{NAME}_kernel:
{body}
    s_endpgm
.section .rodata,"a"
.p2align 6
.amdhsa_kernel {NAME}_kernel
  .amdhsa_next_free_vgpr 512
  .amdhsa_next_free_sgpr 102
  .amdhsa_accum_offset 256
  .amdhsa_group_segment_fixed_size 0
  .amdhsa_kernarg_size 104
  .amdhsa_user_sgpr_count 2
  .amdhsa_user_sgpr_kernarg_segment_ptr 1
  .amdhsa_system_sgpr_workgroup_id_x 1
.end_amdhsa_kernel
'''
if __name__ == '__main__':
    out = sys.argv[1]; roles = sys.argv[2].split(',')
    opts = dict(eval(sys.argv[3])) if len(sys.argv) > 3 else {}
    open(out, 'w').write(build(roles, opts))
```

```python
import re

class Op:
    __slots__ = ('t', 'kind', 'tag')
    def __init__(self, t, kind=None, tag=None):
        self.t, self.kind, self.tag = t, kind, tag

def kind_of(t):
    m = t.split()[0]
    if m.startswith('ds_'): return 'ds'
    if m.startswith('buffer_') or m.startswith('global_'): return 'vm'
    return None

class S(list):
    def __call__(self, text, tag=None):
        for x in text.strip('\n').split('\n'):
            x = x.strip()
            if not x: continue
            self.append(Op(x, kind_of(x), tag))
        return self
    def W(self, kind, tag):
        self.append(Op(None, 'wait_' + kind, tag)); return self
    def nops(self, n):
        while n > 0:
            k = min(n, 16); self(f's_nop {k-1}'); n -= k
        return self

def resolve(stream, pre_vm=(), pre_ds=()):
    q = {'vm': list(pre_vm), 'ds': list(pre_ds)}
    mx = {'vm': 63, 'ds': 15}
    nm = {'vm': 'vmcnt', 'ds': 'lgkmcnt'}
    out = []
    for o in stream:
        if o.kind in ('wait_vm', 'wait_ds'):
            k = o.kind[5:]
            if o.tag == '*':
                out.append(f's_waitcnt {nm[k]}(0)'); q[k] = []; continue
            idx = [i for i, t in enumerate(q[k]) if t == o.tag]
            if not idx: continue
            n = len(q[k]) - 1 - idx[-1]
            n2 = min(n, mx[k])
            out.append(f's_waitcnt {nm[k]}({n2})')
            q[k] = q[k][len(q[k]) - n2:] if n2 else []
            continue
        out.append(o.t)
        if o.kind in q: q[o.kind].append(o.tag)
        if o.t.startswith('s_waitcnt'):
            for k in q:
                m = re.search(nm[k] + r'\((\d+)\)', o.t)
                if m:
                    n = int(m.group(1)); q[k] = q[k][len(q[k]) - n:] if n and n < len(q[k]) else (q[k] if n else [])
    return out, q

def is_mfma(o): return o.t is not None and (o.t.startswith('v_mfma') or o.t.startswith('v_smfmac'))
def is_vec(o): return o.t is not None and (o.t.startswith('v_') or o.kind in ('ds', 'vm'))

def merge(main, fill, per=2, start=0):
    out = S(); fi = 0; n = 0; pend = 0
    def pull(k):
        nonlocal fi
        while fi < len(fill) and k > 0:
            if fill[fi].kind in ('ds', 'vm'): break
            if is_vec(fill[fi]): k -= 1
            out.append(fill[fi]); fi += 1
    for i, o in enumerate(main):
        if pend and not (o.kind in ('ds', 'vm')):
            pull(pend); pend = 0
        out.append(o)
        if is_mfma(o):
            n += 1
            if n > start:
                pend = per(n) if callable(per) else per
                nxt = main[i+1] if i + 1 < len(main) else None
                if fi < len(fill) and fill[fi].kind in ('ds', 'vm') and not (nxt is not None and nxt.kind in ('ds', 'vm')):
                    out.append(fill[fi]); fi += 1
    out.extend(fill[fi:])
    return out

def vr(b, n=1, p='v'):
    return f'{p}{b}' if n == 1 else f'{p}[{b}:{b+n-1}]'
def R(r, n=1):
    if isinstance(r, tuple): return vr(r[1], n, 'a')
    return vr(r, n)
def radd(r, k):
    return ('a', r[1] + k) if isinstance(r, tuple) else r + k

def hoist_waits(st):
    out = S(); i = 0
    for o in st:
        if is_mfma(o):
            j = len(out)
            while j > 0 and out[j-1].kind in ('wait_vm', 'wait_ds'): j -= 1
            k = j
            while k > 0 and out[k-1].t and out[k-1].t.startswith('v_') and not is_mfma(out[k-1]): k -= 1
            if j < len(out) and k < j: out[k:] = out[j:] + out[k:j]
        out.append(o)
    return out

def model(lines, show=False):
    t = 0; pipe = 0; vfree = 0; prev_valu = False; last = 0; out = []
    for x in lines:
        m = x.split()[0] if x.split() else ''
        if not m or m.endswith(':') or m.startswith(';'): continue
        if m.startswith('v_mfma') or m.startswith('v_smfmac'):
            big = '32x32' in m
            t = max(t, pipe); pipe = t + (32 if big else 16); vfree = t + (12 if 'smf' in m else 8)
            out.append((t, t - last, x)); last = t; t += 4; prev_valu = False; continue
        t0 = t
        if m.startswith('v_'):
            t = max(t, vfree); t0 = t
            t += 8 if m.split('_')[1] in ('exp', 'rcp', 'rsq', 'swap', 'permlane16', 'permlane32') else 4; prev_valu = True
        elif m.startswith('ds_') or m.startswith('buffer_'):
            c = 8
            if 'write2' in m or 'write_b64' in m or 'store_dwordx2' in m: c = 16
            if 'write_b128' in m or 'store_dwordx4' in m: c = 24
            t += c + (4 if prev_valu else 0); prev_valu = False
        elif m == 's_nop': t += 4 * (int(x.split()[1]) + 1); prev_valu = False
        elif m.startswith('s_cbranch') or m == 's_barrier': t += 8; prev_valu = False
        else: t += 4; prev_valu = False
        out.append((t0, None, x))
    if show:
        for a, d, x in out: print(f'{a:5d} {("+" + str(d - 16)) if d is not None and d != 16 else "":>5s}  {x}')
    return t
```

```python
from common import *
LM, LK, LP, LSEL, LQ, LW = 0, 8192, 10240, 11264, 12288, 16384
LO, LMX = LQ, LM + 4096
WSTR = 18 * 2048
vIDX, vG16, vWL, vQW, vKW, vQR, vST, vPUB, vKX, vG8, vF8, vF32, vFV, vFP, vSEN = range(1, 16)
ONES, PM, KX, VX, MA, AQ, AK, AV, SX, SM, POOL = 16, 20, 24, 32, 40, 72, 80, 88, 96, 100, 104
QB, KA, PX, LL, OX = POOL, POOL+16, POOL+24, POOL+28, POOL+32
NWORK = 144
sH, sL, sS, sN, sTAG, sMS, sMC, sG1, sG2, sKV, sKM, sPT, sCV, sC, sFPO, sFCO, sALO, sAL, s4K = [f's{i}' for i in range(32, 51)]
sTCH = 's51'; sTC2 = 's3'; vSEN2 = PM + 3; sKN = 's56'; sMN = 's57'; CH_JUNK = 0x20000; vTC = 0; sH2, sH2O = 's4', 's5'
sPW = 's[20:21]'
sPUBX = 's[52:53]'; sGL, sGH = 's54', 's55'
LDS_Q = [(0,0),(0,1),(1,0),(1,1),(2,0)]
LDS_K = [(1,0),(2,0),(5,1),(6,1),(7,1)]
LDS_O = [(1,2),(1,3),(2,1),(2,2),(2,3),(3,1),(3,2),(3,3)]
home = {}
def _alloc():
    free = [NWORK + 8*i for i in range((256-NWORK)//8)] + [('a', 8*i) for i in range(32)]
    n = 0
    for m, ld in (('q', LDS_Q), ('k', LDS_K), ('v', [])):
        for t in range(8):
            for tau in range(2):
                if (t, tau) in ld: home[m, t, tau] = ('lds', n); n += 1
                else: home[m, t, tau] = free.pop()
    for u in range(4):
        for z in range(4):
            if (u, z) in LDS_O: home['o', u, z] = ('lds', 10 + LDS_O.index((u, z)))
            else: home['o', u, z] = free.pop()
    assert not free
_alloc()
def in_lds(k): return isinstance(home[k], tuple) and home[k][0] == 'lds'
def smf(d, a, b): return f'v_smfmac_f32_16x16x64_bf16 {vr(d,4)}, {vr(a,4)}, {R(b,8)}, v{vIDX}'
def stage(s, key, reg, half, tag):
    s(f'ds_read_b128 {vr(reg+4*half,4)}, v{vWL} offset:{home[key][1]*2048 + 1024*half}', tag)

def setup(s, opts, fail):
    s('L_role_chain:'); stamp(s, opts, 0, 126)
    s(f'''
    s_mov_b32 {sH}, {sROLE}
    v_lshrrev_b32 v120, 4, v0          ; g
    v_and_b32 v121, 15, v0             ; c
    v_lshlrev_b32 v{vG16}, 4, v0
    s_mul_i32 s30, {sW}, {WSTR}
    s_add_u32 s30, s30, {LW}
    v_add_u32 v{vWL}, s30, v{vG16}
    v_lshrrev_b32 v122, 1, v120
    v_and_b32 v123, 1, v120
    v_lshlrev_b32 v16, 19, v122
    v_lshl_add_u32 v16, v123, 17, v16
    v_lshl_add_u32 v16, v121, 2, v16
    s_lshl_b32 s30, {sH}, 8
    s_lshl_b32 s31, {sW}, 6
    s_add_u32 s30, s30, s31
    v_add_u32 v16, s30, v16
    v_add_u32 v17, 0x2000, v16
    ''')
    TL = 88
    for m, key in (('q', 'Wq'), ('k', 'Wk'), ('v', 'Wv')):
        set_srd(s, 16, key, 4*MB)
        pairs = []; posts = {}
        for t in range(8):
            for jr in range(8):
                row = 256*(t & 1) + 128*(jr >> 2) + 32*(jr & 1) + 8*((jr >> 1) & 1) + 2*(t >> 1)
                d = [TL + 16*(t & 1) + 8*tau + jr if in_lds((m, t, tau)) else radd(home[m, t, tau], jr) for tau in range(2)]
                pairs.append((row * 8192, d[0], d[1]))
            posts[len(pairs) - 1] = [(tau, home[m, t, tau][1], TL + 16*(t & 1) + 8*tau) for tau in range(2) if in_lds((m, t, tau))]
        def post(i):
            for tau, slot, r in posts.get(i, []):
                s(f'ds_write_b128 v{vWL}, {vr(r,4)} offset:{slot*2048}\nds_write_b128 v{vWL}, {vr(r+4,4)} offset:{slot*2048+1024}')
        load_pairs(s, pairs, 16, 17, 24, 64, post=post)
        s('s_waitcnt lgkmcnt(0)')
    set_srd(s, 16, 'Wo', 4*MB)
    s(f'''v_lshlrev_b32 v16, 12, v120
          v_lshl_add_u32 v16, v121, 4, v16
          s_lshl_b32 s30, {sH}, 17
          s_lshl_b32 s31, {sW}, 8
          s_add_u32 s30, s30, s31
          v_add_u32 v16, s30, v16''')
    def oissue(i):
        z, jp = i >> 2, i & 3; b = 24 + 8*(i % 8)
        s(f'''s_add_u32 s30, {sW}, {z}
              s_and_b32 s30, s30, 3
              s_lshl_b32 s30, s30, 15
              s_add_u32 s30, s30, {(16*(jp >> 1) + 2*(jp & 1)) * 1024}
              buffer_load_dwordx4 {vr(b,4)}, v16, {WSR}, s30 offen
              buffer_load_dwordx4 {vr(b+4,4)}, v16, {WSR}, s30 offen offset:1024''')
    for i in range(8): oissue(i)
    for i in range(16):
        z, jp = i >> 2, i & 3; b = 24 + 8*(i % 8)
        s(f's_waitcnt vmcnt({2*(min(16, i+8) - i - 1)})')
        if jp == 0: s('s_waitcnt lgkmcnt(0)')
        for u in range(4):
            for f, sel in ((0, sSEL0), (1, sSEL1)):
                d = TL + 8*u + 2*jp + f if in_lds(('o', u, z)) else radd(home['o', u, z], 2*jp + f)
                if isinstance(d, tuple): s(f'v_perm_b32 v{18+f}, v{b+4+u}, v{b+u}, {sel}\nv_accvgpr_write_b32 a{d[1]}, v{18+f}')
                else: s(f'v_perm_b32 v{d}, v{b+4+u}, v{b+u}, {sel}')
        if i + 8 < 16: oissue(i + 8)
        if jp == 3:
            for u in range(4):
                if in_lds(('o', u, z)):
                    slot = home['o', u, z][1]
                    s(f'ds_write_b128 v{vWL}, {vr(TL+8*u,4)} offset:{slot*2048}\nds_write_b128 v{vWL}, {vr(TL+8*u+4,4)} offset:{slot*2048+1024}')
    stamp(s, opts, 1, 126)
    s(f'''
    v_bfe_u32 v124, v0, 1, 1
    v_mov_b32 v{vIDX}, 0x44444444
    v_mov_b32 v125, 0xeeeeeeee
    v_cmp_eq_u32 vcc, 1, v124
    v_bfe_u32 v126, v0, 2, 1           ; (c>>2)&1
    v_bfe_u32 v127, v0, 3, 1           ; c>>3
    v_cndmask_b32 v{vIDX}, v{vIDX}, v125, vcc
    v_and_b32 v128, 1, v0              ; c&1
    v_and_b32 v129, 3, v0              ; c&3
    v_bfe_u32 v130, v0, 2, 2           ; c>>2
    ; q write: 576w + 144(2(c>>3) + ((c>>1)&1)) + 32g + 8(c&1) + 4((c>>2)&1)
    v_lshl_add_u32 v131, v127, 1, v124
    v_mul_u32_u24 v{vQW}, 144, v131
    v_lshl_add_u32 v{vQW}, v120, 5, v{vQW}
    v_lshl_add_u32 v{vQW}, v128, 3, v{vQW}
    v_lshl_add_u32 v{vQW}, v126, 2, v{vQW}
    s_mul_i32 s30, {sW}, 576
    s_add_u32 s30, s30, {LQ}
    v_add_u32 v{vQW}, s30, v{vQW}
    ; q read: 144g + 16(2(c>>2) + (c&1))
    v_lshl_add_u32 v132, v130, 1, v128          ; row r(c)
    v_mul_u32_u24 v{vQR}, 144, v120
    v_lshl_add_u32 v{vQR}, v132, 4, v{vQR}
    ; k write: 512w + 256(c>>3) + 64g + 32((c>>2)&1) + 4(c&3)
    v_lshlrev_b32 v{vKW}, 8, v127
    v_lshl_add_u32 v{vKW}, v120, 6, v{vKW}
    v_lshl_add_u32 v{vKW}, v126, 5, v{vKW}
    v_lshl_add_u32 v{vKW}, v129, 2, v{vKW}
    s_lshl_b32 s30, {sW}, 9
    s_add_u32 s30, s30, {LK}
    v_add_u32 v{vKW}, s30, v{vKW}
    v_lshrrev_b32 v131, 3, v0
    v_and_b32 v133, 7, v0
    v_lshlrev_b32 v{vST}, 13, v131
    v_lshl_add_u32 v{vST}, v133, 3, v{vST}
    s_lshl_b32 s30, {sW}, 16
    s_lshl_b32 s31, {sH}, 6
    s_add_u32 s30, s30, s31
    s_add_u32 s30, s30, {CH_IN}
    v_add_u32 v{vST}, s30, v{vST}
    v_lshlrev_b32 v{vPUB}, 5, v124
    v_lshl_add_u32 v{vPUB}, v123, 4, v{vPUB}
    v_lshl_add_u32 v{vPUB}, v128, 3, v{vPUB}
    v_lshl_add_u32 v{vPUB}, v122, 2, v{vPUB}
    s_lshr_b32 s30, {sH}, 3
    s_lshl_b32 s30, s30, 9
    s_and_b32 s31, {sH}, 1
    s_lshl_b32 s31, s31, 8
    s_add_u32 s30, s30, s31
    s_bfe_u32 s31, {sH}, 0x20001
    s_lshl_b32 s31, s31, 6
    s_add_u32 s30, s30, s31
    v_add_u32 v{vPUB}, s30, v{vPUB}
    v_lshlrev_b32 v{vKX}, 9, v120
    v_lshl_add_u32 v{vKX}, v124, 6, v{vKX}
    v_lshl_add_u32 v{vKX}, v130, 7, v{vKX}
    v_lshl_add_u32 v{vKX}, v128, 4, v{vKX}
    s_lshr_b32 s30, {sW}, 1
    s_lshl_b32 s30, s30, 12
    s_and_b32 s31, {sW}, 1
    s_lshl_b32 s31, s31, 5
    s_add_u32 s30, s30, s31
    s_add_u32 s30, s30, 8192
    v_add_u32 v{vKX}, s30, v{vKX}
    v_lshlrev_b32 v{vG8}, 3, v0
    v_lshlrev_b32 v{vF8}, 2, v133
    v_and_b32 v{vF32}, 31, v0
    v_lshlrev_b32 v{vF32}, 2, v{vF32}
    v_mov_b32 v{vSEN}, -1
    v_lshlrev_b32 v0, 7, v0
    v_add_u32 v0, 0x2000, v0
    v_mov_b32 v134, 0x3f80
    v_lshlrev_b32 v135, 4, v129
    v_lshlrev_b32 v134, v135, v134
    v_cmp_gt_u32 vcc, 2, v129
    v_mov_b32 v135, 0
    s_nop 0
    v_cndmask_b32 v134, v135, v134, vcc
    ''')
    for r in range(4): s(f'v_cmp_eq_u32 vcc, {r}, v130\ns_nop 1\nv_cndmask_b32 v{136+r}, v135, v134, vcc')
    s(f'ds_write_b128 v{vG16}, v[136:139] offset:{LSEL}')
    for r in range(4): s(f'v_mov_b32 v{ONES+r}, 0x3f803f80\nv_mov_b32 v{PM+r}, 0\nv_mov_b32 v{136+r}, -1')
    s(f'''
    s_mov_b32 s52, 0x000f000f
    s_mov_b32 s53, 0x000f000f
    s_mov_b32 {sC}, {f32(128**-0.5 * LOG2E)}
    s_mov_b32 {s4K}, 4096
    s_mov_b32 {sGL}, 0x17800000
    s_mov_b32 {sGH}, 0x50000000
    s_lshl_b32 s30, {sW}, 11
    s_lshl_b32 {sG1}, {sH}, 13
    s_add_u32 {sG1}, {sG1}, s30
    s_add_u32 {sG1}, {sG1}, {CH_IN}
    s_add_u32 {sG2}, s30, {CH_MEM}
    s_lshl_b32 {sFPO}, {sH}, 7
    s_add_u32 {sFCO}, {sFPO}, {F_C}
    s_add_u32 {sFPO}, {sFPO}, {F_P}
    s_lshl_b32 {sALO}, {sH}, 2
    s_add_u32 {sALO}, {sALO}, {F_AL}
    s_mov_b32 {sAL}, {F_AL}
    s_mov_b32 {sN}, 0
    s_mov_b32 {sL}, 0
    s_mov_b32 {sCV}, 0
    ''')
    set_srd(s, 12, 'mem0', 8192)
    s(f's_lshl_b32 s30, {sW}, 7\ns_add_u32 s30, s30, 128\ns_add_u32 {sH2}, s30, {sAL}\ns_add_u32 {sH2O}, s30, {sALO}')
    wait_init(s, 120, 121, fail)
    s(f'''global_load_dword v121, v120, s[6:7] sc1
          s_waitcnt vmcnt(0)
          v_readfirstlane_b32 s30, v121
          s_cmp_ge_u32 s30, 32
          s_cbranch_scc1 L_ch_initF
          s_branch L_ch_initS''')

def body(mode, opts, fail):
    st = 'sc1' if mode == 'S' else ''
    s = S()
    s(f'L_ch_init{mode}:')
    for i in range(2): s(f'buffer_load_dwordx4 v[120:123], v{vG16}, {WS}, {sG1} offen offset:{1024*i} sc1')
    for i in range(4): s(f's_add_u32 s30, {sG2}, {8192*i}\nbuffer_load_dwordx4 v[120:123], v{vG16}, {WS}, s30 offen sc1\nbuffer_load_dwordx4 v[120:123], v{vG16}, {WS}, s30 offen offset:1024 sc1')
    s(f'''buffer_load_dword v120, v{vF8}, {WS}, {sAL} offen sc1
    buffer_load_dword v120, v{vF8}, {WS}, {sH2} offen sc1
    buffer_store_dwordx4 v[136:139], v{vG16}, {WS}, {sG1} offen {st}
    buffer_store_dwordx4 v[136:139], v{vG16}, {WS}, {sG1} offen offset:1024 {st}
    s_mov_b64 exec, {sPUBX}
    buffer_store_dword v{vSEN}, v{vPUB}, {WS}, {sG2} offen {st}
    s_add_u32 s30, {sG2}, 8192
    buffer_store_dword v{vSEN}, v{vPUB}, {WS}, s30 offen {st}
    s_mov_b64 exec, -1
    v_mov_b32 v124, 1
    s_add_u32 s30, {sALO}, 640
    s_add_u32 s31, {sAL}, 640
    s_waitcnt vmcnt(0) lgkmcnt(0)
    s_barrier
    buffer_store_dword v124, v{PM+1}, {WS}, s30 offen {st}
    ''')
    poll(s, vF32, 's31', 120, 1, fail, sleep=0)
    for w in range(3): s(f's_cmp_eq_u32 {sW}, {w}\ns_cbranch_scc1 L_ch_layer{mode}{w}')
    s(f's_branch L_ch_layer{mode}3')
    out = resolve(s)[0]
    for w in range(4): out += wave(mode, w, opts, fail, st)
    return out

def wave(mode, w, opts, fail, st):
    T = f'{mode}{w}'
    P1 = opts.get('p1', (30, 44, 58, 72)); D2 = opts.get('d2', (68, 61, 55, 48))[w]; AW = 1 if opts.get('align') else -1
    DIR = opts.get('direct', 1)
    DD = opts.get('DD', 2); HR = VX if DIR else KX
    vZ = PM + 1
    tail = S()
    pts = opts.get('tl') or []
    def P(s, k):
        if k in pts: s(f's_memtime s[{70+2*pts.index(k)}:{71+2*pts.index(k)}]')
    def cnt(s, r):
        if opts.get('trace'): s(f's_add_u32 {r}, {r}, 1')
    def zero(s, r, n):
        for i in range(0, n, 2): s(f'v_mov_b64 {vr(r+i,2)}, 0')
    def kxload(s):
        s(f'buffer_load_dwordx4 {vr(KX,4)}, v{vKX}, {WS}, {sKV} offen sc1\nbuffer_load_dwordx4 {vr(KX+4,4)}, v{vKX}, {WS}, {sKV} offen offset:2048 sc1', 'kx')
    def vxload(s):
        s(f's_add_u32 s30, {sKV}, {16384 + 1024*w}\ns_add_u32 s31, s30, 4096')
        s(f'buffer_load_dwordx4 {vr(VX,4)}, v{vG16}, {WS}, s30 offen sc1\nbuffer_load_dwordx4 {vr(VX+4,4)}, v{vG16}, {WS}, s31 offen sc1', 'vx')
    def prestage(s, lo=0, hi=5):
        for i, (t, tau) in list(enumerate(LDS_Q))[lo:hi]:
            for hf in range(2): stage(s, ('q', t, tau), POOL + 8*i, hf, 'pre')
    def kmstore(s):
        if w >= 2 and not opts.get('nokv') and not opts.get('nokm'): s(f'buffer_store_dwordx4 {vr(AV+4,4)}, v{vG16}, {WS}, {sKN} offen offset:{1024*(w-2)} sc1', 'far')
    def vmstore(s):
        if not opts.get('nokv') and not opts.get('novm'): s(f'buffer_store_dwordx2 {vr(AV,2)}, v{vG8}, {WS}, {sKN} offen offset:{2048 + 512*w} sc1', 'far')
    def cflag(s):
        if w == 2: s(f'buffer_store_dword v{vFV}, v{vZ}, {WS}, {sFCO} offen sc1', 'far')
    def touchmask(s):
        if w == 0 and not DIR: s(f's_add_u32 s30, {sPT}, 1\nv_cmp_gt_u32 vcc, s30, v{vFP}\ns_nop 0\ns_cmp_eq_u64 vcc, 0\ns_cselect_b32 s30, {24*32*1024}, 0\ns_add_u32 {sTCH}, {sKV}, s30\ns_add_u32 {sTC2}, {sTCH}, 8192')
    def book(s):
        s(f"""s_add_u32 {sN}, {sN}, 1
              s_and_b32 {sTAG}, {sN}, 1
              s_xor_b32 {sTAG}, {sTAG}, 1
              s_add_u32 s30, {sN}, 3
              s_and_b32 s30, s30, 3
              s_lshl_b32 s30, s30, 13
              s_add_u32 {sMN}, s30, {sG2}
              s_xor_b32 s30, s30, 0x4000
              s_add_u32 {sMC}, s30, {sG2}""")
        s(f's_add_u32 {sCV}, {sCV}, 1')
        if DIR: s(f's_add_u32 {sTCH}, {sKV}, {16384 + 1024*w}\ns_add_u32 {sTC2}, {sTCH}, 4096\ns_add_u32 {sKV}, {sKV}, {0 if opts.get("samekv") else 24*32*1024}\ns_add_u32 {sPT}, {sPT}, 1')
        if w == AW: s(f'v_mov_b32 v{vFV}, {sCV}')
    s = S()
    s(f"""L_ch_layer{T}:
    s_mul_i32 s30, {sL}, {LSTR}
    s_mul_i32 {sKV}, {sH}, {24*1024}
    s_add_u32 {sKV}, {sKV}, s30
    s_add_u32 {sKV}, {sKV}, {LB0 + O_QKV}
    s_lshl_b32 {sKM}, {sH}, 12
    s_add_u32 {sKN}, {sKM}, {CH_JUNK}
    s_add_u32 {sKM}, {sKM}, s30
    s_add_u32 {sKM}, {sKM}, {LB0 + O_KVM}
    s_lshl_b32 {sPT}, {sL}, 7
    s_add_u32 {sPT}, {sPT}, 1
    s_mov_b32 {sS}, 0
    s_mov_b32 m0, {LM + 2048*w}""")
    if opts.get('trace'): s('s_mov_b32 s64, 0\ns_mov_b32 s65, 0\ns_mov_b32 s66, 0\ns_mov_b32 s67, 0\ns_mov_b32 s68, 0')
    s(f"""; mem0 gather: row*1024 + 128g + 64f + 4w
    v_bfe_u32 v{MA+8}, v{vG16}, 6, 2
    v_bfe_u32 v{MA+9}, v{vG16}, 4, 1
    v_lshl_add_u32 v{MA+8}, v{MA+8}, 1, v{MA+9}
    v_lshlrev_b32 v{MA+8}, 10, v{MA+8}
    v_lshrrev_b32 v{MA+9}, 8, v{vG16}
    v_lshl_add_u32 v{MA+8}, v{MA+9}, 7, v{MA+8}
    v_bfe_u32 v{MA+9}, v{vG16}, 5, 1
    v_lshl_add_u32 v{MA+8}, v{MA+9}, 6, v{MA+8}
    v_add_u32 v{MA+8}, {4*w}, v{MA+8}""")
    for i in range(8): s(f'buffer_load_dword v{MA+i}, v{MA+8}, {XIN}, 0 offen offset:{512*(i >> 2) + 16*(i & 3)}')
    zero(s, AQ, 32); prestage(s)
    s('s_waitcnt vmcnt(0)')
    for i in range(8): s(f'v_min_u32 v{MA+i}, -2, v{MA+i}')
    s(f'ds_write_b128 v{vG16}, {vr(MA,4)} offset:{LM + 2048*w}\nds_write_b128 v{vG16}, {vr(MA+4,4)} offset:{LM + 2048*w + 1024}')
    poll(s, vF8, sFPO, vFP, sPT, fail)
    if opts.get('trace'): s(f's_lshl_b32 s69, {sL}, 4\ns_add_u32 s69, s69, 2')
    stamp(s, opts, 's69', MA)
    if DIR: kxload(s)
    touchmask(s); book(s)
    if w == 2: s(f's_sub_u32 s30, {sCV}, 1\nv_mov_b32 v{vFV}, s30')
    s(f's_waitcnt lgkmcnt(0)\ns_branch L_ch_in{T}')
    pre = resolve(s)[0]
    s = S()
    s(f'L_ch_step{T}:')
    if not opts.get('gate'): s.W('vm', 'hint'); s(f'v_cmp_gt_u32 vcc, v{MA+29}, v{HR}\ns_cbranch_vccnz L_ch_hmiss{T}\nL_ch_hok{T}:')
    s.W('vm', 'h2')
    if DIR: s.append(Op('', 'vm', 'kx0'))
    P(s, 'b0in'); s(f'L_ch_in{T}:\ns_barrier'); P(s, 'b0')
    def rdma(t, x=None): (x or s)(f'ds_read_b128 {vr(MA+4*t,4)}, v{vG16} offset:{LM + 1024*t}', f'ma{t}')
    rdma(0); rdma(1); rdma(2)
    PRP = opts.get('prp', ['q5', 'q9', 'q12', 'q15']); CHK = opts.get('chk', 2)
    NQ = len(PRP); PR = AV
    def al(k, x=None):
        if w == AW and k in PRP: r = PRP.index(k); (x or s)(f'buffer_load_dword v{PR+r}, v{vF32}, {WS}, {sAL} offen sc1', f'pr{r}')
    if w == AW: s(f'buffer_store_dword v{vFV}, v{vZ}, {WS}, {sALO} offen {st}')
    if DIR: s(f'buffer_load_dwordx4 {vr(VX,4)}, v{vG16}, {WS}, {sTCH} offen sc1', 'vx')
    else: kxload(s); s(f's_add_u32 s30, {sKV}, {16384 + 1024*w}\ns_add_u32 s31, s30, 4096')
    def s1(m, i, tt, x=None):
        x = x or s
        t, tau = tt; key = (m, t, tau)
        acc = {'q': AQ, 'k': AK, 'v': AV}[m] + 4*tau
        if in_lds(key):
            j = (LDS_Q if m == 'q' else LDS_K).index((t, tau)); b = POOL + 8*j
            if m == 'k': x.W('ds', f'k{j}')
        else: b = home[key]
        if m == 'q': x.W('ds', f'ma{t}')
        x(smf(acc, MA + 4*t, b))
        if x is s: P(s, f'{m}{i}')
    ORD = [(t, tau) for t in range(4) for tau in range(2)] + [(t, 0) for t in range(4, 8)] + [(t, 1) for t in range(4, 8)]
    def add(d, j): return f'v_add_f32 v{d+j}, v{d+j}, v{d+2+j}'
    def mul(d): return f'v_mul_f32 v{d}, {sC}, v{d}'
    CK = vSEN2
    def sk(x, j, hf): stage(x, ('k',) + LDS_K[j], POOL + 8*j, hf, f'k{j}')
    def qpass(x, first):
        rd = {0: 3, 1: 4, 3: 5, 4: 6, 6: 7}
        sg = {7: (0, 0), 9: (0, 1), 11: (1, 0), 12: (1, 1), 14: (2, 0)}
        for i in range(16):
            s1('q', i, ORD[i], x)
            if i in rd and first: rdma(rd[i], x)
            if i in sg: sk(x, *sg[i])
            if first:
                if i == opts.get('vxp', (2, 2, 2, 2))[w]: x(f'buffer_load_dwordx4 {vr(VX+4,4)}, v{vG16}, {WS}, {sTC2} offen sc1', 'vx')
                if i == (10, 8, 10, 13)[w]: vmstore(x)
                if i == (0, 0, 5, 8)[w]: kmstore(x)
                if i == 13: cflag(x)
                if i == 4: x(f'v_cmp_gt_u32 {sPW}, {sPT}, v{vFP}')
            if i == 13: x(add(AQ, 0))
            if i == 14: x(add(AQ, 1))
            if i == 15: x(f'v_cmp_u_f32 vcc, v{AQ}, v{AQ+1}')
        s1('k', 0, ORD[0], x); sk(x, 2, 1); x(mul(AQ)); x(mul(AQ+1))
        s1('k', 1, ORD[1], x)
    qpass(s, True)
    s(f's_cbranch_vccnz L_ch_missb{T}\nL_ch_okb{T}:')
    tail(f'L_ch_pwait{T}:'); cnt(tail, 's68'); poll(tail, vF8, sFPO, vFP, sPT, fail, sleep=0); tail(f's_branch L_ch_pok{T}')
    P(s, 'qend')
    ob = [('o',) + x for x in LDS_O]
    sreg = [MA, MA+8, POOL, POOL+8, POOL+16, MA+16, MA+24, POOL+24]
    def so(j, hf): stage(s, ob[j], sreg[j], hf, f'o{j}')
    def K(i): s1('k', i, ORD[i])
    def V(i):
        s1('v', i, ORD[i])
        k0 = opts.get('kxp', (0, 0, 0, 0))[w]; k1 = opts.get('kxq', (2, 2, 2, 2))[w]
        if i == k0: s(f'buffer_load_dwordx4 {vr(KX,4)}, v{vKX}, {WS}, {sKV} offen sc1', 'kx')
        if i == k1: s(f'buffer_load_dwordx4 {vr(KX+4,4)}, v{vKX}, {WS}, {sKV} offen offset:2048 sc1', 'kx')
    s(add(AQ+4, 0)); s(add(AQ+4, 1))
    K(2); sk(s, 3, 0); s(mul(AQ+4)); s(mul(AQ+5))
    K(3); s(f's_mov_b32 {sKN}, {sKM}'); s(f'v_cvt_pk_bf16_f32 v{AQ}, v{AQ}, v{AQ+4}\nv_cvt_pk_bf16_f32 v{AQ+1}, v{AQ+1}, v{AQ+5}')
    K(4); s(f'ds_write2_b32 v{vQW}, v{AQ}, v{AQ+1} offset1:4', 'qw')
    K(5); sk(s, 3, 1); zero(s, AQ+2, 2)
    K(6); sk(s, 4, 0); zero(s, AQ+4, 2)
    K(7); sk(s, 4, 1); zero(s, AQ+6, 2)
    K(8); s.W('ds', 'qw'); s('s_barrier'); P(s, 'b1')
    fl = [f'v_mov_b64 {vr(AQ,2)}, 0', f'v_mov_b64 {vr(AV,2)}, 0', f'v_mov_b64 {vr(AV+4,2)}, 0', f'v_mov_b64 {vr(AV+6,2)}, 0']
    for j in range(4):
        K(9 + j)
        s(f'ds_read_b128 {vr(QB+4*j,4)}, v{vQR} offset:{LQ + 576*j}', f'qb{j}'); s(fl[j])
    K(13); s.W('vm', 'kx0'); s(f's_cmp_lg_u64 {sPW}, 0'); s(add(AK, 0))
    K(14); s(f's_cbranch_scc1 L_ch_pwait{T}\nL_ch_pok{T}:'); s(add(AK, 1))
    K(15); s(f's_sub_u32 s30, {sCV}, 1')
    s.W('ds', 'qb1'); s(smf(SX, KX, QB)); s(f's_mov_b32 {sMS}, {sMN}')
    if w == 2: s(f'v_mov_b32 v{vFV}, s30')
    s.W('ds', 'qb3'); s(smf(SX, KX+4, QB+8)); s(add(AK+4, 0)); s(add(AK+4, 1))
    V(0); s(f'v_cvt_pk_bf16_f32 v{AK}, v{AK}, v{AK+4}\nv_cvt_pk_bf16_f32 v{AK+1}, v{AK+1}, v{AK+5}')
    V(1); s(f'ds_write2_b32 v{vKW}, v{AK}, v{AK+1} offset1:4', 'kw'); s(add(SX, 0)); s(add(SX, 1))
    V(2); s(f'v_exp_f32 v{SX+2}, v{SX}\nv_exp_f32 v{SX+3}, v{SX+1}'); zero(s, AK+2, 2); s(f'v_cvt_pk_bf16_f32 v{SX+2}, v{SX+2}, v{SX+3}')
    V(3); s(f'ds_write_b32 v{vG16}, v{SX+2} offset:{LP + 4*w}', 'pw')
    V(4); s(f'buffer_store_dword v{vSEN}, v{vPUB}, {WS}, {sMC} offen {st}'); zero(s, AK+4, 2)
    V(5); so(0, 0); zero(s, AK+6, 2)
    V(6); so(0, 1); zero(s, AK, 2)
    V(7); s.W('ds', 'pw'); s('s_barrier'); P(s, 'b2')
    s(f'ds_read_b128 {vr(KA,4)}, v{vG16} offset:{LK}', 'ka0')
    V(8); s(f'ds_read_b128 {vr(KA+4,4)}, v{vG16} offset:{LK + 1024}', 'ka1')
    V(9); s(f'ds_read_b128 {vr(PX,4)}, v{vG16} offset:{LP}', 'px')
    LSW = opts.get('lsw', 1)
    V(10)
    if not LSW: s.W('vm', 'vx'); s(f'v_swap_b32 v{VX+2}, v{VX+4}')
    V(11); so(1, 0)
    if not LSW: s(f'v_swap_b32 v{VX+3}, v{VX+5}')
    s.W('ds', 'ka0'); s(smf(SM, KA, QB)); so(1, 1)
    s.W('ds', 'ka1'); s(smf(SM, KA+4, QB+8))
    if opts.get('nofp'): s(f'v_mov_b32 v{vFP}, -1')
    else: s(f'buffer_load_dword v{vFP}, v{vF8}, {WS}, {sFPO} offen sc1', 'fp')
    s(add(AV, 0))
    s.W('ds', 'px')
    s(f'v_mfma_f32_16x16x32_bf16 {vr(LL,4)}, {vr(ONES,4)}, {vr(PX,4)}, 0'); so(2, 0); s(add(AV, 1)); s(f'v_cvt_pk_bf16_f32 v{AV}, v{AV}, v{AV+1}')
    V(12); so(2, 1); s(add(SM, 0)); s(add(SM, 1))
    V(13); so(3, 0); s(f'v_exp_f32 v{SM+2}, v{SM}')
    V(14); so(3, 1); s(f'v_exp_f32 v{SM+3}, v{SM+1}')
    if not LSW:
        V(15); so(4, 0); s(f's_cmp_eq_u32 {sS}, 63'); s(f'v_cvt_pk_bf16_f32 v{PM}, v{SM+2}, v{SM+3}')
        P(s, 'vend')
        s(f'v_mfma_f32_16x16x32_bf16 {vr(OX,4)}, {vr(VX,4)}, {vr(PX,4)}, 0')
        so(4, 1); s(f'v_mov_b32 v{PM+3}, v{PM}')
        s(f'v_mfma_f32_16x16x32_bf16 {vr(OX+4,4)}, {vr(VX+4,4)}, {vr(PX,4)}, 0')
        s(f's_cselect_b32 s30, 0, {sGH}'); s(add(AV+4, 0)); s(add(AV+4, 1)); s(f'v_cvt_pk_bf16_f32 v{AV+1}, v{AV+4}, v{AV+5}')
        s(f'v_mfma_f32_16x16x16_bf16 {vr(LL,4)}, {vr(ONES,2)}, {vr(PM,2)}, {vr(LL,4)}')
        s('s_nop 0')
        s(f'v_mfma_f32_16x16x16_bf16 {vr(OX,4)}, {vr(AV,2)}, {vr(PM,2)}, {vr(OX,4)}')
        s(f'v_mfma_f32_16x16x16_bf16 {vr(OX+4,4)}, {vr(AV,2)}, {vr(PM+2,2)}, {vr(OX+4,4)}')
    else:
        V(15); s.W('vm', 'vx'); s(f's_cmp_eq_u32 {sS}, 63'); s(f'v_cvt_pk_bf16_f32 v{PM}, v{SM+2}, v{SM+3}\nv_swap_b32 v{VX+2}, v{VX+4}\nv_swap_b32 v{VX+3}, v{VX+5}')
        P(s, 'vend')
        s(f'v_mfma_f32_16x16x16_bf16 {vr(LL,4)}, {vr(ONES,2)}, {vr(PM,2)}, {vr(LL,4)}')
        s(f's_cselect_b32 s30, 0, {sGH}'); s(add(AV+4, 0)); s(add(AV+4, 1))
        s(f'v_mfma_f32_16x16x32_bf16 {vr(OX,4)}, {vr(VX,4)}, {vr(PX,4)}, 0')
        so(4, 0); s(f'v_cvt_pk_bf16_f32 v{AV+1}, v{AV+4}, v{AV+5}')
        s(f'v_mfma_f32_16x16x32_bf16 {vr(OX+4,4)}, {vr(VX+4,4)}, {vr(PX,4)}, 0')
        so(4, 1); s(f'v_mov_b32 v{PM+3}, v{PM}\ns_nop 0')
        s(f'v_mfma_f32_16x16x16_bf16 {vr(OX,4)}, {vr(AV,2)}, {vr(PM,2)}, {vr(OX,4)}')
        s('s_nop 1')
        s(f'v_mfma_f32_16x16x16_bf16 {vr(OX+4,4)}, {vr(AV,2)}, {vr(PM+2,2)}, {vr(OX+4,4)}')
    s(f's_nop 0\nv_rcp_f32 v{LL+2}, v{LL}\nv_subrev_u32 v{LL+1}, {sGL}, v{LL}\nv_cmp_le_u32 vcc, s30, v{LL+1}')
    s(f'L_ch_norm{T}:'); P(s, 'norm')
    for r in range(4): s(f'v_mul_f32 v{OX+r}, v{LL+2}, v{OX+r}')
    for r in range(4): s(f'v_mul_f32 v{OX+4+r}, v{LL+2}, v{OX+4+r}')
    for r in range(4): s(f'v_cvt_pk_bf16_f32 v{OX+r}, v{OX+r}, v{OX+4+r}')
    s(f'ds_write_b128 v{vG16}, {vr(OX,4)} offset:{LO + 1024*w}', 'ow')
    P(s, 'ow')
    s(f's_cbranch_vccnz L_ch_safe{T}')
    AWO = AQ
    NOWN = opts.get('nown', 2)
    for u in range(NOWN):
        s(smf(AWO + 4*u, OX, home['o', u, 0]))
        if u == 0: s(f's_add_u32 {sS}, {sS}, 1\ns_add_u32 {sKM}, {sKM}, {32*4096}')
    P(s, 'own'); s.W('ds', 'ow'); s('s_barrier'); P(s, 'b3')
    OA = [OX, OX+4, SX, SM]
    for z in (1, 2, 3): s(f'ds_read_b128 {vr(OA[z],4)}, v{vG16} offset:{LO + 1024*((w+z) & 3)}', f'oa{z}')
    for u in range(NOWN, 4): s(smf(AWO + 4*u, OX, home['o', u, 0]))
    def epi(u, part):
        d = AWO + 4*u
        if part == 0: s(f'v_cvt_pk_bf16_f32 v{d}, v{d}, v{d+2}\nv_cvt_pk_bf16_f32 v{d+1}, v{d+1}, v{d+3}\nv_and_or_b32 v{d}, v{d}, -2, {sTAG}')
        else: s(f'buffer_store_dwordx2 {vr(d,2)}, v{vST}, {WS}, {"0" if u < 2 else s4K} offen offset:{2048*(u & 1)} {st}')
    late = {(0,1): (5,0), (0,2): (5,1), (0,3): (6,0), (1,1): (6,1), (1,2): (7,0), (2,1): (7,1)}
    for u in range(4):
        for z in (1, 2, 3):
            key = ('o', u, z)
            if u == 0: s.W('ds', f'oa{z}')
            if in_lds(key): j = ob.index(key); s.W('ds', f'o{j}'); b = sreg[j]
            else: b = home[key]
            s(smf(AWO + 4*u, OA[z], b)); P(s, f'o{u}{z}')
            if (u, z) in late: so(*late[u, z])
            if u > 0 and z == 2: epi(u-1, 0)
            if u > 0 and z == 3: epi(u-1, 1)
    SEL, RA = OX, OX+4
    s(f'ds_read_b128 {vr(SEL,4)}, v{vG16} offset:{LSEL}', 'sel')
    s('s_nop 5')
    epi(3, 0); epi(3, 1); P(s, 'st3')
    idle = S()
    idle(f'v_mov_b32 v{MA+29}, {sCV}'); zero(idle, AQ, 12); zero(idle, AV+2, 2); zero(idle, SX, 8); zero(idle, AQ+12, 4)
    def fill(n):
        k = min(n, len(idle)); s.extend(idle[:k]); del idle[:k]; s.nops(n - k)
    G = [MA, MA+8, MA+16]
    def h1l(t, r): t(f'buffer_load_dwordx4 {vr(G[r],4)}, v{vG16}, {WS}, {sG1} offen sc1\nbuffer_load_dwordx4 {vr(G[r]+4,4)}, v{vG16}, {WS}, {sG1} offen offset:1024 sc1')
    def h2l(t, r): t(f'buffer_load_dwordx4 {vr(G[r],4)}, v{vG16}, {WS}, {sMS} offen sc1\nbuffer_load_dwordx4 {vr(G[r]+4,4)}, v{vG16}, {WS}, {sMS} offen offset:1024 sc1')
    TM = MA + 30
    def h1f(t, r, out):
        b = G[r]
        t(f"""s_waitcnt vmcnt({out+1})
              v_mfma_f32_16x16x32_bf16 {vr(RA,4)}, {vr(SEL,4)}, {vr(b,4)}, 0
              v_bitop3_b32 v{TM}, v{b}, v{b+2}, {sTAG} bitop3:0x7e
              s_waitcnt vmcnt({out})
              v_mfma_f32_16x16x32_bf16 {vr(RA,4)}, {vr(SEL,4)}, {vr(b+4,4)}, {vr(RA,4)}
              v_bitop3_b32 v{TM+1}, v{b+4}, v{b+6}, {sTAG} bitop3:0x7e
              v_bitop3_b32 v{TM}, v{TM}, v{TM+1}, 1 bitop3:0xa8
              v_cmp_ne_u32 vcc, 0, v{TM}""")
    def h2f(t, r, out):
        b = G[r]
        t(f"""s_waitcnt vmcnt({out})
              v_max3_u32 v{TM+1}, v{b}, v{b+1}, v{b+2}
              v_max3_u32 v{TM+1}, v{TM+1}, v{b+3}, v{b+4}
              v_max3_u32 v{TM+1}, v{TM+1}, v{b+5}, v{b+6}
              v_max_u32 v{TM+1}, v{TM+1}, v{b+7}
              v_cmp_eq_u32 vcc, -1, v{TM+1}
              ds_write_b128 v{vG16}, {vr(b,4)} offset:{LM + 2048*w}
              ds_write_b128 v{vG16}, {vr(b+4,4)} offset:{LM + 2048*w + 1024}""")
    def retry(tag, ld, fin, c):
        tail(f's_mov_b32 {sSPIN}, 0'); cnt(tail, c)
        for r in range(2): ld(tail, r); tail('s_nop 9')
        tail(f'L_ch_poll{tag}{T}:')
        for r in range(3):
            ld(tail, (r+2) % 3); fin(tail, r, 4); tail(f's_cbranch_vccz L_ch_got{tag}{T}')
        tail(f's_add_u32 {sSPIN}, {sSPIN}, 1\ns_cmp_lt_u32 {sSPIN}, {SPIN_MAX}\ns_cbranch_scc1 L_ch_poll{tag}{T}\ns_branch {fail}')
        tail(f'L_ch_got{tag}{T}:')
    if opts.get('solo'):
        s.extend(idle); del idle[:]; prestage(s); book(s); s(f's_waitcnt vmcnt(0)\ns_branch L_ch_solo{T}')
    D1 = opts.get('D1', 2); G1 = opts.get('g1', (42, 40, 38, 36)); G1 = G1[w] if isinstance(G1, tuple) else G1; D1 = D1[w] if isinstance(D1, tuple) else D1
    G2_ = opts.get('g2', 28); G2_ = G2_[w] if isinstance(G2_, tuple) else G2_
    fill(P1[w])
    P(s, 'h1'); h1l(s, 0)
    for r in range(1, D1): fill(G1); h1l(s, r)
    s.extend(idle)
    if w >= 2: s(f'ds_read_b128 {vr(AV+4,4)}, v{vG16} offset:{LK + 1024*(w-2)}', 'kre')
    PS = opts.get('ps', 4); prestage(s, 0, PS); s.W('ds', 'sel')
    h1f(s, 0, 2*(D1-1)); s(f's_nop 3\ns_cbranch_vccnz L_ch_missa{T}\nL_ch_oka{T}:')
    tail(f'L_ch_missa{T}:\ns_mov_b32 {sSPIN}, 0\nL_ch_polla{T}:')
    for r in list(range(1, D1)) + [0]:
        cnt(tail, 's65'); h1l(tail, (r+D1-1) % D1); h1f(tail, r, 2*(D1-1)); tail(f's_nop 3\ns_cbranch_vccz L_ch_oka{T}')
    tail(f's_add_u32 {sSPIN}, {sSPIN}, 1\ns_cmp_lt_u32 {sSPIN}, {SPIN_MAX}\ns_cbranch_scc1 L_ch_polla{T}\ns_branch {fail}')
    P(s, 'h1ok')
    GATE = opts.get('gate')
    ann = f'buffer_store_dword v{TM-1}, v{vZ}, {WS}, {sH2O} offen {st}'
    if GATE: s(ann)
    s(f"""v_add_f32_dpp v{RA}, v{RA}, v{RA} row_ror:4 row_mask:0xf bank_mask:0xf
          v_add_f32_dpp v{RA+1}, v{RA+1}, v{RA+1} row_ror:4 row_mask:0xf bank_mask:0xf
          s_nop 0
          v_add_f32_dpp v{RA}, v{RA}, v{RA} row_ror:8 row_mask:0xf bank_mask:0xf
          v_add_f32_dpp v{RA+1}, v{RA+1}, v{RA+1} row_ror:8 row_mask:0xf bank_mask:0xf
          v_cvt_pk_bf16_f32 v{TM}, v{RA}, v{RA+1}
          v_min_u32 v{TM}, -2, v{TM}
          buffer_store_dword v{TM}, v{vPUB}, {WS}, {sMS} offen {st}""")
    def dma(t, tag): t(f'buffer_load_dwordx4 v{vG16}, {WS}, {sMS} offen sc1 lds\nbuffer_load_dwordx4 v{vG16}, {WS}, {sMS} offen offset:1024 sc1 lds', tag)
    def prb(t, r, tag='x'): t(f'buffer_load_dword v{HR+r}, v{vF32}, {WS}, {sH2} offen sc1', tag)
    idle = S(); book(idle)
    if GATE:
        NG, GG = GATE
        fill(D2)
        for r in range(NG):
            prb(s, r, f'g{r}')
            if r == 0: prestage(s, PS, 5)
            if r < NG-1: fill(GG)
        s.extend(idle); P(s, 'pub')
        s.W('vm', 'g0'); s(f'v_cmp_gt_u32 vcc, v{TM-1}, v{HR}\ns_cbranch_vccnz L_ch_g1{T}'); P(s, 'h2'); dma(s, 'h2'); s(f'L_ch_gok{T}:')
        for r in list(range(1, NG)) + [0]:
            tail(f'L_ch_g{r}{T}:'); cnt(tail, 's66'); prb(tail, (r+NG-1) % NG)
            if r == 0: tail(f's_add_u32 {sSPIN}, {sSPIN}, 1\ns_cmp_lt_u32 {sSPIN}, {SPIN_MAX}\ns_cbranch_scc0 {fail}')
            tail(f's_waitcnt vmcnt({NG-1})\nv_cmp_gt_u32 vcc, v{TM-1}, v{HR+r}\ns_cbranch_vccnz L_ch_g{(r+1) % NG}{T}'); dma(tail, 'x'); tail(f's_branch L_ch_gok{T}')
        s(f's_mov_b32 {sSPIN}, 0\nv_cmp_gt_u32 vcc, {sPT}, v{vFP}')
    else:
        s.nops(opts.get('da', 4)); s(ann)
        P(s, 'pub')
        prestage(s, PS, 5); s.nops(max(0, D2 - 2*(5-PS) - opts.get('da', 4)))
        P(s, 'h2')
        def shot(t, r): prb(t, r, 'hint' if r == 0 else 'x'); dma(t, 'h2' if r == 0 else 'x')
        shot(s, 0)
        for r in range(1, DD): fill(G2_); shot(s, r)
        s.extend(idle)
        tail(f'L_ch_hmiss{T}:\ns_mov_b32 {sSPIN}, 0\nL_ch_hpoll{T}:')
        for r in list(range(1, DD)) + [0]:
            cnt(tail, 's66'); shot(tail, (r+DD-1) % DD)
            tail(f's_waitcnt vmcnt({3*(DD-1)+2})\nv_cmp_gt_u32 vcc, v{TM-1}, v{HR+r}\ns_cbranch_vccz L_ch_hok{T}')
        tail(f's_add_u32 {sSPIN}, {sSPIN}, 1\ns_cmp_lt_u32 {sSPIN}, {SPIN_MAX}\ns_cbranch_scc1 L_ch_hpoll{T}\ns_branch {fail}')
    if opts.get('solo'): s(f'L_ch_solo{T}:\nv_mov_b32 v{HR}, -1')
    P(s, 'end')
    if opts.get('trace'):
        s(f's_cmp_eq_u32 {sS}, 13\ns_cbranch_scc1 L_ch_m0{T}\ns_cmp_eq_u32 {sS}, 63\ns_cbranch_scc1 L_ch_m1{T}\nL_ch_mb{T}:')
        tail(f'L_ch_m0{T}:\ns_memtime s[58:59]\ns_memrealtime s[60:61]\ns_mov_b32 s65, 0\ns_mov_b32 s66, 0\ns_mov_b32 s67, 0\ns_branch L_ch_mb{T}')
        tail(f'L_ch_m1{T}:\ns_memtime s[62:63]\ns_memrealtime s[98:99]\ns_waitcnt lgkmcnt(0)\ns_sub_u32 s64, s62, s58\ns_sub_u32 s60, s98, s60\ns_branch L_ch_mb{T}')
    s('s_waitcnt lgkmcnt(0)')
    if pts:
        s(f's_cmp_eq_u32 {sS}, {opts.get("tls", 41)}\ns_cbranch_scc0 L_ch_step{T}')
        s(f's_lshl_b32 s100, {sROLE}, 2\ns_add_u32 s100, s100, {sW}\ns_lshl_b32 s100, s100, 9\ns_add_u32 s100, s100, {TRACE+256}\nv_mov_b32 v{TM-4}, s100')
        for i in range(len(pts)): s(f'v_mov_b32 v{TM-3}, s{70+2*i}\nbuffer_store_dword v{TM-3}, v{TM-4}, {WS}, 0 offen offset:{4*i}\ns_waitcnt vmcnt(0)')
    s(f's_branch L_ch_step{T}')
    if opts.get('hoist', 1): s = hoist_waits(s)
    for pat in opts.get('drop', []):
        lo = [i for i, o in enumerate(s) if o.t == f'L_ch_in{T}:'][0] + 2; hi = [i for i, o in enumerate(s) if o.tag == 'oa1'][0] - 2
        s = S(o for i, o in enumerate(s) if not (lo <= i < hi and o.t and o.t.startswith(pat) and 'safe' not in o.t))
    step = resolve(s, pre_vm=['h2']*2 if GATE else ['hint'] + ['h2']*2 + ['x']*(3*(DD-1)))[0]
    if opts.get('model') == T: model(step[step.index(f'L_ch_in{T}:'):], True)
    tail(f'L_ch_missb{T}:\ns_mov_b32 {sSPIN}, 0\ns_sub_u32 s30, {sMS}, {2048*w}\ns_add_u32 s31, s30, 4096\ns_waitcnt lgkmcnt(0)'); cnt(tail, 's68')
    for t in range(8): rdma(t, tail)
    tail('s_waitcnt lgkmcnt(0)'); prestage(tail); tail(f's_branch L_ch_chkb{T}\nL_ch_pollb{T}:')
    for t in range(8): tail(f'buffer_load_dwordx4 {vr(MA+4*t,4)}, v{vG16}, {WS}, s3{t >> 2} offen offset:{1024*(t & 3)} sc1')
    tail(f's_add_u32 {sSPIN}, {sSPIN}, 1\ns_cmp_lt_u32 {sSPIN}, {SPIN_MAX}\ns_cbranch_scc0 {fail}\ns_waitcnt vmcnt(0)\nL_ch_chkb{T}:\nv_max_u32 v{CK}, v{MA}, v{MA+1}')
    for r in range(2, 32, 2): tail(f'v_max3_u32 v{CK}, v{CK}, v{MA+r}, v{MA+r+1}')
    tail(f'v_cmp_eq_u32 vcc, -1, v{CK}\ns_cbranch_vccnz L_ch_pollb{T}')
    zero(tail, AQ, 16); tail('s_waitcnt lgkmcnt(0)\ns_nop 0')
    qpass(tail, False); tail(f's_branch L_ch_okb{T}')
    t = tail
    t(f'L_ch_last{T}:')
    if w >= 2: t(f'ds_read_b128 {vr(AV+4,4)}, v{vG16} offset:{LK + 1024*(w-2)}\ns_waitcnt lgkmcnt(0)')
    kmstore(t); vmstore(t)
    t(f's_waitcnt vmcnt({0 if opts.get("nokv") else 2 if w >= 2 else 1})\ns_barrier'); cflag(t)
    t(f's_sub_u32 {sN}, {sN}, 1\ns_waitcnt vmcnt({1 if w == 2 else 0})\nv_mov_b32 v{vFV}, {sCV}\ns_barrier')
    cflag(t)
    if opts.get('trace'): t('s_add_u32 s69, s69, 1')
    stamp(t, opts, 's69', MA)
    if opts.get('trace'):
        for i, r in enumerate(('s64', 's65', 's66', 's67', 's68', 's60')):
            t(f'v_mov_b32 v{MA}, {r}\nv_add_u32 v{MA+1}, 4, v{MA+1}\nbuffer_store_dword v{MA}, v{MA+1}, {WS}, 0 offen\ns_nop 1')
    t(f"""s_waitcnt vmcnt(0) lgkmcnt(0)
          s_barrier
          s_add_u32 {sL}, {sL}, 1
          s_cmp_lt_u32 {sL}, {opts.get('nl', 2)}
          s_cbranch_scc1 L_ch_layer{T}
          s_endpgm""")
    m, m2 = LL + 1, LL + 3
    t(f'L_ch_safe{T}:\ns_cmp_eq_u32 {sS}, 63\ns_cbranch_scc1 L_ch_last{T}\nv_max3_f32 v{m}, v{SX}, v{SX+1}, v{SM}\nv_max_f32 v{m}, v{m}, v{SM+1}')
    xreduce(t, m, m2, 'v_max_f32', dpp=())
    t(f'''ds_write_b32 v{vG16}, v{m} offset:{LMX + 4*w}
          s_waitcnt lgkmcnt(0)
          s_barrier
          ds_read_b128 {vr(PX,4)}, v{vG16} offset:{LMX}
          s_waitcnt lgkmcnt(0)
          v_max3_f32 v{m}, v{PX}, v{PX+1}, v{PX+2}
          v_max_f32 v{m}, v{m}, v{PX+3}''')
    for b in (SX, SM):
        for r in range(2): t(f'v_sub_f32 v{b+2+r}, v{b+r}, v{m}\nv_exp_f32 v{b+2+r}, v{b+2+r}')
    t(f'''s_nop 0
          v_cvt_pk_bf16_f32 v{SX+2}, v{SX+2}, v{SX+3}
          v_cvt_pk_bf16_f32 v{PM}, v{SM+2}, v{SM+3}
          v_cvt_pk_bf16_f32 v{PM+3}, v{SM+2}, v{SM+3}
          ds_write_b32 v{vG16}, v{SX+2} offset:{LP + 4*w}
          s_waitcnt lgkmcnt(0)
          s_barrier
          ds_read_b128 {vr(PX,4)}, v{vG16} offset:{LP}
          s_waitcnt lgkmcnt(0)
          v_mfma_f32_16x16x32_bf16 {vr(LL,4)}, {vr(ONES,4)}, {vr(PX,4)}, 0
          v_mfma_f32_16x16x32_bf16 {vr(OX,4)}, {vr(VX,4)}, {vr(PX,4)}, 0
          v_mfma_f32_16x16x32_bf16 {vr(OX+4,4)}, {vr(VX+4,4)}, {vr(PX,4)}, 0
          s_nop 7
          v_mfma_f32_16x16x16_bf16 {vr(LL,4)}, {vr(ONES,2)}, {vr(PM,2)}, {vr(LL,4)}
          v_mfma_f32_16x16x16_bf16 {vr(OX,4)}, {vr(AV,2)}, {vr(PM,2)}, {vr(OX,4)}
          v_mfma_f32_16x16x16_bf16 {vr(OX+4,4)}, {vr(AV,2)}, {vr(PM+2,2)}, {vr(OX+4,4)}
          s_nop 7
          v_rcp_f32 v{LL+2}, v{LL}
          s_mov_b64 vcc, 0
          s_branch L_ch_norm{T}''')
    return pre + step + resolve(tail)[0]

def role_chain(opts):
    fail = 'L_ch_fail'
    s = S(); setup(s, opts, fail)
    return resolve(s)[0] + body('F', opts, fail) + [f'{fail}:', 's_endpgm'] + body('S', opts, fail)
```

```python
from common import *

def dense_pairs(nks, rowbytes, dst, krow=lambda ks, jr: 32*ks + 2*jr):
    return [(krow(ks, jr) * rowbytes, dst(0, ks, jr), dst(1, ks, jr)) for ks in range(nks) for jr in range(4)]

def role_p(after, opts):
    s = S()
    fail = 'L_p_fail'; tl = TL(opts, 'p')
    sH, sU, sL, sS, sO, sIN, sSTR, sC, sFO, sFV, sRB, sWB, sW4 = [f's{i}' for i in range(32, 45)]
    sX = ['s46', 's47', 's48', 's49']
    vL16, vXa, vLR, vFo, vFp, vFt, vSF, vSW, vSR, vBP = range(1, 11)
    vA, vB, vKS = 12, 13, 120
    AF, SF, GM, ONES, aK, aV, aQ, CS, ST = 16, 32, 48, 56, 60, 68, 76, 84, 108
    U = SF; RQ, NQ = 118, 119
    st = Stats(vSF, SF, GM, ONES, vSW, vSR, vBP, ST, 50)
    WK = lambda t, ks, jr=0: ('a', 8*ks + 4*t + jr)
    WV = lambda t, ks, jr=0: ('a', 128 + 8*ks + 4*t + jr)
    WQ = lambda t, ks, jr=0: 128 + 8*ks + 4*t + jr
    def mk(d, t, ks, a): return f'v_mfma_f32_16x16x32_bf16 {vr(d+4*t,4)}, {R(WK(t,ks),4)}, {a}, {"0" if ks == 0 else vr(d+4*t,4)}'
    def mv(d, t, ks, a): return f'v_mfma_f32_16x16x32_bf16 {vr(d+4*t,4)}, {a}, {R(WV(t,ks),4)}, {"0" if ks == 0 else vr(d+4*t,4)}'
    def mq(d, t, ks, a): return f'v_mfma_f32_16x16x32_bf16 {vr(d+4*t,4)}, {R(WQ(t,ks),4)}, {a}, {"0" if ks == 0 else vr(d+4*t,4)}'
    s(f'''L_role_p:
    s_lshr_b32 s30, {sROLE}, 5
    s_sub_u32 s30, s30, 1
    s_lshl_b32 s30, s30, 3
    s_bfe_u32 s31, {sROLE}, 0x30001
    s_add_u32 {sH}, s30, s31
    s_and_b32 {sU}, {sROLE}, 1
    v_lshlrev_b32 v{vL16}, 4, v0
    v_lshrrev_b32 v14, 4, v0
    v_and_b32 v15, 15, v0
    v_lshlrev_b32 v{vA}, 16, v14
    v_lshl_add_u32 v{vA}, v15, 2, v{vA}
    s_lshl_b32 s30, {sH}, 8
    s_lshl_b32 s31, {sW}, 6
    s_add_u32 s30, s30, s31
    v_add_u32 v{vA}, s30, v{vA}
    v_add_u32 v{vB}, 0x2000, v{vA}
    v_lshlrev_b32 v{vXa}, 10, v15
    v_lshl_add_u32 v{vXa}, v14, 4, v{vXa}
    s_lshl_b32 s30, {sW}, 8
    v_add_u32 v{vXa}, s30, v{vXa}
    ''')
    for key, dst in (('Wk', WK), ('Wv', WV), ('Wq', WQ)):
        set_srd(s, 16, key, 4*MB)
        load_pairs(s, dense_pairs(16, 8192, dst), vA, vB, 16, 64)
    set_srd(s, 12, 'x', 2*MB)
    st.setup(s, 49152, 12)
    s('s_nop 1')
    for ks in range(16):
        for t in range(2): s(mk(CS, t, ks, vr(ONES,4))); s(mv(CS+8, t, ks, vr(ONES,4))); s(mq(CS+16, t, ks, vr(ONES,4)))
    s(f'''; K fragment position: 512(g>>1) + 128(c>>2) + 64(g&1) + 16(c&3)
    v_lshrrev_b32 v12, 5, v0
    v_bfe_u32 v13, v0, 2, 2
    v_lshlrev_b32 v{vKS}, 9, v12
    v_lshl_add_u32 v{vKS}, v13, 7, v{vKS}
    v_bfe_u32 v12, v0, 4, 1
    v_and_b32 v13, 3, v0
    v_lshl_add_u32 v{vKS}, v12, 6, v{vKS}
    v_lshl_add_u32 v{vKS}, v13, 4, v{vKS}''')
    stamp(s, opts, 0, 12)
    wait_init(s, 12, 13, fail)
    s(f'''
    v_and_b32 v{vFo}, 7, v0
    v_lshlrev_b32 v{vFo}, 2, v{vFo}
    s_lshl_b32 s30, {sH}, 7
    s_lshl_b32 s31, {sU}, 4
    s_add_u32 s30, s30, s31
    s_lshl_b32 s31, {sW}, 2
    s_add_u32 s30, s30, s31
    s_add_u32 s30, s30, {F_P}
    v_mov_b32 v{vFp}, s30
    s_mov_b32 {sC}, {f32(128**-0.5 * LOG2E)}
    s_mov_b32 {sL}, 0
    s_lshl_b32 {sIN}, {sU}, 14
    s_mov_b32 {sSTR}, 64
    s_lshl_b32 {sW4}, {sW}, 12
    L_p_layer:
    s_mul_i32 {sO}, {sH}, 24
    s_lshl_b32 s30, {sU}, 2
    s_add_u32 {sO}, {sO}, s30
    s_add_u32 {sO}, {sO}, {sW}
    s_lshl_b32 {sO}, {sO}, 10
    s_mul_i32 s30, {sL}, {LSTR}
    s_add_u32 {sO}, {sO}, s30
    s_add_u32 {sO}, {sO}, {LB0 + O_QKV}
    s_lshl_b32 {sFV}, {sL}, 7
    s_mov_b32 {sS}, 0
    s_mov_b32 {sRB}, 0
    s_mov_b32 {sWB}, 0
    ''')
    def flag_offset(t, k):
        t(f'''s_add_u32 s30, {sS}, {k}
              s_min_u32 s30, s30, 63
              s_lshl_b32 s30, s30, 1
              s_add_u32 s30, s30, {sU}
              s_lshl_b32 {sFO}, s30, 5
              s_add_u32 {sFO}, {sFO}, {F_O}''')
    def ring(t, r): t(f's_add_u32 {r}, {r}, 0x4000\ns_cmp_eq_u32 {r}, 0xc000\ns_cselect_b32 {r}, 0, {r}')
    def dma(t, k):
        t(f'''s_add_u32 s30, {sS}, {k}
              s_min_u32 s30, s30, 63
              s_lshl_b32 s30, s30, 15
              s_add_u32 s30, s30, {sIN}
              s_add_u32 m0, {sWB}, {sW4}''')
        for i in range(4):
            if i: t(f's_add_u32 m0, m0, 1024\ns_add_u32 s30, s30, {sSTR}')
            else: t('s_nop 0')
            t(f'buffer_load_dwordx4 v{vXa}, {XIN}, s30 offen sc1 lds', 'x')
        ring(t, sWB)
    def flagload(t, k):
        flag_offset(t, k); t(f'buffer_load_dword v{vFt}, v{vFo}, {WS}, {sFO} offen sc1', 'fl')
    flag_offset(s, 0); poll(s, vFo, sFO, vFt, sL, fail); dma(s, 0); flagload(s, 1)
    s(f's_waitcnt vmcnt(0)\nv_cmp_gt_u32 vcc, {sL}, v{vFt}\ns_cbranch_vccnz L_p_slow0\nL_p_back0:')
    dma(s, 1); flagload(s, 2)
    if opts.get('trace'): s(f's_add_u32 s69, {sL}, 1')
    stamp(s, opts, 's69', 12)
    s(f'buffer_load_dword v12, v{vFo}, {WS}, {sFO} offen sc1\nbuffer_load_dword v13, v{vFo}, {WS}, {sFO} offen sc1')
    pre, _ = resolve(s)
    m = S(); f = S()
    def rd(ks, tag): m(f'ds_read_b128 v[{AF+4*(ks%4)}:{AF+4*(ks%4)+3}], v{vLR} offset:{1024*(ks%16)}', tag)
    m(f'L_p_loop:\ns_add_u32 s30, {sRB}, {sW4}\nv_add_u32 v{vSF}, s30, v{vL16}\nv_add_u32 v{vLR}, {sRB}, v{vL16}\ns_barrier')
    tl(m, 'bar'); st.reads(m); ring(m, sRB)
    st.mfmas(m, after=lambda i: rd(i, f'a{i}') if i < 3 else None)
    for i in range(32):
        ks = i % 16
        tl(m, f'i{i}'); m.W('ds', f'a{i}')
        a = vr(AF + 4*(i % 4), 4)
        if i < 16:
            m(mk(aK, 0, ks, a))
            if i + 3 < 32: rd(i + 3, f'a{i+3}')
            m(mk(aK, 1, ks, a)); m(mv(aV, 0, ks, a)); m(mv(aV, 1, ks, a))
            if i == 0: st.part1(m)
            if i == 2: m.W('ds', 'sw'); m('s_barrier'); st.part2(m)
            if i == 3:
                m(f's_cmp_eq_u32 {sS}, 0\ns_cbranch_scc1 L_p_nofl'); tl(m, 'qst'); m.W('vm', 'kv'); tl(m, 'ack')
                m(f's_mov_b64 exec, 1\nbuffer_store_dword v11, v{vFp}, {WS}, 0 offen sc1\ns_mov_b64 exec, -1', 'flag'); m('L_p_nofl:')
        else:
            m(mq(aQ, 0, ks, a))
            if i + 3 < 32: rd(i + 3, f'a{i+3}')
            m(mq(aQ, 1, ks, a))
    st.part3(f)
    for r in range(8): f(f'v_mul_f32 v{U+r}, v{st.NM}, v{CS+r}')
    f(f'v_mul_f32 v{RQ}, {sC}, v{st.RS}\nv_mul_f32 v{NQ}, {sC}, v{st.NM}')
    f.W('ds', 'bp')
    for r in range(8): f(f'v_mul_f32 v{U+8+r}, v{st.NMr + (r & 3)}, v{CS+8+r}')
    f('s_waitcnt vmcnt(2)'); f(f'v_cmp_gt_u32 vcc, {sL}, v{vFt}\ns_add_u32 {sFV}, {sFV}, 1\nv_mov_b32 v11, {sFV}\ns_cbranch_vccnz L_p_slow\nL_p_back:')
    dma(f, 2); flagload(f, 3)
    g = S()
    for r in range(8): g(f'v_fmac_f32 v{U+r}, v{st.RS}, v{aK+r}')
    for r in range(4): g(f'v_cvt_pk_bf16_f32 v{aK+r}, v{U+r}, v{U+4+r}')
    g(f's_add_u32 s31, {sO}, 8192\nbuffer_store_dwordx4 {vr(aK,4)}, v{vKS}, {WS}, s31 offen sc1', 'kv')
    for r in range(8): g(f'v_fmac_f32 v{U+8+r}, v{st.RSr + (r & 3)}, v{aV+r}')
    for r in range(4): g(f'v_cvt_pk_bf16_f32 v{aV+r}, v{U+8+2*r}, v{U+8+2*r+1}')
    g(f's_add_u32 s31, {sO}, 16384\nbuffer_store_dwordx4 {vr(aV,4)}, v{vL16}, {WS}, s31 offen sc1', 'kv')
    for r in range(8): g(f'v_mul_f32 v{U+r}, v{NQ}, v{CS+16+r}')
    cut = [i for i, o in enumerate(m) if is_mfma(o)][8 + 64]
    b = merge(S(m[:cut]), f, per=2, start=8 + 17)
    b.extend(merge(S(m[cut:]), g, per=3, start=0))
    tl(b, 'mend'); b('s_nop 6')
    for r in range(8): b(f'v_fmac_f32 v{U+r}, v{RQ}, v{aQ+r}')
    for r in range(4): b(f'v_cvt_pk_bf16_f32 v{aQ+r}, v{U+r}, v{U+4+r}')
    b(f'buffer_store_dwordx4 {vr(aQ,4)}, v{vL16}, {WS}, {sO} offen sc1', 'q')
    tl(b, 'end'); tl.dump(b, f's_cmp_eq_u32 {sS}, 40', 12)
    b(f'''s_add_u32 {sO}, {sO}, {24*32*1024}
          s_add_u32 {sS}, {sS}, 1
          s_cmp_lt_u32 {sS}, {opts.get('pseg', 64)}
          s_cbranch_scc1 L_p_loop''')
    body, q = resolve(b, pre_vm=['x']*4 + ['fl', 'kv', 'kv', 'q'])
    e = S()
    if opts.get('trace'): e(f's_add_u32 s69, {sL}, 3')
    stamp(e, opts, 's69', 12)
    e(f'''s_add_u32 {sFV}, {sFV}, 1
          v_mov_b32 v11, {sFV}
          s_waitcnt vmcnt(0) lgkmcnt(0)
          s_mov_b64 exec, 1
          buffer_store_dword v11, v{vFp}, {WS}, 0 offen sc1
          s_mov_b64 exec, -1
          s_barrier
          s_cmp_eq_u32 {sL}, {opts.get('nl', 2) - 1}
          s_cbranch_scc1 {after}
          s_mov_b32 {sL}, 1
          s_mov_b32 s12, s8
          s_mov_b32 s13, s9
          s_mov_b32 s14, s10
          v_add_u32 v{vXa}, {sW4}, v{vL16}
          s_add_u32 {sIN}, {sIN}, {LB0 + O_X2}
          s_mov_b32 {sSTR}, 1024
          s_branch L_p_layer
          L_p_slow:''')
    poll(e, vFo, sFO, vFt, sL, fail)
    e('s_branch L_p_back\nL_p_slow0:')
    poll(e, vFo, sFO, vFt, sL, fail)
    e(f's_branch L_p_back0\n{fail}:\ns_endpgm')
    return pre + body + resolve(e)[0]
```

```python
from common import *
from role_p import dense_pairs

def rep_rank(s, sR, sI, base):
    s(f's_lshr_b32 {sR}, {sROLE}, 5\ns_sub_u32 {sR}, {sR}, 5\ns_and_b32 {sI}, {sROLE}, 31\ns_sub_u32 {sI}, {sI}, {base}')
def layer_base(s, sHS, sLB, sHL):
    s(f's_lshr_b32 s30, {sHS}, 7\ns_mul_i32 {sLB}, s30, {LSTR}\ns_add_u32 {sLB}, {sLB}, {LB0}\ns_and_b32 {sHL}, {sHS}, 127')
def flag(s, vval, val, vzero, soff):
    s(f'v_mov_b32 v{vval}, {val}\ns_mov_b64 exec, 1\nbuffer_store_dword v{vval}, v{vzero}, {WS}, {soff} offen sc1\ns_mov_b64 exec, -1')
def lflag(s, sM, tail, vval, val, vzero, soff):
    s(f'v_mov_b32 v{vval}, {val}\ns_mov_b64 exec, 1'); dual(s, sM, tail, f'buffer_store_dword v{vval}, v{vzero}, {WS}, {soff} offen @'); s('s_mov_b64 exec, -1')
def tstamp(s, opts, sHS, vt, k=0):
    if opts.get('trace'):
        s(f's_mul_i32 s69, {sHS}, 21846\ns_lshr_b32 s69, s69, 16\ns_add_u32 s69, s69, 2'); stamp(s, opts, 's69', vt)

def role_x2(opts):
    s = S(); fail = 'L_x2_fail'; tl = TL(opts, 'x2')
    sR, sNB, sHS, sLB, sHL, sO, sT, sFI, sFO, sX, sM = [f's{i}' for i in range(32, 43)]; tail = S()
    vL16, vF, vFt, vA, vB, vRes, vLW, vLR = range(1, 9)
    AC, RS, PT, OB = 12, 20, 24, 128
    s('L_role_x2:'); rep_rank(s, sR, sNB, 0)
    s(f'''v_lshlrev_b32 v{vL16}, 4, v0
    v_lshrrev_b32 v10, 4, v0
    v_and_b32 v11, 15, v0
    v_lshlrev_b32 v{vA}, 13, v10
    v_lshl_add_u32 v{vA}, v11, 2, v{vA}
    s_lshl_b32 s30, {sW}, 20
    s_lshl_b32 s31, {sNB}, 6
    s_add_u32 s30, s30, s31
    v_add_u32 v{vA}, s30, v{vA}
    v_add_u32 v{vB}, 0x400, v{vA}
    v_lshlrev_b32 v{vRes}, 10, v11
    v_lshl_add_u32 v{vRes}, v10, 4, v{vRes}
    v_add_u32 v{vRes}, s31, v{vRes}
    s_lshl_b32 s30, {sW}, 11
    v_add_u32 v{vLW}, s30, v{vL16}
    v_mov_b32 v{vLR}, v{vL16}
    v_and_b32 v{vF}, 7, v0
    v_lshlrev_b32 v{vF}, 2, v{vF}
    s_lshl_b32 s30, {sR}, 7
    s_lshl_b32 s31, {sW}, 5
    s_add_u32 {sFI}, s30, s31
    s_add_u32 {sFI}, {sFI}, {F_X1}
    s_lshl_b32 s31, {sNB}, 2
    s_add_u32 {sFO}, s30, s31
    s_add_u32 {sFO}, {sFO}, {F_X2}
    s_mov_b32 {sHS}, {sR}''')
    set_srd(s, 16, 'Wo', 4*MB)
    load_pairs(s, dense_pairs(32, 1024, lambda t, ks, jr: ('a', 8*ks + 4*t + jr)), vA, vB, 16, 64)
    set_srd(s, 12, 'x', 2*MB)
    wait_init(s, 10, 11, fail); die_mode(s, sM, 10, 11)
    s('L_x2_loop:'); layer_base(s, sHS, sLB, sHL)
    s(f'''s_lshl_b32 {sO}, {sHL}, 17
    s_lshl_b32 s30, {sW}, 15
    s_add_u32 {sO}, {sO}, s30
    s_add_u32 {sO}, {sO}, {sLB}
    s_add_u32 {sO}, {sO}, {O_O}
    s_add_u32 {sT}, {sHS}, 1
    s_lshl_b32 {sX}, {sHL}, 14''')
    s(f'''s_cmp_lg_u32 {sW}, 0
    s_cbranch_scc1 L_x2_r2
    s_cmp_ge_u32 {sHS}, 128
    s_cbranch_scc1 L_x2_r1
    buffer_load_dwordx4 {vr(RS,4)}, v{vRes}, {XIN}, {sX} offen
    L_x2_r2:''')
    tail(f'L_x2_r1:\ns_lshl_b32 s31, {sHL}, 5\ns_add_u32 s31, s31, {F_O}'); poll(tail, vF, 's31', vFt, 1, fail)
    tail(f'''s_lshl_b32 s30, {sNB}, 10
    s_add_u32 s30, s30, {sX}
    s_add_u32 s30, s30, {LB0 + O_X2}
    buffer_load_dwordx4 {vr(RS,4)}, v{vL16}, {WS}, s30 offen sc1
    s_branch L_x2_r2''')
    tl(s, 'top'); poll(s, vF, sFI, vFt, sT, fail, sleep=0); tl(s, 'poll')
    AH = opts.get('x2ah', 6)
    def ld(ks):
        if ks and ks & 3 == 0: s(f's_add_u32 {sO}, {sO}, 4096')
        s(f'buffer_load_dwordx4 {vr(OB+4*ks,4)}, v{vL16}, {WS}, {sO} offen offset:{1024*(ks & 3)} sc1', f'o{ks}')
    for ks in range(AH): ld(ks)
    for ks in range(32):
        tl(s, f'w{ks}'); s.W('vm', f'o{ks}'); tl(s, f'g{ks}')
        for t in range(2):
            s(f'v_mfma_f32_16x16x32_bf16 {vr(AC+4*t,4)}, a[{8*ks+4*t}:{8*ks+4*t+3}], {vr(OB+4*ks,4)}, {"0" if ks == 0 else vr(AC+4*t,4)}')
            if t == 0 and ks + AH < 32: ld(ks + AH)
    s(f'''s_nop 7
    ds_write_b128 v{vLW}, {vr(AC,4)}
    ds_write_b128 v{vLW}, {vr(AC+4,4)} offset:1024
    s_waitcnt lgkmcnt(0)
    s_barrier
    s_cmp_lg_u32 {sW}, 0
    s_cbranch_scc1 L_x2_next''')
    tl(s, 'bar')
    for i in range(6): s(f'ds_read_b128 {vr(PT+4*i,4)}, v{vLR} offset:{2048 + 1024*i}', f'p{i}')
    s('s_waitcnt vmcnt(0)')
    for r in range(4):
        s(f'v_lshlrev_b32 v10, 16, v{RS+r}\nv_and_b32 v11, 0xffff0000, v{RS+r}\nv_add_f32 v{AC+r}, v{AC+r}, v10\nv_add_f32 v{AC+4+r}, v{AC+4+r}, v11')
    for i in range(6):
        s.W('ds', f'p{i}')
        for r in (0, 2): s(f'v_pk_add_f32 {vr(AC+4*(i&1)+r,2)}, {vr(AC+4*(i&1)+r,2)}, {vr(PT+4*i+r,2)}')
    for r in range(4): s(f'v_cvt_pk_bf16_f32 v{RS+r}, v{AC+r}, v{AC+4+r}')
    s(f'''s_lshl_b32 s30, {sNB}, 10
    s_add_u32 s30, s30, {sX}
    s_add_u32 s30, s30, {sLB}
    s_add_u32 s30, s30, {O_X1L}''')
    dual(s, sM, tail, f'buffer_store_dwordx4 {vr(RS,4)}, v{vL16}, {WS}, s30 offen @')
    s('s_waitcnt vmcnt(0)')
    tl(s, 'ack'); lflag(s, sM, tail, 10, sT, vF, sFO); tstamp(s, opts, sHS, 10)
    s('L_x2_next:'); tl.dump(s, f's_sub_u32 s30, {sHS}, {sR}\ns_cmp_eq_u32 s30, 60', 10)
    s(f'''
    v_xor_b32 v{vLW}, 0x2000, v{vLW}
    v_xor_b32 v{vLR}, 0x2000, v{vLR}
    s_add_u32 {sHS}, {sHS}, 3
    s_cmp_lt_u32 {sHS}, {128*opts.get('nl', 2)}
    s_cbranch_scc1 L_x2_loop
    {fail}:
    s_endpgm''')
    return resolve(s)[0] + resolve(tail)[0]

def role_x3(opts):
    s = S(); fail = 'L_x3_fail'; tl = TL(opts, 'x3')
    sR, sNB, sHS, sLB, sHL, sO, sT, sFI, sFO, sH, sC, sB, sW4, sG = [f's{i}' for i in range(32, 46)]
    sX = ['s46', 's47', 's48']
    vF, vFt, vA, vL16, vLR, vSF, vSW, vSR, vBP, vQK, vV, vCP = range(1, 13); vTA, vTS, vTT = 122, 123, 124
    AF, SF, GM, ONES, AC, CS, ST, CP = 16, 32, 48, 56, 60, 84, 108, 120
    U = SF; RQ, NQ = 118, 119
    st = Stats(vSF, SF, GM, ONES, vSW, vSR, vBP, ST, 50)
    def mm(d, m, ks, a):
        wv = f'a[{64*m+4*ks}:{64*m+4*ks+3}]'
        return f'v_mfma_f32_16x16x32_bf16 {vr(d+4*m,4)}, {wv if m < 2 else a}, {a if m < 2 else wv}, {"0" if ks == 0 else vr(d+4*m,4)}'
    s('L_role_x3:'); rep_rank(s, sR, sNB, 16)
    s(f"""s_lshl_b32 {sH}, {sNB}, 2
    s_add_u32 {sH}, {sH}, {sW}
    v_lshrrev_b32 v13, 4, v0
    v_and_b32 v14, 15, v0
    v_mul_u32_u24 v{vA}, {8*3072}, v13
    v_lshl_add_u32 v{vA}, v14, 1, v{vA}
    s_lshl_b32 s30, {sH}, 5
    v_add_u32 v{vA}, s30, v{vA}
    v_lshlrev_b32 v{vF}, 2, v14
    v_lshlrev_b32 v14, 4, v14
    v_and_b32 v15, 1, v13
    v_lshl_add_u32 v14, v15, 3, v14
    v_lshrrev_b32 v13, 1, v13
    v_lshl_add_u32 v{vQK}, v13, 9, v14
    v_lshl_add_u32 v{vV}, v13, 8, v14
    v_lshlrev_b32 v{vL16}, 4, v0
    s_lshl_b32 {sFI}, {sR}, 7
    s_add_u32 {sFI}, {sFI}, {F_X2}
    s_lshl_b32 {sFO}, {sH}, 7
    s_lshl_b32 s30, {sR}, 2
    s_add_u32 {sFO}, {sFO}, s30
    s_add_u32 {sFO}, {sFO}, {F_X3}
    s_mov_b32 {sC}, {f32(0.25 * LOG2E)}
    s_lshl_b32 {sW4}, {sW}, 12
    s_mov_b32 {sB}, 0
    s_mov_b32 {sHS}, {sR}""")
    set_srd(s, 16, 'wqkv', 512*3072)
    items = [((32*ks + 2*jr)*3072 + 1024*m, 64*m + 4*ks + jr) for m in range(3) for ks in range(16) for jr in range(4)]
    D = 30
    def issue(i):
        b = 16 + 2*(i % D)
        s(f's_mov_b32 s30, {items[i][0]}\nbuffer_load_ushort v{b}, v{vA}, {WSR}, s30 offen\nbuffer_load_ushort v{b+1}, v{vA}, {WSR}, s30 offen offset:3072')
    for i in range(D): issue(i)
    for i in range(len(items)):
        b = 16 + 2*(i % D)
        s(f's_waitcnt vmcnt({2*(min(len(items), i+D) - i - 1)})\nv_perm_b32 v13, v{b+1}, v{b}, {sSEL0}\nv_accvgpr_write_b32 a{items[i][1]}, v13')
        if i + D < len(items): issue(i + D)
    st.setup(s, 32768, 13); s('s_nop 1')
    for ks in range(16):
        for m in range(3): s(mm(CS, m, ks, vr(ONES, 4)))
    s(f"""v_cmp_gt_u32 vcc, 32, v0
    v_lshlrev_b32 v13, 7, v0
    s_lshl_b32 s30, {sH}, 12
    s_add_u32 s30, s30, {LB0 + O_O}
    v_add_u32 v13, s30, v13
    v_and_b32 v14, 3, v0
    v_lshlrev_b32 v14, 7, v14
    s_lshl_b32 s30, {sH}, 9
    s_add_u32 s30, s30, {LB0 + O_X1L}
    v_add_u32 v14, s30, v14
    v_cndmask_b32 v{vTA}, v14, v13, vcc
    v_mov_b32 v13, 14
    v_cndmask_b32 v{vTS}, v13, 17, vcc""")
    def touch(t, k):
        t(f"""s_add_u32 s30, {sHS}, {k}
        s_min_u32 s30, s30, 255
        s_and_b32 s31, s30, 127
        v_lshlrev_b32 v{vTT}, v{vTS}, s31
        v_add_u32 v{vTT}, v{vTA}, v{vTT}
        s_lshr_b32 s30, s30, 7
        s_mul_i32 s30, s30, {LSTR}
        buffer_load_dword v{vTT}, v{vTT}, {WS}, s30 offen sc1""")
    for k in (0, 3, 6): touch(s, k); s('s_waitcnt vmcnt(0)')
    wait_init(s, 13, 14, fail)
    s('L_x3_loop:'); layer_base(s, sHS, sLB, sHL)
    s(f"""s_lshl_b32 s30, {sHL}, 14
    s_add_u32 s30, s30, {sLB}
    s_lshl_b32 s31, {sH}, 9
    s_add_u32 {sG}, s30, s31
    s_add_u32 {sG}, {sG}, {O_X1}
    s_add_u32 s31, s31, {sB}
    v_lshrrev_b32 v{vCP}, 1, v{vL16}
    v_add_u32 v{vCP}, s31, v{vCP}
    s_add_u32 s30, s30, {sW4}
    s_add_u32 {sLB}, {sLB}, {O_BQ}
    s_add_u32 {sO}, s30, {O_X1L}
    s_add_u32 {sT}, {sHS}, 1
    s_mul_i32 s30, {sH}, {3*65536}
    s_add_u32 s30, s30, {sLB}
    s_lshr_b32 s31, {sHL}, 1
    s_lshl_b32 s31, s31, 10
    s_add_u32 s30, s30, s31
    s_and_b32 s31, {sHL}, 1
    s_lshl_b32 s31, s31, 8
    s_add_u32 {sX[0]}, s30, s31
    s_add_u32 {sX[1]}, {sX[0]}, 65536
    s_add_u32 {sX[2]}, {sX[1]}, 65536
    s_add_u32 {sX[2]}, {sX[2]}, s31
    s_add_u32 m0, {sB}, {sW4}
    v_add_u32 v{vSF}, m0, v{vL16}
    v_add_u32 v{vLR}, {sB}, v{vL16}
    s_xor_b32 {sB}, {sB}, 0x4000""")
    tl(s, 'top'); poll(s, vF, sFI, vFt, sT, fail, sleep=0); tl(s, 'poll')
    for i in range(4): s(f'buffer_load_dwordx4 v{vL16}, {WS}, {sO} offen offset:{1024*i} sc1 lds')
    s('s_waitcnt vmcnt(0)'); tl(s, 'ld'); s('s_barrier'); tl(s, 'bar')
    m = S(); f = S()
    def rd(ks): m(f'ds_read_b128 {vr(AF+4*(ks%4),4)}, v{vLR} offset:{1024*ks}', f'a{ks}')
    st.reads(m); touch(m, 9); st.mfmas(m, after=lambda i: rd(i) if i < 3 else m(f'ds_read_b64 {vr(CP,2)}, v{vCP}', 'cp'))
    for ks in range(16):
        m.W('ds', f'a{ks}'); a = vr(AF+4*(ks%4), 4)
        for t in range(3):
            m(mm(AC, t, ks, a))
            if t == 0 and ks + 3 < 16: rd(ks + 3)
        if ks == 0: st.part1(m)
        if ks == 1:
            m.W('ds', 'cp'); m(f'v_lshrrev_b32 v{vCP}, 1, v{vL16}\nbuffer_store_dwordx2 {vr(CP,2)}, v{vCP}, {WS}, {sG} offen sc1')
        if ks == 2: m.W('ds', 'sw'); m('s_barrier'); st.part2(m)
    st.part3(f)
    f(f'v_mul_f32 v{RQ}, {sC}, v{st.RS}\nv_mul_f32 v{NQ}, {sC}, v{st.NM}')
    for r in range(4): f(f'v_mul_f32 v{U+r}, v{NQ}, v{CS+r}\nv_mul_f32 v{U+4+r}, v{st.NM}, v{CS+4+r}')
    f.W('ds', 'bp')
    for r in range(4): f(f'v_mul_f32 v{U+8+r}, v{st.NMr+r}, v{CS+8+r}')
    s.extend(merge(m, f, per=2, start=8 + 13))
    s('s_nop 5')
    for t in range(3):
        for r in range(4): s(f'v_fmac_f32 v{U+4*t+r}, v{(RQ, st.RS, st.RSr+r)[t]}, v{AC+4*t+r}')
        s(f'v_cvt_pk_bf16_f32 v{AC+4*t}, v{U+4*t}, v{U+4*t+1}\nv_cvt_pk_bf16_f32 v{AC+4*t+1}, v{U+4*t+2}, v{U+4*t+3}')
        s(f'buffer_store_dwordx2 {vr(AC+4*t,2)}, v{vQK if t < 2 else vV}, {WS}, {sX[t]} offen sc1')
    tl(s, 'st'); s('s_waitcnt vmcnt(0)'); tl(s, 'ack')
    flag(s, 13, sT, vF, sFO); tstamp(s, opts, sHS, 13); tl.dump(s, f's_sub_u32 s30, {sHS}, {sR}\ns_cmp_eq_u32 s30, 60', 13)
    s(f"""s_add_u32 {sHS}, {sHS}, 3
    s_cmp_lt_u32 {sHS}, {128*opts.get('nl', 2)}
    s_cbranch_scc1 L_x3_loop
    {fail}:
    s_endpgm""")
    return resolve(s)[0]

sBI, sBN, sBC, sBL = 's60', 's61', 's62', 's63'
def load_wo(s):
    s(f'''v_lshrrev_b32 v10, 4, v0
    v_and_b32 v11, 15, v0
    v_lshrrev_b32 v12, 1, v10
    v_and_b32 v13, 1, v10
    v_lshlrev_b32 v14, 14, v12
    v_lshl_add_u32 v14, v13, 12, v14
    v_lshl_add_u32 v14, v11, 2, v14
    s_lshl_b32 s30, {sBC}, 9
    s_lshl_b32 s31, {sW}, 7
    s_add_u32 s30, s30, s31
    v_add_u32 v14, s30, v14
    v_add_u32 v15, 0x400, v14''')
    set_srd(s, 16, 'wo', 512*1024)
    pairs = [((32*ks + 8*(jr >> 1) + 2*(jr & 1))*1024 + 64*p, ('a', 16*ks + 8*p + jr), ('a', 16*ks + 8*p + 4 + jr)) for ks in range(16) for p in range(2) for jr in range(4)]
    load_pairs(s, pairs, 14, 15, 16, 64)

def role_bo(opts):
    s = S(); fail = 'L_bo_fail'
    sHS, sLB, sA, sX, sT, sF, sM = 's64', 's65', 's66', 's67', 's68', 's70', 's71'
    vL16, vF, vFt, vLR, vOut = 240, 241, 242, 243, 244
    AF, AC, RS = 200, 216, 232
    s(f'''L_bo_p:
    s_and_b32 {sBC}, {sROLE}, 1
    s_lshr_b32 s30, {sROLE}, 5
    s_sub_u32 s30, s30, 1
    s_lshl_b32 s30, s30, 3
    s_bfe_u32 s31, {sROLE}, 0x30001
    s_add_u32 {sBI}, s30, s31
    s_add_u32 {sBI}, {sBI}, 12
    s_mov_b32 {sBL}, 1''')
    load_wo(s)
    s(f'''L_bo:
    s_cmp_eq_u32 {sBL}, 0
    s_cselect_b32 {sBN}, 12, 44
    v_lshlrev_b32 v{vL16}, 4, v0
    v_mov_b32 v{vLR}, v{vL16}
    v_and_b32 v{vF}, 31, v0
    v_lshlrev_b32 v{vF}, 2, v{vF}
    v_lshrrev_b32 v{vFt}, 4, v0
    v_and_b32 v{vOut}, 15, v0
    v_lshlrev_b32 v{vOut}, 10, v{vOut}
    v_lshl_add_u32 v{vOut}, v{vFt}, 4, v{vOut}
    s_mul_i32 {sLB}, {sBL}, {LSTR}
    s_add_u32 {sLB}, {sLB}, {LB0}
    s_add_u32 {sT}, {sBL}, 1
    s_lshl_b32 {sM}, {sW}, 12
    s_mov_b32 {sHS}, {sBI}''')
    set_srd(s, 20, 'out', 2*MB)
    s(f'''L_bo_loop:
    s_lshr_b32 {sF}, {sHS}, 1
    s_lshl_b32 {sF}, {sF}, 7
    s_add_u32 {sF}, {sF}, {F_B}
    s_lshl_b32 s30, {sHS}, 14
    s_add_u32 s30, s30, {sLB}
    s_lshl_b32 s31, {sW}, 12
    s_add_u32 {sA}, s30, s31
    s_add_u32 {sA}, {sA}, {O_OB}
    s_lshl_b32 s31, {sBC}, 13
    s_add_u32 {sX}, s30, s31
    s_lshl_b32 s31, {sW}, 11
    s_add_u32 {sX}, {sX}, s31''')
    poll(s, vF, sF, vFt, sT, fail)
    s(f's_mov_b32 m0, {sM}\ns_add_u32 s30, {sX}, {O_X1}')
    for i in range(4): s(f'buffer_load_dwordx4 v{vL16}, {WS}, {sA} offen offset:{1024*i} sc1 lds')
    for p in range(2): s(f'buffer_load_dwordx4 {vr(RS+4*p,4)}, v{vL16}, {WS}, s30 offen offset:{1024*p} sc1')
    s('s_waitcnt vmcnt(2)\ns_barrier')
    def rd(ks): s(f'ds_read_b128 {vr(AF+4*(ks%4),4)}, v{vLR} offset:{1024*ks}', f'a{ks}')
    rd(0); rd(1); rd(2)
    for ks in range(16):
        s.W('ds', f'a{ks}')
        for t in range(4):
            s(f'v_mfma_f32_16x16x32_bf16 {vr(AC+4*t,4)}, a[{16*ks+4*t}:{16*ks+4*t+3}], {vr(AF+4*(ks%4),4)}, {"0" if ks == 0 else vr(AC+4*t,4)}')
            if t == 0 and ks + 3 < 16: rd(ks + 3)
    s(f'v_xor_b32 v{vLR}, 0x4000, v{vLR}\ns_xor_b32 {sM}, {sM}, 0x4000\ns_waitcnt vmcnt(0)\ns_nop 2')
    for p in range(2):
        for r in range(4):
            a0, a1, x = AC+8*p+r, AC+8*p+4+r, RS+4*p+r
            s(f'v_lshlrev_b32 v{AF}, 16, v{x}\nv_and_b32 v{AF+1}, 0xffff0000, v{x}\nv_add_f32 v{a0}, v{a0}, v{AF}\nv_add_f32 v{a1}, v{a1}, v{AF+1}\nv_cvt_pk_bf16_f32 v{x}, v{a0}, v{a1}')
    s(f'''s_cmp_eq_u32 {sBL}, 0
    s_cbranch_scc1 L_bo_mid
    s_lshl_b32 s30, {sHS}, 14
    s_lshl_b32 s31, {sBC}, 9
    s_add_u32 s30, s30, s31
    s_lshl_b32 s31, {sW}, 7
    s_add_u32 s30, s30, s31
    buffer_store_dwordx4 {vr(RS,4)}, v{vOut}, {OUT}, s30 offen
    buffer_store_dwordx4 {vr(RS+4,4)}, v{vOut}, {OUT}, s30 offen offset:64
    s_branch L_bo_next
    L_bo_mid:
    s_add_u32 s30, {sX}, {O_X2}
    buffer_store_dwordx4 {vr(RS,4)}, v{vL16}, {WS}, s30 offen sc1
    buffer_store_dwordx4 {vr(RS+4,4)}, v{vL16}, {WS}, s30 offen offset:1024 sc1
    s_lshl_b32 s30, {sHS}, 5
    s_lshl_b32 s31, {sBC}, 4
    s_add_u32 s30, s30, s31
    s_lshl_b32 s31, {sW}, 2
    s_add_u32 s30, s30, s31
    s_add_u32 s30, s30, {F_O}
    s_waitcnt vmcnt(0)''')
    flag(s, AF, 1, vF, 's30')
    s('L_bo_next:')
    if opts.get('trace'):
        s(f's_cmp_eq_u32 {sHS}, {sBI}\ns_cselect_b32 s69, 0, 1\ns_add_u32 s69, s69, 100\ns_lshl_b32 s30, {sBL}, 1\ns_add_u32 s69, s69, s30'); stamp(s, opts, 's69', AF)
    s(f'''s_add_u32 {sHS}, {sHS}, {sBN}
    s_cmp_lt_u32 {sHS}, 128
    s_cbranch_scc1 L_bo_loop
    s_cmp_lt_u32 {sBL}, {opts.get('nl', 2) - 1}
    s_cbranch_scc0 {fail}
    s_mov_b32 {sBL}, 1
    s_branch L_x1_layer
    {fail}:
    s_endpgm''')
    return resolve(s)[0]

def role_x1(with_bo, opts):
    s = S(); fail = 'L_x1_fail'; tl = TL(opts, 'x1')
    sR, sJ, sHS, sLB, sHL, sH, sQ, sKM, sO, sT, sFP, sFC, sFO, sPT, sCT, sEND, sPF, sM = [f's{i}' for i in range(32, 50)]; tail = S()
    MK = [f's[{50+2*r}:{51+2*r}]' for r in range(4)]
    vL16, vL8, vF, vZ, vFt, vFP, vKM, vNEG, vKS = range(1, 10)
    Q = [16, 32]; V = [48, 80]; K = 112; KM = 144; VM = 160; SD, SP, SMm = 168, 172, 176; PB, PMm = 180, 184; AC = 192; TT = 10
    s('L_role_x1:'); rep_rank(s, sR, sJ, 24)
    s(f'''s_lshl_b32 {sH}, {sJ}, 2
    s_add_u32 {sH}, {sH}, {sW}
    s_lshl_b32 s30, {sR}, 3
    s_add_u32 s30, s30, {sJ}
    s_and_b32 {sBC}, s30, 1
    s_lshr_b32 {sBI}, s30, 1
    s_mov_b32 {sBL}, 0''')
    if with_bo: load_wo(s)
    wait_init(s, 10, 11, fail); die_mode(s, sM, 10, 11)
    s(f'''v_lshlrev_b32 v{vL16}, 4, v0
    v_lshlrev_b32 v{vL8}, 3, v0
    v_and_b32 v{vF}, 7, v0
    v_lshlrev_b32 v{vF}, 2, v{vF}
    v_mov_b32 v{vZ}, 0
    v_mov_b32 v{vNEG}, {f32(-1e30)}
    v_lshrrev_b32 v10, 4, v0
    v_and_b32 v11, 15, v0
    v_lshrrev_b32 v12, 1, v10
    v_and_b32 v13, 1, v10
    v_lshrrev_b32 v14, 2, v11
    v_and_b32 v15, 1, v11
    v_lshlrev_b32 v{vKM}, 8, v12
    v_lshl_add_u32 v{vKM}, v13, 5, v{vKM}
    v_lshl_add_u32 v{vKM}, v14, 6, v{vKM}
    v_lshl_add_u32 v{vKM}, v15, 4, v{vKM}
    v_lshlrev_b32 v{vKS}, 9, v12
    v_lshl_add_u32 v{vKS}, v14, 7, v{vKS}
    v_lshl_add_u32 v{vKS}, v13, 6, v{vKS}
    v_and_b32 v15, 3, v11
    v_lshl_add_u32 v{vKS}, v15, 4, v{vKS}
    v_lshlrev_b32 v10, 2, v10''')
    for r in range(4): s(f'v_add_u32 v12, {r}, v10\nv_cmp_le_u32 {MK[r]}, v12, v11')
    s(f'''s_lshl_b32 s30, {sH}, 7
    s_add_u32 {sFP}, s30, {F_P}
    s_add_u32 {sFC}, s30, {F_C}
    s_lshl_b32 s30, {sR}, 7
    s_lshl_b32 s31, {sH}, 2
    s_add_u32 {sFO}, s30, s31
    s_add_u32 {sFO}, {sFO}, {F_X1}
    s_mov_b32 {sHS}, {sR}
    L_x1_layer:
    v_mov_b32 v{PMm+1}, 0
    v_mov_b32 v{PMm+2}, 0
    s_and_b32 {sEND}, {sHS}, 128
    s_add_u32 {sEND}, {sEND}, 128''')
    def qaddr(t, hs):
        t(f'''s_lshr_b32 s30, {hs}, 7
              s_mul_i32 {sQ}, s30, {LSTR}
              s_lshl_b32 {sPT}, s30, 7
              s_bfe_u32 s30, {hs}, 0x60001
              s_add_u32 {sPT}, {sPT}, s30
              s_add_u32 {sPT}, {sPT}, 2
              s_lshl_b32 s30, s30, 5
              s_add_u32 s30, s30, {sH}
              s_mul_i32 s30, s30, {24*1024}
              s_add_u32 {sQ}, {sQ}, s30
              s_add_u32 {sQ}, {sQ}, {LB0 + O_QKV}''')
    def loads(t, u):
        def four(reg, off, step=4, va=vL16):
            t(f's_add_u32 s30, {sQ}, {off}')
            for i in range(4): t(f'buffer_load_dwordx4 {vr(reg+step*i,4)}, v{va}, {WS}, s30 offen offset:{1024*i} sc1', 'pf')
        four(Q[u], 4096*u); four(K, 8192 + 4096*u, 4, vKS)
        if u: four(K+16, 8192, 4, vKS); four(V[u], 16384, 8); four(V[u]+4, 16384 + 4096, 8)
        else: four(V[u], 16384)
    s('L_x1_pro:'); qaddr(s, sHS); poll(s, vF, sFP, vFP, sPT, fail)
    s(f's_bitcmp1_b32 {sHS}, 0\ns_cbranch_scc1 L_x1_pro1\nL_x1_pro0:')
    loads(s, 0); s('s_waitcnt vmcnt(0)\ns_branch L_x1_task0\nL_x1_pro1:'); loads(s, 1); s('s_waitcnt vmcnt(0)\ns_branch L_x1_task1')
    out = resolve(s)[0]
    for u in range(2):
        s = S()
        s(f'L_x1_task{u}:'); tl(s, 'top')
        for ks in range(4):
            s(f'v_mfma_f32_16x16x32_bf16 {vr(SD,4)}, {vr(K+4*ks,4)}, {vr(Q[u]+4*ks,4)}, {"0" if ks == 0 else vr(SD,4)}')
            if u:
                s(f'v_mfma_f32_16x16x32_bf16 {vr(SP,4)}, {vr(K+16+4*ks,4)}, {vr(Q[u]+4*ks,4)}, {"0" if ks == 0 else vr(SP,4)}')
                s(f'v_swap_b32 v{V[u]+8*ks+2}, v{V[u]+8*ks+4}\nv_swap_b32 v{V[u]+8*ks+3}, v{V[u]+8*ks+5}')
        layer_base(s, sHS, sLB, sHL)
        s(f'''s_lshr_b32 {sCT}, {sHS}, 1
        s_add_u32 {sCT}, {sCT}, 1
        s_lshr_b32 s30, {sHL}, 1
        s_lshl_b32 s30, s30, 5
        s_add_u32 s30, s30, {sH}
        s_lshl_b32 {sKM}, s30, 12
        s_add_u32 {sKM}, {sKM}, {sLB}
        s_add_u32 {sKM}, {sKM}, {O_KVM}
        s_lshl_b32 {sO}, {sHL}, 17
        s_lshl_b32 s30, {sH}, 12
        s_add_u32 {sO}, {sO}, s30
        s_add_u32 {sO}, {sO}, {sLB}
        s_add_u32 {sO}, {sO}, {O_O}
        s_add_u32 {sT}, {sHS}, 1
        s_add_u32 {sHS}, {sHS}, 3''')
        qaddr(s, sHS)
        for r in range(4): s(f'v_cndmask_b32 v{SD+r}, v{vNEG}, v{SD+r}, {MK[r]}')
        m = TT
        s(f'v_max3_f32 v{m}, v{SD}, v{SD+1}, v{SD+2}\nv_max_f32 v{m}, v{m}, v{SD+3}')
        if u: s(f'v_max3_f32 v{m}, v{m}, v{SP}, v{SP+1}\nv_max3_f32 v{m}, v{m}, v{SP+2}, v{SP+3}')
        s(f'''v_cmp_gt_u32 vcc, {sPT}, v{vFP}
        s_mov_b32 {sPF}, 0
        s_cmp_lt_u32 {sHS}, {sEND}
        s_cbranch_scc0 L_x1_nopf{u}
        s_cbranch_vccnz L_x1_nopf{u}
        s_mov_b32 {sPF}, 1''')
        loads(s, 1 - u)
        s(f'L_x1_nopf{u}:')
        tl(s, 'pre'); poll(s, vZ, sFC, vFt, sCT, fail); tl(s, 'poll')
        for ks in range(4): s(f'buffer_load_dwordx4 {vr(KM+4*ks,4)}, v{vKM}, {WS}, {sKM} offen offset:{512*ks} sc1', f'km{ks}')
        for i in range(4): s(f'buffer_load_dwordx2 {vr(VM+2*i,2)}, v{vL8}, {WS}, {sKM} offen offset:{2048 + 512*i} sc1', 'vm')
        s(f'buffer_load_dword v{vFP}, v{vF}, {WS}, {sFP} offen sc1'); tl(s, 'go')
        for ks in range(4):
            s.W('vm', f'km{ks}')
            s(f'v_mfma_f32_16x16x32_bf16 {vr(SMm,4)}, {vr(KM+4*ks,4)}, {vr(Q[u]+4*ks,4)}, {"0" if ks == 0 else vr(SMm,4)}')
        tl(s, 'km'); s(f's_nop 7\nv_max3_f32 v{m}, v{m}, v{SMm}, v{SMm+1}')
        xreduce(s, m, m+1, 'v_max_f32', dpp=())
        regs = [SMm, SMm+1] + list(range(SD, SD+4)) + (list(range(SP, SP+4)) if u else [])
        for r in regs: s(f'v_sub_f32 v{r}, v{r}, v{m}')
        for r in regs: s(f'v_exp_f32 v{r}, v{r}')
        s(f'v_cvt_pk_bf16_f32 v{PMm}, v{SMm}, v{SMm+1}\nv_cvt_pk_bf16_f32 v{PMm+3}, v{SMm}, v{SMm+1}')
        s(f'v_cvt_pk_bf16_f32 v{PB+2}, v{SD}, v{SD+1}\nv_cvt_pk_bf16_f32 v{PB+3}, v{SD+2}, v{SD+3}')
        if u: s(f'v_cvt_pk_bf16_f32 v{PB}, v{SP}, v{SP+1}\nv_cvt_pk_bf16_f32 v{PB+1}, v{SP+2}, v{SP+3}')
        s.W('vm', 'vm'); s('s_nop 0')
        mm = S(); f = S()
        for i in range(8):
            if u: mm(f'v_mfma_f32_16x16x32_bf16 {vr(AC+4*i,4)}, {vr(V[u]+4*i,4)}, {vr(PB,4)}, 0')
            else: mm(f'v_mfma_f32_16x16x16_bf16 {vr(AC+4*i,4)}, {vr(V[u]+2*i,2)}, {vr(PB+2,2)}, 0')
        for i in range(8):
            mm(f'v_mfma_f32_16x16x16_bf16 {vr(AC+4*i,4)}, {vr(VM+2*(i>>1),2)}, {vr(PMm+2*(i&1),2)}, {vr(AC+4*i,4)}')
        f(f'v_add_f32 v{m}, v{regs[0]}, v{regs[1]}')
        for r in regs[2:]: f(f'v_add_f32 v{m}, v{m}, v{r}')
        xreduce(f, m, m+1, 'v_add_f32', dpp=())
        f(f'v_rcp_f32 v{m}, v{m}')
        s.extend(merge(mm, f, 2))
        for b in range(4):
            if b == 0: s('s_nop 1')
            for r in range(8): s(f'v_mul_f32 v{AC+8*b+r}, v{m}, v{AC+8*b+r}')
            for r in range(4): s(f'v_cvt_pk_bf16_f32 v{AC+8*b+r}, v{AC+8*b+r}, v{AC+8*b+4+r}')
            dual(s, sM, tail, f'buffer_store_dwordx4 {vr(AC+8*b,4)}, v{vL16}, {WS}, {sO} offen offset:{1024*b} @')
        tl(s, 'st'); s('s_waitcnt vmcnt(0)'); tl(s, 'ack')
        lflag(s, sM, tail, TT, sT, vZ, sFO); tl.dump(s, f's_sub_u32 s30, {sHS}, {sR}\ns_cmp_eq_u32 s30, 63', TT)
        if opts.get('trace'): s(f's_sub_u32 s31, {sHS}, 3'); tstamp(s, opts, 's31', TT)
        s(f'''s_cmp_eq_u32 {sPF}, 1
        s_cbranch_scc1 L_x1_task{1-u}
        s_cmp_lt_u32 {sHS}, {sEND}
        s_cbranch_scc1 L_x1_pro
        s_branch {"L_bo" if with_bo else fail}''')
        out += resolve(s)[0]
    return out + [f'{fail}:', 's_endpgm'] + resolve(tail)[0]
```

```python
import re

class Op:
    __slots__ = ('t', 'kind', 'tag')
    def __init__(self, t, kind=None, tag=None):
        self.t, self.kind, self.tag = t, kind, tag

def kind_of(t):
    m = t.split()[0]
    if m.startswith('ds_'): return 'ds'
    if m.startswith('buffer_') or m.startswith('global_'): return 'vm'
    return None

class S(list):
    def __call__(self, text, tag=None):
        for x in text.strip('\n').split('\n'):
            x = x.strip()
            if not x: continue
            self.append(Op(x, kind_of(x), tag))
        return self
    def W(self, kind, tag):
        self.append(Op(None, 'wait_' + kind, tag)); return self
    def nops(self, n):
        while n > 0:
            k = min(n, 16); self(f's_nop {k-1}'); n -= k
        return self

def resolve(stream, pre_vm=(), pre_ds=()):
    q = {'vm': list(pre_vm), 'ds': list(pre_ds)}
    mx = {'vm': 63, 'ds': 15}
    nm = {'vm': 'vmcnt', 'ds': 'lgkmcnt'}
    out = []
    for o in stream:
        if o.kind in ('wait_vm', 'wait_ds'):
            k = o.kind[5:]
            if o.tag == '*':
                out.append(f's_waitcnt {nm[k]}(0)'); q[k] = []; continue
            idx = [i for i, t in enumerate(q[k]) if t == o.tag]
            if not idx: continue
            n = len(q[k]) - 1 - idx[-1]
            n2 = min(n, mx[k])
            out.append(f's_waitcnt {nm[k]}({n2})')
            q[k] = q[k][len(q[k]) - n2:] if n2 else []
            continue
        out.append(o.t)
        if o.kind in q: q[o.kind].append(o.tag)
        if o.t.startswith('s_waitcnt'):
            for k in q:
                m = re.search(nm[k] + r'\((\d+)\)', o.t)
                if m:
                    n = int(m.group(1)); q[k] = q[k][len(q[k]) - n:] if n and n < len(q[k]) else (q[k] if n else [])
    return out, q

def is_mfma(o): return o.t is not None and (o.t.startswith('v_mfma') or o.t.startswith('v_smfmac'))
def is_vec(o): return o.t is not None and (o.t.startswith('v_') or o.kind in ('ds', 'vm'))

def merge(main, fill, per=2, start=0):
    out = S(); fi = 0; n = 0; pend = 0
    def pull(k):
        nonlocal fi
        while fi < len(fill) and k > 0:
            if fill[fi].kind in ('ds', 'vm'): break
            if is_vec(fill[fi]): k -= 1
            out.append(fill[fi]); fi += 1
    for i, o in enumerate(main):
        if pend and not (o.kind in ('ds', 'vm')):
            pull(pend); pend = 0
        out.append(o)
        if is_mfma(o):
            n += 1
            if n > start:
                pend = per(n) if callable(per) else per
                nxt = main[i+1] if i + 1 < len(main) else None
                if fi < len(fill) and fill[fi].kind in ('ds', 'vm') and not (nxt is not None and nxt.kind in ('ds', 'vm')):
                    out.append(fill[fi]); fi += 1
    out.extend(fill[fi:])
    return out

def vr(b, n=1, p='v'):
    return f'{p}{b}' if n == 1 else f'{p}[{b}:{b+n-1}]'
def R(r, n=1):
    if isinstance(r, tuple): return vr(r[1], n, 'a')
    return vr(r, n)
def radd(r, k):
    return ('a', r[1] + k) if isinstance(r, tuple) else r + k

def hoist_waits(st):
    out = S(); i = 0
    for o in st:
        if is_mfma(o):
            j = len(out)
            while j > 0 and out[j-1].kind in ('wait_vm', 'wait_ds'): j -= 1
            k = j
            while k > 0 and out[k-1].t and out[k-1].t.startswith('v_') and not is_mfma(out[k-1]): k -= 1
            if j < len(out) and k < j: out[k:] = out[j:] + out[k:j]
        out.append(o)
    return out

def model(lines, show=False):
    t = 0; pipe = 0; vfree = 0; prev_valu = False; last = 0; out = []
    for x in lines:
        m = x.split()[0] if x.split() else ''
        if not m or m.endswith(':') or m.startswith(';'): continue
        if m.startswith('v_mfma') or m.startswith('v_smfmac'):
            big = '32x32' in m
            t = max(t, pipe); pipe = t + (32 if big else 16); vfree = t + (12 if 'smf' in m else 8)
            out.append((t, t - last, x)); last = t; t += 4; prev_valu = False; continue
        t0 = t
        if m.startswith('v_'):
            t = max(t, vfree); t0 = t
            t += 8 if m.split('_')[1] in ('exp', 'rcp', 'rsq', 'swap', 'permlane16', 'permlane32') else 4; prev_valu = True
        elif m.startswith('ds_') or m.startswith('buffer_'):
            c = 8
            if 'write2' in m or 'write_b64' in m or 'store_dwordx2' in m: c = 16
            if 'write_b128' in m or 'store_dwordx4' in m: c = 24
            t += c + (4 if prev_valu else 0); prev_valu = False
        elif m == 's_nop': t += 4 * (int(x.split()[1]) + 1); prev_valu = False
        elif m.startswith('s_cbranch') or m == 's_barrier': t += 8; prev_valu = False
        else: t += 4; prev_valu = False
        out.append((t0, None, x))
    if show:
        for a, d, x in out: print(f'{a:5d} {("+" + str(d - 16)) if d is not None and d != 16 else "":>5s}  {x}')
    return t

def cost(o):
    if o.kind in ('wait_vm', 'wait_ds'): return 4
    m = o.t.split()[0] if o.t.split() else ''
    if not m or m.endswith(':') or m.startswith(';'): return 0
    if o.kind in ('ds', 'vm'):
        if 'write_b128' in m or 'store_dwordx4' in m: return 24
        if 'write2' in m or 'write_b64' in m or 'store_dwordx2' in m: return 16
        return 8
    if m == 's_nop': return 4 * (int(o.t.split()[1]) + 1)
    if m.startswith('s_cbranch') or m == 's_barrier': return 8
    if m.startswith('v_') and m.split('_')[1] in ('exp', 'rcp', 'rsq', 'swap'): return 8
    return 4

def weave(main, fill, start=0, budget=12):
    gaps = [[]]
    for o in main:
        if is_mfma(o): gaps.append([o])
        else: gaps[-1].append(o)
    out = S(gaps[0]); fi = 0
    for n, g in enumerate(gaps[1:], 1):
        own = g[1:]
        head = [o for o in own if o.kind not in ('wait_vm', 'wait_ds')]; waits = [o for o in own if o.kind in ('wait_vm', 'wait_ds')]
        if any(o.t and (o.t.startswith('v_') or o.t.endswith(':') or o.t.startswith('s_barrier') or o.t.startswith('s_cbranch') or 'exec' in o.t) for o in head):
            out.extend(g); continue
        cur = head + waits; used = sum(map(cost, cur)); valu = False
        while n > start and fi < len(fill):
            o = fill[fi]; c = cost(o); isv = o.t is not None and o.t.startswith('v_')
            if isv and not valu and used == 0: c += 4
            if o.kind in ('ds', 'vm'):
                if valu or (any(x.kind in ('ds', 'vm') for x in cur) and used + c > budget): break
            elif used and used + c > budget: break
            cur.append(o); used += c; valu = valu or isv; fi += 1
        out.append(g[0]); out.extend(cur)
    out.extend(fill[fi:])
    return out
```

```python
from asmlib import *
NAME = 'interleave_layers__memory_aug_recurrent_mem_tr__softmax_full_mha__prompt'
KA = dict(x=0, mem0=8, Wq=16, Wk=24, Wv=32, Wo=40, wqkv=64, wo=72, out=80, dbg=88, ws=96)
F_P, F_C, F_X1, F_X2, F_AL, F_X3, F_O, F_B = 0x0, 0x1000, 0x2000, 0x2200, 0x2400, 0x3000, 0x4000, 0x10000
CH_MEM, CH_IN = 0x20000, 0x40000
MB = 1 << 20
LB0, LSTR = MB, 86 * MB
O_QKV, O_KVM, O_O, O_X1, O_BQ, O_OB, O_X2, O_X1L = 0, 48*MB, 56*MB, 72*MB, 74*MB, 80*MB, 82*MB, 84*MB
WS_BYTES = 256 * MB
WS, XIN, WSR, OUT = 's[8:11]', 's[12:15]', 's[16:19]', 's[20:23]'
sW, sROLE, sXCC, sSPIN = 's24', 's25', 's26', 's27'
sSEL0, sSEL1 = 's28', 's29'
SPIN_MAX = 200000
LOG2E = 1.4426950408889634
import struct
def f32(x): return hex(struct.unpack('<I', struct.pack('<f', x))[0])

_lbl = [0]
def L(p):
    _lbl[0] += 1
    return f'L_{p}_{_lbl[0]}'

def set_srd(s, srd_base, key, nbytes):
    s(f'''s_load_dwordx2 s[4:5], s[0:1], {KA[key]}
          s_waitcnt lgkmcnt(0)
          s_mov_b32 s{srd_base}, s4
          s_mov_b32 s{srd_base+1}, s5
          s_mov_b32 s{srd_base+2}, {nbytes}
          s_mov_b32 s{srd_base+3}, 0x20000''')

def poll(s, vaddr, soff, vtmp, target, fail, sleep=1):
    a, b = L('poll'), L('pollok')
    s(f'''s_mov_b32 {sSPIN}, 0
          {a}:
          buffer_load_dword v{vtmp}, v{vaddr}, {WS}, {soff} offen sc1
          s_waitcnt vmcnt(0)
          v_cmp_gt_u32 vcc, {target}, v{vtmp}
          s_cbranch_vccz {b}
          s_sleep {sleep}
          s_add_u32 {sSPIN}, {sSPIN}, 1
          s_cmp_lt_u32 {sSPIN}, {SPIN_MAX}
          s_cbranch_scc1 {a}
          s_branch {fail}
          {b}:''')

def poll1(s, vaddr, soff, vtmp, target, fail, sleep=1):
    l = L('p1'); s(f's_cmp_lg_u32 {sW}, 0\ns_cbranch_scc1 {l}'); poll(s, vaddr, soff, vtmp, target, fail, sleep); s(f'{l}:\ns_barrier')

def wait_init(s, v0, v1, fail):
    a, b = L('wi'), L('wiok')
    s(f'''v_mov_b32 v{v0}, 0
          s_mov_b32 {sSPIN}, 0
          {a}:
          global_load_dword v{v1}, v{v0}, s[6:7] offset:64 sc1
          s_waitcnt vmcnt(0)
          v_cmp_gt_u32 vcc, 0x100, v{v1}
          s_cbranch_vccz {b}
          s_sleep 2
          s_add_u32 {sSPIN}, {sSPIN}, 1
          s_cmp_lt_u32 {sSPIN}, {SPIN_MAX}
          s_cbranch_scc1 {a}
          s_branch {fail}
          {b}:''')

def load_pairs(s, pairs, vA, vB, tmp, ntmp, ssoff='s30', post=None, lds=None):
    depth = min(ntmp // 2 - 1, 31)
    t0 = tmp + 2 * depth
    n = len(pairs)
    def issue(i):
        b = tmp + 2 * (i % depth)
        s(f's_mov_b32 {ssoff}, {pairs[i][0]}')
        s(f'buffer_load_dword v{b}, v{vA}, {WSR}, {ssoff} offen')
        s(f'buffer_load_dword v{b+1}, v{vB}, {WSR}, {ssoff} offen')
    for i in range(min(depth, n)): issue(i)
    for i in range(n):
        b = tmp + 2 * (i % depth)
        s(f's_waitcnt vmcnt({2 * (min(n, i + depth) - i - 1)})')
        for j, sel in ((0, sSEL0), (1, sSEL1)):
            d = pairs[i][1 + j]
            if isinstance(d, tuple):
                s(f'v_perm_b32 v{t0+j}, v{b+1}, v{b}, {sel}')
            else:
                s(f'v_perm_b32 v{d}, v{b+1}, v{b}, {sel}')
        for j in (0, 1):
            d = pairs[i][1 + j]
            if isinstance(d, tuple): s(f'v_accvgpr_write_b32 a{d[1]}, v{t0+j}')
        if i + depth < n: issue(i + depth)
        if post: post(i)

def xreduce(s, v, t, op='v_add_f32', dpp=(4, 8)):
    for r in dpp:
        s(f's_nop 1\n{op}_dpp v{v}, v{v}, v{v} row_ror:{r} row_mask:0xf bank_mask:0xf')
    for w in (16, 32):
        s(f'v_mov_b32 v{t}, v{v}\ns_nop 1\nv_permlane{w}_swap_b32 v{v}, v{t}\ns_nop 1\n{op} v{v}, v{v}, v{t}')

def ln_unpack(s, X, F):
    for i in range(16):
        s(f'v_lshlrev_b32 v{F+2*i}, 16, v{X+i}\nv_and_b32 v{F+2*i+1}, 0xffff0000, v{X+i}')

def ln_rest_np(s, F, T, vLW):
    for i in range(4): s(f'v_add_f32 v{T+i}, v{F+i}, v{F+4+i}')
    for i in range(8, 32): s(f'v_add_f32 v{T+i%4}, v{T+i%4}, v{F+i}')
    s(f'v_add_f32 v{T}, v{T}, v{T+1}\nv_add_f32 v{T+2}, v{T+2}, v{T+3}\nv_add_f32 v{T}, v{T}, v{T+2}')
    xreduce(s, T, T + 1)
    s(f'v_mul_f32 v{T}, {f32(-1.0/512)}, v{T}')
    for i in range(32): s(f'v_add_f32 v{F+i}, v{F+i}, v{T}')
    for i in range(32):
        s(f'v_mul_f32 v{T+2+i}, v{F+i}, v{F+i}' if i < 4 else f'v_fmac_f32 v{T+2+i%4}, v{F+i}, v{F+i}')
    s(f'v_add_f32 v{T}, v{T+2}, v{T+3}\nv_add_f32 v{T+4}, v{T+4}, v{T+5}\nv_add_f32 v{T}, v{T}, v{T+4}')
    xreduce(s, T, T + 1)
    s(f'v_mov_b32 v{T+1}, {f32(1e-5)}\nv_fmac_f32 v{T+1}, {f32(1.0/512)}, v{T}\nv_rsq_f32 v{T}, v{T+1}\ns_nop 0')
    for i in range(4):
        for j in range(8): s(f'v_mul_f32 v{F+8*i+j}, v{F+8*i+j}, v{T}')
        for j in range(4): s(f'v_cvt_pk_bf16_f32 v{F+8*i+j}, v{F+8*i+2*j}, v{F+8*i+2*j+1}')
        s(f'ds_write_b128 v{vLW}, v[{F+8*i}:{F+8*i+3}] offset:{4096*i}', 'lnw')

def ln_rest(s, F, T, vLW):
    s(f'v_pk_add_f32 v[{T}:{T+1}], v[{F}:{F+1}], v[{F+2}:{F+3}]')
    s(f'v_pk_add_f32 v[{T+2}:{T+3}], v[{F+4}:{F+5}], v[{F+6}:{F+7}]')
    for i in range(4, 16):
        t = T + 2 * (i & 1)
        s(f'v_pk_add_f32 v[{t}:{t+1}], v[{t}:{t+1}], v[{F+2*i}:{F+2*i+1}]')
    s(f'v_pk_add_f32 v[{T}:{T+1}], v[{T}:{T+1}], v[{T+2}:{T+3}]\nv_add_f32 v{T}, v{T}, v{T+1}')
    xreduce(s, T, T + 1)
    s(f'v_mul_f32 v{T}, {f32(-1.0/512)}, v{T}')
    for i in range(16):
        s(f'v_pk_add_f32 v[{F+2*i}:{F+2*i+1}], v[{F+2*i}:{F+2*i+1}], v[{T}:{T+1}] op_sel_hi:[1,0]')
    for i in range(16):
        t = T + 2 + 2 * (i & 1); f = f'v[{F+2*i}:{F+2*i+1}]'
        if i < 2: s(f'v_pk_mul_f32 v[{t}:{t+1}], {f}, {f}')
        else: s(f'v_pk_fma_f32 v[{t}:{t+1}], {f}, {f}, v[{t}:{t+1}]')
    s(f'v_pk_add_f32 v[{T}:{T+1}], v[{T+2}:{T+3}], v[{T+4}:{T+5}]\nv_add_f32 v{T}, v{T}, v{T+1}')
    xreduce(s, T, T + 1)
    s(f'v_mov_b32 v{T+1}, {f32(1e-5)}\nv_fmac_f32 v{T+1}, {f32(1.0/512)}, v{T}\nv_rsq_f32 v{T}, v{T+1}\ns_nop 0')
    for i in range(4):
        for j in range(4):
            f = F + 8 * i + 2 * j
            s(f'v_pk_mul_f32 v[{f}:{f+1}], v[{f}:{f+1}], v[{T}:{T+1}] op_sel_hi:[1,0]')
        for j in range(4):
            s(f'v_cvt_pk_bf16_f32 v{F+8*i+j}, v{F+8*i+2*j}, v{F+8*i+2*j+1}')
        s(f'ds_write_b128 v{vLW}, v[{F+8*i}:{F+8*i+3}] offset:{4096*i}', 'lnw')

def prologue(s, opts):
    s(f'''
    s_cmp_ge_u32 s2, 0x100
    s_cbranch_scc0 L_start
    s_endpgm
    L_start:
    s_load_dwordx2 s[6:7], s[0:1], {KA['dbg']}
    s_load_dwordx2 s[4:5], s[0:1], {KA['ws']}
    s_getreg_b32 {sXCC}, hwreg(HW_REG_XCC_ID)
    s_and_b32 {sXCC}, {sXCC}, 7
    v_lshrrev_b32 v1, 6, v0
    v_and_b32 v0, 63, v0
    s_mov_b32 {sSEL0}, 0x05040100
    v_readfirstlane_b32 {sW}, v1
    s_mov_b32 {sSEL1}, 0x07060302
    s_waitcnt lgkmcnt(0)
    s_mov_b32 s8, s4
    s_mov_b32 s9, s5
    s_mov_b32 s10, {WS_BYTES}
    s_mov_b32 s11, 0x20000
    s_cmp_eq_u32 {sW}, 0
    s_cbranch_scc1 L_rank
    s_cmp_lg_u32 {sW}, 1
    s_cbranch_scc1 {'L_warm' if opts.get('warm', 0) else 'L_rank_done'}
    s_getpc_b64 s[30:31]
    L_pc:
    s_bfe_u32 s32, s2, 0x40003
    s_lshl_b32 s32, s32, 13
    v_lshlrev_b32 v2, 7, v0
    v_add_u32 v2, s32, v2
    v_min_u32 v2, L_code_end - L_pc - 4, v2
    global_load_dword v143, v2, s[30:31]
    s_branch L_rank_done
    L_warm:
    s_cmp_eq_u32 {sXCC}, 0
    s_cbranch_scc1 L_rank_done
    s_lshl_b32 s30, {sW}, 4
    s_sub_u32 s30, s30, 16
    s_load_dwordx4 s[32:35], s[0:1], s30
    s_lshl_b32 s31, s2, 14
    v_lshlrev_b32 v2, 6, v0
    v_add_u32 v2, s31, v2
    s_cmp_eq_u32 {sXCC}, 1
    s_cselect_b32 s36, 8, 4
    s_cselect_b32 s31, 0x4000, 0
    v_subrev_u32 v2, s31, v2
    s_waitcnt lgkmcnt(0)
    L_warm_loop:
    v_and_b32 v2, 0x3fffff, v2
    global_load_dword v10, v2, s[32:33]
    global_load_dword v10, v2, s[34:35]
    v_add_u32 v2, 0x1000, v2
    s_sub_u32 s36, s36, 1
    s_cmp_lg_u32 s36, 0
    s_cbranch_scc1 L_warm_loop
    s_branch L_rank_done
    L_rank:
    s_lshl_b32 s30, {sXCC}, 2
    s_add_u32 s30, s30, 128
    s_cmp_eq_u32 {sXCC}, 0
    s_cselect_b32 s30, 0, s30
    v_mov_b32 v2, s30
    v_mov_b32 v3, 1
    v_mov_b32 v5, 0
    v_mov_b64 v[8:9], 0
    v_lshlrev_b32 v6, 3, v0
    s_lshl_b32 s31, s2, 9
    s_mov_b64 exec, 1
    global_atomic_add v4, v2, v3, s[6:7] sc0
    s_mov_b64 exec, -1
    buffer_store_dwordx2 v[8:9], v6, {WS}, s31 offen sc1
    v_mov_b64 v[12:13], -1
    v_mov_b64 v[14:15], -1
    v_lshlrev_b32 v6, 4, v0
    v_lshlrev_b32 v7, 2, v0
    s_lshl_b32 s31, s2, 10
    s_add_u32 s31, s31, {CH_IN}
    buffer_store_dwordx4 v[12:15], v6, {WS}, s31 offen sc1
    s_lshl_b32 s31, s2, 8
    s_add_u32 s31, s31, {CH_MEM}
    buffer_store_dword v12, v7, {WS}, s31 offen sc1
    s_mov_b64 exec, 1
    s_waitcnt vmcnt(0)
    global_atomic_add v5, v3, s[6:7] offset:64
    v_readfirstlane_b32 s30, v4
    s_mov_b64 exec, -1
    s_lshl_b32 {sROLE}, {sXCC}, 5
    s_add_u32 {sROLE}, {sROLE}, s30
    s_cmp_lt_u32 s30, 32
    s_cbranch_scc1 L_rank_put
    ''')
    wait_init(s, 5, 4, 'L_exit')
    s(f'''
    s_mov_b64 exec, 1
    global_atomic_add v4, v5, v3, s[6:7] offset:68 sc0
    s_mov_b64 exec, -1
    v_lshlrev_b32 v6, 2, v0
    v_add_u32 v6, 128, v6
    v_cmp_eq_u32 vcc, 0, v0
    s_nop 1
    v_cndmask_b32 v6, v6, v5, vcc
    v_and_b32 v6, 0xbf, v6
    global_load_dword v7, v6, s[6:7] sc1
    s_waitcnt vmcnt(0)
    v_readfirstlane_b32 s30, v4
    s_mov_b32 s31, 0
    L_hole:
    s_nop 3
    v_readlane_b32 s32, v7, s31
    s_min_u32 s32, s32, 32
    s_sub_u32 s33, 32, s32
    s_lshl_b32 {sROLE}, s31, 5
    s_add_u32 {sROLE}, {sROLE}, s32
    s_add_u32 {sROLE}, {sROLE}, s30
    s_cmp_lt_u32 s30, s33
    s_cbranch_scc1 L_rank_put
    s_sub_u32 s30, s30, s33
    s_add_u32 s31, s31, 1
    s_cmp_lt_u32 s31, 8
    s_cbranch_scc1 L_hole
    s_mov_b32 {sROLE}, 0x100
    L_rank_put:
    v_mov_b32 v2, 0
    v_mov_b32 v3, {sROLE}
    ds_write_b32 v2, v3
    s_waitcnt lgkmcnt(0)
    L_rank_done:
    s_barrier
    v_mov_b32 v2, 0
    ds_read_b32 v3, v2
    s_waitcnt lgkmcnt(0)
    v_readfirstlane_b32 {sROLE}, v3
    s_barrier
    s_cmp_lt_u32 {sROLE}, 0x100
    s_cbranch_scc1 L_dispatch
    L_exit:
    s_endpgm
    L_dispatch:
    ''')

TRACE = 0x80000
def stamp(s, opts, idx, vt):
    if not opts.get('trace'): return
    s(f'''s_memrealtime s[98:99]
          s_lshl_b32 s100, {sROLE}, 2
          s_add_u32 s100, s100, {sW}
          s_lshl_b32 s100, s100, 7
          s_add_u32 s100, s100, {idx}
          s_lshl_b32 s100, s100, 2
          s_add_u32 s100, s100, {TRACE}
          s_waitcnt lgkmcnt(0)
          v_mov_b32 v{vt}, s98
          v_mov_b32 v{vt+1}, s100
          buffer_store_dword v{vt}, v{vt+1}, {WS}, 0 offen''')

class TL:
    def __init__(self, opts, role):
        self.pts = list(opts.get('tl_' + role) or []); self.ins = 's_memrealtime' if opts.get('rt') else 's_memtime'; self.at = opts.get('at_' + role)
    def __call__(self, s, k):
        if k in self.pts: s(f'{self.ins} s[{72+2*self.pts.index(k)}:{73+2*self.pts.index(k)}]')
    def dump(self, s, cond, vt):
        if not self.pts: return
        l = L('tl')
        s(f's_waitcnt lgkmcnt(0)\n{cond}\ns_cbranch_scc0 {l}')
        s(f's_lshl_b32 s100, {sROLE}, 2\ns_add_u32 s100, s100, {sW}\ns_lshl_b32 s100, s100, 9\ns_add_u32 s100, s100, {TRACE+4*108}\nv_mov_b32 v{vt}, s100')
        for i in range(len(self.pts)):
            s.append(Op(f'v_mov_b32 v{vt+1}, s{72+2*i}')); s.append(Op(f'buffer_store_dword v{vt+1}, v{vt}, {WS}, 0 offen offset:{4*i}')); s.append(Op('s_nop 1'))
        s(f'{l}:')

class Stats:
    def __init__(self, vSF, SF, GM, ONES, vSW, vSR, vBP, ST, masks):
        self.__dict__.update(locals())
        self.RS, self.NM, self.RSr, self.NMr = ST, ST+1, ST+2, ST+6
    def setup(self, s, lds_off, t0):
        m = self.masks
        s(f'''v_and_b32 v{t0}, 15, v0
              v_lshrrev_b32 v{t0+1}, 4, v0
              v_lshlrev_b32 v{self.vSR}, 5, v{t0}
              v_add_u32 v{self.vSR}, {lds_off}, v{self.vSR}
              s_lshl_b32 s30, {sW}, 3
              v_add_u32 v{self.vSW}, s30, v{self.vSR}
              v_mul_u32_u24 v{self.vBP}, 80, v{t0+1}
              v_lshrrev_b32 v{t0+2}, 2, v{t0}
              v_cmp_eq_u32 s[{m}:{m+1}], v{t0+2}, v{t0+1}
              v_and_b32 v{t0+2}, 3, v{t0}''')
        for r in (1, 2, 3): s(f'v_cmp_eq_u32 s[{m+2*r}:{m+2*r+1}], {r}, v{t0+2}')
        for r in range(4): s(f'v_mov_b32 v{self.ONES+r}, 0x3f803f80')
    def reads(self, s):
        for i in range(4): s(f'ds_read_b128 {vr(self.SF+4*i,4)}, v{self.vSF} offset:{1024*i}', f'sf{i}')
    def mfmas(self, s, after=None):
        G, M = self.GM + 4, self.GM
        for i in range(4):
            s.W('ds', f'sf{i}'); a = vr(self.SF+4*i, 4)
            s(f'v_mfma_f32_16x16x32_bf16 {vr(G,4)}, {a}, {a}, {"0" if i == 0 else vr(G,4)}')
            if after: after(i)
            s(f'v_mfma_f32_16x16x32_bf16 {vr(M,4)}, {vr(self.ONES,4)}, {a}, {"0" if i == 0 else vr(M,4)}')
    def part1(self, f):
        G, M, m = self.GM + 4, self.GM, self.masks
        for r in (1, 2, 3): f(f'v_cndmask_b32 v{M+1 if r == 3 else G}, v{G}, v{G+r}, s[{m+2*r}:{m+2*r+1}]')
        f(f's_mov_b64 exec, s[{m}:{m+1}]'); f(f'ds_write_b64 v{self.vSW}, {vr(M,2)}', 'sw'); f('s_mov_b64 exec, -1')
    def part2(self, f):
        T = self.SF; RS, NM = self.RS, self.NM
        f(f'ds_read_b128 {vr(T,4)}, v{self.vSR}', 'sr0'); f(f'ds_read_b128 {vr(T+4,4)}, v{self.vSR} offset:16', 'sr1')
    def part3(self, f):
        T = self.SF; RS, NM = self.RS, self.NM
        f.W('ds', 'sr1')
        for r in range(4): f(f'v_add_f32 v{T+r}, v{T+r}, v{T+4+r}')
        f(f'''v_add_f32 v{T}, v{T}, v{T+2}
              v_add_f32 v{T+1}, v{T+1}, v{T+3}
              v_mul_f32 v{T}, {f32(-1.0/512)}, v{T}
              v_mul_f32 v{T+1}, {f32(1.0/512)}, v{T+1}
              v_fma_f32 v{T+1}, -v{T}, v{T}, v{T+1}
              v_max_f32 v{T+1}, 0, v{T+1}
              v_add_f32 v{T+1}, {f32(1e-5)}, v{T+1}
              v_rsq_f32 v{RS}, v{T+1}
              s_nop 0
              v_mul_f32 v{NM}, v{T}, v{RS}''')
        for r in range(4):
            f(f'ds_bpermute_b32 v{self.RSr+r}, v{self.vBP}, v{RS} offset:{4*r}', 'bp'); f(f'ds_bpermute_b32 v{self.NMr+r}, v{self.vBP}, v{NM} offset:{4*r}', 'bp')

sMODE = 's31'
def die_mode(s, sM, v0, v1):
    s(f"""s_lshr_b32 s30, {sROLE}, 5
          s_lshl_b32 s30, s30, 2
          s_add_u32 s30, s30, 128
          v_mov_b32 v{v0}, s30
          global_load_dword v{v1}, v{v0}, s[6:7] sc1
          s_waitcnt vmcnt(0)
          v_readfirstlane_b32 s30, v{v1}
          s_cmp_ge_u32 s30, 32
          s_cselect_b32 {sM}, 1, 0""")
def dual(s, sM, tail, lines, tag=None):
    a, b = L('far'), L('join')
    s(f's_cmp_eq_u32 {sM}, 0\ns_cbranch_scc1 {a}')
    s(lines.replace('@', ''), tag); s(f'{b}:')
    tail(f'{a}:'); tail(lines.replace('@', 'sc1')); tail(f's_branch {b}')

def load_pairs_lds(s, groups, grow, rowbytes, delta, scol, lbase, ring, v, tmp, fl=''):
    vG, vR = v, v + 1
    s(f"""v_bfe_u32 v{tmp}, v0, 3, 1
          v_mul_u32_u24 v{vG}, {grow[0]}, v{tmp}
          v_bfe_u32 v{tmp}, v0, 2, 1
          v_mul_u32_u24 v{tmp}, {grow[1]}, v{tmp}
          v_add_u32 v{vG}, v{vG}, v{tmp}
          v_bfe_u32 v{tmp}, v0, 4, 1
          v_add_u32 v{vG}, v{vG}, v{tmp}
          v_lshrrev_b32 v{tmp}, 5, v0
          v_mul_u32_u24 v{tmp}, {delta}, v{tmp}
          v_add_u32 v{vG}, v{vG}, v{tmp}
          v_mul_u32_u24 v{vG}, {rowbytes}, v{vG}
          v_and_b32 v{tmp}, 3, v0
          v_lshl_add_u32 v{vG}, v{tmp}, 4, v{vG}
          v_add_u32 v{vG}, {scol}, v{vG}
          v_lshlrev_b32 v{vR}, 2, v0
          v_add_u32 v{vR}, {lbase}, v{vR}""")
    n = len(groups)
    def issue(i):
        s(f's_add_u32 m0, {lbase}, {1024 * (i % ring)}\ns_mov_b32 s30, {groups[i][1]}\nbuffer_load_dwordx4 v{vG}, {groups[i][0]}, s30 offen {fl} lds')
    def read(i):
        s(f's_waitcnt vmcnt({min(n, i + ring - 2) - i - 1})')
        for jj in range(2):
            b = tmp + 4 * (i % 4) + 2 * jj; o = 4 * (i % ring) + 2 * jj
            s(f'ds_read2st64_b32 v[{b}:{b+1}], v{vR} offset0:{o} offset1:{o+1}')
    for i in range(min(ring - 2, n)): issue(i)
    read(0)
    for i in range(n):
        if i + ring - 2 < n: issue(i + ring - 2)
        if i + 1 < n: read(i + 1)
        s(f's_waitcnt lgkmcnt({2 if i + 1 < n else 0})')
        for jj in range(2):
            b = tmp + 4 * (i % 4) + 2 * jj
            for j, sel in ((0, sSEL0), (1, sSEL1)):
                d = groups[i][2][jj][j]
                if isinstance(d, tuple): s(f'v_perm_b32 v{tmp+16+j}, v{b+1}, v{b}, {sel}\nv_accvgpr_write_b32 a{d[1]}, v{tmp+16+j}')
                else: s(f'v_perm_b32 v{d}, v{b+1}, v{b}, {sel}')

def set_srds(s, items):
    for b, key, n in items: s(f's_load_dwordx2 s[{b}:{b+1}], s[0:1], {KA[key]}')
    s('s_waitcnt lgkmcnt(0)')
    for b, key, n in items: s(f's_mov_b32 s{b+2}, {n}\ns_mov_b32 s{b+3}, 0x20000')

def load_pairs_wg(s, stages, grow, wrow, delta, scol, lbase, v, tmp):
    vG, vR = v, v + 1; RB = 8192; ring = 8; ahead = ring - 2
    s(f"""v_lshrrev_b32 v{tmp}, 5, v0
          v_mul_u32_u24 v{vG}, {grow[0]}, v{tmp}
          v_bfe_u32 v{tmp}, v0, 4, 1
          v_mul_u32_u24 v{tmp}, {grow[1]}, v{tmp}
          v_add_u32 v{vG}, v{vG}, v{tmp}
          s_lshr_b32 s30, {sW}, 1
          s_mul_i32 s30, s30, {wrow[0]}
          s_and_b32 s31, {sW}, 1
          s_mul_i32 s31, s31, {wrow[1]}
          s_add_u32 s30, s30, s31
          v_add_u32 v{vG}, s30, v{vG}
          v_lshlrev_b32 v{vG}, 13, v{vG}
          v_and_b32 v{tmp}, 15, v0
          v_lshl_add_u32 v{vG}, v{tmp}, 4, v{vG}
          v_add_u32 v{vG}, {scol}, v{vG}
          v_lshrrev_b32 v{vR}, 4, v0
          v_lshlrev_b32 v{vR}, 8, v{vR}
          v_lshl_add_u32 v{vR}, v{tmp}, 2, v{vR}
          s_lshl_b32 s30, {sW}, 6
          s_add_u32 s30, s30, {lbase}
          v_add_u32 v{vR}, s30, v{vR}
          v_add_u32 v{vR+1}, 0x10000, v{vR}
          s_lshl_b32 s31, {sW}, 12""")
    n = len(stages)
    def issue(i):
        for k in range(4):
            s(f's_add_u32 m0, s31, {lbase + 16384 * (i % ring) + 1024 * k}\ns_mov_b32 s30, {stages[i][1] + ((k & 1) + (k >> 1) * delta) * RB}\nbuffer_load_dwordx4 v{vG}, {stages[i][0]}, s30 offen lds')
    for i in range(min(ahead, n)): issue(i)
    for i in range(n):
        s(f's_waitcnt vmcnt({4 * (min(n, i + ahead) - i - 1)})\ns_barrier')
        for q in range(4):
            for jj in range(2):
                b = tmp + 4 * q + 2 * jj; o = 64 * (i % 4) + 16 * q + 8 * jj
                s(f'ds_read2st64_b32 v[{b}:{b+1}], v{vR + ((i % ring) >> 2)} offset0:{o} offset1:{o+4}')
        if i + ahead < n: issue(i + ahead)
        for q in range(4):
            s(f's_waitcnt lgkmcnt({6 - 2 * q})')
            for jj in range(2):
                b = tmp + 4 * q + 2 * jj
                for j, sel in ((0, sSEL0), (1, sSEL1)):
                    d = stages[i][2][q][jj][j]
                    if isinstance(d, tuple): s(f'v_perm_b32 v{tmp+16+j}, v{b+1}, v{b}, {sel}\nv_accvgpr_write_b32 a{d[1]}, v{tmp+16+j}')
                    else: s(f'v_perm_b32 v{d}, v{b+1}, v{b}, {sel}')
    s('s_barrier')
```

```python
from common import *
from role_x import load_wo, sBI, sBC, sBL, sBN, sBE, sBR, BO_X
TS = 48
NS = TS // 8
LKB, LVB, VG = 0, 65536, 4112
LSC = 0x20400
def tree(s, reg, lo, hi, lab):
    if lo == hi: s(f's_branch {lab(lo)}'); return
    mid = (lo + hi) // 2
    if hi == mid + 1:
        s(f's_cmp_gt_u32 {reg}, {mid}\ns_cbranch_scc1 {lab(hi)}'); tree(s, reg, lo, mid, lab); return
    l = L('tr'); s(f's_cmp_gt_u32 {reg}, {mid}\ns_cbranch_scc1 {l}'); tree(s, reg, lo, mid, lab); s(f'{l}:'); tree(s, reg, mid + 1, hi, lab)

def role_batt(opts):
    s = S(); fail = 'L_b_fail'; tl = TL(opts, 'b')
    sH, sRP, sL, sT, sB, sNA, sNB, sFI, sX, sOB, sFB, sGL, sGH, sY, sHV, sV = [f's{i}' for i in range(32, 48)]
    sLO, sHI, sKT, sDF = 's52', 's53', 's54', 's55'
    RET = 's[50:51]'
    vL16, vF, vTg, vFt, vIDX, vKW, vVL, vVH, vSW, vSR, vOB, vFB, vT, vCR, vMK = range(1, 16)
    KF, VH, QT, S0, S1, TA, FI, ACC = 16, 24, 28, 32, 48, 64, 80, 128
    VLs = [20, 104]; vA0, vA1, vA2, vVB = 108, 109, 110, 111
    SS = [S0, S1]
    QR = ACC + 16*NS; QN = QR + 4; sPM = 's56'
    def pend(t):
        l = L('pf'); t(f's_cmp_eq_u32 {sPM}, 0\ns_cbranch_scc1 {l}\ns_mov_b32 exec_lo, {sPM}\ns_mov_b32 exec_hi, 0\ns_waitcnt vmcnt(0)\nbuffer_store_dword v{vTg}, v{vFB}, {WS}, {sFB} offen sc1\ns_mov_b64 exec, -1\ns_mov_b32 {sPM}, 0\n{l}:')
    QS = lambda i: vr(QR + 4*i, 4)
    def sm(acc, v, p): return f'v_smfmac_f32_32x32x32_bf16 {vr(acc,16)}, {vr(v,4)}, {vr(p,8)}, v{vIDX}'
    def qk(d, q): return f'v_mfma_f32_32x32x16_bf16 {vr(d,16)}, {vr(KF,4)}, {q}, 0'
    def ex(t, b, lo, hi):
        for j in range(lo, hi): t(f'v_exp_f32 v{b+j}, v{b+j}')
    def rd(t, reg, a, off=0): t(f'ds_read_b128 {vr(reg,4)}, v{a} offset:{off}')
    def voff(t, dst, blk): t(f's_lshr_b32 s30, {blk}, 2\ns_lshl_b32 s30, s30, 4\ns_lshl_b32 {dst}, {blk}, 10\ns_add_u32 {dst}, {dst}, s30')
    def vaddr(t, off):
        t(f'v_and_b32 v{vA1}, {off}, v{vMK}\nv_add_u32 v{vA1}, v{vA1}, v{vVB}\nv_and_b32 v{vA2}, 0x200, v{vMK}\nv_add_u32 v{vA2}, v{vA2}, v{vA1}')
    s(f'''L_role_batt:
    s_and_b32 {sBC}, {sROLE}, 1''')
    if opts.get('_bo'): load_wo(s)
    set_srd(s, 12, 'x', 2*MB)
    s(f's_and_b32 s30, {sROLE}, 15\ns_lshl_b32 s30, s30, 2\ns_add_u32 s30, s30, {sW}\ns_lshl_b32 s30, s30, 13\nv_lshlrev_b32 v16, 7, v0')
    for i in range(4): s(f'buffer_load_dword v17, v16, {XIN}, s30 offen\ns_add_u32 s30, s30, 0x80000')
    s(f'''s_waitcnt vmcnt(0)
    s_mov_b32 {sL}, 0
    s_mov_b32 {sLO}, 0
    s_mov_b32 {sHI}, {TS}
    s_branch L_b_setup
    L_b_helper:
    s_mov_b32 {sL}, 1
    s_mov_b32 {sLO}, {TS}
    s_mov_b32 {sHI}, 64
    L_b_setup:
    s_lshr_b32 s30, {sROLE}, 5
    s_sub_u32 s30, s30, 1
    s_lshl_b32 s30, s30, 3
    s_bfe_u32 s31, {sROLE}, 0x30001
    s_add_u32 {sH}, s30, s31
    s_and_b32 {sRP}, {sROLE}, 1
    v_lshlrev_b32 v{vL16}, 4, v0
    v_mov_b32 v{vIDX}, 0xdddddddd
    v_lshrrev_b32 v16, 5, v0
    v_and_b32 v17, 15, v0
    v_lshlrev_b32 v{vVB}, 8, v16
    v_lshl_add_u32 v{vVB}, v17, 4, v{vVB}
    v_bfe_u32 v16, v0, 4, 1
    v_lshl_add_u32 v{vOB}, v16, 14, v{vVB}
    s_lshl_b32 s30, {sH}, 9
    v_add_u32 v{vOB}, s30, v{vOB}
    v_add_u32 v{vMK}, -1, v16
    v_and_b32 v{vVB}, v{vVB}, v{vMK}
    v_lshl_add_u32 v{vVB}, v16, 12, v{vVB}
    v_add_u32 v{vVB}, {LVB}, v{vVB}
    s_lshl_b32 s31, {sW}, 10
    v_add_u32 v{vKW}, s31, v{vL16}''')
    vaddr(s, 's31')
    s(f'''v_mov_b32 v{vVL}, v{vA1}
    v_mov_b32 v{vVH}, v{vA2}
    s_mul_i32 s30, {sW}, 3072
    s_add_u32 s30, s30, {LSC}
    v_add_u32 v{vSW}, s30, v{vL16}
    v_add_u32 v{vSR}, {LSC}, v{vL16}
    v_lshlrev_b32 v{vFB}, 13, v0
    v_min_u32 v{vF}, 2, v0
    v_cmp_gt_u32 vcc, 2, v0
    v_lshlrev_b32 v{vF}, 2, v{vF}
    s_lshl_b32 {sFI}, {sH}, 7
    v_cndmask_b32 v{vCR}, 0, 1, vcc
    s_add_u32 {sFI}, {sFI}, {F_X3}
    s_mov_b32 {sGL}, 0x17800000
    s_mov_b32 {sGH}, 0x50000000
    v_mul_u32_u24 v16, {VG}, v17
    v_add_u32 v16, {LVB + 4096}, v16''')
    for r in range(4): s(f'v_mov_b32 v{VH+r}, 0x3f803f80')
    s(f'ds_write_b128 v16, {vr(VH,4)}\ns_waitcnt lgkmcnt(0)')
    wait_init(s, 16, 17, fail)
    def loads(t, blk, tag):
        a, b = L('bl'), L('bl')
        t(f'''s_lshl_b32 s31, {blk}, 10
        s_add_u32 {sX}, {sB}, s31
        s_xor_b32 s30, {blk}, {sRP}
        s_bitcmp1_b32 s30, 0
        s_cbranch_scc1 {a}
        s_cmp_ge_u32 {blk}, {sHI}
        s_cbranch_scc1 {a}
        buffer_load_dwordx4 {vr(QT,4)}, v{vL16}, {WS}, {sX} offen sc1
        {a}:
        s_cmp_ge_u32 {sW}, 2
        s_cbranch_scc1 {b}
        s_lshr_b32 s30, {blk}, 2
        s_lshl_b32 s30, s30, 4
        s_add_u32 s30, s30, {LVB}
        s_mul_i32 s30, s30, {sW}
        s_add_u32 m0, s30, s31
        s_add_u32 s30, {sW}, 1
        s_lshl_b32 s30, s30, 16
        s_add_u32 {sX}, {sX}, s30
        buffer_load_dwordx4 v{vL16}, {WS}, {sX} offen sc1 lds
        {b}:''')
    def outaddr(t, seg):
        t(f"""s_mov_b32 s30, 0
        s_lshl_b32 {sOB}, {seg}, 15
        s_add_u32 {sOB}, {sOB}, s30
        s_add_u32 {sOB}, {sOB}, {LB0 + O_OB}
        s_lshl_b32 {sFB}, {seg}, 10
        s_lshl_b32 s30, {sH}, 5
        s_add_u32 {sFB}, {sFB}, s30
        s_add_u32 {sFB}, {sFB}, {F_B}""")
    s(f"""L_b_layer:
    s_mov_b32 s30, 0
    s_mul_i32 {sB}, {sH}, {3*65536}
    s_add_u32 {sB}, {sB}, s30
    s_add_u32 {sB}, {sB}, {LB0 + O_BQ}
    s_lshl_b32 s31, {sW}, 1
    s_add_u32 s31, s31, {sRP}
    s_add_u32 s31, s31, {sLO}""")
    outaddr(s, 's31')
    s(f"""s_mov_b32 {sT}, {sLO}
    s_mov_b32 {sNA}, 0
    s_mov_b32 {sHV}, 0
    s_mov_b32 {sDF}, 0
    s_mov_b32 {sPM}, 0
    s_lshl_b32 {sY}, {sL}, 7
    s_lshl_b32 s30, {sLO}, 1
    s_add_u32 {sY}, {sY}, s30
    s_cmp_eq_u32 {sLO}, 0
    s_cbranch_scc1 L_b_step
    s_sub_u32 s31, {sY}, 2""")
    poll(s, vF, sFI, vFt, 's31', fail)
    s(f's_lshl_b32 s31, {sW}, 10\ns_add_u32 {sX}, {sB}, s31\ns_add_u32 {sX}, {sX}, 65536\ns_add_u32 {sV}, {sX}, 65536')
    for i in range(TS // 4):
        s(f"""s_add_u32 m0, s31, {4096*i}
        s_nop 0
        buffer_load_dwordx4 v{vL16}, {WS}, {sX} offen sc1 lds
        s_add_u32 m0, s31, {LVB + VG*i}
        s_add_u32 {sX}, {sX}, 4096
        buffer_load_dwordx4 v{vL16}, {WS}, {sV} offen sc1 lds
        s_add_u32 {sV}, {sV}, 4096""")
    s('L_b_step:')
    tl(s, 'top')
    s(f's_cmp_eq_u32 {sHV}, 1\ns_cbranch_scc1 L_b_have\nv_max_u32 v{vTg}, {sY}, v{vCR}')
    poll(s, vF, sFI, vFt, f'v{vTg}', fail, lazy=(sT, 58, opts.get('lzb', 0))); loads(s, sT, 'a')
    s('L_b_have:'); tl(s, 'poll')
    voff(s, sV, sT); vaddr(s, sV)
    s(f'''s_lshl_b32 s31, {sT}, 10
    v_add_u32 v{vA0}, s31, v{vL16}
    s_add_u32 {sY}, {sY}, 2
    s_waitcnt vmcnt(0)
    v_cmp_gt_u32 vcc, {sY}, v{vFt}
    s_barrier''')
    rd(s, KF, vA0); rd(s, VLs[0], vA1); rd(s, VH, vA2)
    tl(s, 'bar')
    s(f'''s_mov_b32 {sHV}, 0
    s_cmp_eq_u32 {sT}, 63
    s_cbranch_scc1 L_b_fin
    s_cbranch_vccnz L_b_nopf
    s_mov_b32 {sHV}, 1
    s_add_u32 {sV}, {sT}, 1''')
    loads(s, sV, 'b')
    s(f'buffer_load_dword v{vFt}, v{vF}, {WS}, {sFI} offen sc1\nL_b_nopf:\ns_waitcnt lgkmcnt(0)')
    tree(s, sNA, 0, NS, lambda i: f'L_b_ain{i-1}' if i else 'L_b_adone')
    for i in range(NS-1, -1, -1):
        s(f'L_b_ain{i}:\n{qk(SS[i&1], QS(i))}\ns_nop 11'); ex(s, SS[i&1], 0, 2)
        s(f's_branch L_b_a{i}')
    for i in range(NS-1, -1, -1):
        c, o = SS[i&1], SS[1-(i&1)]
        if i < NS-1: ex(s, c, 0, 2); s(sm(ACC+16*(i+1), VH, o+8))
        s(f'L_b_a{i}:'); ex(s, c, 2, 5)
        if i: s(qk(o, QS(i-1)))
        ex(s, c, 5, 11); s(sm(ACC+16*i, VLs[0], c)); ex(s, c, 11, 16)
    s(f's_nop 1\n{sm(ACC, VH, S0+8)}')
    s('L_b_adone:'); tl(s, 'a')
    s(f'''s_xor_b32 s30, {sT}, {sRP}
    s_bitcmp1_b32 s30, 0
    s_cbranch_scc1 L_b_next
    s_cmp_ge_u32 {sT}, {sHI}
    s_cbranch_scc1 L_b_next
    s_mov_b32 {sKT}, {sT}
    L_b_bgo:''')
    for r in range(0, 10, 2): s(f'v_mov_b64 {vr(TA+r,2)}, 0')
    s(f'''s_cmp_lt_u32 {sKT}, {sW}
    s_cbranch_scc1 L_b_bdone
    s_sub_u32 {sNB}, {sKT}, {sW}
    s_lshr_b32 {sNB}, {sNB}, 2''')
    tree(s, sNB, 0, 15, lambda i: f'L_b_bin{i}')
    for b in range(15, -1, -1):
        s(f'L_b_bin{b}:'); rd(s, KF, vKW, 4096*b); rd(s, VLs[0], vVL, VG*b)
        s(f's_waitcnt lgkmcnt(1)\n{qk(SS[b&1], vr(QT,4))}')
        if b: rd(s, KF, vKW, 4096*(b-1))
        s(f's_nop {9 if b else 10}\ns_waitcnt lgkmcnt(0)'); ex(s, SS[b&1], 0, 2); s(f's_branch L_b_b{b}')
    for b in range(15, -1, -1):
        c, o = SS[b&1], SS[1-(b&1)]
        if b < 15: ex(s, c, 0, 2); s(sm(TA, VH, o+8)); s('s_waitcnt lgkmcnt(0)')
        s(f'L_b_b{b}:'); rd(s, VH, vVH, VG*b)
        ex(s, c, 2, 5)
        if b: s(qk(o, vr(QT,4)))
        if b > 1: rd(s, KF, vKW, 4096*(b-2))
        ex(s, c, 5, 10); s(sm(TA, VLs[0], c)); s(f's_waitcnt lgkmcnt({1 if b > 1 else 0})')
        if b: rd(s, VLs[0], vVL, VG*(b-1))
        ex(s, c, 10, 16)
    s(f's_nop 1\n{sm(TA, VH, S0+8)}\ns_nop 11')
    s('L_b_bdone:'); tl(s, 'b'); s('s_waitcnt vmcnt(0)'); pend(s)
    s(f'''
    ds_write_b128 v{vSW}, {vr(TA,4)}
    ds_write_b128 v{vSW}, {vr(TA+4,4)} offset:1024
    ds_write_b32 v{vSW}, v{TA+8} offset:2048
    s_bfe_u32 s30, {sT}, 0x20001
    s_cmp_lg_u32 s30, {sW}
    s_waitcnt lgkmcnt(0)
    s_barrier
    s_cbranch_scc1 L_b_next''')
    for j in range(4):
        s(f'ds_read_b128 {vr(S0+8*j,4)}, v{vSR} offset:{3072*j}\nds_read_b128 {vr(S0+8*j+4,4)}, v{vSR} offset:{3072*j+1024}\nds_read_b32 v{FI+j}, v{vSR} offset:{3072*j+2048}')
    tree(s, sNA, 0, NS-1, lambda i: f'L_b_put{i}')
    for i in range(NS-1, -1, -1):
        s(f'L_b_put{i}:')
        for r in range(4): s(f'v_mov_b32 v{QR+4*i+r}, v{QT+r}')
        s('s_waitcnt lgkmcnt(6)')
        for r in range(0, 8, 2): s(f'v_pk_add_f32 {vr(S0+r,2)}, {vr(S0+r,2)}, {vr(S0+8+r,2)}')
        s('s_waitcnt lgkmcnt(0)')
        for r in range(0, 8, 2): s(f'v_pk_add_f32 {vr(S0+16+r,2)}, {vr(S0+16+r,2)}, {vr(S0+24+r,2)}')
        s(f'v_pk_add_f32 {vr(FI,2)}, {vr(FI,2)}, {vr(FI+2,2)}')
        for r in range(0, 8, 2): s(f'v_pk_add_f32 {vr(ACC+16*i+r,2)}, {vr(S0+r,2)}, {vr(S0+16+r,2)}')
        s(f'v_add_f32 v{ACC+16*i+8}, v{FI}, v{FI+1}')
        if i: s('s_branch L_b_putdone')
    s(f"""L_b_putdone:
    s_cmp_eq_u32 {sKT}, 63
    s_cbranch_scc1 L_b_fin1
    s_add_u32 {sNA}, {sNA}, 1
    L_b_next:
    s_cmp_eq_u32 {sDF}, 1
    s_cbranch_scc1 L_b_dnext"""); tl(s, 'end'); tl.dump(s, f's_lshl_b32 s30, {sL}, 6\ns_add_u32 s30, s30, {sT}\ns_cmp_eq_u32 s30, {tl.at or 44}', 112)
    s(f"""s_add_u32 {sT}, {sT}, 1
    s_cmp_lt_u32 {sT}, 64
    s_cbranch_scc1 L_b_step
    s_cmp_lg_u32 {sLO}, 0
    s_cbranch_scc1 {fail}
    s_cmp_eq_u32 {sL}, 1
    s_cbranch_scc1 L_b_out
    s_mov_b32 {sDF}, 1
    s_mov_b32 {sKT}, 63
    s_add_u32 {sT}, {sRP}, {TS - 2}
    s_add_u32 s31, {sT}, 2
    s_lshl_b32 s31, s31, 10
    s_add_u32 {sX}, {sB}, s31
    buffer_load_dwordx4 {vr(QN,4)}, v{vL16}, {WS}, {sX} offen sc1
    s_waitcnt vmcnt(0)
    L_b_dnext:
    s_add_u32 {sT}, {sT}, 2
    s_cmp_lt_u32 {sT}, 64
    s_cbranch_scc0 L_b_ddone
    v_mov_b64 {vr(QT,2)}, {vr(QN,2)}
    v_mov_b64 {vr(QT+2,2)}, {vr(QN+2,2)}
    s_add_u32 {sX}, {sX}, 2048
    v_xor_b32 v{vSW}, 0x4000, v{vSW}
    v_xor_b32 v{vSR}, 0x4000, v{vSR}
    buffer_load_dwordx4 {vr(QN,4)}, v{vL16}, {WS}, {sX} offen sc1
    s_branch L_b_bgo
    L_b_ddone:""")
    pend(s)
    s(f"""s_barrier
    s_add_u32 {sBI}, {sH}, {BO_X}
    s_mov_b32 {sBL}, 0
    s_mov_b32 {sBN}, 32
    s_mov_b32 {sBE}, 128
    s_mov_b32 {sBR}, {2 if opts.get('nl', 2) == 2 else 0}
    s_branch {'L_bo' if opts.get('_bo') else fail}
    L_b_second:
    s_waitcnt vmcnt(0)
    s_barrier
    s_mov_b32 {sL}, 1
    s_branch L_b_layer
    {fail}:
    s_endpgm
    L_b_out:
    s_barrier
    s_add_u32 {sBI}, {sH}, 12
    s_mov_b32 {sBL}, 1
    s_mov_b32 {sBN}, 44
    s_mov_b32 {sBE}, 128
    s_mov_b32 {sBR}, 0
    s_branch {'L_bo' if opts.get('_bo') else fail}""")
    t = S()
    def fin(i):
        a = ACC + 16*i; f = FI + 8 + 4*(i & 1); u = L('f')
        s(f'''v_subrev_u32 v{vT}, {sGL}, v{a+8}
        v_cmp_lt_u32 vcc, {sGH}, v{vT}
        {u}r:
        v_rcp_f32 v{vT}, v{a+8}
        s_add_u32 s30, {sOB}, {8*32768*i}''')
        for r in range(8): s(f'v_mul_f32 v{FI+r}, v{vT}, v{a+r}')
        s(f's_cbranch_vccnz {u}s')
        for r in range(4): s(f'v_cvt_pk_bf16_f32 v{f+r}, v{FI+2*r}, v{FI+2*r+1}')
        s(f'buffer_store_dwordx4 {vr(f,4)}, v{vOB}, {WS}, s30 offen sc1')
        t(f'{u}s:')
        for r in range(4): t(f'v_mov_b32 v{FI+16+r}, v{QR+4*i+r}')
        t(f's_getpc_b64 {RET}\ns_add_u32 s50, s50, 12\ns_addc_u32 s51, s51, 0\ns_branch L_b_exact')
        for r in range(9): t(f'v_mov_b32 v{a+r}, v{TA+r}')
        t(f's_mov_b64 vcc, 0\ns_branch {u}r')
    def flags(mask, n, k):
        s(f's_mov_b64 exec, {mask}\ns_waitcnt vmcnt({n})\nbuffer_store_dword v{vTg}, v{vFB}, {WS}, {sFB} offen sc1\ns_mov_b64 exec, -1')
        if opts.get('trace'): s(f's_mul_i32 s69, {sL}, 40\ns_add_u32 s69, s69, {k}'); stamp(s, opts, 's69', 102)
    s(f'L_b_fin:\ns_add_u32 s30, {sL}, 1\nv_mov_b32 v{vTg}, s30')
    if opts.get('trace'): s(f's_mul_i32 s69, {sL}, 40\ns_add_u32 s69, s69, 34'); stamp(s, opts, 's69', 102)
    s(f's_waitcnt lgkmcnt(0)\n{qk(S0, QS(0))}\ns_nop 11')
    ends = (0, 1, NS-1)
    for i in range(NS):
        c, o = SS[i&1], SS[1-(i&1)]
        ex(s, c, 0, 2)
        if i: s(sm(ACC+16*(i-1), VH, o+8))
        ex(s, c, 2, 5)
        if i < NS-1: s(qk(o, QS(i+1)))
        ex(s, c, 5, 11); s(sm(ACC+16*i, VLs[0], c)); ex(s, c, 11, 16)
        if i: fin(i-1)
        if i == 4: flags(1, 3, 35)
        if i in ends and i < NS-1: s(f's_cmp_eq_u32 {sNA}, {i+1}\ns_cbranch_scc1 L_b_fe{i}')
    for i in reversed(ends):
        s(f'L_b_fe{i}:\ns_nop 1\n{sm(ACC+16*i, VH, SS[i&1]+8)}\ns_nop 11'); fin(i)
        s(f's_mov_b32 {sPM}, {(1 << i+1) - 1}')
        if i: s('s_branch L_b_fex')
    s(f'L_b_fex:\ns_mov_b32 {sNA}, 0\ns_add_u32 s30, {sRP}, {sHI}\ns_cmp_eq_u32 s30, 65\ns_cbranch_scc1 L_b_adone'); pend(s)
    if opts.get('trace'): s(f's_mul_i32 s69, {sL}, 40\ns_add_u32 s69, s69, 36'); stamp(s, opts, 's69', 102)
    s('s_branch L_b_adone')
    s('L_b_fin1:'); outaddr(s, sT); fin(0); s(f's_mov_b32 {sPM}, 1\ns_cmp_eq_u32 {sDF}, 1\ns_cbranch_scc1 L_b_next'); pend(s)
    if opts.get('trace'): s(f's_mul_i32 s69, {sL}, 40\ns_add_u32 s69, s69, 37'); stamp(s, opts, 's69', 102)
    s('s_branch L_b_next')
    s.extend(t)
    q = vr(FI+16, 4); m = FI + 20; X = 112; K2 = FI; V2 = FI + 4; V3 = VLs[1]
    def qk2(): return f'v_mfma_f32_32x32x16_bf16 {vr(X,16)}, {vr(K2,4)}, {q}, 0'
    s(f'L_b_exact:\nv_mov_b32 v{m}, {f32(-3e38)}\nv_mov_b32 v{vA0}, v{vL16}\ns_mov_b32 {sNB}, 0\nL_b_ex1:')
    s(f'ds_read_b128 {vr(K2,4)}, v{vA0}\nv_add_u32 v{vA0}, 0x400, v{vA0}\ns_waitcnt lgkmcnt(0)\n{qk2()}\ns_nop 11')
    for r in range(0, 16, 2): s(f'v_max3_f32 v{m}, v{m}, v{X+r}, v{X+r+1}')
    s(f's_add_u32 {sNB}, {sNB}, 1\ns_cmp_lt_u32 {sNB}, 64\ns_cbranch_scc1 L_b_ex1')
    s(f'v_mov_b32 v{m+1}, v{m}\ns_nop 1\nv_permlane32_swap_b32 v{m}, v{m+1}\ns_nop 1\nv_max_f32 v{m}, v{m}, v{m+1}')
    for r in range(0, 10, 2): s(f'v_mov_b64 {vr(TA+r,2)}, 0')
    s(f'v_mov_b32 v{vA0}, v{vL16}\ns_mov_b32 {sNB}, 0\nL_b_ex2:')
    voff(s, sV, sNB); vaddr(s, sV); rd(s, K2, vA0); rd(s, V2, vA1); rd(s, V3, vA2)
    s(f'v_add_u32 v{vA0}, 0x400, v{vA0}\ns_waitcnt lgkmcnt(0)\n{qk2()}\ns_nop 11')
    for r in range(16): s(f'v_sub_f32 v{X+r}, v{X+r}, v{m}')
    ex(s, X, 0, 16)
    s(f's_nop 1\n{sm(TA, V2, X)}\n{sm(TA, V3, X+8)}\ns_add_u32 {sNB}, {sNB}, 1\ns_cmp_lt_u32 {sNB}, 64\ns_nop 7\ns_cbranch_scc1 L_b_ex2\ns_nop 7\ns_setpc_b64 {RET}')
    return resolve(s)[0]
```

```python
from common import *
LM, LK, LP, LSEL, LQ, LW = 0, 8192, 10240, 11264, 12288, 16384
LO, LMX = LQ, LM + 4096
WSTR = 18 * 2048
vIDX, vG16, vWL, vQW, vKW, vQR, vST, vPUB, vKX, vG8, vF8, vF32, vFV, vFP, vSEN = range(1, 16)
ONES, PM, KX, VX, MA, AQ, AK, AV, SX, SM, POOL = 16, 20, 24, 32, 40, 72, 80, 88, 96, 100, 104
QB, KA, PX, LL, OX = POOL, POOL+16, POOL+24, POOL+28, POOL+32
NWORK = 144
sH, sL, sS, sN, sTAG, sMS, sMC, sG1, sG2, sKV, sKM, sPT, sCV, sC, sFPO, sFCO, sALO, sAL, s4K = [f's{i}' for i in range(32, 51)]
sTCH = 's51'; sTC2 = 's3'; vSEN2 = PM + 3; sKN = 's56'; sMN = 's57'; CH_JUNK = 200*MB; vTC = 0; sH2, sH2O = 's4', 's5'
sPW = 's[20:21]'
sPUBX = 's[52:53]'; sGL, sGH = 's54', 's55'
LDS_Q = [(0,0),(0,1),(1,0),(1,1),(2,0)]
LDS_K = [(1,0),(2,0),(5,1),(6,1),(7,1)]
LDS_O = [(1,2),(1,3),(2,1),(2,2),(2,3),(3,1),(3,2),(3,3)]
home = {}
def _alloc():
    free = [NWORK + 8*i for i in range((256-NWORK)//8)] + [('a', 8*i) for i in range(32)]
    n = 0
    for m, ld in (('q', LDS_Q), ('k', LDS_K), ('v', [])):
        for t in range(8):
            for tau in range(2):
                if (t, tau) in ld: home[m, t, tau] = ('lds', n); n += 1
                else: home[m, t, tau] = free.pop()
    for u in range(4):
        for z in range(4):
            if (u, z) in LDS_O: home['o', u, z] = ('lds', 10 + LDS_O.index((u, z)))
            else: home['o', u, z] = free.pop()
    assert not free
_alloc()
def in_lds(k): return isinstance(home[k], tuple) and home[k][0] == 'lds'
def smf(d, a, b): return f'v_smfmac_f32_16x16x64_bf16 {vr(d,4)}, {vr(a,4)}, {R(b,8)}, v{vIDX}'
def stage(s, key, reg, half, tag):
    s(f'ds_read_b128 {vr(reg+4*half,4)}, v{vWL} offset:{home[key][1]*2048 + 1024*half}', tag)

def setup(s, opts, fail):
    s('L_role_chain:'); stamp(s, opts, 0, 126)
    s(f'''
    s_mov_b32 {sH}, {sROLE}
    v_lshrrev_b32 v120, 4, v0          ; g
    v_and_b32 v121, 15, v0             ; c
    v_lshlrev_b32 v{vG16}, 4, v0
    s_mul_i32 s30, {sW}, {WSTR}
    s_add_u32 s30, s30, {LW}
    v_add_u32 v{vWL}, s30, v{vG16}
    v_lshrrev_b32 v122, 1, v120
    v_and_b32 v123, 1, v120
    v_lshlrev_b32 v16, 19, v122
    v_lshl_add_u32 v16, v123, 17, v16
    v_lshl_add_u32 v16, v121, 2, v16
    s_lshl_b32 s30, {sH}, 8
    s_lshl_b32 s31, {sW}, 6
    s_add_u32 s30, s30, s31
    v_add_u32 v16, s30, v16
    v_add_u32 v17, 0x2000, v16
    ''')
    TL = 88; TH = 40
    set_srds(s, [(16, 'Wo', 4*MB), (80, 'Wq', 4*MB), (84, 'Wk', 4*MB), (88, 'Wv', 4*MB)])
    s(f's_lshl_b32 s92, {sH}, 8')
    def dst(m, t, tau, jr): return TH + 8*home[m, t, tau][1] + jr if in_lds((m, t, tau)) else radd(home[m, t, tau], jr)
    stages = [(srd, (256*(t & 1) + 2*(t >> 1))*8192, [[(dst(m, t, 0, 2*jp+jj), dst(m, t, 1, 2*jp+jj)) for jj in range(2)] for jp in range(4)])
              for m, srd in (('q', 's[80:83]'), ('k', 's[84:87]'), ('v', 's[88:91]')) for t in range(8)]
    load_pairs_wg(s, stages, (64, 16), (128, 8), 32, 's92', 0, 16, 124)
    stamp(s, opts, 10, 126)
    for i in range(10): s(f'ds_write_b128 v{vWL}, {vr(TH+8*i,4)} offset:{2048*i}\nds_write_b128 v{vWL}, {vr(TH+8*i+4,4)} offset:{2048*i+1024}')
    s('s_waitcnt lgkmcnt(0)')
    s(f'''v_lshlrev_b32 v16, 12, v120
          v_lshl_add_u32 v16, v121, 4, v16
          s_lshl_b32 s30, {sH}, 17
          s_lshl_b32 s31, {sW}, 8
          s_add_u32 s30, s30, s31
          v_add_u32 v16, s30, v16''')
    def oissue(i):
        z, jp = i >> 2, i & 3; b = 24 + 8*(i % 8)
        s(f'''s_add_u32 s30, {sW}, {z}
              s_and_b32 s30, s30, 3
              s_lshl_b32 s30, s30, 15
              s_add_u32 s30, s30, {(16*(jp >> 1) + 2*(jp & 1)) * 1024}
              buffer_load_dwordx4 {vr(b,4)}, v16, {WSR}, s30 offen {opts.get('cfl', '')}
              buffer_load_dwordx4 {vr(b+4,4)}, v16, {WSR}, s30 offen offset:1024 {opts.get('cfl', '')}''', f'wo{i}')
    s('v_mov_b32 v20, 0\nglobal_load_dword v21, v20, s[6:7] offset:64 sc1\nglobal_load_dword v22, v20, s[6:7] sc1', 'ini')
    for i in range(8): oissue(i)
    s(f'''
    v_bfe_u32 v124, v0, 1, 1
    v_mov_b32 v{vIDX}, 0x44444444
    v_mov_b32 v125, 0xeeeeeeee
    v_cmp_eq_u32 vcc, 1, v124
    v_bfe_u32 v126, v0, 2, 1           ; (c>>2)&1
    v_bfe_u32 v127, v0, 3, 1           ; c>>3
    v_cndmask_b32 v{vIDX}, v{vIDX}, v125, vcc
    v_and_b32 v128, 1, v0              ; c&1
    v_and_b32 v129, 3, v0              ; c&3
    v_bfe_u32 v130, v0, 2, 2           ; c>>2
    ; q write: 576w + 144(2(c>>3) + ((c>>1)&1)) + 32g + 8(c&1) + 4((c>>2)&1)
    v_lshl_add_u32 v131, v127, 1, v124
    v_mul_u32_u24 v{vQW}, 144, v131
    v_lshl_add_u32 v{vQW}, v120, 5, v{vQW}
    v_lshl_add_u32 v{vQW}, v128, 3, v{vQW}
    v_lshl_add_u32 v{vQW}, v126, 2, v{vQW}
    s_mul_i32 s30, {sW}, 576
    s_add_u32 s30, s30, {LQ}
    v_add_u32 v{vQW}, s30, v{vQW}
    ; q read: 144g + 16(2(c>>2) + (c&1))
    v_lshl_add_u32 v132, v130, 1, v128          ; row r(c)
    v_mul_u32_u24 v{vQR}, 144, v120
    v_lshl_add_u32 v{vQR}, v132, 4, v{vQR}
    ; k write: 512w + 256(c>>3) + 64g + 32((c>>2)&1) + 4(c&3)
    v_lshlrev_b32 v{vKW}, 8, v127
    v_lshl_add_u32 v{vKW}, v120, 6, v{vKW}
    v_lshl_add_u32 v{vKW}, v126, 5, v{vKW}
    v_lshl_add_u32 v{vKW}, v129, 2, v{vKW}
    s_lshl_b32 s30, {sW}, 9
    s_add_u32 s30, s30, {LK}
    v_add_u32 v{vKW}, s30, v{vKW}
    v_lshrrev_b32 v131, 3, v0
    v_and_b32 v133, 7, v0
    v_lshlrev_b32 v{vST}, 13, v131
    v_lshl_add_u32 v{vST}, v133, 3, v{vST}
    s_lshl_b32 s30, {sW}, 16
    s_lshl_b32 s31, {sH}, 6
    s_add_u32 s30, s30, s31
    s_add_u32 s30, s30, {CH_IN}
    v_add_u32 v{vST}, s30, v{vST}
    v_lshlrev_b32 v{vPUB}, 5, v124
    v_lshl_add_u32 v{vPUB}, v123, 4, v{vPUB}
    v_lshl_add_u32 v{vPUB}, v128, 3, v{vPUB}
    v_lshl_add_u32 v{vPUB}, v122, 2, v{vPUB}
    s_lshr_b32 s30, {sH}, 3
    s_lshl_b32 s30, s30, 9
    s_and_b32 s31, {sH}, 1
    s_lshl_b32 s31, s31, 8
    s_add_u32 s30, s30, s31
    s_bfe_u32 s31, {sH}, 0x20001
    s_lshl_b32 s31, s31, 6
    s_add_u32 s30, s30, s31
    v_add_u32 v{vPUB}, s30, v{vPUB}
    v_lshlrev_b32 v{vKX}, 9, v120
    v_lshl_add_u32 v{vKX}, v124, 6, v{vKX}
    v_lshl_add_u32 v{vKX}, v130, 7, v{vKX}
    v_lshl_add_u32 v{vKX}, v128, 4, v{vKX}
    s_lshr_b32 s30, {sW}, 1
    s_lshl_b32 s30, s30, 12
    s_and_b32 s31, {sW}, 1
    s_lshl_b32 s31, s31, 5
    s_add_u32 s30, s30, s31
    s_add_u32 s30, s30, 8192
    v_add_u32 v{vKX}, s30, v{vKX}
    v_lshlrev_b32 v{vG8}, 3, v0
    v_lshlrev_b32 v{vF8}, 2, v133
    v_and_b32 v{vF32}, 31, v0
    v_lshlrev_b32 v{vF32}, 2, v{vF32}
    v_mov_b32 v{vSEN}, -1
    v_mov_b32 v134, 0x3f80
    v_lshlrev_b32 v135, 4, v129
    v_lshlrev_b32 v134, v135, v134
    v_cmp_gt_u32 vcc, 2, v129
    v_mov_b32 v135, 0
    s_nop 0
    v_cndmask_b32 v134, v135, v134, vcc
    ''')
    for r in range(4): s(f'v_cmp_eq_u32 vcc, {r}, v130\ns_nop 1\nv_cndmask_b32 v{136+r}, v135, v134, vcc')
    s(f'ds_write_b128 v{vG16}, v[136:139] offset:{LSEL}')
    s(f'''
    s_mov_b32 s52, 0x000f000f
    s_mov_b32 s53, 0x000f000f
    s_mov_b32 {sC}, {f32(128**-0.5 * LOG2E)}
    s_mov_b32 {s4K}, 4096
    s_mov_b32 {sGL}, 0x17800000
    s_mov_b32 {sGH}, 0x50000000
    s_lshl_b32 s30, {sW}, 11
    s_lshl_b32 {sG1}, {sH}, 13
    s_add_u32 {sG1}, {sG1}, s30
    s_add_u32 {sG1}, {sG1}, {CH_IN}
    s_add_u32 {sG2}, s30, {CH_MEM}
    s_lshl_b32 {sFPO}, {sH}, 7
    s_add_u32 {sFCO}, {sFPO}, {F_C}
    s_add_u32 {sFPO}, {sFPO}, {F_P}
    s_lshl_b32 {sALO}, {sH}, 2
    s_add_u32 {sALO}, {sALO}, {F_AL}
    s_mov_b32 {sAL}, {F_AL}
    s_mov_b32 {sN}, 0
    s_mov_b32 {sL}, 0
    s_mov_b32 {sCV}, 0
    ''')
    set_srd(s, 12, 'mem0', 8192)
    s(f's_lshl_b32 s30, {sW}, 7\ns_add_u32 s30, s30, 128\ns_add_u32 {sH2}, s30, {sAL}\ns_add_u32 {sH2O}, s30, {sALO}')
    s.W('vm', 'ini'); s('v_cmp_gt_u32 vcc, 0x100, v21\ns_cbranch_vccz L_ch_inited')
    x = S(); wait_init(x, 20, 21, fail); x('global_load_dword v22, v20, s[6:7] sc1\ns_waitcnt vmcnt(0)')
    for o in x: s.append(Op(' ' + o.t if not o.t.endswith(':') else o.t))
    s('L_ch_inited:')
    for i in range(2): s(f'buffer_load_dwordx4 v[140:143], v{vG16}, {WS}, {sG1} offen offset:{1024*i} sc1')
    for i in range(4): s(f's_add_u32 s30, {sG2}, {8192*i}\nbuffer_load_dwordx4 v[140:143], v{vG16}, {WS}, s30 offen sc1\nbuffer_load_dwordx4 v[140:143], v{vG16}, {WS}, s30 offen offset:1024 sc1')
    s(f'buffer_load_dword v140, v{vF8}, {WS}, {sH2} offen sc1\nv_lshlrev_b32 v23, 7, v0\nbuffer_load_dword v140, v23, {XIN}, 0 offen')
    for i in range(16):
        z, jp = i >> 2, i & 3; b = 24 + 8*(i % 8)
        s.W('vm', f'wo{i}')
        if jp == 0: s('s_waitcnt lgkmcnt(0)')
        for u in range(4):
            for f, sel in ((0, sSEL0), (1, sSEL1)):
                d = TL + 8*u + 2*jp + f if in_lds(('o', u, z)) else radd(home['o', u, z], 2*jp + f)
                if isinstance(d, tuple): s(f'v_perm_b32 v{18+f}, v{b+4+u}, v{b+u}, {sel}\nv_accvgpr_write_b32 a{d[1]}, v{18+f}')
                else: s(f'v_perm_b32 v{d}, v{b+4+u}, v{b+u}, {sel}')
        if i + 8 < 16: oissue(i + 8)
        if jp == 3:
            for u in range(4):
                if in_lds(('o', u, z)):
                    slot = home['o', u, z][1]
                    s(f'ds_write_b128 v{vWL}, {vr(TL+8*u,4)} offset:{slot*2048}\nds_write_b128 v{vWL}, {vr(TL+8*u+4,4)} offset:{slot*2048+1024}')
    stamp(s, opts, 1, 126)
    s('v_readfirstlane_b32 s30, v22')
    for r in range(4): s(f'v_mov_b32 v{ONES+r}, 0x3f803f80\nv_mov_b32 v{PM+r}, 0')
    s(f'''s_waitcnt lgkmcnt(0)
          s_cmp_ge_u32 s30, 32
          s_cbranch_scc1 L_ch_initF
          s_branch L_ch_initS''')

def body(mode, opts, fail):
    st = 'sc1' if mode == 'S' else ''
    s = S()
    s(f'L_ch_init{mode}:')
    for w in range(3): s(f's_cmp_eq_u32 {sW}, {w}\ns_cbranch_scc1 L_ch_layer{mode}{w}')
    s(f's_branch L_ch_layer{mode}3')
    out = resolve(s)[0]
    for w in range(4): out += wave(mode, w, opts, fail, st)
    return out

def wave(mode, w, opts, fail, st):
    T = f'{mode}{w}'
    P1 = opts.get('p1', (7, 20, 33, 46)); D2 = opts.get('d2', (64, 58, 52, 47))[w]; AW = 1 if opts.get('align') else -1
    DIR = opts.get('direct', 1)
    DD = opts.get('DD', 2); DD = DD[w] if isinstance(DD, tuple) else DD; HR = VX if DIR else KX
    AN = vFV
    vZ = PM + 1
    tail = S()
    pts = opts.get('tl') or []
    clk = opts.get('clk')
    def P(s, k):
        if clk and k == clk[0]: s('s_memtime s[70:71]\ns_memrealtime s[72:73]')
        if clk and k == clk[1]: s('s_memtime s[74:75]\ns_memrealtime s[76:77]')
        if k in pts: s(f's_memtime s[{70+2*pts.index(k)}:{71+2*pts.index(k)}]')
    def cnt(s, r):
        if opts.get('trace'): s(f's_add_u32 {r}, {r}, 1')
    def zero(s, r, n):
        for i in range(0, n, 2): s(f'v_mov_b64 {vr(r+i,2)}, 0')
    def kxload(s):
        s(f'buffer_load_dwordx4 {vr(KX,4)}, v{vKX}, {WS}, {sKV} offen sc1\nbuffer_load_dwordx4 {vr(KX+4,4)}, v{vKX}, {WS}, {sKV} offen offset:2048 sc1', 'kx')
    def vxload(s):
        s(f's_add_u32 s30, {sKV}, {16384 + 1024*w}\ns_add_u32 s31, s30, 4096')
        s(f'buffer_load_dwordx4 {vr(VX,4)}, v{vG16}, {WS}, s30 offen sc1\nbuffer_load_dwordx4 {vr(VX+4,4)}, v{vG16}, {WS}, s31 offen sc1', 'vx')
    def prestage(s, lo=0, hi=5):
        for i, (t, tau) in list(enumerate(LDS_Q))[lo:hi]:
            for hf in range(2): stage(s, ('q', t, tau), POOL + 8*i, hf, 'pre')
    def kmstore(s):
        if w >= 2 and not opts.get('nokv') and not opts.get('nokm'): s(f'buffer_store_dwordx4 {vr(AV+4,4)}, v{vG16}, {WS}, {sKN} offen offset:{1024*(w-2)} sc1', 'far')
    def vmstore(s):
        if not opts.get('nokv') and not opts.get('novm'): s(f'buffer_store_dwordx2 {vr(AV,2)}, v{vG8}, {WS}, {sKN} offen offset:{2048 + 512*w} sc1', 'far')
    def cflag(s):
        pass
    def touchmask(s):
        if w == 0 and not DIR: s(f's_add_u32 s30, {sPT}, 1\nv_cmp_gt_u32 vcc, s30, v{vFP}\ns_nop 0\ns_cmp_eq_u64 vcc, 0\ns_cselect_b32 s30, {24*32*1024}, 0\ns_add_u32 {sTCH}, {sKV}, s30\ns_add_u32 {sTC2}, {sTCH}, 8192')
    def book(s):
        s(f"""s_add_u32 {sN}, {sN}, 1
              s_and_b32 {sTAG}, {sN}, 1
              s_xor_b32 {sTAG}, {sTAG}, 1
              s_add_u32 s30, {sN}, 3
              s_and_b32 s30, s30, 3
              s_lshl_b32 s30, s30, 13
              s_add_u32 {sMN}, s30, {sG2}
              s_xor_b32 s30, s30, 0x4000
              s_add_u32 {sMC}, s30, {sG2}""")
        s(f's_add_u32 {sCV}, {sCV}, 1')
        if DIR: s(f's_add_u32 {sTCH}, {sKV}, {16384 + 1024*w}\ns_add_u32 {sTC2}, {sTCH}, 4096\ns_add_u32 {sKV}, {sKV}, {0 if opts.get("samekv") else 24*32*1024}\ns_add_u32 {sPT}, {sPT}, 1')
        if w == AW: s(f'v_mov_b32 v{vFV}, {sCV}')
    s = S()
    s(f"""L_ch_layer{T}:
    s_mul_i32 s30, {sL}, {LSTR}
    s_mul_i32 {sKV}, {sH}, {24*1024}
    s_add_u32 {sKV}, {sKV}, s30
    s_add_u32 {sKV}, {sKV}, {LB0 + O_QKV}
    s_lshl_b32 {sKM}, {sH}, 12
    s_add_u32 {sKN}, {sKM}, {CH_JUNK}
    s_add_u32 {sKM}, {sKM}, s30
    s_add_u32 {sKM}, {sKM}, {LB0 + O_KVM}
    s_lshl_b32 {sPT}, {sL}, 7
    s_add_u32 {sPT}, {sPT}, 1
    s_mov_b32 {sS}, 0
    s_mov_b32 m0, {LM + 2048*w}""")
    if opts.get('trace'): s('s_mov_b32 s64, 0\ns_mov_b32 s65, 0\ns_mov_b32 s66, 0\ns_mov_b32 s67, 0\ns_mov_b32 s68, 0')
    s(f"""; mem0 gather: row*1024 + 128g + 64f + 4w
    v_bfe_u32 v{MA+8}, v{vG16}, 6, 2
    v_bfe_u32 v{MA+9}, v{vG16}, 4, 1
    v_lshl_add_u32 v{MA+8}, v{MA+8}, 1, v{MA+9}
    v_lshlrev_b32 v{MA+8}, 10, v{MA+8}
    v_lshrrev_b32 v{MA+9}, 8, v{vG16}
    v_lshl_add_u32 v{MA+8}, v{MA+9}, 7, v{MA+8}
    v_bfe_u32 v{MA+9}, v{vG16}, 5, 1
    v_lshl_add_u32 v{MA+8}, v{MA+9}, 6, v{MA+8}
    v_add_u32 v{MA+8}, {4*w}, v{MA+8}""")
    for i in range(8): s(f'buffer_load_dword v{MA+i}, v{MA+8}, {XIN}, 0 offen offset:{512*(i >> 2) + 16*(i & 3)}')
    zero(s, AQ, 32); prestage(s)
    s('s_waitcnt vmcnt(0)')
    for i in range(8): s(f'v_min_u32 v{MA+i}, -2, v{MA+i}')
    s(f'ds_write_b128 v{vG16}, {vr(MA,4)} offset:{LM + 2048*w}\nds_write_b128 v{vG16}, {vr(MA+4,4)} offset:{LM + 2048*w + 1024}')
    poll(s, vF8, sFPO, vFP, sPT, fail)
    if opts.get('trace'): s(f's_lshl_b32 s69, {sL}, 4\ns_add_u32 s69, s69, 2')
    stamp(s, opts, 's69', MA)
    if DIR: kxload(s)
    touchmask(s); book(s)
    s(f'v_mov_b32 v{HR}, -1\ns_waitcnt lgkmcnt(0)\ns_branch L_ch_in{T}')
    pre = resolve(s)[0]
    s = S()
    ES = opts.get('es'); LATE = ES is not None and w >= 2
    s(f'L_ch_step{T}:')
    if not LATE:
        s.W('vm', 'hint'); s(f'v_cmp_gt_u32 vcc, v{AN}, v{HR}\ns_cbranch_vccnz L_ch_hmiss{T}\nL_ch_hok{T}:')
        s.W('vm', 'h2')
        s.append(Op('', 'vm', 'kx0'))
    P(s, 'b0in'); s(f'L_ch_in{T}:\ns_barrier'); P(s, 'b0')
    def rdma(t, x=None): (x or s)(f'ds_read_b128 {vr(MA+4*t,4)}, v{vG16} offset:{LM + 1024*t}', f'ma{t}')
    rdma(0); rdma(1); rdma(2)
    PRP = opts.get('prp', ['q5', 'q9', 'q12', 'q15']); CHK = opts.get('chk', 2)
    NQ = len(PRP); PR = AV
    def al(k, x=None):
        if w == AW and k in PRP: r = PRP.index(k); (x or s)(f'buffer_load_dword v{PR+r}, v{vF32}, {WS}, {sAL} offen sc1', f'pr{r}')
    if w == AW: s(f'buffer_store_dword v{vFV}, v{vZ}, {WS}, {sALO} offen {st}')
    if ES: rdma(3)
    elif DIR: s(f'buffer_load_dwordx4 {vr(VX,4)}, v{vG16}, {WS}, {sTCH} offen sc1', 'vx')
    else: kxload(s); s(f's_add_u32 s30, {sKV}, {16384 + 1024*w}\ns_add_u32 s31, s30, 4096')
    def s1(m, i, tt, x=None):
        x = x or s
        t, tau = tt; key = (m, t, tau)
        acc = {'q': AQ, 'k': AK, 'v': AV}[m] + 4*tau
        if in_lds(key):
            j = (LDS_Q if m == 'q' else LDS_K).index((t, tau)); b = POOL + 8*j
            if m == 'k': x.W('ds', f'k{j}')
        else: b = home[key]
        if m == 'q': x.W('ds', f'ma{t}')
        x(smf(acc, MA + 4*t, b))
        if x is s: P(s, f'{m}{i}')
    ORD = [(t, tau) for t in range(4) for tau in range(2)] + [(t, 0) for t in range(4, 8)] + [(t, 1) for t in range(4, 8)]
    def add(d, j): return f'v_add_f32 v{d+j}, v{d+j}, v{d+2+j}'
    def mul(d): return f'v_mul_f32 v{d}, {sC}, v{d}'
    CK = vSEN2
    def sk(x, j, hf): stage(x, ('k',) + LDS_K[j], POOL + 8*j, hf, f'k{j}')
    NK = 0
    def qpass(x, first):
        rd = {0: 3, 1: 4, 3: 5, 4: 6, 6: 7}
        sg = {7: (0, 0), 9: (0, 1), 11: (1, 0), 12: (1, 1), 14: (2, 0)}
        seq = [('q', i) for i in range(16)] + [('k', 0), ('k', 1)]
        vx2 = opts.get('vxp', (2, 2, 2, 2))[w]; vms = (10, 8, 10, 13)[w]; kms = (0, 0, 5, 8)[w]; pc = 4
        if ES:
            e = ES[0]; rd = {e+1: 4, e+2: 5, e+3: 6, e+4: 7}
            sg = {e+7: (0, 0), e+8: (0, 1), e+9: (1, 0), e+10: (1, 1), 15: (2, 0)}
            seq = seq[:8] + seq[16:16+NK] + seq[8:16] + seq[16+NK:]
            vx2 = e+6; vms = -1; kms = -1; pc = 1
        for n, (m, i) in enumerate(seq):
            s1(m, i, ORD[i], x)
            if first and ES:
                if LATE and n == ES[0] - 3: x.W('vm', 'hint'); x(f'v_cmp_gt_u32 vcc, v{AN}, v{HR}')
                if LATE and n == ES[0] - 1: x(f's_cbranch_vccnz L_ch_hmiss{T}\nL_ch_hok{T}:')
                if n == ES[0]:
                    if LATE: x.W('vm', 'h2'); x.append(Op('', 'vm', 'kx0'))
                    x('s_barrier')
                if n == ES[0] + 5: x(f'buffer_load_dwordx4 {vr(VX,4)}, v{vG16}, {WS}, {sTCH} offen sc1', 'vx')
            if n in rd and first: rdma(rd[n], x)
            if n in sg: sk(x, *sg[n])
            if first:
                if n == vx2: x(f'buffer_load_dwordx4 {vr(VX+4,4)}, v{vG16}, {WS}, {sTC2} offen sc1', 'vx')
                if n == vms: vmstore(x)
                if n == kms: kmstore(x)
                if n == pc and opts.get('fpw', 0) in (None, w): x(f'v_cmp_gt_u32 {sPW}, {sPT}, v{vFP}')
                if n == 8 and opts.get('fpw', 0) == w: x(f's_cmp_lg_u64 {sPW}, 0')
                if n == 13 and opts.get('fpw', 0) == w: x(f's_cbranch_scc1 L_ch_pwait{T}\nL_ch_pok{T}:')
            if (m, i) == ('q', 13): x(add(AQ, 0))
            if (m, i) == ('q', 14): x(add(AQ, 1))
            if (m, i) == ('q', 15): x(f'v_cmp_u_f32 vcc, v{AQ}, v{AQ+1}')
            if (m, i) == ('k', 0): sk(x, 2, 1); x(mul(AQ)); x(mul(AQ+1))
    qpass(s, True)
    s(f's_cbranch_vccnz L_ch_missb{T}\nL_ch_okb{T}:')
    if opts.get('fpw', 0) in (None, w): tail(f'L_ch_pwait{T}:'); cnt(tail, 's68'); poll(tail, vF8, sFPO, vFP, sPT, fail, sleep=0); tail(f's_branch L_ch_pok{T}')
    P(s, 'qend')
    ob = [('o',) + x for x in LDS_O]
    sreg = [MA, MA+8, POOL, POOL+8, POOL+16, MA+16, MA+24, POOL+24]
    def so(j, hf): stage(s, ob[j], sreg[j], hf, f'o{j}')
    FW = opts.get('fpw', 0)
    def fpl(k):
        if k != opts.get('fpp', 'k15') or FW not in (None, w): return
        if opts.get('nofp'): s(f'v_mov_b32 v{vFP}, -1')
        else: s(f'buffer_load_dword v{vFP}, v{vF8}, {WS}, {sFPO} offen sc1', 'fp')
    def K(i): s1('k', i, ORD[i]); fpl(f'k{i}')
    def V(i):
        s1('v', i, ORD[i]); fpl(f'v{i}')
        k0 = opts.get('kxp', (0, 0, 0, 0))[w]; k1 = opts.get('kxq', (2, 2, 2, 2))[w]
        if i == k0: s(f'buffer_load_dwordx4 {vr(KX,4)}, v{vKX}, {WS}, {sKV} offen sc1', 'kx')
        if i == k1: s(f'buffer_load_dwordx4 {vr(KX+4,4)}, v{vKX}, {WS}, {sKV} offen offset:2048 sc1', 'kx')
    s(add(AQ+4, 0)); s(add(AQ+4, 1))
    K(2); sk(s, 3, 0); s(mul(AQ+4)); s(mul(AQ+5))
    K(3)
    if ES: (kmstore if w >= 2 else vmstore)(s)
    else: s(f's_mov_b32 {sKN}, {sKM}')
    s(f'v_cvt_pk_bf16_f32 v{AQ}, v{AQ}, v{AQ+4}\nv_cvt_pk_bf16_f32 v{AQ+1}, v{AQ+1}, v{AQ+5}')
    K(4); s(f'ds_write2_b32 v{vQW}, v{AQ}, v{AQ+1} offset1:4', 'qw')
    K(5); sk(s, 3, 1); zero(s, AQ+2, 2)
    K(6); sk(s, 4, 0); zero(s, AQ+4, 2)
    K(7); sk(s, 4, 1); zero(s, AQ+6, 2)
    K(8)
    if ES and w >= 2: vmstore(s)
    s.W('ds', 'qw'); s('s_barrier'); P(s, 'b1')
    fl = [f'v_mov_b64 {vr(AQ,2)}, 0', f'v_mov_b64 {vr(AV,2)}, 0', f'v_mov_b64 {vr(AV+4,2)}, 0', f'v_mov_b64 {vr(AV+6,2)}, 0']
    for j in range(4):
        K(9 + j)
        s(f'ds_read_b128 {vr(QB+4*j,4)}, v{vQR} offset:{LQ + 576*j}', f'qb{j}'); s(fl[j])
    K(13); s.W('vm', 'kx0')
    if FW is None: s(f's_cmp_lg_u64 {sPW}, 0')
    s(add(AK, 0))
    K(14)
    if FW is None: s(f's_cbranch_scc1 L_ch_pwait{T}\nL_ch_pok{T}:')
    s(add(AK, 1))
    K(15)
    if ES: s(f's_mov_b32 {sKN}, {sKM}')
    s.W('ds', 'qb1'); s(smf(SX, KX, QB)); s(f's_mov_b32 {sMS}, {sMN}')
    s.W('ds', 'qb3'); s(smf(SX, KX+4, QB+8)); s(add(AK+4, 0)); s(add(AK+4, 1))
    V(0); s(f'v_cvt_pk_bf16_f32 v{AK}, v{AK}, v{AK+4}\nv_cvt_pk_bf16_f32 v{AK+1}, v{AK+1}, v{AK+5}')
    V(1); s(f'ds_write2_b32 v{vKW}, v{AK}, v{AK+1} offset1:4', 'kw'); s(add(SX, 0)); s(add(SX, 1))
    V(2); s(f'v_exp_f32 v{SX+2}, v{SX}\nv_exp_f32 v{SX+3}, v{SX+1}'); zero(s, AK+2, 2); s(f'v_cvt_pk_bf16_f32 v{SX+2}, v{SX+2}, v{SX+3}')
    V(3); s(f'ds_write_b32 v{vG16}, v{SX+2} offset:{LP + 4*w}', 'pw')
    V(4); s(f'buffer_store_dword v{vSEN}, v{vPUB}, {WS}, {sMC} offen {st}'); zero(s, AK+4, 2)
    V(5); so(0, 0); zero(s, AK+6, 2)
    V(6); so(0, 1); zero(s, AK, 2)
    V(7); s.W('ds', 'pw'); s('s_barrier'); P(s, 'b2')
    s(f'ds_read_b128 {vr(KA,4)}, v{vG16} offset:{LK}', 'ka0')
    V(8); s(f'ds_read_b128 {vr(KA+4,4)}, v{vG16} offset:{LK + 1024}', 'ka1')
    V(9); s(f'ds_read_b128 {vr(PX,4)}, v{vG16} offset:{LP}', 'px')
    LSW = opts.get('lsw', 1)
    V(10)
    if not LSW: s.W('vm', 'vx'); s(f'v_swap_b32 v{VX+2}, v{VX+4}')
    V(11); so(1, 0)
    if not LSW: s(f'v_swap_b32 v{VX+3}, v{VX+5}')
    s.W('ds', 'ka0'); s(smf(SM, KA, QB)); so(1, 1)
    s.W('ds', 'ka1'); s(smf(SM, KA+4, QB+8))
    fpl('m1')
    s(add(AV, 0))
    s.W('ds', 'px')
    s(f'v_mfma_f32_16x16x32_bf16 {vr(LL,4)}, {vr(ONES,4)}, {vr(PX,4)}, 0'); so(2, 0); s(add(AV, 1)); s(f'v_cvt_pk_bf16_f32 v{AV}, v{AV}, v{AV+1}')
    V(12); so(2, 1); s(add(SM, 0)); s(add(SM, 1))
    V(13); so(3, 0); s(f'v_exp_f32 v{SM+2}, v{SM}')
    V(14); so(3, 1); s(f'v_exp_f32 v{SM+3}, v{SM+1}')
    if not LSW:
        V(15); so(4, 0); s(f's_cmp_eq_u32 {sS}, 63'); s(f'v_cvt_pk_bf16_f32 v{PM}, v{SM+2}, v{SM+3}')
        P(s, 'vend')
        s(f'v_mfma_f32_16x16x32_bf16 {vr(OX,4)}, {vr(VX,4)}, {vr(PX,4)}, 0')
        so(4, 1); s(f'v_mov_b32 v{PM+3}, v{PM}')
        s(f'v_mfma_f32_16x16x32_bf16 {vr(OX+4,4)}, {vr(VX+4,4)}, {vr(PX,4)}, 0')
        s(f's_cselect_b32 s30, 0, {sGH}'); s(add(AV+4, 0)); s(add(AV+4, 1)); s(f'v_cvt_pk_bf16_f32 v{AV+1}, v{AV+4}, v{AV+5}')
        s(f'v_mfma_f32_16x16x16_bf16 {vr(LL,4)}, {vr(ONES,2)}, {vr(PM,2)}, {vr(LL,4)}')
        s('s_nop 0')
        s(f'v_mfma_f32_16x16x16_bf16 {vr(OX,4)}, {vr(AV,2)}, {vr(PM,2)}, {vr(OX,4)}')
        s(f'v_mfma_f32_16x16x16_bf16 {vr(OX+4,4)}, {vr(AV,2)}, {vr(PM+2,2)}, {vr(OX+4,4)}')
    else:
        V(15); s.W('vm', 'vx'); s(f's_cmp_eq_u32 {sS}, 63'); s(f'v_cvt_pk_bf16_f32 v{PM}, v{SM+2}, v{SM+3}\nv_swap_b32 v{VX+2}, v{VX+4}\nv_swap_b32 v{VX+3}, v{VX+5}')
        P(s, 'vend')
        s(f'v_mfma_f32_16x16x16_bf16 {vr(LL,4)}, {vr(ONES,2)}, {vr(PM,2)}, {vr(LL,4)}')
        s(f's_cselect_b32 s30, 0, {sGH}'); s(add(AV+4, 0)); s(add(AV+4, 1))
        s(f'v_mfma_f32_16x16x32_bf16 {vr(OX,4)}, {vr(VX,4)}, {vr(PX,4)}, 0')
        so(4, 0); s(f'v_cvt_pk_bf16_f32 v{AV+1}, v{AV+4}, v{AV+5}')
        s(f'v_mfma_f32_16x16x32_bf16 {vr(OX+4,4)}, {vr(VX+4,4)}, {vr(PX,4)}, 0')
        so(4, 1); s(f'v_mov_b32 v{PM+3}, v{PM}\ns_nop 0')
        s(f'v_mfma_f32_16x16x16_bf16 {vr(OX,4)}, {vr(AV,2)}, {vr(PM,2)}, {vr(OX,4)}')
        s('s_nop 1')
        s(f'v_mfma_f32_16x16x16_bf16 {vr(OX+4,4)}, {vr(AV,2)}, {vr(PM+2,2)}, {vr(OX+4,4)}')
    s(f's_nop 0\nv_rcp_f32 v{LL+2}, v{LL}\nv_subrev_u32 v{LL+1}, {sGL}, v{LL}\nv_cmp_le_u32 vcc, s30, v{LL+1}')
    s(f'L_ch_norm{T}:'); P(s, 'norm')
    for r in range(4): s(f'v_mul_f32 v{OX+r}, v{LL+2}, v{OX+r}')
    for r in range(4): s(f'v_mul_f32 v{OX+4+r}, v{LL+2}, v{OX+4+r}')
    for r in range(4): s(f'v_cvt_pk_bf16_f32 v{OX+r}, v{OX+r}, v{OX+4+r}')
    s(f'ds_write_b128 v{vG16}, {vr(OX,4)} offset:{LO + 1024*w}', 'ow')
    P(s, 'ow')
    s(f's_cbranch_vccnz L_ch_safe{T}')
    AWO = AQ
    NOWN = opts.get('nown', 2)
    for u in range(NOWN):
        s(smf(AWO + 4*u, OX, home['o', u, 0]))
        if u == 0: s(f's_add_u32 {sS}, {sS}, 1\ns_add_u32 {sKM}, {sKM}, {32*4096}')
    P(s, 'own'); s.W('ds', 'ow'); s('s_barrier'); P(s, 'b3')
    OA = [OX, OX+4, SX, SM]
    for z in (1, 2, 3): s(f'ds_read_b128 {vr(OA[z],4)}, v{vG16} offset:{LO + 1024*((w+z) & 3)}', f'oa{z}')
    for u in range(NOWN, 4): s(smf(AWO + 4*u, OX, home['o', u, 0]))
    def epi(u, part):
        d = AWO + 4*u
        if part == 0: s(f'v_cvt_pk_bf16_f32 v{d}, v{d}, v{d+2}\nv_cvt_pk_bf16_f32 v{d+1}, v{d+1}, v{d+3}\nv_and_or_b32 v{d}, v{d}, -2, {sTAG}')
        else: s(f'buffer_store_dwordx2 {vr(d,2)}, v{vST}, {WS}, {"0" if u < 2 else s4K} offen offset:{2048*(u & 1)} {st}')
    late = {(0,1): (5,0), (0,2): (5,1), (0,3): (6,0), (1,1): (6,1), (1,2): (7,0), (2,1): (7,1)}
    for u in range(4):
        for z in (1, 2, 3):
            key = ('o', u, z)
            if u == 0: s.W('ds', f'oa{z}')
            if in_lds(key): j = ob.index(key); s.W('ds', f'o{j}'); b = sreg[j]
            else: b = home[key]
            s(smf(AWO + 4*u, OA[z], b)); P(s, f'o{u}{z}')
            if (u, z) in late: so(*late[u, z])
            if u > 0 and z == 2: epi(u-1, 0)
            if u > 0 and z == 3: epi(u-1, 1)
    SEL, RA = OX, OX+4
    s(f'ds_read_b128 {vr(SEL,4)}, v{vG16} offset:{LSEL}', 'sel')
    s('s_nop 5')
    epi(3, 0); epi(3, 1); P(s, 'st3')
    idle = S()
    idle(f'v_mov_b32 v{AN}, {sCV}'); zero(idle, AQ, 12); zero(idle, AV+2, 2); zero(idle, SX, 8); zero(idle, AQ+12, 4)
    def fill(n):
        k = min(n, len(idle)); s.extend(idle[:k]); del idle[:k]; s.nops(n - k)
    G = [MA, MA+8, MA+16]
    def h1l(t, r): t(f'buffer_load_dwordx4 {vr(G[r],4)}, v{vG16}, {WS}, {sG1} offen sc1\nbuffer_load_dwordx4 {vr(G[r]+4,4)}, v{vG16}, {WS}, {sG1} offen offset:1024 sc1')
    def h2l(t, r): t(f'buffer_load_dwordx4 {vr(G[r],4)}, v{vG16}, {WS}, {sMS} offen sc1\nbuffer_load_dwordx4 {vr(G[r]+4,4)}, v{vG16}, {WS}, {sMS} offen offset:1024 sc1')
    TM = MA + 30
    def h1f(t, r, out):
        b = G[r]
        t(f"""s_waitcnt vmcnt({out+1})
              v_mfma_f32_16x16x32_bf16 {vr(RA,4)}, {vr(SEL,4)}, {vr(b,4)}, 0
              v_bitop3_b32 v{TM}, v{b}, v{b+2}, {sTAG} bitop3:0x7e
              s_waitcnt vmcnt({out})
              v_mfma_f32_16x16x32_bf16 {vr(RA,4)}, {vr(SEL,4)}, {vr(b+4,4)}, {vr(RA,4)}
              v_bitop3_b32 v{TM+1}, v{b+4}, v{b+6}, {sTAG} bitop3:0x7e
              v_bitop3_b32 v{TM}, v{TM}, v{TM+1}, 1 bitop3:0xa8
              v_cmp_ne_u32 vcc, 0, v{TM}""")
    def h2f(t, r, out):
        b = G[r]
        t(f"""s_waitcnt vmcnt({out})
              v_max3_u32 v{TM+1}, v{b}, v{b+1}, v{b+2}
              v_max3_u32 v{TM+1}, v{TM+1}, v{b+3}, v{b+4}
              v_max3_u32 v{TM+1}, v{TM+1}, v{b+5}, v{b+6}
              v_max_u32 v{TM+1}, v{TM+1}, v{b+7}
              v_cmp_eq_u32 vcc, -1, v{TM+1}
              ds_write_b128 v{vG16}, {vr(b,4)} offset:{LM + 2048*w}
              ds_write_b128 v{vG16}, {vr(b+4,4)} offset:{LM + 2048*w + 1024}""")
    def retry(tag, ld, fin, c):
        tail(f's_mov_b32 {sSPIN}, 0'); cnt(tail, c)
        for r in range(2): ld(tail, r); tail('s_nop 9')
        tail(f'L_ch_poll{tag}{T}:')
        for r in range(3):
            ld(tail, (r+2) % 3); fin(tail, r, 4); tail(f's_cbranch_vccz L_ch_got{tag}{T}')
        tail(f's_add_u32 {sSPIN}, {sSPIN}, 1\ns_cmp_lt_u32 {sSPIN}, {SPIN_MAX}\ns_cbranch_scc1 L_ch_poll{tag}{T}\ns_branch {fail}')
        tail(f'L_ch_got{tag}{T}:')
    if opts.get('solo'):
        s.extend(idle); del idle[:]; prestage(s); book(s); s(f's_waitcnt vmcnt(0)\ns_branch L_ch_solo{T}')
    D1 = opts.get('D1', 2); G1 = opts.get('g1', (42, 40, 38, 36)); G1 = G1[w] if isinstance(G1, tuple) else G1; D1 = D1[w] if isinstance(D1, tuple) else D1
    G2_ = opts.get('g2', 28); G2_ = G2_[w] if isinstance(G2_, tuple) else G2_
    if opts.get('sbar', 1): s('s_barrier')
    fill(P1[w])
    P(s, 'h1'); h1l(s, 0)
    for r in range(1, D1): fill(G1); h1l(s, r)
    s.extend(idle)
    if w >= 2: s(f'ds_read_b128 {vr(AV+4,4)}, v{vG16} offset:{LK + 1024*(w-2)}', 'kre')
    PS = opts.get('ps', 4); prestage(s, 0, PS); s.W('ds', 'sel')
    h1f(s, 0, 2*(D1-1)); s(f's_nop 3\ns_cbranch_vccnz L_ch_missa{T}\nL_ch_oka{T}:')
    tail(f'L_ch_missa{T}:\ns_mov_b32 {sSPIN}, 0\nL_ch_polla{T}:')
    for r in list(range(1, D1)) + [0]:
        cnt(tail, 's65'); h1l(tail, (r+D1-1) % D1); h1f(tail, r, 2*(D1-1)); tail(f's_nop 3\ns_cbranch_vccz L_ch_oka{T}')
    tail(f's_add_u32 {sSPIN}, {sSPIN}, 1\ns_cmp_lt_u32 {sSPIN}, {SPIN_MAX}\ns_cbranch_scc1 L_ch_polla{T}\ns_branch {fail}')
    P(s, 'h1ok')
    GATE = opts.get('gate')
    ann = f'buffer_store_dword v{AN}, v{vZ}, {WS}, {sH2O} offen {st}'
    if GATE: s(ann)
    s(f"""v_add_f32_dpp v{RA}, v{RA}, v{RA} row_ror:4 row_mask:0xf bank_mask:0xf
          v_add_f32_dpp v{RA+1}, v{RA+1}, v{RA+1} row_ror:4 row_mask:0xf bank_mask:0xf
          s_nop 0
          v_add_f32_dpp v{RA}, v{RA}, v{RA} row_ror:8 row_mask:0xf bank_mask:0xf
          v_add_f32_dpp v{RA+1}, v{RA+1}, v{RA+1} row_ror:8 row_mask:0xf bank_mask:0xf
          v_cvt_pk_bf16_f32 v{TM}, v{RA}, v{RA+1}
          v_min_u32 v{TM}, -2, v{TM}
          buffer_store_dword v{TM}, v{vPUB}, {WS}, {sMS} offen {st}""")
    def dma(t, tag): t(f'buffer_load_dwordx4 v{vG16}, {WS}, {sMS} offen sc1 lds\nbuffer_load_dwordx4 v{vG16}, {WS}, {sMS} offen offset:1024 sc1 lds', tag)
    def prb(t, r, tag='x'): t(f'buffer_load_dword v{HR+r}, v{vF32}, {WS}, {sH2} offen sc1', tag)
    def clamp(t):
        for r in [0, 1] + ([4, 5, 6, 7] if w >= 2 else []): t(f'v_min_u32 v{AV+r}, -2, v{AV+r}')
    idle = S(); book(idle); idle.W('ds', 'kre'); clamp(idle)
    if GATE:
        NG, GG = GATE
        fill(D2)
        for r in range(NG):
            prb(s, r, f'g{r}')
            if r == 0: prestage(s, PS, 5)
            if r < NG-1: fill(GG)
        s.extend(idle); P(s, 'pub')
        s.W('vm', 'g0'); s(f'v_cmp_gt_u32 vcc, v{AN}, v{HR}\ns_cbranch_vccnz L_ch_g1{T}'); P(s, 'h2'); dma(s, 'h2'); s(f'L_ch_gok{T}:')
        for r in list(range(1, NG)) + [0]:
            tail(f'L_ch_g{r}{T}:'); cnt(tail, 's66'); prb(tail, (r+NG-1) % NG)
            if r == 0: tail(f's_add_u32 {sSPIN}, {sSPIN}, 1\ns_cmp_lt_u32 {sSPIN}, {SPIN_MAX}\ns_cbranch_scc0 {fail}')
            tail(f's_waitcnt vmcnt({NG-1})\nv_cmp_gt_u32 vcc, v{AN}, v{HR+r}\ns_cbranch_vccnz L_ch_g{(r+1) % NG}{T}'); dma(tail, 'x'); tail(f's_branch L_ch_gok{T}')
        s(f's_mov_b32 {sSPIN}, 0\nv_cmp_gt_u32 vcc, {sPT}, v{vFP}')
    else:
        s.nops(opts.get('da', 4)); s(ann)
        P(s, 'pub')
        prestage(s, PS, 5); s.nops(max(0, D2 - 2*(5-PS) - opts.get('da', 4)))
        P(s, 'h2')
        def shot(t, r): prb(t, r, 'hint' if r == 0 else 'x'); dma(t, 'h2' if r == 0 else 'x')
        shot(s, 0)
        for r in range(1, DD): fill(G2_); shot(s, r)
        s.extend(idle)
        tail(f'L_ch_hmiss{T}:\ns_mov_b32 {sSPIN}, 0\nL_ch_hpoll{T}:')
        for r in list(range(1, DD)) + [0]:
            cnt(tail, 's66'); shot(tail, (r+DD-1) % DD)
            tail(f's_waitcnt vmcnt({3*(DD-1)+2})\nv_cmp_gt_u32 vcc, v{AN}, v{HR+r}\ns_cbranch_vccz L_ch_hok{T}')
        tail(f's_add_u32 {sSPIN}, {sSPIN}, 1\ns_cmp_lt_u32 {sSPIN}, {SPIN_MAX}\ns_cbranch_scc1 L_ch_hpoll{T}\ns_branch {fail}')
    if opts.get('solo'): s(f'L_ch_solo{T}:\nv_mov_b32 v{HR}, -1')
    P(s, 'end')
    if opts.get('trace'):
        s(f's_cmp_eq_u32 {sS}, 13\ns_cbranch_scc1 L_ch_m0{T}\ns_cmp_eq_u32 {sS}, 63\ns_cbranch_scc1 L_ch_m1{T}\nL_ch_mb{T}:')
        tail(f'L_ch_m0{T}:\ns_memtime s[58:59]\ns_memrealtime s[60:61]\ns_mov_b32 s65, 0\ns_mov_b32 s66, 0\ns_mov_b32 s67, 0\ns_mov_b32 s68, 0\ns_branch L_ch_mb{T}')
        tail(f'L_ch_m1{T}:\ns_memtime s[62:63]\ns_memrealtime s[98:99]\ns_waitcnt lgkmcnt(0)\ns_sub_u32 s64, s62, s58\ns_sub_u32 s60, s98, s60\ns_branch L_ch_mb{T}')
    s('s_waitcnt lgkmcnt(0)')
    if clk: s('s_sub_u32 s74, s74, s70\ns_sub_u32 s76, s76, s72\ns_add_u32 s67, s67, s74\ns_add_u32 s68, s68, s76')
    if pts:
        s(f's_cmp_eq_u32 {sS}, {opts.get("tls", 41)}\ns_cbranch_scc0 L_ch_step{T}')
        s(f's_lshl_b32 s100, {sROLE}, 2\ns_add_u32 s100, s100, {sW}\ns_lshl_b32 s100, s100, 9\ns_add_u32 s100, s100, {TRACE+256}\nv_mov_b32 v{TM-4}, s100')
        for i in range(len(pts)): s(f'v_mov_b32 v{TM-3}, s{70+2*i}\nbuffer_store_dword v{TM-3}, v{TM-4}, {WS}, 0 offen offset:{4*i}\ns_waitcnt vmcnt(0)')
    s(f's_branch L_ch_step{T}')
    if opts.get('hoist', 1): s = hoist_waits(s)
    for pat in opts.get('drop', []):
        lo = [i for i, o in enumerate(s) if o.t == f'L_ch_in{T}:'][0] + 2; hi = [i for i, o in enumerate(s) if o.tag == 'oa1'][0] - 2
        s = S(o for i, o in enumerate(s) if not (lo <= i < hi and o.t and o.t.startswith(pat) and 'safe' not in o.t))
    step = resolve(s, pre_vm=['h2']*2 if GATE else ['hint'] + ['h2']*2 + ['x']*(3*(DD-1)))[0]
    if opts.get('model') == T: model(step[step.index(f'L_ch_in{T}:'):], True)
    tail(f'L_ch_missb{T}:\ns_mov_b32 {sSPIN}, 0\ns_sub_u32 s30, {sMS}, {2048*w}\ns_add_u32 s31, s30, 4096\ns_waitcnt lgkmcnt(0)'); cnt(tail, 's68')
    for t in range(8): rdma(t, tail)
    tail('s_waitcnt lgkmcnt(0)'); prestage(tail); tail(f's_branch L_ch_chkb{T}\nL_ch_pollb{T}:')
    for t in range(8): tail(f'buffer_load_dwordx4 {vr(MA+4*t,4)}, v{vG16}, {WS}, s3{t >> 2} offen offset:{1024*(t & 3)} sc1')
    tail(f's_add_u32 {sSPIN}, {sSPIN}, 1\ns_cmp_lt_u32 {sSPIN}, {SPIN_MAX}\ns_cbranch_scc0 {fail}\ns_waitcnt vmcnt(0)\nL_ch_chkb{T}:\nv_max_u32 v{CK}, v{MA}, v{MA+1}')
    for r in range(2, 32, 2): tail(f'v_max3_u32 v{CK}, v{CK}, v{MA+r}, v{MA+r+1}')
    tail(f'v_cmp_eq_u32 vcc, -1, v{CK}\ns_cbranch_vccnz L_ch_pollb{T}')
    zero(tail, AQ, 16); tail('s_waitcnt lgkmcnt(0)\ns_nop 0')
    qpass(tail, False); tail(f's_branch L_ch_okb{T}')
    t = tail
    t(f'L_ch_last{T}:')
    if w >= 2: t(f'ds_read_b128 {vr(AV+4,4)}, v{vG16} offset:{LK + 1024*(w-2)}\ns_waitcnt lgkmcnt(0)')
    clamp(t); kmstore(t); vmstore(t)
    t(f's_sub_u32 {sN}, {sN}, 1')
    if opts.get('trace'): t('s_add_u32 s69, s69, 1')
    stamp(t, opts, 's69', MA)
    if opts.get('trace'):
        for i, r in enumerate(('s64', 's65', 's66', 's67', 's68', 's60')):
            t(f'v_mov_b32 v{MA}, {r}\nv_add_u32 v{MA+1}, 4, v{MA+1}\nbuffer_store_dword v{MA}, v{MA+1}, {WS}, 0 offen\ns_nop 1')
    t(f"""s_waitcnt vmcnt(0) lgkmcnt(0)
          s_barrier
          s_add_u32 {sL}, {sL}, 1
          s_cmp_lt_u32 {sL}, {opts.get('nl', 2)}
          s_cbranch_scc1 L_ch_layer{T}
          s_endpgm""")
    m, m2 = LL + 1, LL + 3
    t(f'L_ch_safe{T}:\ns_cmp_eq_u32 {sS}, 63\ns_cbranch_scc1 L_ch_last{T}\nv_max3_f32 v{m}, v{SX}, v{SX+1}, v{SM}\nv_max_f32 v{m}, v{m}, v{SM+1}')
    xreduce(t, m, m2, 'v_max_f32', dpp=())
    t(f'''ds_write_b32 v{vG16}, v{m} offset:{LMX + 4*w}
          s_waitcnt lgkmcnt(0)
          s_barrier
          ds_read_b128 {vr(PX,4)}, v{vG16} offset:{LMX}
          s_waitcnt lgkmcnt(0)
          v_max3_f32 v{m}, v{PX}, v{PX+1}, v{PX+2}
          v_max_f32 v{m}, v{m}, v{PX+3}''')
    for b in (SX, SM):
        for r in range(2): t(f'v_sub_f32 v{b+2+r}, v{b+r}, v{m}\nv_exp_f32 v{b+2+r}, v{b+2+r}')
    t(f'''s_nop 0
          v_cvt_pk_bf16_f32 v{SX+2}, v{SX+2}, v{SX+3}
          v_cvt_pk_bf16_f32 v{PM}, v{SM+2}, v{SM+3}
          v_cvt_pk_bf16_f32 v{PM+3}, v{SM+2}, v{SM+3}
          ds_write_b32 v{vG16}, v{SX+2} offset:{LP + 4*w}
          s_waitcnt lgkmcnt(0)
          s_barrier
          ds_read_b128 {vr(PX,4)}, v{vG16} offset:{LP}
          s_waitcnt lgkmcnt(0)
          v_mfma_f32_16x16x32_bf16 {vr(LL,4)}, {vr(ONES,4)}, {vr(PX,4)}, 0
          v_mfma_f32_16x16x32_bf16 {vr(OX,4)}, {vr(VX,4)}, {vr(PX,4)}, 0
          v_mfma_f32_16x16x32_bf16 {vr(OX+4,4)}, {vr(VX+4,4)}, {vr(PX,4)}, 0
          s_nop 7
          v_mfma_f32_16x16x16_bf16 {vr(LL,4)}, {vr(ONES,2)}, {vr(PM,2)}, {vr(LL,4)}
          v_mfma_f32_16x16x16_bf16 {vr(OX,4)}, {vr(AV,2)}, {vr(PM,2)}, {vr(OX,4)}
          v_mfma_f32_16x16x16_bf16 {vr(OX+4,4)}, {vr(AV,2)}, {vr(PM+2,2)}, {vr(OX+4,4)}
          s_nop 7
          v_rcp_f32 v{LL+2}, v{LL}
          s_mov_b64 vcc, 0
          s_branch L_ch_norm{T}''')
    return pre + step + resolve(tail)[0]

def role_chain(opts):
    fail = 'L_ch_fail'
    s = S(); setup(s, opts, fail)
    return resolve(s)[0] + body('F', opts, fail) + [f'{fail}:', 's_endpgm'] + body('S', opts, fail)
```

```python
from common import *

def dense_pairs(nks, rowbytes, dst, krow=lambda ks, jr: 32*ks + 2*jr):
    return [(krow(ks, jr) * rowbytes, dst(0, ks, jr), dst(1, ks, jr)) for ks in range(nks) for jr in range(4)]

def role_p(after, opts):
    s = S()
    fail = 'L_p_fail'; tl = TL(opts, 'p')
    sH, sU, sL, sS, sO, sIN, sSTR, sC, sFO, sFV, sRB, sWB, sW4 = [f's{i}' for i in range(32, 45)]
    sX = ['s46', 's47', 's48', 's49']
    vL16, vXa, vLR, vFo, vFp, vFt, vSF, vSW, vSR, vBP = range(1, 11)
    vA, vB, vKS, vL8, SEN, vRD = 12, 13, 120, 121, 122, 124; sKC = 's45'; sOQ = 's58'; sOK, sOV = 's59', 's60'
    AF, SF, GM, ONES, aK, aV, aQ, CS, ST = 16, 32, 48, 56, 60, 68, 76, 84, 108
    U = SF; RQ, NQ = 118, 119
    st = Stats(vSF, SF, GM, ONES, vSW, vSR, vBP, ST, 50)
    WK = lambda t, ks, jr=0: ('a', 8*ks + 4*t + jr)
    WV = lambda t, ks, jr=0: ('a', 128 + 8*ks + 4*t + jr)
    WQ = lambda t, ks, jr=0: 128 + 8*ks + 4*t + jr
    def mk(d, t, ks, a): return f'v_mfma_f32_16x16x32_bf16 {vr(d+4*t,4)}, {R(WK(t,ks),4)}, {a}, {"0" if ks == 0 else vr(d+4*t,4)}'
    def mv(d, t, ks, a): return f'v_mfma_f32_16x16x32_bf16 {vr(d+4*t,4)}, {a}, {R(WV(t,ks),4)}, {"0" if ks == 0 else vr(d+4*t,4)}'
    def mq(d, t, ks, a): return f'v_mfma_f32_16x16x32_bf16 {vr(d+4*t,4)}, {R(WQ(t,ks),4)}, {a}, {"0" if ks == 0 else vr(d+4*t,4)}'
    s(f'''L_role_p:
    s_lshr_b32 s30, {sROLE}, 5
    s_sub_u32 s30, s30, 1
    s_lshl_b32 s30, s30, 3
    s_bfe_u32 s31, {sROLE}, 0x30001
    s_add_u32 {sH}, s30, s31
    s_and_b32 {sU}, {sROLE}, 1
    v_lshlrev_b32 v{vL16}, 4, v0
    v_lshrrev_b32 v14, 4, v0
    v_and_b32 v15, 15, v0
    v_lshlrev_b32 v{vA}, 16, v14
    v_lshl_add_u32 v{vA}, v15, 2, v{vA}
    s_lshl_b32 s30, {sH}, 8
    s_lshl_b32 s31, {sW}, 6
    s_add_u32 s30, s30, s31
    v_add_u32 v{vA}, s30, v{vA}
    v_add_u32 v{vB}, 0x2000, v{vA}
    v_sub_u32 v16, 0, v14
    v_xor_b32 v16, v16, v0
    v_and_b32 v16, 3, v16
    v_lshrrev_b32 v17, 2, v0
    v_lshlrev_b32 v{vXa}, 10, v17
    v_lshl_add_u32 v{vXa}, v16, 4, v{vXa}
    s_lshl_b32 s30, {sW}, 8
    v_add_u32 v{vXa}, s30, v{vXa}
    v_sub_u32 v16, 0, v17
    v_xor_b32 v16, v16, v14
    v_and_b32 v16, 3, v16
    v_lshlrev_b32 v{vRD}, 6, v15
    v_lshl_add_u32 v{vRD}, v16, 4, v{vRD}
    ''')
    set_srds(s, [(16, 'Wk', 4*MB), (84, 'Wv', 4*MB), (88, 'Wq', 4*MB)])
    s(f's_lshl_b32 s92, {sH}, 8')
    stages = [(srd, 64*k2*8192, [[(dst(0, 2*k2 + (q >> 1), 2*(q & 1)+jj), dst(1, 2*k2 + (q >> 1), 2*(q & 1)+jj)) for jj in range(2)] for q in range(4)])
              for srd, dst in (('s[16:19]', WK), ('s[84:87]', WV), ('s[88:91]', WQ)) for k2 in range(8)]
    load_pairs_wg(s, stages, (16, 8), (32, 4), 2, 's92', 0, vA, 16)
    set_srd(s, 12, 'x', 2*MB)
    st.setup(s, 49152, 12)
    s('s_nop 1')
    for ks in range(16):
        for t in range(2): s(mk(CS, t, ks, vr(ONES,4))); s(mv(CS+8, t, ks, vr(ONES,4))); s(mq(CS+16, t, ks, vr(ONES,4)))
    s(f'''; K fragment position: 512(g>>1) + 128(c>>2) + 64(g&1) + 16(c&3)
    v_lshrrev_b32 v12, 5, v0
    v_bfe_u32 v13, v0, 2, 2
    v_lshlrev_b32 v{vKS}, 9, v12
    v_lshl_add_u32 v{vKS}, v13, 7, v{vKS}
    v_bfe_u32 v12, v0, 4, 1
    v_and_b32 v13, 3, v0
    v_lshl_add_u32 v{vKS}, v12, 6, v{vKS}
    v_lshl_add_u32 v{vKS}, v13, 4, v{vKS}''')
    stamp(s, opts, 0, 12)
    wait_init(s, 12, 13, fail)
    s(f'''
    v_and_b32 v{vFo}, 1, v0
    v_lshlrev_b32 v{vFo}, 2, v{vFo}
    v_lshlrev_b32 v{vL8}, 3, v0
    v_mov_b64 v[{SEN}:{SEN+1}], -1
    s_lshl_b32 s30, {sH}, 7
    s_lshl_b32 s31, {sU}, 4
    s_add_u32 s30, s30, s31
    s_lshl_b32 s31, {sW}, 2
    s_add_u32 s30, s30, s31
    s_add_u32 s30, s30, {F_P}
    v_mov_b32 v{vFp}, s30
    s_mov_b32 {sC}, {f32(128**-0.5 * LOG2E)}
    s_mov_b32 {sL}, 0
    s_lshl_b32 {sIN}, {sU}, 14
    s_mov_b32 {sSTR}, 64
    s_lshl_b32 {sW4}, {sW}, 12
    L_p_layer:
    s_mul_i32 {sO}, {sH}, 24
    s_lshl_b32 s30, {sU}, 2
    s_add_u32 {sO}, {sO}, s30
    s_add_u32 {sO}, {sO}, {sW}
    s_lshl_b32 {sO}, {sO}, 10
    s_mov_b32 s30, 0
    {'' if opts.get('qre') else f's_add_u32 {sO}, {sO}, s30'}
    s_add_u32 {sO}, {sO}, {LB0 + O_QKV}
    s_lshl_b32 {sKC}, {sH}, 3
    s_lshl_b32 s31, {sU}, 2
    s_add_u32 {sKC}, {sKC}, s31
    s_add_u32 {sKC}, {sKC}, {sW}
    s_lshl_b32 {sKC}, {sKC}, 9
    s_add_u32 {sKC}, {sKC}, s30
    s_add_u32 {sKC}, {sKC}, {LB0 + O_KVM}
    s_lshl_b32 {sFV}, {sL}, 7
    s_mov_b32 {sS}, 0
    s_add_u32 {sOQ}, {sW4}, {201*MB}
    s_mov_b32 {sRB}, 0
    s_mov_b32 {sWB}, 0
    ''')
    def flag_offset(t, k):
        t(f'''s_add_u32 s30, {sS}, {k}
              s_min_u32 s30, s30, 63
              s_lshl_b32 s30, s30, 1
              s_add_u32 s30, s30, {sU}
              s_lshl_b32 {sFO}, s30, 7
              s_add_u32 {sFO}, {sFO}, {F_O}''')
    def ring(t, r): t(f's_add_u32 {r}, {r}, 0x4000\ns_cmp_eq_u32 {r}, 0xc000\ns_cselect_b32 {r}, 0, {r}')
    def dma(t, k):
        t(f'''s_add_u32 s30, {sS}, {k}
              s_min_u32 s30, s30, 63
              s_lshl_b32 s30, s30, 15
              s_add_u32 s30, s30, {sIN}
              s_add_u32 m0, {sWB}, {sW4}''')
        for i in range(4):
            if i: t(f's_add_u32 m0, m0, 1024\ns_add_u32 s30, s30, {sSTR}')
            else: t('s_nop 0')
            t(f'buffer_load_dwordx4 v{vXa}, {XIN}, s30 offen sc1 lds', 'x')
        ring(t, sWB)
    def flagload(t, k):
        flag_offset(t, k); t(f'buffer_load_dword v{vFt}, v{vFo}, {WS}, {sFO} offen sc1', 'fl')
    flag_offset(s, 0); poll1(s, vFo, sFO, vFt, sL, fail); tl(s, 'poll'); dma(s, 0); flagload(s, 1)
    s(f's_waitcnt vmcnt(0)\nv_cmp_gt_u32 vcc, {sL}, v{vFt}\ns_cbranch_vccnz L_p_slow0\nL_p_back0:')
    tl(s, 'ld'); dma(s, 1); flagload(s, 2)
    if opts.get('trace'): s(f's_add_u32 s69, {sL}, 1')
    stamp(s, opts, 's69', 12)
    s(f'buffer_load_dword v12, v{vFo}, {WS}, {sFO} offen sc1\nv_add_u32 v{vSF}, {sW4}, v{vRD}')
    pre, _ = resolve(s)
    m = S(); f = S()
    def rd(ks, tag): m(f'ds_read_b128 v[{AF+4*(ks%4)}:{AF+4*(ks%4)+3}], v{vLR} offset:{1024*(ks%16)}', tag)
    m(f'L_p_loop:\ns_barrier')
    tl(m, 'bar'); st.reads(m); m(f'v_add_u32 v{vLR}, {sRB}, v{vRD}'); ring(m, sRB)
    st.mfmas(m, after=lambda i: rd(i, f'a{i}') if i < 3 else None)
    for i in range(32):
        ks = i % 16
        tl(m, f'i{i}'); m.W('ds', f'a{i}')
        a = vr(AF + 4*(i % 4), 4)
        if i < 16:
            m(mk(aK, 0, ks, a))
            if i + 3 < 32: rd(i + 3, f'a{i+3}')
            m(mk(aK, 1, ks, a)); m(mv(aV, 0, ks, a)); m(mv(aV, 1, ks, a))
            if i == 0: st.part1(m)
            if i == 2: m.W('ds', 'sw'); m('s_barrier'); st.part2(m)
            if i == opts.get('pfi', 2):
                m(f's_cmp_eq_u32 {sS}, 0\ns_cbranch_scc1 L_p_nofl'); tl(m, 'qst'); m.W('vm', 'kv'); tl(m, 'ack')
                m(f's_mov_b64 exec, 1\nbuffer_store_dword v11, v{vFp}, {WS}, 0 offen sc1\ns_mov_b64 exec, -1', 'flag'); m('L_p_nofl:')
        else:
            m(mq(aQ, 0, ks, a))
            if i + 3 < 32: rd(i + 3, f'a{i+3}')
            m(mq(aQ, 1, ks, a))
    f('s_waitcnt vmcnt(2)'); f(f'v_cmp_gt_u32 vcc, {sL}, v{vFt}\ns_add_u32 {sFV}, {sFV}, 1\nv_mov_b32 v11, {sFV}\ns_cbranch_vccnz L_p_slow\nL_p_back:')
    dma(f, 2); flagload(f, 3)
    st.part3(f)
    for r in range(8): f(f'v_mul_f32 v{U+r}, v{st.NM}, v{CS+r}')
    f(f'v_mul_f32 v{RQ}, {sC}, v{st.RS}\nv_mul_f32 v{NQ}, {sC}, v{st.NM}')
    f.W('ds', 'bp')
    for r in range(8): f(f'v_mul_f32 v{U+8+r}, v{st.NMr + (r & 3)}, v{CS+8+r}')
    f(f'buffer_store_dwordx2 v[{SEN}:{SEN+1}], v{vL8}, {WS}, {sKC} offen sc1\ns_add_u32 {sKC}, {sKC}, {32*4096}', 'kv')
    f(f's_add_u32 {sOK}, {sO}, 8192\ns_add_u32 {sOV}, {sO}, 16384')
    g = S()
    for r in range(8): g(f'v_fmac_f32 v{U+r}, v{st.RS}, v{aK+r}')
    for r in range(4): g(f'v_cvt_pk_bf16_f32 v{aK+r}, v{U+r}, v{U+4+r}')
    g(f'buffer_store_dwordx4 {vr(aK,4)}, v{vKS}, {WS}, {sOK} offen sc1', 'kv')
    for r in range(8): g(f'v_fmac_f32 v{U+8+r}, v{st.RSr + (r & 3)}, v{aV+r}')
    for r in range(4): g(f'v_cvt_pk_bf16_f32 v{aV+r}, v{U+8+2*r}, v{U+8+2*r+1}')
    g(f'buffer_store_dwordx4 {vr(aV,4)}, v{vL16}, {WS}, {sOV} offen sc1', 'kv')
    def qepi(t):
        for r in range(8): t(f'v_mul_f32 v{aQ+r}, v{RQ}, v{aQ+r}')
        for r in range(8): t(f'v_fmac_f32 v{aQ+r}, v{NQ}, v{CS+16+r}')
        for r in range(4): t(f'v_cvt_pk_bf16_f32 v{aQ+r}, v{aQ+r}, v{aQ+4+r}')
        t(f'buffer_store_dwordx4 {vr(aQ,4)}, v{vL16}, {WS}, {sOQ} offen sc1', 'q')
    g(f's_mov_b32 {sOQ}, {sO}\ns_add_u32 {sO}, {sO}, {24*32*1024}\ns_add_u32 {sS}, {sS}, 1')
    g(f's_add_u32 s30, {sRB}, {sW4}\nv_add_u32 v{vSF}, s30, v{vRD}')
    q = S(); qepi(q); i0 = [i for i, o in enumerate(m) if o.kind == 'wait_ds'][0]; i1 = [i for i, o in enumerate(m) if is_mfma(o)][11]
    m = S(m[:i0] + q[:7] + weave(S(m[i0:i1]), S(q[7:])) + m[i1:])
    cut = [i for i, o in enumerate(m) if is_mfma(o)][8 + 64]
    b = weave(S(m[:cut]), f, start=8 + 4*opts.get('pfi', 2) + 4)
    b.extend(weave(S(m[cut:]), g, budget=opts.get('pb', 16)))
    tl(b, 'end'); tl.dump(b, f's_cmp_eq_u32 {sS}, {41 if tl.at is None else tl.at + 1}', 12)
    b(f'''s_cmp_lt_u32 {sS}, {opts.get('pseg', 64)}
          s_cbranch_scc1 L_p_loop''')
    if opts.get('model') == 'p': model(resolve(b)[0], True)
    body, q = resolve(b, pre_vm=['x']*4 + ['fl', 'kv', 'kv', 'kv'])
    e = S(); e('s_nop 7'); qepi(e)
    if opts.get('trace'): e(f's_add_u32 s69, {sL}, 3')
    stamp(e, opts, 's69', 12)
    e(f'''s_add_u32 {sFV}, {sFV}, 1
          v_mov_b32 v11, {sFV}
          s_waitcnt vmcnt(0) lgkmcnt(0)
          s_mov_b64 exec, 1
          buffer_store_dword v11, v{vFp}, {WS}, 0 offen sc1
          s_mov_b64 exec, -1
          s_barrier
          s_cmp_eq_u32 {sL}, {opts.get('nl', 2) - 1}
          s_cbranch_scc0 L_p_second
          s_branch {after}
          L_p_second:
          s_mov_b32 {sL}, 1
          s_mov_b32 s12, s8
          s_mov_b32 s13, s9
          s_mov_b32 s14, s10
          v_add_u32 v{vXa}, {sW4}, v{vL16}
          v_mov_b32 v{vRD}, v{vL16}
          s_add_u32 {sIN}, {sIN}, {LB0 + O_X2}
          s_mov_b32 {sSTR}, 1024
          s_branch L_p_layer
          L_p_slow:''')
    poll(e, vFo, sFO, vFt, sL, fail)
    e('s_branch L_p_back\nL_p_slow0:')
    poll(e, vFo, sFO, vFt, sL, fail)
    e(f's_branch L_p_back0\n{fail}:\ns_endpgm')
    return pre + body + resolve(e)[0]
```

```python
from common import *
from role_p import dense_pairs

def rep_rank(s, sR, sI, base):
    s(f's_lshr_b32 {sR}, {sROLE}, 5\ns_sub_u32 {sR}, {sR}, 5\ns_and_b32 {sI}, {sROLE}, 31\ns_sub_u32 {sI}, {sI}, {base}')
def layer_base(s, sHS, sLB, sHL):
    s(f's_lshr_b32 s30, {sHS}, 7\ns_mul_i32 {sLB}, s30, {LSTR}\ns_add_u32 {sLB}, {sLB}, {LB0}\ns_and_b32 {sHL}, {sHS}, 127')
def flag(s, vval, val, vzero, soff):
    s(f'v_mov_b32 v{vval}, {val}\ns_mov_b64 exec, 1\nbuffer_store_dword v{vval}, v{vzero}, {WS}, {soff} offen sc1\ns_mov_b64 exec, -1')
def lflag(s, sM, tail, vval, val, vzero, soff):
    s(f'v_mov_b32 v{vval}, {val}\ns_mov_b64 exec, 1'); dual(s, sM, tail, f'buffer_store_dword v{vval}, v{vzero}, {WS}, {soff} offen @'); s('s_mov_b64 exec, -1')
def tstamp(s, opts, sHS, vt, k=0):
    if opts.get('trace'):
        s(f's_mul_i32 s69, {sHS}, 21846\ns_lshr_b32 s69, s69, 16\ns_add_u32 s69, s69, 2'); stamp(s, opts, 's69', vt)

def role_x2(opts):
    s = S(); fail = 'L_x2_fail'; tl = TL(opts, 'x2')
    sR, sNB, sHS, sLB, sHL, sO, sT, sFI, sFO, sX, sM = [f's{i}' for i in range(32, 43)]; tail = S()
    vL16, vF, vFt, vA, vB, vRes, vLW, vLR = range(1, 9)
    AC, RS, PT, OB = 12, 20, 24, 128
    s('L_role_x2:'); rep_rank(s, sR, sNB, 0)
    s(f'''v_lshlrev_b32 v{vL16}, 4, v0
    v_lshrrev_b32 v10, 4, v0
    v_and_b32 v11, 15, v0
    v_lshlrev_b32 v{vA}, 13, v10
    v_lshl_add_u32 v{vA}, v11, 2, v{vA}
    s_lshl_b32 s30, {sW}, 20
    s_lshl_b32 s31, {sNB}, 6
    s_add_u32 s30, s30, s31
    v_add_u32 v{vA}, s30, v{vA}
    v_add_u32 v{vB}, 0x400, v{vA}
    v_lshlrev_b32 v{vRes}, 10, v11
    v_lshl_add_u32 v{vRes}, v10, 4, v{vRes}
    v_add_u32 v{vRes}, s31, v{vRes}
    s_lshl_b32 s30, {sW}, 11
    v_add_u32 v{vLW}, s30, v{vL16}
    v_mov_b32 v{vLR}, v{vL16}
    v_and_b32 v{vF}, 7, v0
    v_lshlrev_b32 v{vF}, 2, v{vF}
    s_lshl_b32 s30, {sR}, 7
    s_lshl_b32 s31, {sW}, 5
    s_add_u32 {sFI}, s30, s31
    s_add_u32 {sFI}, {sFI}, {F_X1}
    s_lshl_b32 s31, {sNB}, 2
    s_add_u32 {sFO}, s30, s31
    s_add_u32 {sFO}, {sFO}, {F_X2}
    s_mov_b32 {sHS}, {sR}''')
    set_srd(s, 16, 'Wo', 4*MB)
    s(f's_lshl_b32 s92, {sW}, 20\ns_lshl_b32 s31, {sNB}, 6\ns_add_u32 s92, s92, s31\ns_lshl_b32 s93, {sW}, 15')
    load_pairs_lds(s, [(WSR, (32*ks + 4*jp)*1024, [(('a', 8*ks + 2*jp + jj), ('a', 8*ks + 4 + 2*jp + jj)) for jj in range(2)]) for ks in range(32) for jp in range(2)], (16, 8), 1024, 2, 's92', 's93', 32, vA, 16)
    s('s_barrier')
    set_srd(s, 12, 'x', 2*MB)
    wait_init(s, 10, 11, fail); die_mode(s, sM, 10, 11)
    s('L_x2_loop:'); layer_base(s, sHS, sLB, sHL)
    s(f'''s_lshl_b32 {sO}, {sHL}, 17
    s_lshl_b32 s30, {sW}, 15
    s_add_u32 {sO}, {sO}, s30
    s_add_u32 {sO}, {sO}, {sLB}
    s_add_u32 {sO}, {sO}, {O_O}
    s_add_u32 {sT}, {sHS}, 1
    s_lshl_b32 {sX}, {sHL}, 14''')
    tl(s, 'top'); poll(s, vF, sFI, vFt, sT, fail, sleep=0); tl(s, 'poll')
    s(f'''s_cmp_lg_u32 {sW}, 0
    s_cbranch_scc1 L_x2_r2
    s_cmp_ge_u32 {sHS}, 128
    s_cbranch_scc1 L_x2_r1
    buffer_load_dwordx4 {vr(RS,4)}, v{vRes}, {XIN}, {sX} offen
    L_x2_r2:''')
    tail(f'''L_x2_r1:
    s_lshl_b32 s30, {sNB}, 10
    s_add_u32 s30, s30, {sX}
    s_add_u32 s30, s30, {LB0 + O_X2}
    buffer_load_dwordx4 {vr(RS,4)}, v{vL16}, {WS}, s30 offen sc1
    s_branch L_x2_r2''')
    AH = opts.get('x2ah', 6)
    def ld(ks):
        if ks and ks & 3 == 0: s(f's_add_u32 {sO}, {sO}, 4096')
        s(f'buffer_load_dwordx4 {vr(OB+4*ks,4)}, v{vL16}, {WS}, {sO} offen offset:{1024*(ks & 3)} sc1', f'o{ks}')
    for ks in range(AH): ld(ks)
    for ks in range(32):
        tl(s, f'w{ks}'); s.W('vm', f'o{ks}'); tl(s, f'g{ks}')
        for t in range(2):
            s(f'v_mfma_f32_16x16x32_bf16 {vr(AC+4*t,4)}, a[{8*ks+4*t}:{8*ks+4*t+3}], {vr(OB+4*ks,4)}, {"0" if ks == 0 else vr(AC+4*t,4)}')
            if t == 0 and ks + AH < 32: ld(ks + AH)
    s(f'''s_nop 7
    ds_write_b128 v{vLW}, {vr(AC,4)}
    ds_write_b128 v{vLW}, {vr(AC+4,4)} offset:1024
    s_waitcnt lgkmcnt(0)
    s_barrier
    s_cmp_lg_u32 {sW}, 0
    s_cbranch_scc1 L_x2_next''')
    tl(s, 'bar')
    for i in range(6): s(f'ds_read_b128 {vr(PT+4*i,4)}, v{vLR} offset:{2048 + 1024*i}', f'p{i}')
    s('s_waitcnt vmcnt(0)')
    for r in range(4):
        s(f'v_lshlrev_b32 v10, 16, v{RS+r}\nv_and_b32 v11, 0xffff0000, v{RS+r}\nv_add_f32 v{AC+r}, v{AC+r}, v10\nv_add_f32 v{AC+4+r}, v{AC+4+r}, v11')
    for i in range(6):
        s.W('ds', f'p{i}')
        for r in (0, 2): s(f'v_pk_add_f32 {vr(AC+4*(i&1)+r,2)}, {vr(AC+4*(i&1)+r,2)}, {vr(PT+4*i+r,2)}')
    for r in range(4): s(f'v_cvt_pk_bf16_f32 v{RS+r}, v{AC+r}, v{AC+4+r}')
    s(f'''s_lshl_b32 s30, {sNB}, 10
    s_add_u32 s30, s30, {sX}
    s_add_u32 s30, s30, {sLB}
    s_add_u32 s30, s30, {O_X1L}''')
    dual(s, sM, tail, f'buffer_store_dwordx4 {vr(RS,4)}, v{vL16}, {WS}, s30 offen @')
    s('s_waitcnt vmcnt(0)')
    tl(s, 'ack'); lflag(s, sM, tail, 10, sT, vF, sFO); tstamp(s, opts, sHS, 10)
    s('L_x2_next:'); tl.dump(s, f's_sub_u32 s30, {sHS}, {tl.at or 60}\ns_cmp_lt_u32 s30, 3', 10)
    s(f'''
    v_xor_b32 v{vLW}, 0x2000, v{vLW}
    v_xor_b32 v{vLR}, 0x2000, v{vLR}
    s_add_u32 {sHS}, {sHS}, 3
    s_cmp_lt_u32 {sHS}, {128*opts.get('nl', 2)}
    s_cbranch_scc1 L_x2_loop
    {fail}:
    s_endpgm''')
    return resolve(s)[0] + resolve(tail)[0]

def role_x3(opts):
    s = S(); fail = 'L_x3_fail'; tl = TL(opts, 'x3')
    sR, sNB, sHS, sLB, sHL, sO, sT, sFI, sFO, sH, sC, sB, sW4, sG = [f's{i}' for i in range(32, 46)]
    sX = ['s46', 's47', 's48']
    vF, vFt, vA, vL16, vLR, vSF, vSW, vSR, vBP, vQK, vV, vCP = range(1, 13); vTA, vTS, vTT = 122, 123, 124
    AF, SF, GM, ONES, AC, CS, ST, CP = 16, 32, 48, 56, 60, 84, 108, 120
    U = SF; RQ, NQ = 118, 119
    st = Stats(vSF, SF, GM, ONES, vSW, vSR, vBP, ST, 50)
    def mm(d, m, ks, a):
        wv = f'a[{64*m+4*ks}:{64*m+4*ks+3}]'
        return f'v_mfma_f32_16x16x32_bf16 {vr(d+4*m,4)}, {wv if m < 2 else a}, {a if m < 2 else wv}, {"0" if ks == 0 else vr(d+4*m,4)}'
    s('L_role_x3:'); rep_rank(s, sR, sNB, 16)
    s(f"""s_lshl_b32 {sH}, {sNB}, 2
    s_add_u32 {sH}, {sH}, {sW}
    v_lshrrev_b32 v13, 4, v0
    v_and_b32 v14, 15, v0
    v_mul_u32_u24 v{vA}, {8*3072}, v13
    v_lshl_add_u32 v{vA}, v14, 1, v{vA}
    s_lshl_b32 s30, {sH}, 5
    v_add_u32 v{vA}, s30, v{vA}
    v_lshlrev_b32 v{vF}, 2, v14
    v_lshlrev_b32 v14, 4, v14
    v_and_b32 v15, 1, v13
    v_lshl_add_u32 v14, v15, 3, v14
    v_lshrrev_b32 v13, 1, v13
    v_lshl_add_u32 v{vQK}, v13, 9, v14
    v_lshl_add_u32 v{vV}, v13, 8, v14
    v_lshlrev_b32 v{vL16}, 4, v0
    s_lshl_b32 {sFI}, {sR}, 7
    s_add_u32 {sFI}, {sFI}, {F_X2}
    s_lshl_b32 {sFO}, {sH}, 7
    s_lshl_b32 s30, {sR}, 2
    s_add_u32 {sFO}, {sFO}, s30
    s_add_u32 {sFO}, {sFO}, {F_X3}
    s_mov_b32 {sC}, {f32(0.25 * LOG2E)}
    s_lshl_b32 {sW4}, {sW}, 12
    s_mov_b32 {sB}, 0
    s_mov_b32 {sHS}, {sR}""")
    set_srd(s, 16, 'wqkv', 512*3072)
    items = [((32*ks + 2*jr)*3072 + 1024*m, 64*m + 4*ks + jr) for m in range(3) for ks in range(16) for jr in range(4)]
    D = 30
    def issue(i):
        b = 16 + 2*(i % D)
        s(f's_mov_b32 s30, {items[i][0]}\nbuffer_load_ushort v{b}, v{vA}, {WSR}, s30 offen\nbuffer_load_ushort v{b+1}, v{vA}, {WSR}, s30 offen offset:3072')
    for i in range(D): issue(i)
    for i in range(len(items)):
        b = 16 + 2*(i % D)
        s(f's_waitcnt vmcnt({2*(min(len(items), i+D) - i - 1)})\nv_perm_b32 v13, v{b+1}, v{b}, {sSEL0}\nv_accvgpr_write_b32 a{items[i][1]}, v13')
        if i + D < len(items): issue(i + D)
    st.setup(s, 32768, 13); s('s_nop 1')
    for ks in range(16):
        for m in range(3): s(mm(CS, m, ks, vr(ONES, 4)))
    s(f"""v_cmp_gt_u32 vcc, 32, v0
    v_lshlrev_b32 v13, 7, v0
    s_lshl_b32 s30, {sH}, 12
    s_add_u32 s30, s30, {LB0 + O_O}
    v_add_u32 v13, s30, v13
    v_and_b32 v14, 3, v0
    v_lshlrev_b32 v14, 7, v14
    s_lshl_b32 s30, {sH}, 9
    s_add_u32 s30, s30, {LB0 + O_X1L}
    v_add_u32 v14, s30, v14
    v_cndmask_b32 v{vTA}, v14, v13, vcc
    v_mov_b32 v13, 14
    v_cndmask_b32 v{vTS}, v13, 17, vcc""")
    def touch(t, k):
        t(f"""s_add_u32 s30, {sHS}, {k}
        s_min_u32 s30, s30, 255
        s_and_b32 s31, s30, 127
        v_lshlrev_b32 v{vTT}, v{vTS}, s31
        v_add_u32 v{vTT}, v{vTA}, v{vTT}
        s_lshr_b32 s30, s30, 7
        s_mul_i32 s30, s30, {LSTR}
        buffer_load_dword v{vTT}, v{vTT}, {WS}, s30 offen sc1""")
    for k in (0, 3, 6): touch(s, k); s('s_waitcnt vmcnt(0)')
    wait_init(s, 13, 14, fail)
    s('L_x3_loop:'); layer_base(s, sHS, sLB, sHL)
    s(f"""s_lshl_b32 s30, {sHL}, 14
    s_add_u32 s30, s30, {sLB}
    s_lshl_b32 s31, {sH}, 9
    s_add_u32 {sG}, s30, s31
    s_add_u32 {sG}, {sG}, {O_X1}
    s_add_u32 s31, s31, {sB}
    v_lshrrev_b32 v{vCP}, 1, v{vL16}
    v_add_u32 v{vCP}, s31, v{vCP}
    s_add_u32 s30, s30, {sW4}
    s_add_u32 {sLB}, {sLB}, {O_BQ}
    s_add_u32 {sO}, s30, {O_X1L}
    s_add_u32 {sT}, {sHS}, 1
    s_mul_i32 s30, {sH}, {3*65536}
    s_add_u32 s30, s30, {sLB}
    s_lshr_b32 s31, {sHL}, 1
    s_lshl_b32 s31, s31, 10
    s_add_u32 s30, s30, s31
    s_and_b32 s31, {sHL}, 1
    s_lshl_b32 s31, s31, 8
    s_add_u32 {sX[0]}, s30, s31
    s_add_u32 {sX[1]}, {sX[0]}, 65536
    s_add_u32 {sX[2]}, {sX[1]}, 65536
    s_add_u32 {sX[2]}, {sX[2]}, s31
    s_add_u32 m0, {sB}, {sW4}
    v_add_u32 v{vSF}, m0, v{vL16}
    v_add_u32 v{vLR}, {sB}, v{vL16}
    s_xor_b32 {sB}, {sB}, 0x4000""")
    tl(s, 'top'); poll(s, vF, sFI, vFt, sT, fail, sleep=0); tl(s, 'poll')
    for i in range(4): s(f'buffer_load_dwordx4 v{vL16}, {WS}, {sO} offen offset:{1024*i} sc1 lds')
    s('s_waitcnt vmcnt(0)'); tl(s, 'ld'); s('s_barrier'); tl(s, 'bar')
    m = S(); f = S()
    def rd(ks): m(f'ds_read_b128 {vr(AF+4*(ks%4),4)}, v{vLR} offset:{1024*ks}', f'a{ks}')
    st.reads(m); touch(m, 9); st.mfmas(m, after=lambda i: rd(i) if i < 3 else m(f'ds_read_b64 {vr(CP,2)}, v{vCP}', 'cp'))
    for ks in range(16):
        m.W('ds', f'a{ks}'); a = vr(AF+4*(ks%4), 4)
        for t in range(3):
            m(mm(AC, t, ks, a))
            if t == 0 and ks + 3 < 16: rd(ks + 3)
        if ks == 0: st.part1(m)
        if ks == 1:
            m.W('ds', 'cp'); m(f'v_lshrrev_b32 v{vCP}, 1, v{vL16}\nbuffer_store_dwordx2 {vr(CP,2)}, v{vCP}, {WS}, {sG} offen sc1')
        if ks == 2: m.W('ds', 'sw'); m('s_barrier'); st.part2(m)
    st.part3(f)
    f(f'v_mul_f32 v{RQ}, {sC}, v{st.RS}\nv_mul_f32 v{NQ}, {sC}, v{st.NM}')
    for r in range(4): f(f'v_mul_f32 v{U+r}, v{NQ}, v{CS+r}\nv_mul_f32 v{U+4+r}, v{st.NM}, v{CS+4+r}')
    f.W('ds', 'bp')
    for r in range(4): f(f'v_mul_f32 v{U+8+r}, v{st.NMr+r}, v{CS+8+r}')
    s.extend(weave(m, f, start=8 + 13))
    s('s_nop 5')
    for t in range(3):
        for r in range(4): s(f'v_fmac_f32 v{U+4*t+r}, v{(RQ, st.RS, st.RSr+r)[t]}, v{AC+4*t+r}')
        s(f'v_cvt_pk_bf16_f32 v{AC+4*t}, v{U+4*t}, v{U+4*t+1}\nv_cvt_pk_bf16_f32 v{AC+4*t+1}, v{U+4*t+2}, v{U+4*t+3}')
        s(f'buffer_store_dwordx2 {vr(AC+4*t,2)}, v{vQK if t < 2 else vV}, {WS}, {sX[t]} offen sc1')
    tl(s, 'st'); s('s_waitcnt vmcnt(0)'); tl(s, 'ack')
    flag(s, 13, sT, vF, sFO); tstamp(s, opts, sHS, 13); tl.dump(s, f's_sub_u32 s30, {sHS}, {tl.at or 60}\ns_cmp_lt_u32 s30, 3', 13)
    s(f"""s_add_u32 {sHS}, {sHS}, 3
    s_cmp_lt_u32 {sHS}, {128*opts.get('nl', 2)}
    s_cbranch_scc1 L_x3_loop""")
    if opts.get('wb', 1):
        s(f's_cmp_lg_u32 {sH}, 0\ns_cbranch_scc1 {fail}\ns_waitcnt vmcnt(0)\ns_sleep {opts.get("wbs", 8)}\nbuffer_wbl2 sc1\ns_waitcnt vmcnt(0)')
    s(f"""{fail}:
    s_endpgm""")
    return resolve(s)[0]

sBI, sBN, sBC, sBL = 's60', 's61', 's62', 's63'
def load_wo(s):
    set_srd(s, 16, 'wo', 512*1024)
    s(f's_lshl_b32 s92, {sBC}, 9\ns_lshl_b32 s31, {sW}, 7\ns_add_u32 s92, s92, s31\ns_lshl_b32 s93, {sW}, 15')
    groups = [(WSR, (32*ks + 8*jp)*1024 + 64*p, [(('a', 16*ks + 8*p + 2*jp + jj), ('a', 16*ks + 8*p + 4 + 2*jp + jj)) for jj in range(2)]) for ks in range(16) for p in range(2) for jp in range(2)]
    load_pairs_lds(s, groups, (16, 4), 1024, 2, 's92', 's93', 32, 14, 16)
    s('s_barrier')

BO_X = 36
sBE, sBR = 's64', 's101'
def role_bo(opts):
    s = S(); fail = 'L_bo_fail'; tl = TL(opts, 'bo')
    sHS, sLB, sA, sX, sT, sF, sM, sHV, sN = 's66', 's67', 's68', 's70', 's71', 's94', 's95', 's96', 's97'
    vL16, vF, vFt, vLR, vOut = 248, 249, 250, 251, 252
    AF, AC, RS, RN = 200, 216, 232, 240
    s(f"""L_bo:
    v_lshlrev_b32 v{vL16}, 4, v0
    v_mov_b32 v{vLR}, v{vL16}
    v_and_b32 v{vF}, 31, v0
    v_lshlrev_b32 v{vF}, 5, v{vF}
    v_lshrrev_b32 v{vFt}, 4, v0
    v_and_b32 v{vOut}, 15, v0
    v_lshlrev_b32 v{vOut}, 10, v{vOut}
    v_lshl_add_u32 v{vOut}, v{vFt}, 4, v{vOut}
    s_mul_i32 {sLB}, {sBL}, {LSTR}
    s_add_u32 {sLB}, {sLB}, {LB0}
    s_add_u32 {sT}, {sBL}, 1
    s_lshl_b32 {sM}, {sW}, 12
    s_mov_b32 {sHS}, {sBI}""")
    set_srd(s, 20, 'out', 2*MB)
    def faddr(t, hs): t(f's_min_u32 {sF}, {hs}, 127\ns_lshr_b32 {sF}, {sF}, 1\ns_lshl_b32 {sF}, {sF}, 10\ns_add_u32 {sF}, {sF}, {F_B}')
    def loads(t, hs):
        t(f"""s_lshl_b32 s30, {hs}, 14
        s_add_u32 s30, s30, {sLB}
        s_lshl_b32 s31, {sW}, 12
        s_add_u32 {sA}, s30, s31
        s_add_u32 {sA}, {sA}, {O_OB}
        s_mov_b32 m0, {sM}
        s_lshl_b32 s31, {sBC}, 13
        s_add_u32 s30, s30, s31""")
        for i in range(4): t(f'buffer_load_dwordx4 v{vL16}, {WS}, {sA} offen offset:{1024*i} sc1 lds')
        t(f's_lshl_b32 s31, {sW}, 11\ns_add_u32 s30, s30, s31\ns_add_u32 s30, s30, {O_X1}\ns_xor_b32 {sM}, {sM}, 0x4000')
        for p in range(2): t(f'buffer_load_dwordx4 {vr(RN+4*p,4)}, v{vL16}, {WS}, s30 offen offset:{1024*p} sc1')
        t(f's_add_u32 s30, {hs}, {sBN}'); faddr(t, 's30')
        t(f'buffer_load_dword v{vFt}, v{vF}, {WS}, {sF} offen sc1')
    faddr(s, sHS); tl(s, 'top'); poll1(s, vF, sF, vFt, sT, fail); s('s_branch L_bo_fetch')
    s(f'L_bo_loop:\ns_cmp_eq_u32 {sHV}, 1\ns_cbranch_scc1 L_bo_have'); faddr(s, sHS); poll(s, vF, sF, vFt, sT, fail)
    s('L_bo_fetch:'); tl(s, 'poll'); loads(s, sHS); s('s_waitcnt vmcnt(0)\ns_branch L_bo_go')
    s(f'L_bo_have:\ns_waitcnt vmcnt(2)\nL_bo_go:\nv_cmp_gt_u32 vcc, {sT}, v{vFt}\ns_barrier'); tl(s, 'bar')
    def rd(ks): s(f'ds_read_b128 {vr(AF+4*(ks%4),4)}, v{vLR} offset:{1024*ks}', f'a{ks}')
    rd(0); rd(1); rd(2)
    for r in range(0, 8, 2): s(f'v_mov_b64 {vr(RS+r,2)}, {vr(RN+r,2)}')
    for ks in range(16):
        s.W('ds', f'a{ks}')
        for t in range(4):
            s(f'v_mfma_f32_16x16x32_bf16 {vr(AC+4*t,4)}, a[{16*ks+4*t}:{16*ks+4*t+3}], {vr(AF+4*(ks%4),4)}, {"0" if ks == 0 else vr(AC+4*t,4)}')
            if t == 0 and ks + 3 < 16: rd(ks + 3)
        if ks == 0:
            s(f's_add_u32 {sN}, {sHS}, {sBN}\ns_mov_b32 {sHV}, 0\ns_cmp_lt_u32 {sN}, {sBE}\ns_cbranch_scc0 L_bo_nopf\ns_cbranch_vccnz L_bo_nopf\ns_mov_b32 {sHV}, 1')
            loads(s, sN); s('L_bo_nopf:')
    s(f'v_xor_b32 v{vLR}, 0x4000, v{vLR}\ns_lshl_b32 s30, {sHS}, 14\ns_nop 2')
    for p in range(2):
        for r in range(4):
            a0, a1, x = AC+8*p+r, AC+8*p+4+r, RS+4*p+r
            s(f'v_lshlrev_b32 v{AF}, 16, v{x}\nv_and_b32 v{AF+1}, 0xffff0000, v{x}\nv_add_f32 v{a0}, v{a0}, v{AF}\nv_add_f32 v{a1}, v{a1}, v{AF+1}\nv_cvt_pk_bf16_f32 v{x}, v{a0}, v{a1}')
    tl(s, 'st')
    s(f"""s_cmp_eq_u32 {sBL}, 0
    s_cbranch_scc1 L_bo_mid
    s_lshl_b32 s31, {sBC}, 9
    s_add_u32 s30, s30, s31
    s_lshl_b32 s31, {sW}, 7
    s_add_u32 s30, s30, s31
    buffer_store_dwordx4 {vr(RS,4)}, v{vOut}, {OUT}, s30 offen {opts.get('ofl', '')}
    buffer_store_dwordx4 {vr(RS+4,4)}, v{vOut}, {OUT}, s30 offen offset:64 {opts.get('ofl', '')}
    s_branch L_bo_next
    L_bo_mid:
    s_lshl_b32 s31, {sBC}, 13
    s_add_u32 s30, s30, s31
    s_lshl_b32 s31, {sW}, 11
    s_add_u32 s30, s30, s31
    s_add_u32 s30, s30, {LB0 + O_X2}
    buffer_store_dwordx4 {vr(RS,4)}, v{vL16}, {WS}, s30 offen sc1
    buffer_store_dwordx4 {vr(RS+4,4)}, v{vL16}, {WS}, s30 offen offset:1024 sc1
    s_lshl_b32 s30, {sHS}, 7
    s_lshl_b32 s31, {sBC}, 2
    s_add_u32 s30, s30, s31
    s_add_u32 s30, s30, {F_O}
    s_cmp_lg_u32 {sW}, 1
    s_waitcnt vmcnt(0)
    s_barrier
    s_cbranch_scc1 L_bo_next""")
    flag(s, AF, 1, vF, 's30')
    s('L_bo_next:'); tl(s, 'end'); tl.dump(s, f's_lshl_b32 s30, {sBL}, 8\ns_add_u32 s30, s30, {sHS}\ns_sub_u32 s30, s30, {sBI}\ns_cmp_eq_u32 s30, {tl.at or 0}', AF)
    if opts.get('trace'):
        s(f's_cmp_eq_u32 {sHS}, {sBI}\ns_cselect_b32 s69, 0, 1\ns_add_u32 s69, s69, 100\ns_lshl_b32 s30, {sBL}, 1\ns_add_u32 s69, s69, s30'); stamp(s, opts, 's69', AF)
    s(f"""s_mov_b32 {sHS}, {sN}
    s_cmp_lt_u32 {sHS}, {sBE}
    s_cbranch_scc1 L_bo_loop
    s_cmp_eq_u32 {sBR}, 1
    s_cbranch_scc1 L_x1_second
    s_cmp_eq_u32 {sBR}, 2
    s_cbranch_scc0 {fail}
    s_branch L_b_second
    {fail}:
    s_endpgm""")
    return resolve(s)[0]

def role_x1(with_bo, opts):
    s = S(); fail = 'L_x1_fail'; tl = TL(opts, 'x1')
    sR, sJ, sHS, sLB, sHL, sH, sQ, sKM, sO, sT, sFP, sFC, sFO, sPT, sCT, sEND, sPF, sM = [f's{i}' for i in range(32, 50)]; tail = S()
    MK = [f's[{50+2*r}:{51+2*r}]' for r in range(4)]
    vL16, vL8, vF, vZ, vFt, vFP, vKM, vNEG, vKS = range(1, 10); vRT = 188
    Q = [16, 32]; V = [48, 80]; K = 112; KM = 144; VM = 160; SD, SP, SMm = 168, 172, 176; PB, PMm = 180, 184; AC = 192; TT = 10
    s('L_role_x1:'); rep_rank(s, sR, sJ, 24)
    s(f'''s_lshl_b32 {sH}, {sJ}, 2
    s_add_u32 {sH}, {sH}, {sW}
    s_lshl_b32 s30, {sR}, 3
    s_add_u32 s30, s30, {sJ}
    s_and_b32 {sBC}, s30, 1
    s_lshr_b32 {sBI}, s30, 1
    s_mov_b32 {sBL}, 0
    s_mov_b32 {sBN}, 12
    s_mov_b32 {sBE}, {BO_X}
    s_mov_b32 {sBR}, {1 if opts.get('nl', 2) == 2 else 0}''')
    if with_bo: load_wo(s)
    wait_init(s, 10, 11, fail); die_mode(s, sM, 10, 11)
    s(f'''v_lshlrev_b32 v{vL16}, 4, v0
    v_lshlrev_b32 v{vL8}, 3, v0
    v_and_b32 v{vF}, 7, v0
    v_lshlrev_b32 v{vF}, 2, v{vF}
    v_mov_b32 v{vZ}, 0
    v_mov_b32 v{vNEG}, {f32(-1e30)}
    v_lshrrev_b32 v10, 4, v0
    v_and_b32 v11, 15, v0
    v_lshrrev_b32 v12, 1, v10
    v_and_b32 v13, 1, v10
    v_lshrrev_b32 v14, 2, v11
    v_and_b32 v15, 1, v11
    v_lshlrev_b32 v{vKM}, 8, v12
    v_lshl_add_u32 v{vKM}, v13, 5, v{vKM}
    v_lshl_add_u32 v{vKM}, v14, 6, v{vKM}
    v_lshl_add_u32 v{vKM}, v15, 4, v{vKM}
    v_lshlrev_b32 v{vKS}, 9, v12
    v_lshl_add_u32 v{vKS}, v14, 7, v{vKS}
    v_lshl_add_u32 v{vKS}, v13, 6, v{vKS}
    v_and_b32 v15, 3, v11
    v_lshl_add_u32 v{vKS}, v15, 4, v{vKS}
    v_lshlrev_b32 v{vRT}, 7, v15
    s_lshl_b32 s30, {sH}, 9
    v_add_u32 v{vRT}, s30, v{vRT}
    v_lshlrev_b32 v10, 2, v10''')
    set_srd(s, 12, 'x', 2*MB)
    for r in range(4): s(f'v_add_u32 v12, {r}, v10\nv_cmp_le_u32 {MK[r]}, v12, v11')
    s(f'''s_lshl_b32 s30, {sH}, 7
    s_add_u32 {sFP}, s30, {F_P}
    s_add_u32 {sFC}, s30, {F_C}
    s_lshl_b32 s30, {sR}, 7
    s_lshl_b32 s31, {sH}, 2
    s_add_u32 {sFO}, s30, s31
    s_add_u32 {sFO}, {sFO}, {F_X1}
    s_mov_b32 {sHS}, {sR}
    s_branch L_x1_layer
    L_x1_second:
    s_mov_b32 {sBL}, 1
    s_mov_b32 {sBN}, 44
    s_mov_b32 {sBE}, 128
    s_mov_b32 {sBR}, 0
    L_x1_layer:
    v_mov_b32 v{PMm+1}, 0
    v_mov_b32 v{PMm+2}, 0
    s_and_b32 {sEND}, {sHS}, 128
    s_add_u32 {sEND}, {sEND}, 128''')
    def qaddr(t, hs):
        t(f'''s_lshr_b32 s30, {hs}, 7
              s_mul_i32 {sQ}, s30, {LSTR}
              s_lshl_b32 {sPT}, s30, 7
              s_bfe_u32 s30, {hs}, 0x60001
              s_add_u32 {sPT}, {sPT}, s30
              s_add_u32 {sPT}, {sPT}, 2
              s_lshl_b32 s30, s30, 5
              s_add_u32 s30, s30, {sH}
              s_mul_i32 s30, s30, {24*1024}
              s_add_u32 {sQ}, {sQ}, s30
              s_add_u32 {sQ}, {sQ}, {LB0 + O_QKV}''')
    def loads(t, u):
        def four(reg, off, step=4, va=vL16):
            t(f's_add_u32 s30, {sQ}, {off}')
            for i in range(4): t(f'buffer_load_dwordx4 {vr(reg+step*i,4)}, v{va}, {WS}, s30 offen offset:{1024*i} sc1', 'pf')
        a, b = L('rt'), L('rt')
        t(f's_lshl_b32 s30, {sHS}, 14\ns_and_b32 s30, s30, {hex(2*MB - 1)}\ns_cmp_ge_u32 {sHS}, 128\ns_cbranch_scc1 {a}')
        t(f'buffer_load_dword v{vFt}, v{vRT}, {XIN}, s30 offen\ns_branch {b}\n{a}:\ns_add_u32 s30, s30, {LB0 + O_X2}')
        t.append(Op(f'buffer_load_dword v{vFt}, v{vRT}, {WS}, s30 offen sc1')); t(f'{b}:')
        four(Q[u], 4096*u); four(K, 8192 + 4096*u, 4, vKS)
        if u: four(K+16, 8192, 4, vKS); four(V[u], 16384, 8); four(V[u]+4, 16384 + 4096, 8)
        else: four(V[u], 16384)
    s('L_x1_pro:'); qaddr(s, sHS); poll(s, vF, sFP, vFP, sPT, fail)
    s(f's_bitcmp1_b32 {sHS}, 0\ns_cbranch_scc1 L_x1_pro1\nL_x1_pro0:')
    loads(s, 0); s('s_waitcnt vmcnt(0)\ns_branch L_x1_task0\nL_x1_pro1:'); loads(s, 1); s('s_waitcnt vmcnt(0)\ns_branch L_x1_task1')
    out = resolve(s)[0]
    for u in range(2):
        s = S()
        s(f'L_x1_task{u}:'); tl(s, 'top')
        for ks in range(4):
            s(f'v_mfma_f32_16x16x32_bf16 {vr(SD,4)}, {vr(K+4*ks,4)}, {vr(Q[u]+4*ks,4)}, {"0" if ks == 0 else vr(SD,4)}')
            if u:
                s(f'v_mfma_f32_16x16x32_bf16 {vr(SP,4)}, {vr(K+16+4*ks,4)}, {vr(Q[u]+4*ks,4)}, {"0" if ks == 0 else vr(SP,4)}')
                s(f'v_swap_b32 v{V[u]+8*ks+2}, v{V[u]+8*ks+4}\nv_swap_b32 v{V[u]+8*ks+3}, v{V[u]+8*ks+5}')
        layer_base(s, sHS, sLB, sHL)
        s(f'''s_lshr_b32 {sCT}, {sHS}, 1
        s_add_u32 {sCT}, {sCT}, 1
        s_lshr_b32 s30, {sHL}, 1
        s_lshl_b32 s30, s30, 5
        s_add_u32 s30, s30, {sH}
        s_lshl_b32 {sKM}, s30, 12
        s_add_u32 {sKM}, {sKM}, {sLB}
        s_add_u32 {sKM}, {sKM}, {O_KVM}
        s_lshl_b32 {sO}, {sHL}, 17
        s_lshl_b32 s30, {sH}, 12
        s_add_u32 {sO}, {sO}, s30
        s_add_u32 {sO}, {sO}, {sLB}
        s_add_u32 {sO}, {sO}, {O_O}
        s_add_u32 {sT}, {sHS}, 1
        s_add_u32 {sHS}, {sHS}, 3''')
        qaddr(s, sHS)
        for r in range(4): s(f'v_cndmask_b32 v{SD+r}, v{vNEG}, v{SD+r}, {MK[r]}')
        m = TT
        s(f'v_max3_f32 v{m}, v{SD}, v{SD+1}, v{SD+2}\nv_max_f32 v{m}, v{m}, v{SD+3}')
        if u: s(f'v_max3_f32 v{m}, v{m}, v{SP}, v{SP+1}\nv_max3_f32 v{m}, v{m}, v{SP+2}, v{SP+3}')
        s(f'''v_cmp_gt_u32 vcc, {sPT}, v{vFP}
        s_mov_b32 {sPF}, 0
        s_cmp_lt_u32 {sHS}, {sEND}
        s_cbranch_scc0 L_x1_nopf{u}
        s_cbranch_vccnz L_x1_nopf{u}
        s_mov_b32 {sPF}, 1''')
        loads(s, 1 - u)
        s(f'L_x1_nopf{u}:')
        tl(s, 'pre'); s(f's_mov_b32 {sSPIN}, 0\nL_x1_kv{u}:')
        for ks in range(4): s(f'buffer_load_dwordx4 {vr(KM+4*ks,4)}, v{vKM}, {WS}, {sKM} offen offset:{512*ks} sc1', f'km{ks}')
        for i in range(4): s(f'buffer_load_dwordx2 {vr(VM+2*i,2)}, v{vL8}, {WS}, {sKM} offen offset:{2048 + 512*i} sc1', 'vm')
        s(f's_add_u32 {sSPIN}, {sSPIN}, 1\ns_cmp_lt_u32 {sSPIN}, {SPIN_MAX}\ns_cbranch_scc0 {fail}')
        for ks in range(4):
            s.W('vm', f'km{ks}')
            s(f'v_mfma_f32_16x16x32_bf16 {vr(SMm,4)}, {vr(KM+4*ks,4)}, {vr(Q[u]+4*ks,4)}, {"0" if ks == 0 else vr(SMm,4)}')
            s(f'v_max3_u32 v{vFt}, v{KM+4*ks}, v{KM+4*ks+1}, {"v" + str(vFt) if ks else 0}\nv_max3_u32 v{vFt}, v{KM+4*ks+2}, v{KM+4*ks+3}, v{vFt}')
        s.W('vm', 'vm')
        for i in range(4): s(f'v_max3_u32 v{vFt}, v{VM+2*i}, v{VM+2*i+1}, v{vFt}')
        s(f'v_cmp_eq_u32 vcc, -1, v{vFt}\ns_cbranch_vccnz L_x1_kv{u}'); tl(s, 'poll')
        s(f'buffer_load_dword v{vFP}, v{vF}, {WS}, {sFP} offen sc1')
        tl(s, 'km'); s(f'v_max3_f32 v{m}, v{m}, v{SMm}, v{SMm+1}')
        xreduce(s, m, m+1, 'v_max_f32', dpp=())
        regs = [SMm, SMm+1] + list(range(SD, SD+4)) + (list(range(SP, SP+4)) if u else [])
        for r in regs: s(f'v_sub_f32 v{r}, v{r}, v{m}')
        for r in regs: s(f'v_exp_f32 v{r}, v{r}')
        s(f'v_cvt_pk_bf16_f32 v{PMm}, v{SMm}, v{SMm+1}\nv_cvt_pk_bf16_f32 v{PMm+3}, v{SMm}, v{SMm+1}')
        s(f'v_cvt_pk_bf16_f32 v{PB+2}, v{SD}, v{SD+1}\nv_cvt_pk_bf16_f32 v{PB+3}, v{SD+2}, v{SD+3}')
        if u: s(f'v_cvt_pk_bf16_f32 v{PB}, v{SP}, v{SP+1}\nv_cvt_pk_bf16_f32 v{PB+1}, v{SP+2}, v{SP+3}')
        s('s_nop 1')
        mm = S(); f = S()
        for i in range(8):
            if u: mm(f'v_mfma_f32_16x16x32_bf16 {vr(AC+4*i,4)}, {vr(V[u]+4*i,4)}, {vr(PB,4)}, 0')
            else: mm(f'v_mfma_f32_16x16x16_bf16 {vr(AC+4*i,4)}, {vr(V[u]+2*i,2)}, {vr(PB+2,2)}, 0')
        for i in range(8):
            mm(f'v_mfma_f32_16x16x16_bf16 {vr(AC+4*i,4)}, {vr(VM+2*(i>>1),2)}, {vr(PMm+2*(i&1),2)}, {vr(AC+4*i,4)}')
        f(f'v_add_f32 v{m}, v{regs[0]}, v{regs[1]}')
        for r in regs[2:]: f(f'v_add_f32 v{m}, v{m}, v{r}')
        xreduce(f, m, m+1, 'v_add_f32', dpp=())
        f(f'v_rcp_f32 v{m}, v{m}')
        s.extend(merge(mm, f, 2))
        for b in range(4):
            if b == 0: s('s_nop 1')
            for r in range(8): s(f'v_mul_f32 v{AC+8*b+r}, v{m}, v{AC+8*b+r}')
            for r in range(4): s(f'v_cvt_pk_bf16_f32 v{AC+8*b+r}, v{AC+8*b+r}, v{AC+8*b+4+r}')
            dual(s, sM, tail, f'buffer_store_dwordx4 {vr(AC+8*b,4)}, v{vL16}, {WS}, {sO} offen offset:{1024*b} @')
        tl(s, 'st'); s('s_waitcnt vmcnt(0)'); tl(s, 'ack')
        lflag(s, sM, tail, TT, sT, vZ, sFO); tl.dump(s, f's_sub_u32 s30, {sHS}, {(tl.at or 60) + 3}\ns_cmp_lt_u32 s30, 3', TT)
        if opts.get('trace'): s(f's_sub_u32 s31, {sHS}, 3'); tstamp(s, opts, 's31', TT)
        s(f'''s_cmp_eq_u32 {sPF}, 1
        s_cbranch_scc1 L_x1_task{1-u}
        s_cmp_lt_u32 {sHS}, {sEND}
        s_cbranch_scc1 L_x1_pro
        s_branch {"L_bo" if with_bo else fail}''')
        out += resolve(s)[0]
    return out + [f'{fail}:', 's_endpgm'] + resolve(tail)[0]
```

```python
import sys
from common import *
import role_p
def build(roles=('p',), opts=None):
    opts = dict(opts or {}); opts['_bo'] = 'bo' in roles
    s = S()
    if opts.get('trace'): s('s_memrealtime s[96:97]')
    prologue(s, opts)
    if opts.get('trace'):
        stamp(s, opts, 126, 2); s(f'v_mov_b32 v2, s96\nbuffer_store_dword v2, v3, {WS}, 0 offen offset:4')
    def go(cond, name):
        l = L('d'); s(f'{cond}\ns_cbranch_scc0 {l}\ns_branch {"L_role_" + name if name in roles else "L_exit"}\n{l}:')
    go(f's_cmp_lt_u32 {sROLE}, 32', 'chain')
    s(f's_and_b32 s30, {sROLE}, 31')
    l = L('d'); s(f's_cmp_lt_u32 {sROLE}, 160\ns_cbranch_scc0 {l}')
    go('s_cmp_lt_u32 s30, 16', 'p')
    s(f's_branch {"L_role_batt" if "batt" in roles else "L_exit"}\n{l}:')
    go('s_cmp_lt_u32 s30, 16', 'x2')
    go('s_cmp_lt_u32 s30, 24', 'x3')
    s(f's_branch {"L_role_x1" if "x1" in roles else "L_exit"}')
    lines = resolve(s)[0]
    if 'chain' in roles:
        import role_chain; lines += role_chain.role_chain(opts)
    if 'p' in roles: lines += role_p.role_p('L_b_helper' if 'batt' in roles and opts.get('nl', 2) == 2 else 'L_p_fail', opts)
    if 'x1' in roles:
        import role_x; lines += role_x.role_x1('bo' in roles, opts)
    if 'bo' in roles:
        import role_x; lines += role_x.role_bo(opts)
    if 'x2' in roles:
        import role_x; lines += role_x.role_x2(opts)
    if 'x3' in roles:
        import role_x; lines += role_x.role_x3(opts)
    if 'batt' in roles:
        import role_b; lines += role_b.role_batt(opts)
    ref = open(f'cdna_kernels/{NAME}.s.ref').read().split('\n')
    head = [x for x in ref[:ref.index('.text')] if x.startswith(';') and '@launch' not in x]
    body = '\n'.join(x if x.endswith(':') else '    ' + x for x in lines)
    return '\n'.join(head) + f'''
; @launch grid=(256,1,1) block=(256,1,1) lds=163840
.amdgcn_target "amdgcn-amd-amdhsa--gfx950"
.text
.globl {NAME}_kernel
.p2align 8
.type {NAME}_kernel,@function
{NAME}_kernel:
{body}
    s_endpgm
L_code_end:
.section .rodata,"a"
.p2align 6
.amdhsa_kernel {NAME}_kernel
  .amdhsa_next_free_vgpr 512
  .amdhsa_next_free_sgpr 102
  .amdhsa_accum_offset 256
  .amdhsa_group_segment_fixed_size 0
  .amdhsa_kernarg_size 104
  .amdhsa_user_sgpr_count 2
  .amdhsa_user_sgpr_kernarg_segment_ptr 1
  .amdhsa_system_sgpr_workgroup_id_x 1
.end_amdhsa_kernel
'''
if __name__ == '__main__':
    out = sys.argv[1]; roles = sys.argv[2].split(',')
    opts = dict(eval(sys.argv[3])) if len(sys.argv) > 3 else {}
    open(out, 'w').write(build(roles, opts))
```

```python
from asmlib import *
NAME = 'interleave_layers__memory_aug_recurrent_mem_tr__softmax_full_mha__prompt'
KA = dict(x=0, mem0=8, Wq=16, Wk=24, Wv=32, Wo=40, wqkv=64, wo=72, out=80, dbg=88, ws=96)
F_P, F_C, F_X1, F_X2, F_AL, F_X3, F_O, F_B = 0x0, 0x1000, 0x2000, 0x2200, 0x2400, 0x3000, 0x4000, 0x10000
CH_MEM, CH_IN = 0x20000, 0x40000
MB = 1 << 20
LB0, LSTR = MB, 32 * MB
O_QKV, O_KVM, O_O, O_X1, O_BQ, O_OB, O_X2, O_X1L = 0, 48*MB, 68*MB, 56*MB, 58*MB, 64*MB, 66*MB, 84*MB
WS_BYTES = 256 * MB
WS, XIN, WSR, OUT = 's[8:11]', 's[12:15]', 's[16:19]', 's[20:23]'
sW, sROLE, sXCC, sSPIN = 's24', 's25', 's26', 's27'
sSEL0, sSEL1 = 's28', 's29'
SPIN_MAX = 200000
LOG2E = 1.4426950408889634
import struct
def f32(x): return hex(struct.unpack('<I', struct.pack('<f', x))[0])

_lbl = [0]
def L(p):
    _lbl[0] += 1
    return f'L_{p}_{_lbl[0]}'

def set_srd(s, srd_base, key, nbytes):
    s(f'''s_load_dwordx2 s[4:5], s[0:1], {KA[key]}
          s_waitcnt lgkmcnt(0)
          s_mov_b32 s{srd_base}, s4
          s_mov_b32 s{srd_base+1}, s5
          s_mov_b32 s{srd_base+2}, {nbytes}
          s_mov_b32 s{srd_base+3}, 0x20000''')

def poll(s, vaddr, soff, vtmp, target, fail, sleep=1):
    a, b = L('poll'), L('pollok')
    s(f'''s_mov_b32 {sSPIN}, 0
          {a}:
          buffer_load_dword v{vtmp}, v{vaddr}, {WS}, {soff} offen sc1
          s_waitcnt vmcnt(0)
          v_cmp_gt_u32 vcc, {target}, v{vtmp}
          s_cbranch_vccz {b}
          s_sleep {sleep}
          s_add_u32 {sSPIN}, {sSPIN}, 1
          s_cmp_lt_u32 {sSPIN}, {SPIN_MAX}
          s_cbranch_scc1 {a}
          s_branch {fail}
          {b}:''')

def poll1(s, vaddr, soff, vtmp, target, fail, sleep=1):
    l = L('p1'); s(f's_cmp_lg_u32 {sW}, 0\ns_cbranch_scc1 {l}'); poll(s, vaddr, soff, vtmp, target, fail, sleep); s(f'{l}:\ns_barrier')

def wait_init(s, v0, v1, fail):
    a, b = L('wi'), L('wiok')
    s(f'''v_mov_b32 v{v0}, 0
          s_mov_b32 {sSPIN}, 0
          {a}:
          global_load_dword v{v1}, v{v0}, s[6:7] offset:64 sc1
          s_waitcnt vmcnt(0)
          v_cmp_gt_u32 vcc, 0x100, v{v1}
          s_cbranch_vccz {b}
          s_sleep 2
          s_add_u32 {sSPIN}, {sSPIN}, 1
          s_cmp_lt_u32 {sSPIN}, {SPIN_MAX}
          s_cbranch_scc1 {a}
          s_branch {fail}
          {b}:''')

def load_pairs(s, pairs, vA, vB, tmp, ntmp, ssoff='s30', post=None, lds=None):
    depth = min(ntmp // 2 - 1, 31)
    t0 = tmp + 2 * depth
    n = len(pairs)
    def issue(i):
        b = tmp + 2 * (i % depth)
        s(f's_mov_b32 {ssoff}, {pairs[i][0]}')
        s(f'buffer_load_dword v{b}, v{vA}, {WSR}, {ssoff} offen')
        s(f'buffer_load_dword v{b+1}, v{vB}, {WSR}, {ssoff} offen')
    for i in range(min(depth, n)): issue(i)
    for i in range(n):
        b = tmp + 2 * (i % depth)
        s(f's_waitcnt vmcnt({2 * (min(n, i + depth) - i - 1)})')
        for j, sel in ((0, sSEL0), (1, sSEL1)):
            d = pairs[i][1 + j]
            if isinstance(d, tuple):
                s(f'v_perm_b32 v{t0+j}, v{b+1}, v{b}, {sel}')
            else:
                s(f'v_perm_b32 v{d}, v{b+1}, v{b}, {sel}')
        for j in (0, 1):
            d = pairs[i][1 + j]
            if isinstance(d, tuple): s(f'v_accvgpr_write_b32 a{d[1]}, v{t0+j}')
        if i + depth < n: issue(i + depth)
        if post: post(i)

def xreduce(s, v, t, op='v_add_f32', dpp=(4, 8)):
    for r in dpp:
        s(f's_nop 1\n{op}_dpp v{v}, v{v}, v{v} row_ror:{r} row_mask:0xf bank_mask:0xf')
    for w in (16, 32):
        s(f'v_mov_b32 v{t}, v{v}\ns_nop 1\nv_permlane{w}_swap_b32 v{v}, v{t}\ns_nop 1\n{op} v{v}, v{v}, v{t}')

def ln_unpack(s, X, F):
    for i in range(16):
        s(f'v_lshlrev_b32 v{F+2*i}, 16, v{X+i}\nv_and_b32 v{F+2*i+1}, 0xffff0000, v{X+i}')

def ln_rest_np(s, F, T, vLW):
    for i in range(4): s(f'v_add_f32 v{T+i}, v{F+i}, v{F+4+i}')
    for i in range(8, 32): s(f'v_add_f32 v{T+i%4}, v{T+i%4}, v{F+i}')
    s(f'v_add_f32 v{T}, v{T}, v{T+1}\nv_add_f32 v{T+2}, v{T+2}, v{T+3}\nv_add_f32 v{T}, v{T}, v{T+2}')
    xreduce(s, T, T + 1)
    s(f'v_mul_f32 v{T}, {f32(-1.0/512)}, v{T}')
    for i in range(32): s(f'v_add_f32 v{F+i}, v{F+i}, v{T}')
    for i in range(32):
        s(f'v_mul_f32 v{T+2+i}, v{F+i}, v{F+i}' if i < 4 else f'v_fmac_f32 v{T+2+i%4}, v{F+i}, v{F+i}')
    s(f'v_add_f32 v{T}, v{T+2}, v{T+3}\nv_add_f32 v{T+4}, v{T+4}, v{T+5}\nv_add_f32 v{T}, v{T}, v{T+4}')
    xreduce(s, T, T + 1)
    s(f'v_mov_b32 v{T+1}, {f32(1e-5)}\nv_fmac_f32 v{T+1}, {f32(1.0/512)}, v{T}\nv_rsq_f32 v{T}, v{T+1}\ns_nop 0')
    for i in range(4):
        for j in range(8): s(f'v_mul_f32 v{F+8*i+j}, v{F+8*i+j}, v{T}')
        for j in range(4): s(f'v_cvt_pk_bf16_f32 v{F+8*i+j}, v{F+8*i+2*j}, v{F+8*i+2*j+1}')
        s(f'ds_write_b128 v{vLW}, v[{F+8*i}:{F+8*i+3}] offset:{4096*i}', 'lnw')

def ln_rest(s, F, T, vLW):
    s(f'v_pk_add_f32 v[{T}:{T+1}], v[{F}:{F+1}], v[{F+2}:{F+3}]')
    s(f'v_pk_add_f32 v[{T+2}:{T+3}], v[{F+4}:{F+5}], v[{F+6}:{F+7}]')
    for i in range(4, 16):
        t = T + 2 * (i & 1)
        s(f'v_pk_add_f32 v[{t}:{t+1}], v[{t}:{t+1}], v[{F+2*i}:{F+2*i+1}]')
    s(f'v_pk_add_f32 v[{T}:{T+1}], v[{T}:{T+1}], v[{T+2}:{T+3}]\nv_add_f32 v{T}, v{T}, v{T+1}')
    xreduce(s, T, T + 1)
    s(f'v_mul_f32 v{T}, {f32(-1.0/512)}, v{T}')
    for i in range(16):
        s(f'v_pk_add_f32 v[{F+2*i}:{F+2*i+1}], v[{F+2*i}:{F+2*i+1}], v[{T}:{T+1}] op_sel_hi:[1,0]')
    for i in range(16):
        t = T + 2 + 2 * (i & 1); f = f'v[{F+2*i}:{F+2*i+1}]'
        if i < 2: s(f'v_pk_mul_f32 v[{t}:{t+1}], {f}, {f}')
        else: s(f'v_pk_fma_f32 v[{t}:{t+1}], {f}, {f}, v[{t}:{t+1}]')
    s(f'v_pk_add_f32 v[{T}:{T+1}], v[{T+2}:{T+3}], v[{T+4}:{T+5}]\nv_add_f32 v{T}, v{T}, v{T+1}')
    xreduce(s, T, T + 1)
    s(f'v_mov_b32 v{T+1}, {f32(1e-5)}\nv_fmac_f32 v{T+1}, {f32(1.0/512)}, v{T}\nv_rsq_f32 v{T}, v{T+1}\ns_nop 0')
    for i in range(4):
        for j in range(4):
            f = F + 8 * i + 2 * j
            s(f'v_pk_mul_f32 v[{f}:{f+1}], v[{f}:{f+1}], v[{T}:{T+1}] op_sel_hi:[1,0]')
        for j in range(4):
            s(f'v_cvt_pk_bf16_f32 v{F+8*i+j}, v{F+8*i+2*j}, v{F+8*i+2*j+1}')
        s(f'ds_write_b128 v{vLW}, v[{F+8*i}:{F+8*i+3}] offset:{4096*i}', 'lnw')

def prologue(s, opts):
    s(f'''
    s_cmp_ge_u32 s2, 0x100
    s_cbranch_scc0 L_start
    s_endpgm
    L_start:
    s_load_dwordx2 s[6:7], s[0:1], {KA['dbg']}
    s_load_dwordx2 s[4:5], s[0:1], {KA['ws']}
    s_getreg_b32 {sXCC}, hwreg(HW_REG_XCC_ID)
    s_and_b32 {sXCC}, {sXCC}, 7
    v_lshrrev_b32 v1, 6, v0
    v_and_b32 v0, 63, v0
    s_mov_b32 {sSEL0}, 0x05040100
    v_readfirstlane_b32 {sW}, v1
    s_mov_b32 {sSEL1}, 0x07060302
    s_waitcnt lgkmcnt(0)
    s_mov_b32 s8, s4
    s_mov_b32 s9, s5
    s_mov_b32 s10, {WS_BYTES}
    s_mov_b32 s11, 0x20000
    s_getreg_b32 s3, hwreg(HW_REG_HW_ID, 4, 2)
    s_lshl_b32 s30, 1, s3
    v_lshlrev_b32 v2, 2, v1
    v_mov_b32 v3, s30
    ds_write_b32 v2, v3 offset:16
    s_cmp_eq_u32 {sW}, 0
    s_cbranch_scc1 L_rank
    s_cmp_lg_u32 {sW}, 1
    s_cbranch_scc1 L_rank_done
    s_getpc_b64 s[30:31]
    L_pc:
    s_bfe_u32 s32, s2, 0x40003
    s_lshl_b32 s32, s32, 13
    v_lshlrev_b32 v2, 7, v0
    v_add_u32 v2, s32, v2
    v_min_u32 v2, L_code_end - L_pc - 4, v2
    global_load_dword v143, v2, s[30:31]
    s_branch L_rank_done
    L_rank:
    s_lshl_b32 s30, {sXCC}, 2
    s_add_u32 s30, s30, 128
    s_cmp_eq_u32 {sXCC}, 0
    s_cselect_b32 s30, 0, s30
    v_mov_b32 v2, s30
    v_mov_b32 v3, 1
    v_mov_b32 v5, 0
    v_mov_b64 v[8:9], 0
    v_lshlrev_b32 v6, 3, v0
    s_lshl_b32 s31, s2, 9
    s_mov_b64 exec, 1
    global_atomic_add v4, v2, v3, s[6:7] sc0
    s_mov_b64 exec, -1
    buffer_store_dwordx2 v[8:9], v6, {WS}, s31 offen sc1
    ; the chain's hand-off buffers start out empty (all ones)
    v_mov_b64 v[12:13], -1
    v_mov_b64 v[14:15], -1
    v_lshlrev_b32 v6, 4, v0
    v_lshlrev_b32 v7, 2, v0
    s_lshl_b32 s31, s2, 10
    s_add_u32 s31, s31, {CH_IN}
    buffer_store_dwordx4 v[12:15], v6, {WS}, s31 offen sc1
    s_lshl_b32 s31, s2, 8
    s_add_u32 s31, s31, {CH_MEM}
    buffer_store_dword v12, v7, {WS}, s31 offen sc1
    s_mov_b64 exec, 1
    s_waitcnt vmcnt(0)
    global_atomic_add v5, v3, s[6:7] offset:64
    v_readfirstlane_b32 s30, v4
    s_mov_b64 exec, -1
    s_lshl_b32 {sROLE}, {sXCC}, 5
    s_add_u32 {sROLE}, {sROLE}, s30
    s_cmp_lt_u32 s30, 32
    s_cbranch_scc1 L_rank_put
    ''')
    wait_init(s, 5, 4, 'L_exit')
    s(f'''
    s_mov_b64 exec, 1
    global_atomic_add v4, v5, v3, s[6:7] offset:68 sc0
    s_mov_b64 exec, -1
    v_lshlrev_b32 v6, 2, v0
    v_add_u32 v6, 128, v6
    v_cmp_eq_u32 vcc, 0, v0
    s_nop 1
    v_cndmask_b32 v6, v6, v5, vcc
    v_and_b32 v6, 0xbf, v6
    global_load_dword v7, v6, s[6:7] sc1
    s_waitcnt vmcnt(0)
    v_readfirstlane_b32 s30, v4
    s_mov_b32 s31, 0
    L_hole:
    s_nop 3
    v_readlane_b32 s32, v7, s31
    s_min_u32 s32, s32, 32
    s_sub_u32 s33, 32, s32
    s_lshl_b32 {sROLE}, s31, 5
    s_add_u32 {sROLE}, {sROLE}, s32
    s_add_u32 {sROLE}, {sROLE}, s30
    s_cmp_lt_u32 s30, s33
    s_cbranch_scc1 L_rank_put
    s_sub_u32 s30, s30, s33
    s_add_u32 s31, s31, 1
    s_cmp_lt_u32 s31, 8
    s_cbranch_scc1 L_hole
    s_mov_b32 {sROLE}, 0x100
    L_rank_put:
    v_mov_b32 v2, 0
    v_mov_b32 v3, {sROLE}
    ds_write_b32 v2, v3
    L_rank_done:
    s_waitcnt lgkmcnt(0)
    s_barrier
    v_mov_b32 v2, 0
    ds_read_b32 v3, v2
    ds_read_b128 v[4:7], v2 offset:16
    s_waitcnt lgkmcnt(0)
    v_readfirstlane_b32 {sROLE}, v3
    v_or3_b32 v4, v4, v5, v6
    v_or_b32 v4, v4, v7
    s_barrier
    v_readfirstlane_b32 s30, v4
    s_lshl_b32 s3, s3, 2
    s_lshr_b32 s3, {hex(sum(v << 4*i for i, v in enumerate(opts.get('smap') or (0, 2, 1, 3))))}, s3
    s_and_b32 s3, s3, 3
    s_cmp_eq_u32 s30, {15 if opts.get('smap', 1) else 99}
    s_cselect_b32 {sW}, s3, {sW}
    s_cmp_lt_u32 {sROLE}, 0x100
    s_cbranch_scc1 L_dispatch
    L_exit:
    s_endpgm
    L_dispatch:
    ''')

TRACE = 0x80000
def stamp(s, opts, idx, vt):
    if not opts.get('trace'): return
    s(f'''s_memrealtime s[98:99]
          s_lshl_b32 s100, {sROLE}, 2
          s_add_u32 s100, s100, {sW}
          s_lshl_b32 s100, s100, 7
          s_add_u32 s100, s100, {idx}
          s_lshl_b32 s100, s100, 2
          s_add_u32 s100, s100, {TRACE}
          s_waitcnt lgkmcnt(0)
          v_mov_b32 v{vt}, s98
          v_mov_b32 v{vt+1}, s100
          buffer_store_dword v{vt}, v{vt+1}, {WS}, 0 offen''')

class TL:
    def __init__(self, opts, role):
        self.pts = list(opts.get('tl_' + role) or []); self.ins = 's_memrealtime' if opts.get('rt') else 's_memtime'; self.at = opts.get('at_' + role)
    def __call__(self, s, k):
        if k in self.pts: s(f'{self.ins} s[{72+2*self.pts.index(k)}:{73+2*self.pts.index(k)}]')
    def dump(self, s, cond, vt):
        if not self.pts: return
        l = L('tl')
        s(f's_waitcnt lgkmcnt(0)\n{cond}\ns_cbranch_scc0 {l}')
        s(f's_lshl_b32 s100, {sROLE}, 2\ns_add_u32 s100, s100, {sW}\ns_lshl_b32 s100, s100, 9\ns_add_u32 s100, s100, {TRACE+4*108}\nv_mov_b32 v{vt}, s100')
        for i in range(len(self.pts)):
            s.append(Op(f'v_mov_b32 v{vt+1}, s{72+2*i}')); s.append(Op(f'buffer_store_dword v{vt+1}, v{vt}, {WS}, 0 offen offset:{4*i}')); s.append(Op('s_nop 1'))
        s(f'{l}:')

class Stats:
    def __init__(self, vSF, SF, GM, ONES, vSW, vSR, vBP, ST, masks):
        self.__dict__.update(locals())
        self.RS, self.NM, self.RSr, self.NMr = ST, ST+1, ST+2, ST+6
    def setup(self, s, lds_off, t0):
        m = self.masks
        s(f'''v_and_b32 v{t0}, 15, v0
              v_lshrrev_b32 v{t0+1}, 4, v0
              v_lshlrev_b32 v{self.vSR}, 5, v{t0}
              v_add_u32 v{self.vSR}, {lds_off}, v{self.vSR}
              s_lshl_b32 s30, {sW}, 3
              v_add_u32 v{self.vSW}, s30, v{self.vSR}
              v_mul_u32_u24 v{self.vBP}, 80, v{t0+1}
              v_lshrrev_b32 v{t0+2}, 2, v{t0}
              v_cmp_eq_u32 s[{m}:{m+1}], v{t0+2}, v{t0+1}
              v_and_b32 v{t0+2}, 3, v{t0}''')
        for r in (1, 2, 3): s(f'v_cmp_eq_u32 s[{m+2*r}:{m+2*r+1}], {r}, v{t0+2}')
        for r in range(4): s(f'v_mov_b32 v{self.ONES+r}, 0x3f803f80')
    def reads(self, s):
        for i in range(4): s(f'ds_read_b128 {vr(self.SF+4*i,4)}, v{self.vSF} offset:{1024*i}', f'sf{i}')
    def mfmas(self, s, after=None):
        G, M = self.GM + 4, self.GM
        for i in range(4):
            s.W('ds', f'sf{i}'); a = vr(self.SF+4*i, 4)
            s(f'v_mfma_f32_16x16x32_bf16 {vr(G,4)}, {a}, {a}, {"0" if i == 0 else vr(G,4)}')
            if after: after(i)
            s(f'v_mfma_f32_16x16x32_bf16 {vr(M,4)}, {vr(self.ONES,4)}, {a}, {"0" if i == 0 else vr(M,4)}')
    def part1(self, f):
        G, M, m = self.GM + 4, self.GM, self.masks
        for r in (1, 2, 3): f(f'v_cndmask_b32 v{M+1 if r == 3 else G}, v{G}, v{G+r}, s[{m+2*r}:{m+2*r+1}]')
        f(f's_mov_b64 exec, s[{m}:{m+1}]'); f(f'ds_write_b64 v{self.vSW}, {vr(M,2)}', 'sw'); f('s_mov_b64 exec, -1')
    def part2(self, f):
        T = self.SF; RS, NM = self.RS, self.NM
        f(f'ds_read_b128 {vr(T,4)}, v{self.vSR}', 'sr0'); f(f'ds_read_b128 {vr(T+4,4)}, v{self.vSR} offset:16', 'sr1')
    def part3(self, f):
        T = self.SF; RS, NM = self.RS, self.NM
        f.W('ds', 'sr1')
        for r in range(4): f(f'v_add_f32 v{T+r}, v{T+r}, v{T+4+r}')
        f(f'''v_add_f32 v{T}, v{T}, v{T+2}
              v_add_f32 v{T+1}, v{T+1}, v{T+3}
              v_mul_f32 v{T}, {f32(-1.0/512)}, v{T}
              v_mul_f32 v{T+1}, {f32(1.0/512)}, v{T+1}
              v_fma_f32 v{T+1}, -v{T}, v{T}, v{T+1}
              v_max_f32 v{T+1}, 0, v{T+1}
              v_add_f32 v{T+1}, {f32(1e-5)}, v{T+1}
              v_rsq_f32 v{RS}, v{T+1}
              s_nop 0
              v_mul_f32 v{NM}, v{T}, v{RS}''')
        for r in range(4):
            f(f'ds_bpermute_b32 v{self.RSr+r}, v{self.vBP}, v{RS} offset:{4*r}', 'bp'); f(f'ds_bpermute_b32 v{self.NMr+r}, v{self.vBP}, v{NM} offset:{4*r}', 'bp')

sMODE = 's31'
def die_mode(s, sM, v0, v1):
    s(f"""s_lshr_b32 s30, {sROLE}, 5
          s_lshl_b32 s30, s30, 2
          s_add_u32 s30, s30, 128
          v_mov_b32 v{v0}, s30
          global_load_dword v{v1}, v{v0}, s[6:7] sc1
          s_waitcnt vmcnt(0)
          v_readfirstlane_b32 s30, v{v1}
          s_cmp_ge_u32 s30, 32
          s_cselect_b32 {sM}, 1, 0""")
def dual(s, sM, tail, lines, tag=None):
    a, b = L('far'), L('join')
    s(f's_cmp_eq_u32 {sM}, 0\ns_cbranch_scc1 {a}')
    s(lines.replace('@', ''), tag); s(f'{b}:')
    tail(f'{a}:'); tail(lines.replace('@', 'sc1')); tail(f's_branch {b}')

def load_pairs_lds(s, groups, grow, rowbytes, delta, scol, lbase, ring, v, tmp, fl=''):
    vG, vR = v, v + 1
    s(f"""v_bfe_u32 v{tmp}, v0, 3, 1
          v_mul_u32_u24 v{vG}, {grow[0]}, v{tmp}
          v_bfe_u32 v{tmp}, v0, 2, 1
          v_mul_u32_u24 v{tmp}, {grow[1]}, v{tmp}
          v_add_u32 v{vG}, v{vG}, v{tmp}
          v_bfe_u32 v{tmp}, v0, 4, 1
          v_add_u32 v{vG}, v{vG}, v{tmp}
          v_lshrrev_b32 v{tmp}, 5, v0
          v_mul_u32_u24 v{tmp}, {delta}, v{tmp}
          v_add_u32 v{vG}, v{vG}, v{tmp}
          v_mul_u32_u24 v{vG}, {rowbytes}, v{vG}
          v_and_b32 v{tmp}, 3, v0
          v_lshl_add_u32 v{vG}, v{tmp}, 4, v{vG}
          v_add_u32 v{vG}, {scol}, v{vG}
          v_lshlrev_b32 v{vR}, 2, v0
          v_add_u32 v{vR}, {lbase}, v{vR}""")
    n = len(groups)
    def issue(i):
        s(f's_add_u32 m0, {lbase}, {1024 * (i % ring)}\ns_mov_b32 s30, {groups[i][1]}\nbuffer_load_dwordx4 v{vG}, {groups[i][0]}, s30 offen {fl} lds')
    def read(i):
        s(f's_waitcnt vmcnt({min(n, i + ring - 2) - i - 1})')
        for jj in range(2):
            b = tmp + 4 * (i % 4) + 2 * jj; o = 4 * (i % ring) + 2 * jj
            s(f'ds_read2st64_b32 v[{b}:{b+1}], v{vR} offset0:{o} offset1:{o+1}')
    for i in range(min(ring - 2, n)): issue(i)
    read(0)
    for i in range(n):
        if i + ring - 2 < n: issue(i + ring - 2)
        if i + 1 < n: read(i + 1)
        s(f's_waitcnt lgkmcnt({2 if i + 1 < n else 0})')
        for jj in range(2):
            b = tmp + 4 * (i % 4) + 2 * jj
            for j, sel in ((0, sSEL0), (1, sSEL1)):
                d = groups[i][2][jj][j]
                if isinstance(d, tuple): s(f'v_perm_b32 v{tmp+16+j}, v{b+1}, v{b}, {sel}\nv_accvgpr_write_b32 a{d[1]}, v{tmp+16+j}')
                else: s(f'v_perm_b32 v{d}, v{b+1}, v{b}, {sel}')

def set_srds(s, items):
    for b, key, n in items: s(f's_load_dwordx2 s[{b}:{b+1}], s[0:1], {KA[key]}')
    s('s_waitcnt lgkmcnt(0)')
    for b, key, n in items: s(f's_mov_b32 s{b+2}, {n}\ns_mov_b32 s{b+3}, 0x20000')

def load_pairs_wg(s, stages, grow, wrow, delta, scol, lbase, v, tmp):
    vG, vR = v, v + 1; RB = 8192; ring = 8; ahead = ring - 2
    s(f"""v_lshrrev_b32 v{tmp}, 5, v0
          v_mul_u32_u24 v{vG}, {grow[0]}, v{tmp}
          v_bfe_u32 v{tmp}, v0, 4, 1
          v_mul_u32_u24 v{tmp}, {grow[1]}, v{tmp}
          v_add_u32 v{vG}, v{vG}, v{tmp}
          s_lshr_b32 s30, {sW}, 1
          s_mul_i32 s30, s30, {wrow[0]}
          s_and_b32 s31, {sW}, 1
          s_mul_i32 s31, s31, {wrow[1]}
          s_add_u32 s30, s30, s31
          v_add_u32 v{vG}, s30, v{vG}
          v_lshlrev_b32 v{vG}, 13, v{vG}
          v_and_b32 v{tmp}, 15, v0
          v_lshl_add_u32 v{vG}, v{tmp}, 4, v{vG}
          v_add_u32 v{vG}, {scol}, v{vG}
          v_lshrrev_b32 v{vR}, 4, v0
          v_lshlrev_b32 v{vR}, 8, v{vR}
          v_lshl_add_u32 v{vR}, v{tmp}, 2, v{vR}
          s_lshl_b32 s30, {sW}, 6
          s_add_u32 s30, s30, {lbase}
          v_add_u32 v{vR}, s30, v{vR}
          v_add_u32 v{vR+1}, 0x10000, v{vR}
          s_lshl_b32 s31, {sW}, 12""")
    n = len(stages)
    def issue(i):
        for k in range(4):
            s(f's_add_u32 m0, s31, {lbase + 16384 * (i % ring) + 1024 * k}\ns_mov_b32 s30, {stages[i][1] + ((k & 1) + (k >> 1) * delta) * RB}\nbuffer_load_dwordx4 v{vG}, {stages[i][0]}, s30 offen lds')
    for i in range(min(ahead, n)): issue(i)
    for i in range(n):
        s(f's_waitcnt vmcnt({4 * (min(n, i + ahead) - i - 1)})\ns_barrier')
        for q in range(4):
            for jj in range(2):
                b = tmp + 4 * q + 2 * jj; o = 64 * (i % 4) + 16 * q + 8 * jj
                s(f'ds_read2st64_b32 v[{b}:{b+1}], v{vR + ((i % ring) >> 2)} offset0:{o} offset1:{o+4}')
        if i + ahead < n: issue(i + ahead)
        for q in range(4):
            s(f's_waitcnt lgkmcnt({6 - 2 * q})')
            for jj in range(2):
                b = tmp + 4 * q + 2 * jj
                for j, sel in ((0, sSEL0), (1, sSEL1)):
                    d = stages[i][2][q][jj][j]
                    if isinstance(d, tuple): s(f'v_perm_b32 v{tmp+16+j}, v{b+1}, v{b}, {sel}\nv_accvgpr_write_b32 a{d[1]}, v{tmp+16+j}')
                    else: s(f'v_perm_b32 v{d}, v{b+1}, v{b}, {sel}')
    s('s_barrier')

def pretouch(s, opts, idx, n, vt):
    if not opts.get('pt', 0): return
    a, b = L('pt'), L('pt')
    s(f"""v_lshlrev_b32 v{vt}, 6, v0
          s_mov_b32 s31, {idx}
          {a}:
          s_lshl_b32 s30, s31, 12
          s_add_u32 s30, s30, {LB0 + O_X1}
          buffer_load_dword v{vt+1}, v{vt}, {WS}, s30 offen nt
          s_add_u32 s31, s31, {n}
          s_cmp_lt_u32 s31, {12*MB // 4096}
          s_cbranch_scc1 {a}""")
    if opts.get('pt', 0) > 1:
        s(f"""s_mov_b32 s31, {idx}
          {b}:
          s_lshr_b32 s30, s31, 2
          s_mul_i32 s30, s30, 6
          s_and_b32 s3, s31, 3
          s_add_u32 s30, s30, s3
          s_lshl_b32 s30, s30, 12
          s_add_u32 s30, s30, {LB0 + O_QKV + 8192}
          buffer_load_dword v{vt+1}, v{vt}, {WS}, s30 offen nt
          s_waitcnt vmcnt({opts.get('ptd', 1)})
          s_add_u32 s31, s31, {n}
          s_cmp_lt_u32 s31, {32*MB // 4096}
          s_cbranch_scc1 {b}""")
    s('s_waitcnt vmcnt(0)')
```

```python
from common import *
LM, LK, LP, LSEL, LQ, LW = 0, 8192, 10240, 11264, 12288, 16384
LO, LMX = LQ, LM + 4096
WSTR = 18 * 2048
vIDX, vG16, vWL, vQW, vKW, vQR, vST, vPUB, vKX, vG8, vF8, vF32, vFV, vFP, vSEN = range(1, 16)
ONES, PM, KX, VX, MA, AQ, AK, AV, SX, SM, POOL = 16, 20, 24, 32, 40, 72, 80, 88, 96, 100, 104
QB, KA, PX, LL, OX = POOL, POOL+16, POOL+24, POOL+28, POOL+32
NWORK = 144
sH, sL, sS, sN, sTAG, sMS, sMC, sG1, sG2, sKV, sKM, sPT, sCV, sC, sFPO, sFCO, sALO, sAL, s4K = [f's{i}' for i in range(32, 51)]
sTCH = 's51'; sTC2 = 's3'; vSEN2 = PM + 3; sKN = 's56'; sMN = 's57'; CH_JUNK = 200*MB; vTC = 0; sH2, sH2O = 's4', 's5'
sPW = 's[20:21]'
sPUBX = 's[52:53]'; sGL, sGH = 's54', 's55'
LDS_Q = [(0,0),(0,1),(1,0),(1,1),(2,0)]
LDS_K = [(1,0),(2,0),(5,1),(6,1),(7,1)]
LDS_O = [(1,2),(1,3),(2,1),(2,2),(2,3),(3,1),(3,2),(3,3)]
home = {}
def _alloc():
    free = [NWORK + 8*i for i in range((256-NWORK)//8)] + [('a', 8*i) for i in range(32)]
    n = 0
    for m, ld in (('q', LDS_Q), ('k', LDS_K), ('v', [])):
        for t in range(8):
            for tau in range(2):
                if (t, tau) in ld: home[m, t, tau] = ('lds', n); n += 1
                else: home[m, t, tau] = free.pop()
    for u in range(4):
        for z in range(4):
            if (u, z) in LDS_O: home['o', u, z] = ('lds', 10 + LDS_O.index((u, z)))
            else: home['o', u, z] = free.pop()
    assert not free
_alloc()
def in_lds(k): return isinstance(home[k], tuple) and home[k][0] == 'lds'
def smf(d, a, b): return f'v_smfmac_f32_16x16x64_bf16 {vr(d,4)}, {vr(a,4)}, {R(b,8)}, v{vIDX}'
def stage(s, key, reg, half, tag):
    s(f'ds_read_b128 {vr(reg+4*half,4)}, v{vWL} offset:{home[key][1]*2048 + 1024*half}', tag)

def setup(s, opts, fail):
    s('L_role_chain:'); stamp(s, opts, 0, 126)
    if opts.get('trace'): s(f's_getreg_b32 s30, hwreg(HW_REG_HW_ID)\nv_mov_b32 v126, s30\nbuffer_store_dword v126, v127, {WS}, 0 offen offset:44')
    s(f'''
    s_mov_b32 {sH}, {sROLE}
    v_lshrrev_b32 v120, 4, v0          ; g
    v_and_b32 v121, 15, v0             ; c
    v_lshlrev_b32 v{vG16}, 4, v0
    s_mul_i32 s30, {sW}, {WSTR}
    s_add_u32 s30, s30, {LW}
    v_add_u32 v{vWL}, s30, v{vG16}
    v_lshrrev_b32 v122, 1, v120
    v_and_b32 v123, 1, v120
    v_lshlrev_b32 v16, 19, v122
    v_lshl_add_u32 v16, v123, 17, v16
    v_lshl_add_u32 v16, v121, 2, v16
    s_lshl_b32 s30, {sH}, 8
    s_lshl_b32 s31, {sW}, 6
    s_add_u32 s30, s30, s31
    v_add_u32 v16, s30, v16
    v_add_u32 v17, 0x2000, v16
    ''')
    TL = 88; TH = 40
    set_srds(s, [(16, 'Wo', 4*MB), (80, 'Wq', 4*MB), (84, 'Wk', 4*MB), (88, 'Wv', 4*MB)])
    s(f's_lshl_b32 s92, {sH}, 8')
    def dst(m, t, tau, jr): return TH + 8*home[m, t, tau][1] + jr if in_lds((m, t, tau)) else radd(home[m, t, tau], jr)
    stages = [(srd, (256*(t & 1) + 2*(t >> 1))*8192, [[(dst(m, t, 0, 2*jp+jj), dst(m, t, 1, 2*jp+jj)) for jj in range(2)] for jp in range(4)])
              for m, srd in (('q', 's[80:83]'), ('k', 's[84:87]'), ('v', 's[88:91]')) for t in range(8)]
    load_pairs_wg(s, stages, (64, 16), (128, 8), 32, 's92', 0, 16, 124)
    stamp(s, opts, 10, 126)
    for i in range(10): s(f'ds_write_b128 v{vWL}, {vr(TH+8*i,4)} offset:{2048*i}\nds_write_b128 v{vWL}, {vr(TH+8*i+4,4)} offset:{2048*i+1024}')
    s('s_waitcnt lgkmcnt(0)')
    s(f'''v_lshlrev_b32 v16, 12, v120
          v_lshl_add_u32 v16, v121, 4, v16
          s_lshl_b32 s30, {sH}, 17
          s_lshl_b32 s31, {sW}, 8
          s_add_u32 s30, s30, s31
          v_add_u32 v16, s30, v16''')
    def oissue(i):
        z, jp = i >> 2, i & 3; b = 24 + 8*(i % 8)
        s(f'''s_add_u32 s30, {sW}, {z}
              s_and_b32 s30, s30, 3
              s_lshl_b32 s30, s30, 15
              s_add_u32 s30, s30, {(16*(jp >> 1) + 2*(jp & 1)) * 1024}
              buffer_load_dwordx4 {vr(b,4)}, v16, {WSR}, s30 offen {opts.get('cfl', '')}
              buffer_load_dwordx4 {vr(b+4,4)}, v16, {WSR}, s30 offen offset:1024 {opts.get('cfl', '')}''', f'wo{i}')
    s('v_mov_b32 v20, 0\nglobal_load_dword v21, v20, s[6:7] offset:64 sc1\nglobal_load_dword v22, v20, s[6:7] sc1', 'ini')
    for i in range(8): oissue(i)
    s(f'''
    v_bfe_u32 v124, v0, 1, 1
    v_mov_b32 v{vIDX}, 0x44444444
    v_mov_b32 v125, 0xeeeeeeee
    v_cmp_eq_u32 vcc, 1, v124
    v_bfe_u32 v126, v0, 2, 1           ; (c>>2)&1
    v_bfe_u32 v127, v0, 3, 1           ; c>>3
    v_cndmask_b32 v{vIDX}, v{vIDX}, v125, vcc
    v_and_b32 v128, 1, v0              ; c&1
    v_and_b32 v129, 3, v0              ; c&3
    v_bfe_u32 v130, v0, 2, 2           ; c>>2
    ; q write: 576w + 144(2(c>>3) + ((c>>1)&1)) + 32g + 8(c&1) + 4((c>>2)&1)
    v_lshl_add_u32 v131, v127, 1, v124
    v_mul_u32_u24 v{vQW}, 144, v131
    v_lshl_add_u32 v{vQW}, v120, 5, v{vQW}
    v_lshl_add_u32 v{vQW}, v128, 3, v{vQW}
    v_lshl_add_u32 v{vQW}, v126, 2, v{vQW}
    s_mul_i32 s30, {sW}, 576
    s_add_u32 s30, s30, {LQ}
    v_add_u32 v{vQW}, s30, v{vQW}
    ; q read: 144g + 16(2(c>>2) + (c&1))
    v_lshl_add_u32 v132, v130, 1, v128          ; row r(c)
    v_mul_u32_u24 v{vQR}, 144, v120
    v_lshl_add_u32 v{vQR}, v132, 4, v{vQR}
    ; k write: 512w + 256(c>>3) + 64g + 32((c>>2)&1) + 4(c&3)
    v_lshlrev_b32 v{vKW}, 8, v127
    v_lshl_add_u32 v{vKW}, v120, 6, v{vKW}
    v_lshl_add_u32 v{vKW}, v126, 5, v{vKW}
    v_lshl_add_u32 v{vKW}, v129, 2, v{vKW}
    s_lshl_b32 s30, {sW}, 9
    s_add_u32 s30, s30, {LK}
    v_add_u32 v{vKW}, s30, v{vKW}
    v_lshrrev_b32 v131, 3, v0
    v_and_b32 v133, 7, v0
    v_lshlrev_b32 v{vST}, 13, v131
    v_lshl_add_u32 v{vST}, v133, 3, v{vST}
    s_lshl_b32 s30, {sW}, 16
    s_lshl_b32 s31, {sH}, 6
    s_add_u32 s30, s30, s31
    s_add_u32 s30, s30, {CH_IN}
    v_add_u32 v{vST}, s30, v{vST}
    v_lshlrev_b32 v{vPUB}, 5, v124
    v_lshl_add_u32 v{vPUB}, v123, 4, v{vPUB}
    v_lshl_add_u32 v{vPUB}, v128, 3, v{vPUB}
    v_lshl_add_u32 v{vPUB}, v122, 2, v{vPUB}
    s_lshr_b32 s30, {sH}, 3
    s_lshl_b32 s30, s30, 9
    s_and_b32 s31, {sH}, 1
    s_lshl_b32 s31, s31, 8
    s_add_u32 s30, s30, s31
    s_bfe_u32 s31, {sH}, 0x20001
    s_lshl_b32 s31, s31, 6
    s_add_u32 s30, s30, s31
    v_add_u32 v{vPUB}, s30, v{vPUB}
    v_lshlrev_b32 v{vKX}, 9, v120
    v_lshl_add_u32 v{vKX}, v124, 6, v{vKX}
    v_lshl_add_u32 v{vKX}, v130, 7, v{vKX}
    v_lshl_add_u32 v{vKX}, v128, 4, v{vKX}
    s_lshr_b32 s30, {sW}, 1
    s_lshl_b32 s30, s30, 12
    s_and_b32 s31, {sW}, 1
    s_lshl_b32 s31, s31, 5
    s_add_u32 s30, s30, s31
    s_add_u32 s30, s30, 8192
    v_add_u32 v{vKX}, s30, v{vKX}
    v_lshlrev_b32 v{vG8}, 3, v0
    v_lshlrev_b32 v{vF8}, 2, v133
    v_and_b32 v{vF32}, 31, v0
    v_lshlrev_b32 v{vF32}, 2, v{vF32}''')
    if opts.get('lc', 0): s(f'v_bfe_u32 v{vF32}, v0, 1, 4\nv_lshlrev_b32 v{vF32}, 2, v{vF32}\nv_lshl_add_u32 v{vF32}, v0, 6, v{vF32}')
    s(f'''
    v_mov_b32 v{vSEN}, -1
    v_mov_b32 v134, 0x3f80
    v_lshlrev_b32 v135, 4, v129
    v_lshlrev_b32 v134, v135, v134
    v_cmp_gt_u32 vcc, 2, v129
    v_mov_b32 v135, 0
    s_nop 0
    v_cndmask_b32 v134, v135, v134, vcc
    ''')
    for r in range(4): s(f'v_cmp_eq_u32 vcc, {r}, v130\ns_nop 1\nv_cndmask_b32 v{136+r}, v135, v134, vcc')
    s(f'ds_write_b128 v{vG16}, v[136:139] offset:{LSEL}')
    s(f'''
    s_mov_b32 s52, 0x000f000f
    s_mov_b32 s53, 0x000f000f
    s_mov_b32 {sC}, {f32(128**-0.5 * LOG2E)}
    s_mov_b32 {s4K}, 4096
    s_mov_b32 {sGL}, 0x17800000
    s_mov_b32 {sGH}, 0x50000000
    s_lshl_b32 s30, {sW}, 11
    s_lshl_b32 {sG1}, {sH}, 13
    s_add_u32 {sG1}, {sG1}, s30
    s_add_u32 {sG1}, {sG1}, {CH_IN}
    s_add_u32 {sG2}, s30, {CH_MEM}
    s_lshl_b32 {sFPO}, {sH}, 7
    s_add_u32 {sFCO}, {sFPO}, {F_C}
    s_add_u32 {sFPO}, {sFPO}, {F_P}
    s_lshl_b32 {sALO}, {sH}, 2
    s_add_u32 {sALO}, {sALO}, {F_AL}
    s_mov_b32 {sAL}, {F_AL}
    s_mov_b32 {sN}, 0
    s_mov_b32 {sL}, 0
    s_mov_b32 {sCV}, 0
    ''')
    set_srd(s, 12, 'mem0', 8192)
    s(f's_lshl_b32 s30, {sW}, 7\ns_add_u32 s30, s30, 128\ns_add_u32 {sH2}, s30, {sAL}\ns_add_u32 {sH2O}, s30, {sALO}')
    s.W('vm', 'ini'); s('v_cmp_gt_u32 vcc, 0x100, v21\ns_cbranch_vccz L_ch_inited')
    x = S(); wait_init(x, 20, 21, fail); x('global_load_dword v22, v20, s[6:7] sc1\ns_waitcnt vmcnt(0)')
    for o in x: s.append(Op(' ' + o.t if not o.t.endswith(':') else o.t))
    s('L_ch_inited:')
    for i in range(2): s(f'buffer_load_dwordx4 v[140:143], v{vG16}, {WS}, {sG1} offen offset:{1024*i} sc1')
    for i in range(4): s(f's_add_u32 s30, {sG2}, {8192*i}\nbuffer_load_dwordx4 v[140:143], v{vG16}, {WS}, s30 offen sc1\nbuffer_load_dwordx4 v[140:143], v{vG16}, {WS}, s30 offen offset:1024 sc1')
    s(f'buffer_load_dword v140, v{vF8}, {WS}, {sH2} offen sc1\nv_lshlrev_b32 v23, 7, v0\nbuffer_load_dword v140, v23, {XIN}, 0 offen')
    for i in range(16):
        z, jp = i >> 2, i & 3; b = 24 + 8*(i % 8)
        s.W('vm', f'wo{i}')
        if jp == 0: s('s_waitcnt lgkmcnt(0)')
        for u in range(4):
            for f, sel in ((0, sSEL0), (1, sSEL1)):
                d = TL + 8*u + 2*jp + f if in_lds(('o', u, z)) else radd(home['o', u, z], 2*jp + f)
                if isinstance(d, tuple): s(f'v_perm_b32 v{18+f}, v{b+4+u}, v{b+u}, {sel}\nv_accvgpr_write_b32 a{d[1]}, v{18+f}')
                else: s(f'v_perm_b32 v{d}, v{b+4+u}, v{b+u}, {sel}')
        if i + 8 < 16: oissue(i + 8)
        if jp == 3:
            for u in range(4):
                if in_lds(('o', u, z)):
                    slot = home['o', u, z][1]
                    s(f'ds_write_b128 v{vWL}, {vr(TL+8*u,4)} offset:{slot*2048}\nds_write_b128 v{vWL}, {vr(TL+8*u+4,4)} offset:{slot*2048+1024}')
    stamp(s, opts, 1, 126)
    s('v_readfirstlane_b32 s30, v22')
    for r in range(4): s(f'v_mov_b32 v{ONES+r}, 0x3f803f80\nv_mov_b32 v{PM+r}, 0')
    s(f'''s_waitcnt lgkmcnt(0)
          s_cmp_ge_u32 s30, 32
          s_cbranch_scc1 L_ch_initF
          s_branch L_ch_initS''')

def body(mode, opts, fail):
    st = 'sc1' if mode == 'S' else ''
    s = S()
    s(f'L_ch_init{mode}:')
    for w in range(3): s(f's_cmp_eq_u32 {sW}, {w}\ns_cbranch_scc1 L_ch_layer{mode}{w}')
    s(f's_branch L_ch_layer{mode}3')
    out = resolve(s)[0]
    for w in range(4): out += wave(mode, w, opts, fail, st)
    return out

def wave(mode, w, opts, fail, st):
    T = f'{mode}{w}'
    P1 = opts.get('p1', (11, 24, 37, 50)); D2 = opts.get('d2', (48, 54, 48, 43))[w]; AW = 1 if opts.get('align') else -1
    DIR = opts.get('direct', 1)
    DD = opts.get('DD', 2); DD = DD[w] if isinstance(DD, tuple) else DD; HR = VX if DIR else KX
    AN = vFV
    vZ = PM + 1
    tail = S()
    pts = opts.get('tl') or []
    clk = opts.get('clk')
    def P(s, k):
        if clk and k == clk[0]: s('s_memtime s[70:71]\ns_memrealtime s[72:73]')
        if clk and k == clk[1]: s('s_memtime s[74:75]\ns_memrealtime s[76:77]')
        if k in pts: s(f's_memtime s[{70+2*pts.index(k)}:{71+2*pts.index(k)}]')
    def cnt(s, r):
        if opts.get('trace'): s(f's_add_u32 {r}, {r}, 1')
    def zero(s, r, n):
        for i in range(0, n, 2): s(f'v_mov_b64 {vr(r+i,2)}, 0')
    def kxload(s):
        s(f'buffer_load_dwordx4 {vr(KX,4)}, v{vKX}, {WS}, {sKV} offen sc1\nbuffer_load_dwordx4 {vr(KX+4,4)}, v{vKX}, {WS}, {sKV} offen offset:2048 sc1', 'kx')
    def vxload(s):
        s(f's_add_u32 s30, {sKV}, {16384 + 1024*w}\ns_add_u32 s31, s30, 4096')
        s(f'buffer_load_dwordx4 {vr(VX,4)}, v{vG16}, {WS}, s30 offen sc1\nbuffer_load_dwordx4 {vr(VX+4,4)}, v{vG16}, {WS}, s31 offen sc1', 'vx')
    def prestage(s, lo=0, hi=5):
        for i, (t, tau) in list(enumerate(LDS_Q))[lo:hi]:
            for hf in range(2): stage(s, ('q', t, tau), POOL + 8*i, hf, 'pre')
    def kmstore(s):
        if not opts.get('nokv') and not opts.get('nokm'): s(f'buffer_store_dwordx2 {vr(AV+2,2)}, v{vG8}, {WS}, {sKN} offen offset:{512*w} sc1', 'far')
    def vmstore(s):
        if not opts.get('nokv') and not opts.get('novm'): s(f'buffer_store_dwordx2 {vr(AV,2)}, v{vG8}, {WS}, {sKN} offen offset:{2048 + 512*w} sc1', 'far')
    def cflag(s):
        pass
    def touchmask(s):
        if w == 0 and not DIR: s(f's_add_u32 s30, {sPT}, 1\nv_cmp_gt_u32 vcc, s30, v{vFP}\ns_nop 0\ns_cmp_eq_u64 vcc, 0\ns_cselect_b32 s30, {24*32*1024}, 0\ns_add_u32 {sTCH}, {sKV}, s30\ns_add_u32 {sTC2}, {sTCH}, 8192')
    def book(s):
        s(f"""s_add_u32 {sN}, {sN}, 1
              s_and_b32 {sTAG}, {sN}, 1
              s_xor_b32 {sTAG}, {sTAG}, 1
              s_add_u32 s30, {sN}, 3
              s_and_b32 s30, s30, 3
              s_lshl_b32 s30, s30, 13
              s_add_u32 {sMN}, s30, {sG2}
              s_xor_b32 s30, s30, 0x4000
              s_add_u32 {sMC}, s30, {sG2}""")
        s(f's_add_u32 {sCV}, {sCV}, 1' if not opts.get('lc', 0) else f's_mov_b32 {sSPIN}, 0')
        if DIR: s(f's_add_u32 {sTCH}, {sKV}, {16384 + 1024*w}\ns_add_u32 {sTC2}, {sTCH}, 4096\ns_add_u32 {sKV}, {sKV}, {0 if opts.get("samekv") else 24*32*1024}\ns_add_u32 {sPT}, {sPT}, 1')
        if w == AW: s(f'v_mov_b32 v{vFV}, {sCV}')
    s = S()
    s(f"""L_ch_layer{T}:
    s_mov_b32 s30, 0
    s_mul_i32 {sKV}, {sH}, {24*1024}
    {'' if opts.get('qre') else f's_add_u32 {sKV}, {sKV}, s30'}
    s_add_u32 {sKV}, {sKV}, {LB0 + O_QKV}
    s_lshl_b32 {sKM}, {sH}, 12
    s_add_u32 {sKN}, {sKM}, {CH_JUNK}
    s_add_u32 {sKM}, {sKM}, s30
    s_add_u32 {sKM}, {sKM}, {LB0 + O_KVM}
    s_lshl_b32 {sPT}, {sL}, 7
    s_add_u32 {sPT}, {sPT}, 1
    s_mov_b32 {sS}, 0
    s_mov_b32 m0, {LM + 2048*w}""")
    if opts.get('trace'): s('s_mov_b32 s64, 0\ns_mov_b32 s65, 0\ns_mov_b32 s66, 0\ns_mov_b32 s67, 0\ns_mov_b32 s68, 0')
    s(f"""; mem0 gather: row*1024 + 128g + 64f + 4w
    v_bfe_u32 v{MA+8}, v{vG16}, 6, 2
    v_bfe_u32 v{MA+9}, v{vG16}, 4, 1
    v_lshl_add_u32 v{MA+8}, v{MA+8}, 1, v{MA+9}
    v_lshlrev_b32 v{MA+8}, 10, v{MA+8}
    v_lshrrev_b32 v{MA+9}, 8, v{vG16}
    v_lshl_add_u32 v{MA+8}, v{MA+9}, 7, v{MA+8}
    v_bfe_u32 v{MA+9}, v{vG16}, 5, 1
    v_lshl_add_u32 v{MA+8}, v{MA+9}, 6, v{MA+8}
    v_add_u32 v{MA+8}, {4*w}, v{MA+8}""")
    for i in range(8): s(f'buffer_load_dword v{MA+i}, v{MA+8}, {XIN}, 0 offen offset:{512*(i >> 2) + 16*(i & 3)}')
    zero(s, AQ, 32); prestage(s)
    s('s_waitcnt vmcnt(0)')
    for i in range(8): s(f'v_min_u32 v{MA+i}, -2, v{MA+i}')
    s(f'ds_write_b128 v{vG16}, {vr(MA,4)} offset:{LM + 2048*w}\nds_write_b128 v{vG16}, {vr(MA+4,4)} offset:{LM + 2048*w + 1024}')
    poll(s, vF8, sFPO, vFP, sPT, fail)
    if opts.get('trace'): s(f's_lshl_b32 s69, {sL}, 4\ns_add_u32 s69, s69, 2')
    stamp(s, opts, 's69', MA)
    if DIR: kxload(s)
    touchmask(s); book(s)
    s(f'v_mov_b32 v{HR}, -1\ns_waitcnt lgkmcnt(0)\ns_branch L_ch_in{T}')
    pre = resolve(s)[0]
    s = S()
    LC = opts.get('lc', 0)
    EW = opts.get('ew') if w in opts.get('eww', (3,)) else None
    ES = opts.get('es'); LATE = ES is not None and w >= 2
    s(f'L_ch_step{T}:')
    if not LATE:
        if LC: pass
        elif EW:
            s.W('vm', 'early'); s(f'v_cmp_gt_u32 vcc, v{AN}, v{HR+3}\ns_cbranch_vccnz L_ch_warn{T}\nL_ch_hok{T}:')
            tail(f'L_ch_warn{T}:'); cnt(tail, 's67')
            tail(f's_waitcnt vmcnt({3*(DD-1)+2})\nv_cmp_gt_u32 vcc, v{AN}, v{HR}\ns_cbranch_vccnz L_ch_hmiss{T}\ns_waitcnt vmcnt({3*(DD-1)})'); tail.nops(EW[1]); tail(f's_branch L_ch_in{T}')
        else:
            s.W('vm', 'hint'); s(f'v_cmp_gt_u32 vcc, v{AN}, v{HR}\ns_cbranch_vccnz L_ch_hmiss{T}\nL_ch_hok{T}:')
        s.W('vm', 'h2')
        s.append(Op('', 'vm', 'kx0'))
    P(s, 'b0in'); s(f'L_ch_in{T}:\ns_barrier'); P(s, 'b0')
    def rdma(t, x=None): (x or s)(f'ds_read_b128 {vr(MA+4*t,4)}, v{vG16} offset:{LM + 1024*t}', f'ma{t}')
    if LC:
        s(f'L_ch_again{T}:'); rdma(0); rdma(1)
        s(f'ds_read2st64_b32 {vr(AV+4,2)}, v{vF32} offset0:0 offset1:16', 'ck'); rdma(2)
    else: rdma(0); rdma(1); rdma(2)
    PRP = opts.get('prp', ['q5', 'q9', 'q12', 'q15']); CHK = opts.get('chk', 2)
    NQ = len(PRP); PR = AV
    def al(k, x=None):
        if w == AW and k in PRP: r = PRP.index(k); (x or s)(f'buffer_load_dword v{PR+r}, v{vF32}, {WS}, {sAL} offen sc1', f'pr{r}')
    if w == AW: s(f'buffer_store_dword v{vFV}, v{vZ}, {WS}, {sALO} offen {st}')
    if ES: rdma(3)
    elif LC: pass
    elif DIR: s(f'buffer_load_dwordx4 {vr(VX,4)}, v{vG16}, {WS}, {sTCH} offen sc1', 'vx')
    else: kxload(s); s(f's_add_u32 s30, {sKV}, {16384 + 1024*w}\ns_add_u32 s31, s30, 4096')
    def s1(m, i, tt, x=None):
        x = x or s
        t, tau = tt; key = (m, t, tau)
        acc = {'q': AQ, 'k': AK, 'v': AV}[m] + 4*tau
        if in_lds(key):
            j = (LDS_Q if m == 'q' else LDS_K).index((t, tau)); b = POOL + 8*j
            if m == 'k': x.W('ds', f'k{j}')
        else: b = home[key]
        if m == 'q': x.W('ds', f'ma{t}')
        x(smf(acc, MA + 4*t, b))
        if x is s: P(s, f'{m}{i}')
    ORD = [(t, tau) for t in range(4) for tau in range(2)] + [(t, 0) for t in range(4, 8)] + [(t, 1) for t in range(4, 8)]
    def add(d, j): return f'v_add_f32 v{d+j}, v{d+j}, v{d+2+j}'
    def mul(d): return f'v_mul_f32 v{d}, {sC}, v{d}'
    CK = vSEN2
    def sk(x, j, hf): stage(x, ('k',) + LDS_K[j], POOL + 8*j, hf, f'k{j}')
    SG = {n: (j >> 1, j & 1) for j, n in enumerate(opts.get('sg', (7, 9, 11, 12, 14, 16, 18, 21, 22, 23)))}
    NK = 0
    def qpass(x, first):
        rd = dict(zip(opts.get('rd', (0, 1, 3, 4, 6)), range(3, 8)))
        sg = SG
        seq = [('q', i) for i in range(16)] + [('k', 0), ('k', 1)]
        vx2 = opts.get('vxp', (5, 5, 5, 5) if LC else (2, 2, 2, 2))[w]; vms = opts.get('vms', (8, 10, 8, 10))[w]; kms = opts.get('kms', (13, 15, 13, 15))[w]; pc = 4
        if ES:
            e = ES[0]; rd = {e+1: 4, e+2: 5, e+3: 6, e+4: 7}
            sg = {e+7: (0, 0), e+8: (0, 1), e+9: (1, 0), e+10: (1, 1), 15: (2, 0)}
            seq = seq[:8] + seq[16:16+NK] + seq[8:16] + seq[16+NK:]
            vx2 = e+6; vms = -1; kms = -1; pc = 1
        for n, (m, i) in enumerate(seq):
            s1(m, i, ORD[i], x)
            if first and ES:
                if LATE and n == ES[0] - 3: x.W('vm', 'hint'); x(f'v_cmp_gt_u32 vcc, v{AN}, v{HR}')
                if LATE and n == ES[0] - 1: x(f's_cbranch_vccnz L_ch_hmiss{T}\nL_ch_hok{T}:')
                if n == ES[0]:
                    if LATE: x.W('vm', 'h2'); x.append(Op('', 'vm', 'kx0'))
                    x('s_barrier')
                if n == ES[0] + 5: x(f'buffer_load_dwordx4 {vr(VX,4)}, v{vG16}, {WS}, {sTCH} offen sc1', 'vx')
            if n in rd and first: rdma(rd[n], x)
            if first and LC:
                c0 = opts.get('lc0', 0)
                if n == c0: x.W('ds', 'ck'); x(f'v_max_u32 v{AV+4}, v{AV+4}, v{AV+5}\nv_cmp_eq_u32 vcc, -1, v{AV+4}')
                if n == c0 + 2: x(f's_cbranch_vccnz L_ch_hmiss{T}'); x(f'buffer_load_dwordx4 {vr(VX,4)}, v{vG16}, {WS}, {sTCH} offen sc1', 'vx')
            if n in sg: sk(x, *sg[n])
            if first:
                if n == vx2: x(f'buffer_load_dwordx4 {vr(VX+4,4)}, v{vG16}, {WS}, {sTC2} offen sc1', 'vx')
                if n == vms: vmstore(x)
                if n == kms: kmstore(x)
                if n == pc and opts.get('fpw', 0) in (None, w): x(f'v_cmp_gt_u32 {sPW}, {sPT}, v{vFP}')
                if n == 8 and opts.get('fpw', 0) == w: x(f's_cmp_lg_u64 {sPW}, 0')
                if n == 10 and opts.get('fpw', 0) == w: x(f's_cbranch_scc1 L_ch_pwait{T}\nL_ch_pok{T}:')
            if (m, i) == ('q', 13): x(add(AQ, 0))
            if (m, i) == ('q', 14): x(add(AQ, 1))
            if (m, i) == ('q', 15): x(f'v_cmp_u_f32 vcc, v{AQ}, v{AQ+1}')
            if (m, i) == ('k', 0): x(mul(AQ)); x(mul(AQ+1))
    qpass(s, True)
    s(f's_cbranch_vccnz L_ch_missb{T}\nL_ch_okb{T}:')
    if opts.get('fpw', 0) in (None, w): tail(f'L_ch_pwait{T}:'); cnt(tail, 's68'); poll(tail, vF8, sFPO, vFP, sPT, fail, sleep=0); tail(f's_branch L_ch_pok{T}')
    P(s, 'qend')
    ob = [('o',) + x for x in LDS_O]
    sreg = [MA, MA+8, POOL, POOL+8, POOL+16, MA+16, MA+24, POOL+24]
    def so(j, hf): stage(s, ob[j], sreg[j], hf, f'o{j}')
    FW = opts.get('fpw', 0)
    def fpl(k):
        if k != opts.get('fpp', 'k15') or FW not in (None, w): return
        if opts.get('nofp'): s(f'v_mov_b32 v{vFP}, -1')
        else: s(f'buffer_load_dword v{vFP}, v{vF8}, {WS}, {sFPO} offen sc1', 'fp')
    def K(i):
        s1('k', i, ORD[i]); fpl(f'k{i}')
        if 16 + i in SG: sk(s, *SG[16 + i])
        if 16 + i == opts.get('vms', (8, 10, 8, 10))[w]: vmstore(s)
        if 16 + i == opts.get('kms', (13, 15, 13, 15))[w]: kmstore(s)
    def V(i):
        s1('v', i, ORD[i]); fpl(f'v{i}')
        k0 = opts.get('kxp', (0, 0, 0, 0))[w]; k1 = opts.get('kxq', (2, 2, 2, 2))[w]
        if i == k0: s(f'buffer_load_dwordx4 {vr(KX,4)}, v{vKX}, {WS}, {sKV} offen sc1', 'kx')
        if i == k1: s(f'buffer_load_dwordx4 {vr(KX+4,4)}, v{vKX}, {WS}, {sKV} offen offset:2048 sc1', 'kx')
    s(add(AQ+4, 0)); s(add(AQ+4, 1))
    K(2); s(mul(AQ+4)); s(mul(AQ+5))
    K(3)
    if ES: (kmstore if w >= 2 else vmstore)(s)
    s(f'v_cvt_pk_bf16_f32 v{AQ}, v{AQ}, v{AQ+4}\nv_cvt_pk_bf16_f32 v{AQ+1}, v{AQ+1}, v{AQ+5}')
    K(4); s(f'ds_write2_b32 v{vQW}, v{AQ}, v{AQ+1} offset1:4', 'qw')
    K(5); zero(s, AQ+2, 2)
    K(6); zero(s, AQ+4, 2)
    K(7); zero(s, AQ+6, 2)
    K(8)
    if ES and w >= 2: vmstore(s)
    s.W('ds', 'qw'); s('s_barrier'); P(s, 'b1')
    fl = [f'v_mov_b64 {vr(AQ,2)}, 0', f'v_mov_b64 {vr(AV+4,2)}, 0' if LC else '', f'v_mov_b64 {vr(AV,2)}, 0', f'v_mov_b64 {vr(AV+2,2)}, 0']
    def qb(j): s(f'ds_read_b128 {vr(QB+4*j,4)}, v{vQR} offset:{LQ + 576*j}', f'qb{j}')
    QP = opts.get('qp', (9, 10, 11, 12))
    for j in range(4):
        if QP[j] == 8: qb(j)
    for i in range(9, 13):
        K(i)
        for j in range(4):
            if QP[j] == i: qb(j)
        s(fl[i-9])
    K(13); s.W('vm', 'kx0')
    if FW is None: s(f's_cmp_lg_u64 {sPW}, 0')
    s(add(AK, 0))
    K(14)
    if FW is None: s(f's_cbranch_scc1 L_ch_pwait{T}\nL_ch_pok{T}:')
    s(add(AK, 1))
    K(15)
    s(f's_mov_b32 {sKN}, {sKM}')
    s.W('ds', 'qb1'); s(smf(SX, KX, QB)); s(f's_mov_b32 {sMS}, {sMN}')
    s.W('ds', 'qb3'); s(smf(SX, KX+4, QB+8)); s(add(AK+4, 0)); s(add(AK+4, 1))
    V(0); s(f'v_cvt_pk_bf16_f32 v{AK}, v{AK}, v{AK+4}\nv_cvt_pk_bf16_f32 v{AK+1}, v{AK+1}, v{AK+5}')
    V(1); s(f'ds_write2_b32 v{vKW}, v{AK}, v{AK+1} offset1:4', 'kw'); s(add(SX, 0)); s(add(SX, 1))
    V(2); s(f'v_exp_f32 v{SX+2}, v{SX}\nv_exp_f32 v{SX+3}, v{SX+1}'); zero(s, AK+2, 2); s(f'v_cvt_pk_bf16_f32 v{SX+2}, v{SX+2}, v{SX+3}')
    V(3); s(f'ds_write_b32 v{vG16}, v{SX+2} offset:{LP + 4*w}', 'pw')
    V(4); s(f'buffer_store_dword v{vSEN}, v{vPUB}, {WS}, {sMC} offen {st}'); zero(s, AK+4, 2)
    V(5); so(0, 0); zero(s, AK+6, 2)
    V(6); so(0, 1); zero(s, AK, 2)
    V(7); s.W('ds', 'pw'); s('s_barrier'); P(s, 'b2')
    s(f'ds_read_b128 {vr(KA,4)}, v{vG16} offset:{LK}', 'ka0')
    V(8); s(f'ds_read_b128 {vr(KA+4,4)}, v{vG16} offset:{LK + 1024}', 'ka1')
    V(9); s(f'ds_read_b128 {vr(PX,4)}, v{vG16} offset:{LP}', 'px')
    LSW = opts.get('lsw', 1)
    V(10)
    if not LSW: s.W('vm', 'vx'); s(f'v_swap_b32 v{VX+2}, v{VX+4}')
    V(11); so(1, 0)
    if not LSW: s(f'v_swap_b32 v{VX+3}, v{VX+5}')
    s.W('ds', 'ka0'); s(smf(SM, KA, QB)); so(1, 1)
    s.W('ds', 'ka1'); s(smf(SM, KA+4, QB+8))
    fpl('m1')
    s(add(AV, 0))
    s.W('ds', 'px')
    s(f'v_mfma_f32_16x16x32_bf16 {vr(LL,4)}, {vr(ONES,4)}, {vr(PX,4)}, 0'); so(2, 0); s(add(AV, 1)); s(f'v_cvt_pk_bf16_f32 v{AV}, v{AV}, v{AV+1}')
    V(12); so(2, 1); s(add(SM, 0)); s(add(SM, 1))
    V(13); so(3, 0); s(f'v_exp_f32 v{SM+2}, v{SM}')
    V(14); so(3, 1); s(f'v_exp_f32 v{SM+3}, v{SM+1}')
    if not LSW:
        V(15); so(4, 0); s(f's_cmp_eq_u32 {sS}, 63'); s(f'v_cvt_pk_bf16_f32 v{PM}, v{SM+2}, v{SM+3}')
        P(s, 'vend')
        s(f'v_mfma_f32_16x16x32_bf16 {vr(OX,4)}, {vr(VX,4)}, {vr(PX,4)}, 0')
        so(4, 1); s(f'v_mov_b32 v{PM+3}, v{PM}')
        s(f'v_mfma_f32_16x16x32_bf16 {vr(OX+4,4)}, {vr(VX+4,4)}, {vr(PX,4)}, 0')
        s(f's_cselect_b32 s30, 0, {sGH}'); s(add(AV+4, 0)); s(add(AV+4, 1)); s(f'v_cvt_pk_bf16_f32 v{AV+1}, v{AV+4}, v{AV+5}')
        s(f'v_mfma_f32_16x16x16_bf16 {vr(LL,4)}, {vr(ONES,2)}, {vr(PM,2)}, {vr(LL,4)}')
        s('s_nop 0')
        s(f'v_mfma_f32_16x16x16_bf16 {vr(OX,4)}, {vr(AV,2)}, {vr(PM,2)}, {vr(OX,4)}')
        s(f'v_mfma_f32_16x16x16_bf16 {vr(OX+4,4)}, {vr(AV,2)}, {vr(PM+2,2)}, {vr(OX+4,4)}')
    else:
        V(15); s.W('vm', 'vx'); s(f's_cmp_eq_u32 {sS}, 63'); s(f'v_cvt_pk_bf16_f32 v{PM}, v{SM+2}, v{SM+3}\nv_swap_b32 v{VX+2}, v{VX+4}\nv_swap_b32 v{VX+3}, v{VX+5}')
        P(s, 'vend')
        s(f'v_mfma_f32_16x16x16_bf16 {vr(LL,4)}, {vr(ONES,2)}, {vr(PM,2)}, {vr(LL,4)}')
        s(f's_cselect_b32 s30, 0, {sGH}'); s(add(AV+4, 0)); s(add(AV+4, 1))
        s(f'v_mfma_f32_16x16x32_bf16 {vr(OX,4)}, {vr(VX,4)}, {vr(PX,4)}, 0')
        so(4, 0); s(f'v_cvt_pk_bf16_f32 v{AV+1}, v{AV+4}, v{AV+5}')
        s(f'v_mfma_f32_16x16x32_bf16 {vr(OX+4,4)}, {vr(VX+4,4)}, {vr(PX,4)}, 0')
        so(4, 1); s(f'v_mov_b32 v{PM+3}, v{PM}\ns_nop 0')
        s(f'v_mfma_f32_16x16x16_bf16 {vr(OX,4)}, {vr(AV,2)}, {vr(PM,2)}, {vr(OX,4)}')
        s('s_nop 1')
        s(f'v_mfma_f32_16x16x16_bf16 {vr(OX+4,4)}, {vr(AV,2)}, {vr(PM+2,2)}, {vr(OX+4,4)}')
    s(f's_nop 0\nv_rcp_f32 v{LL+2}, v{LL}\nv_subrev_u32 v{LL+1}, {sGL}, v{LL}\nv_cmp_le_u32 vcc, s30, v{LL+1}')
    s(f'L_ch_norm{T}:'); P(s, 'norm')
    for r in range(4): s(f'v_mul_f32 v{OX+r}, v{LL+2}, v{OX+r}')
    for r in range(4): s(f'v_mul_f32 v{OX+4+r}, v{LL+2}, v{OX+4+r}')
    for r in range(4): s(f'v_cvt_pk_bf16_f32 v{OX+r}, v{OX+r}, v{OX+4+r}')
    s(f'ds_write_b128 v{vG16}, {vr(OX,4)} offset:{LO + 1024*w}', 'ow')
    P(s, 'ow')
    s(f's_cbranch_vccnz L_ch_safe{T}')
    AWO = AQ
    NOWN = opts.get('nown', 2)
    for u in range(NOWN):
        s(smf(AWO + 4*u, OX, home['o', u, 0]))
        if u == 0: s(f's_add_u32 {sS}, {sS}, 1\ns_add_u32 {sKM}, {sKM}, {32*4096}')
    P(s, 'own'); s.W('ds', 'ow'); s('s_barrier'); P(s, 'b3')
    OA = [OX, OX+4, SX, SM]
    for z in (1, 2, 3): s(f'ds_read_b128 {vr(OA[z],4)}, v{vG16} offset:{LO + 1024*((w+z) & 3)}', f'oa{z}')
    for u in range(NOWN, 4): s(smf(AWO + 4*u, OX, home['o', u, 0]))
    def epi(u, part):
        d = AWO + 4*u
        if part == 0: s(f'v_cvt_pk_bf16_f32 v{d}, v{d}, v{d+2}\nv_cvt_pk_bf16_f32 v{d+1}, v{d+1}, v{d+3}\nv_and_or_b32 v{d}, v{d}, -2, {sTAG}')
        else: s(f'buffer_store_dwordx2 {vr(d,2)}, v{vST}, {WS}, {"0" if u < 2 else s4K} offen offset:{2048*(u & 1)} {st}')
    late = {(0,1): (5,0), (0,2): (5,1), (0,3): (6,0), (1,1): (6,1), (1,2): (7,0), (2,1): (7,1)}
    for u in range(4):
        for z in (1, 2, 3):
            key = ('o', u, z)
            if u == 0: s.W('ds', f'oa{z}')
            if in_lds(key): j = ob.index(key); s.W('ds', f'o{j}'); b = sreg[j]
            else: b = home[key]
            s(smf(AWO + 4*u, OA[z], b)); P(s, f'o{u}{z}')
            if (u, z) in late: so(*late[u, z])
            if u > 0 and z == 2: epi(u-1, 0)
            if u > 0 and z == 3: epi(u-1, 1)
    SEL, RA = OX, OX+4
    s(f'ds_read_b128 {vr(SEL,4)}, v{vG16} offset:{LSEL}', 'sel')
    s('s_nop 5')
    epi(3, 0); epi(3, 1); P(s, 'st3')
    idle = S()
    idle(f'v_mov_b32 v{AN}, {sCV}'); zero(idle, AQ, 12); zero(idle, AV+4, 12); zero(idle, AQ+12, 4)
    def fill(n):
        k = min(n, len(idle)); s.extend(idle[:k]); del idle[:k]; s.nops(n - k)
    G = [MA, MA+8, MA+16]
    def h1l(t, r): t(f'buffer_load_dwordx4 {vr(G[r],4)}, v{vG16}, {WS}, {sG1} offen sc1\nbuffer_load_dwordx4 {vr(G[r]+4,4)}, v{vG16}, {WS}, {sG1} offen offset:1024 sc1')
    def h2l(t, r): t(f'buffer_load_dwordx4 {vr(G[r],4)}, v{vG16}, {WS}, {sMS} offen sc1\nbuffer_load_dwordx4 {vr(G[r]+4,4)}, v{vG16}, {WS}, {sMS} offen offset:1024 sc1')
    TM = MA + 30
    def h1f(t, r, out):
        b = G[r]
        t(f"""s_waitcnt vmcnt({out+1})
              v_mfma_f32_16x16x32_bf16 {vr(RA,4)}, {vr(SEL,4)}, {vr(b,4)}, 0
              v_bitop3_b32 v{TM}, v{b}, v{b+2}, {sTAG} bitop3:0x7e
              s_waitcnt vmcnt({out})
              v_mfma_f32_16x16x32_bf16 {vr(RA,4)}, {vr(SEL,4)}, {vr(b+4,4)}, {vr(RA,4)}
              v_bitop3_b32 v{TM+1}, v{b+4}, v{b+6}, {sTAG} bitop3:0x7e
              v_bitop3_b32 v{TM}, v{TM}, v{TM+1}, 1 bitop3:0xa8
              v_cmp_ne_u32 vcc, 0, v{TM}""")
    def h2f(t, r, out):
        b = G[r]
        t(f"""s_waitcnt vmcnt({out})
              v_max3_u32 v{TM+1}, v{b}, v{b+1}, v{b+2}
              v_max3_u32 v{TM+1}, v{TM+1}, v{b+3}, v{b+4}
              v_max3_u32 v{TM+1}, v{TM+1}, v{b+5}, v{b+6}
              v_max_u32 v{TM+1}, v{TM+1}, v{b+7}
              v_cmp_eq_u32 vcc, -1, v{TM+1}
              ds_write_b128 v{vG16}, {vr(b,4)} offset:{LM + 2048*w}
              ds_write_b128 v{vG16}, {vr(b+4,4)} offset:{LM + 2048*w + 1024}""")
    def retry(tag, ld, fin, c):
        tail(f's_mov_b32 {sSPIN}, 0'); cnt(tail, c)
        for r in range(2): ld(tail, r); tail('s_nop 9')
        tail(f'L_ch_poll{tag}{T}:')
        for r in range(3):
            ld(tail, (r+2) % 3); fin(tail, r, 4); tail(f's_cbranch_vccz L_ch_got{tag}{T}')
        tail(f's_add_u32 {sSPIN}, {sSPIN}, 1\ns_cmp_lt_u32 {sSPIN}, {SPIN_MAX}\ns_cbranch_scc1 L_ch_poll{tag}{T}\ns_branch {fail}')
        tail(f'L_ch_got{tag}{T}:')
    if opts.get('solo'):
        s.extend(idle); del idle[:]; prestage(s); book(s); s(f's_waitcnt vmcnt(0)\ns_branch L_ch_solo{T}')
    D1 = opts.get('D1', 2); G1 = opts.get('g1', (42, 40, 38, 36)); G1 = G1[w] if isinstance(G1, tuple) else G1; D1 = D1[w] if isinstance(D1, tuple) else D1
    G2_ = opts.get('g2', (32, 32, 36, 28)); G2_ = G2_[w] if isinstance(G2_, tuple) else G2_
    PW = opts.get('pw', (0, 4, 1, 0)); PW = PW[w] if isinstance(PW[0], tuple) else PW
    if opts.get('pw0'): prestage(s, 0, PW[0])
    if opts.get('sbar', 1): s('s_barrier')
    if not opts.get('pw0'): x = S(); prestage(x, 0, PW[0]); idle[0:0] = x
    fill(P1[w])
    P(s, 'h1'); h1l(s, 0)
    for r in range(1, D1): fill(G1); h1l(s, r)
    s.extend(idle)
    s(f'ds_read_b64 {vr(AV+2,2)}, v{vG8} offset:{LK + 512*w}', 'kre')
    PS = PW[0] + PW[1]; prestage(s, PW[0], PS); s.nops(opts.get('t1', (0, 0, 0, 0))[w]); s.W('ds', 'sel')
    h1f(s, 0, 2*(D1-1)); s(f's_nop 3\ns_cbranch_vccnz L_ch_missa{T}\nL_ch_oka{T}:')
    tail(f'L_ch_missa{T}:\ns_mov_b32 {sSPIN}, 0\nL_ch_polla{T}:')
    for r in list(range(1, D1)) + [0]:
        cnt(tail, 's65'); h1l(tail, (r+D1-1) % D1); h1f(tail, r, 2*(D1-1)); tail(f's_nop 3\ns_cbranch_vccz L_ch_oka{T}')
    tail(f's_add_u32 {sSPIN}, {sSPIN}, 1\ns_cmp_lt_u32 {sSPIN}, {SPIN_MAX}\ns_cbranch_scc1 L_ch_polla{T}\ns_branch {fail}')
    P(s, 'h1ok')
    GATE = opts.get('gate')
    ann = f'buffer_store_dword v{AN}, v{vZ}, {WS}, {sH2O} offen {st}'
    if GATE: s(ann)
    s(f"""v_add_f32_dpp v{RA}, v{RA}, v{RA} row_ror:4 row_mask:0xf bank_mask:0xf
          v_add_f32_dpp v{RA+1}, v{RA+1}, v{RA+1} row_ror:4 row_mask:0xf bank_mask:0xf
          s_nop 0
          v_add_f32_dpp v{RA}, v{RA}, v{RA} row_ror:8 row_mask:0xf bank_mask:0xf
          v_add_f32_dpp v{RA+1}, v{RA+1}, v{RA+1} row_ror:8 row_mask:0xf bank_mask:0xf
          v_cvt_pk_bf16_f32 v{TM}, v{RA}, v{RA+1}
          {f'v_min_u32 v{TM}, -2, v{TM}' if opts.get('vmin', 1) else ''}
          buffer_store_dword v{TM}, v{vPUB}, {WS}, {sMS} offen {st}""")
    def dma(t, tag): t(f'buffer_load_dwordx4 v{vG16}, {WS}, {sMS} offen sc1 lds\nbuffer_load_dwordx4 v{vG16}, {WS}, {sMS} offen offset:1024 sc1 lds', tag)
    def prb(t, r, tag='x'): t(f'buffer_load_dword v{HR+r}, v{vF32}, {WS}, {sH2} offen sc1', tag)
    def clamp(t):
        for r in range(4): t(f'v_min_u32 v{AV+r}, -2, v{AV+r}')
    idle = S(); book(idle); idle.W('ds', 'kre'); clamp(idle)
    if GATE:
        NG, GG = GATE
        fill(D2)
        for r in range(NG):
            prb(s, r, f'g{r}')
            if r == 0: prestage(s, PS, 5)
            if r < NG-1: fill(GG)
        s.extend(idle); P(s, 'pub')
        s.W('vm', 'g0'); s(f'v_cmp_gt_u32 vcc, v{AN}, v{HR}\ns_cbranch_vccnz L_ch_g1{T}'); P(s, 'h2'); dma(s, 'h2'); s(f'L_ch_gok{T}:')
        for r in list(range(1, NG)) + [0]:
            tail(f'L_ch_g{r}{T}:'); cnt(tail, 's66'); prb(tail, (r+NG-1) % NG)
            if r == 0: tail(f's_add_u32 {sSPIN}, {sSPIN}, 1\ns_cmp_lt_u32 {sSPIN}, {SPIN_MAX}\ns_cbranch_scc0 {fail}')
            tail(f's_waitcnt vmcnt({NG-1})\nv_cmp_gt_u32 vcc, v{AN}, v{HR+r}\ns_cbranch_vccnz L_ch_g{(r+1) % NG}{T}'); dma(tail, 'x'); tail(f's_branch L_ch_gok{T}')
        s(f's_mov_b32 {sSPIN}, 0\nv_cmp_gt_u32 vcc, {sPT}, v{vFP}')
    else:
        if not LC: s.nops(opts.get('da', 4)); s(ann)
        P(s, 'pub')
        prestage(s, PS, PS + PW[2]); prestage(idle, PS + PW[2], 5); rest = max(0, D2 - 2*PW[2] - (0 if LC else opts.get('da', 4)))
        if EW: s.nops(rest - EW[0]); prb(s, 3, 'early'); s.nops(EW[0] - 3)
        else: s.nops(rest)
        P(s, 'h2')
        def shot(t, r):
            if not LC: prb(t, r, 'hint' if r == 0 else 'x')
            dma(t, 'h2' if r == 0 else 'x')
        shot(s, 0)
        for r in range(1, DD): fill(G2_); shot(s, r)
        s.extend(idle)
        if LC:
            tail(f'L_ch_hmiss{T}:'); cnt(tail, 's66'); shot(tail, 1)
            tail(f's_add_u32 {sSPIN}, {sSPIN}, 1\ns_cmp_lt_u32 {sSPIN}, {SPIN_MAX}\ns_cbranch_scc0 {fail}\ns_waitcnt lgkmcnt(0)\ns_nop 1'); zero(tail, AQ, 8); tail.nops(opts.get('lcd', 0)); tail(f's_branch L_ch_again{T}')
        else:
            tail(f'L_ch_hmiss{T}:\ns_mov_b32 {sSPIN}, 0\nL_ch_hpoll{T}:')
            for r in list(range(1, DD)) + [0]:
                cnt(tail, 's66'); shot(tail, (r+DD-1) % DD)
                tail(f's_waitcnt vmcnt({3*(DD-1)+2})\nv_cmp_gt_u32 vcc, v{AN}, v{HR+r}\ns_cbranch_vccz L_ch_hok{T}')
            tail(f's_add_u32 {sSPIN}, {sSPIN}, 1\ns_cmp_lt_u32 {sSPIN}, {SPIN_MAX}\ns_cbranch_scc1 L_ch_hpoll{T}\ns_branch {fail}')
    s.nops(opts.get('t2', (0, 0, 0, 0))[w])
    if opts.get('solo'): s(f'L_ch_solo{T}:\nv_mov_b32 v{HR}, -1')
    P(s, 'end')
    if opts.get('trace'):
        s(f's_cmp_eq_u32 {sS}, 13\ns_cbranch_scc1 L_ch_m0{T}\ns_cmp_eq_u32 {sS}, 63\ns_cbranch_scc1 L_ch_m1{T}\nL_ch_mb{T}:')
        tail(f'L_ch_m0{T}:\ns_memtime s[58:59]\ns_memrealtime s[60:61]\ns_mov_b32 s65, 0\ns_mov_b32 s66, 0\ns_mov_b32 s67, 0\ns_mov_b32 s68, 0\ns_branch L_ch_mb{T}')
        tail(f'L_ch_m1{T}:\ns_memtime s[62:63]\ns_memrealtime s[98:99]\ns_waitcnt lgkmcnt(0)\ns_sub_u32 s64, s62, s58\ns_sub_u32 s60, s98, s60\ns_branch L_ch_mb{T}')
    s('s_waitcnt lgkmcnt(0)')
    if clk: s('s_sub_u32 s74, s74, s70\ns_sub_u32 s76, s76, s72\ns_add_u32 s67, s67, s74\ns_add_u32 s68, s68, s76')
    if pts:
        s(f's_cmp_eq_u32 {sS}, {opts.get("tls", 41)}\ns_cbranch_scc0 L_ch_step{T}')
        s(f's_lshl_b32 s100, {sROLE}, 2\ns_add_u32 s100, s100, {sW}\ns_lshl_b32 s100, s100, 9\ns_add_u32 s100, s100, {TRACE+256}\nv_mov_b32 v{TM-4}, s100')
        for i in range(len(pts)): s(f'v_mov_b32 v{TM-3}, s{70+2*i}\nbuffer_store_dword v{TM-3}, v{TM-4}, {WS}, 0 offen offset:{4*i}\ns_waitcnt vmcnt(0)')
    s(f's_branch L_ch_step{T}')
    if opts.get('hoist', 1): s = hoist_waits(s)
    for pat in opts.get('drop', []):
        lo = [i for i, o in enumerate(s) if o.t == f'L_ch_in{T}:'][0] + 2; hi = [i for i, o in enumerate(s) if o.tag == 'oa1'][0] - 2
        s = S(o for i, o in enumerate(s) if not (lo <= i < hi and o.t and o.t.startswith(pat) and 'safe' not in o.t))
    step = resolve(s, pre_vm=['h2']*2 if GATE else ['early', 'hint'] + ['h2']*2 + ['x']*((2 if LC else 3)*(DD-1)))[0]
    if opts.get('model') == T: model(step[step.index(f'L_ch_in{T}:'):], True)
    tail(f'L_ch_missb{T}:\ns_mov_b32 {sSPIN}, 0\ns_sub_u32 s30, {sMS}, {2048*w}\ns_add_u32 s31, s30, 4096\ns_waitcnt lgkmcnt(0)'); cnt(tail, 's68')
    for t in range(8): rdma(t, tail)
    tail('s_waitcnt lgkmcnt(0)'); prestage(tail); tail(f's_branch L_ch_chkb{T}\nL_ch_pollb{T}:')
    for t in range(8): tail(f'buffer_load_dwordx4 {vr(MA+4*t,4)}, v{vG16}, {WS}, s3{t >> 2} offen offset:{1024*(t & 3)} sc1')
    tail(f's_add_u32 {sSPIN}, {sSPIN}, 1\ns_cmp_lt_u32 {sSPIN}, {SPIN_MAX}\ns_cbranch_scc0 {fail}\ns_waitcnt vmcnt(0)\nL_ch_chkb{T}:\nv_max_u32 v{CK}, v{MA}, v{MA+1}')
    for r in range(2, 32, 2): tail(f'v_max3_u32 v{CK}, v{CK}, v{MA+r}, v{MA+r+1}')
    tail(f'v_cmp_eq_u32 vcc, -1, v{CK}\ns_cbranch_vccnz L_ch_pollb{T}')
    zero(tail, AQ, 16); tail('s_waitcnt lgkmcnt(0)\ns_nop 0')
    qpass(tail, False); tail(f's_branch L_ch_okb{T}')
    t = tail
    t(f'L_ch_last{T}:')
    t(f'ds_read_b64 {vr(AV+2,2)}, v{vG8} offset:{LK + 512*w}\ns_waitcnt lgkmcnt(0)')
    clamp(t); kmstore(t); vmstore(t)
    t(f's_sub_u32 {sN}, {sN}, 1')
    if opts.get('trace'): t('s_add_u32 s69, s69, 1')
    stamp(t, opts, 's69', MA)
    if opts.get('trace'):
        for i, r in enumerate(('s64', 's65', 's66', 's67', 's68', 's60')):
            t(f'v_mov_b32 v{MA}, {r}\nv_add_u32 v{MA+1}, 4, v{MA+1}\nbuffer_store_dword v{MA}, v{MA+1}, {WS}, 0 offen\ns_nop 1')
    if opts.get('dbgt'): t(f's_lshl_b32 s30, {sL}, 3\ns_add_u32 s30, s30, 48\nv_mov_b32 v{MA+2}, s30\nv_mov_b32 v{MA}, s64\nv_mov_b32 v{MA+1}, s60\nglobal_store_dwordx2 v{MA+2}, v[{MA}:{MA+1}], s[6:7]')
    t(f"""s_waitcnt vmcnt(0) lgkmcnt(0)
          s_barrier
          s_add_u32 {sL}, {sL}, 1
          s_cmp_lt_u32 {sL}, {opts.get('nl', 2)}
          s_cbranch_scc1 L_ch_layer{T}
          s_endpgm""")
    m, m2 = LL + 1, LL + 3
    t(f'L_ch_safe{T}:\ns_cmp_eq_u32 {sS}, 63\ns_cbranch_scc1 L_ch_last{T}\nv_max3_f32 v{m}, v{SX}, v{SX+1}, v{SM}\nv_max_f32 v{m}, v{m}, v{SM+1}')
    xreduce(t, m, m2, 'v_max_f32', dpp=())
    t(f'''ds_write_b32 v{vG16}, v{m} offset:{LMX + 4*w}
          s_waitcnt lgkmcnt(0)
          s_barrier
          ds_read_b128 {vr(PX,4)}, v{vG16} offset:{LMX}
          s_waitcnt lgkmcnt(0)
          v_max3_f32 v{m}, v{PX}, v{PX+1}, v{PX+2}
          v_max_f32 v{m}, v{m}, v{PX+3}''')
    for b in (SX, SM):
        for r in range(2): t(f'v_sub_f32 v{b+2+r}, v{b+r}, v{m}\nv_exp_f32 v{b+2+r}, v{b+2+r}')
    t(f'''s_nop 0
          v_cvt_pk_bf16_f32 v{SX+2}, v{SX+2}, v{SX+3}
          v_cvt_pk_bf16_f32 v{PM}, v{SM+2}, v{SM+3}
          v_cvt_pk_bf16_f32 v{PM+3}, v{SM+2}, v{SM+3}
          ds_write_b32 v{vG16}, v{SX+2} offset:{LP + 4*w}
          s_waitcnt lgkmcnt(0)
          s_barrier
          ds_read_b128 {vr(PX,4)}, v{vG16} offset:{LP}
          s_waitcnt lgkmcnt(0)
          v_mfma_f32_16x16x32_bf16 {vr(LL,4)}, {vr(ONES,4)}, {vr(PX,4)}, 0
          v_mfma_f32_16x16x32_bf16 {vr(OX,4)}, {vr(VX,4)}, {vr(PX,4)}, 0
          v_mfma_f32_16x16x32_bf16 {vr(OX+4,4)}, {vr(VX+4,4)}, {vr(PX,4)}, 0
          s_nop 7
          v_mfma_f32_16x16x16_bf16 {vr(LL,4)}, {vr(ONES,2)}, {vr(PM,2)}, {vr(LL,4)}
          v_mfma_f32_16x16x16_bf16 {vr(OX,4)}, {vr(AV,2)}, {vr(PM,2)}, {vr(OX,4)}
          v_mfma_f32_16x16x16_bf16 {vr(OX+4,4)}, {vr(AV,2)}, {vr(PM+2,2)}, {vr(OX+4,4)}
          s_nop 7
          v_rcp_f32 v{LL+2}, v{LL}
          s_mov_b64 vcc, 0
          s_branch L_ch_norm{T}''')
    return pre + step + resolve(tail)[0]

def role_chain(opts):
    fail = 'L_ch_fail'
    s = S(); setup(s, opts, fail)
    return resolve(s)[0] + body('F', opts, fail) + [f'{fail}:', 's_endpgm'] + (['L_ch_initS:', 's_endpgm'] if opts.get('fastonly') else body('S', opts, fail))
```

```python
from common import *
from role_p import dense_pairs

def rep_rank(s, sR, sI, base):
    s(f's_lshr_b32 {sR}, {sROLE}, 5\ns_sub_u32 {sR}, {sR}, 5\ns_and_b32 {sI}, {sROLE}, 31\ns_sub_u32 {sI}, {sI}, {base}')
def layer_base(s, sHS, sLB, sHL):
    s(f's_lshr_b32 s30, {sHS}, 7\ns_mul_i32 {sLB}, s30, {LSTR}\ns_add_u32 {sLB}, {sLB}, {LB0}\ns_and_b32 {sHL}, {sHS}, 127')
def flag(s, vval, val, vzero, soff):
    s(f'v_mov_b32 v{vval}, {val}\ns_mov_b64 exec, 1\nbuffer_store_dword v{vval}, v{vzero}, {WS}, {soff} offen sc1\ns_mov_b64 exec, -1')
def lflag(s, sM, tail, vval, val, vzero, soff):
    s(f'v_mov_b32 v{vval}, {val}\ns_mov_b64 exec, 1'); dual(s, sM, tail, f'buffer_store_dword v{vval}, v{vzero}, {WS}, {soff} offen @'); s('s_mov_b64 exec, -1')
def xpt(s, opts, vt):
    s(f's_sub_u32 s92, {sROLE}, 160\ns_lshl_b32 s92, s92, 2\ns_add_u32 s92, s92, {sW}'); pretouch(s, opts, 's92', 384, vt)
def tstamp(s, opts, sHS, vt, k=0):
    if opts.get('trace') and not opts.get('dbgt'):
        s(f's_mul_i32 s69, {sHS}, 21846\ns_lshr_b32 s69, s69, 16\ns_add_u32 s69, s69, 2'); stamp(s, opts, 's69', vt)

def role_x2(opts):
    s = S(); fail = 'L_x2_fail'; tl = TL(opts, 'x2')
    sR, sNB, sHS, sLB, sHL, sO, sT, sFI, sFO, sX, sM = [f's{i}' for i in range(32, 43)]; tail = S()
    vL16, vF, vFt, vA, vB, vRes, vLW, vLR = range(1, 9)
    AC, RS, PT, OB = 12, 20, 24, 128
    s('L_role_x2:'); rep_rank(s, sR, sNB, 0)
    s(f'''v_lshlrev_b32 v{vL16}, 4, v0
    v_lshrrev_b32 v10, 4, v0
    v_and_b32 v11, 15, v0
    v_lshlrev_b32 v{vA}, 13, v10
    v_lshl_add_u32 v{vA}, v11, 2, v{vA}
    s_lshl_b32 s30, {sW}, 20
    s_lshl_b32 s31, {sNB}, 6
    s_add_u32 s30, s30, s31
    v_add_u32 v{vA}, s30, v{vA}
    v_add_u32 v{vB}, 0x400, v{vA}
    v_lshlrev_b32 v{vRes}, 10, v11
    v_lshl_add_u32 v{vRes}, v10, 4, v{vRes}
    v_add_u32 v{vRes}, s31, v{vRes}
    s_lshl_b32 s30, {sW}, 11
    v_add_u32 v{vLW}, s30, v{vL16}
    v_mov_b32 v{vLR}, v{vL16}
    v_and_b32 v{vF}, 7, v0
    v_lshlrev_b32 v{vF}, 2, v{vF}
    s_lshl_b32 s30, {sR}, 7
    s_lshl_b32 s31, {sW}, 5
    s_add_u32 {sFI}, s30, s31
    s_add_u32 {sFI}, {sFI}, {F_X1}
    s_lshl_b32 s31, {sNB}, 2
    s_add_u32 {sFO}, s30, s31
    s_add_u32 {sFO}, {sFO}, {F_X2}
    s_mov_b32 {sHS}, {sR}''')
    set_srd(s, 16, 'Wo', 4*MB)
    s(f's_lshl_b32 s92, {sW}, 20\ns_lshl_b32 s31, {sNB}, 6\ns_add_u32 s92, s92, s31\ns_lshl_b32 s93, {sW}, 15')
    load_pairs_lds(s, [(WSR, (32*ks + 4*jp)*1024, [(('a', 8*ks + 2*jp + jj), ('a', 8*ks + 4 + 2*jp + jj)) for jj in range(2)]) for ks in range(32) for jp in range(2)], (16, 8), 1024, 2, 's92', 's93', 32, vA, 16)
    s('s_barrier')
    set_srd(s, 12, 'x', 2*MB)
    xpt(s, opts, 10)
    wait_init(s, 10, 11, fail); die_mode(s, sM, 10, 11)
    s('L_x2_loop:'); layer_base(s, sHS, sLB, sHL)
    s(f'''s_lshl_b32 {sO}, {sHL}, 17
    s_lshl_b32 s30, {sW}, 15
    s_add_u32 {sO}, {sO}, s30
    s_add_u32 {sO}, {sO}, {sLB}
    s_add_u32 {sO}, {sO}, {O_O}
    s_add_u32 {sT}, {sHS}, 1
    s_lshl_b32 {sX}, {sHL}, 14''')
    tl(s, 'top'); poll(s, vF, sFI, vFt, sT, fail, sleep=0); tl(s, 'poll')
    s(f'''s_cmp_lg_u32 {sW}, 0
    s_cbranch_scc1 L_x2_r2
    s_cmp_ge_u32 {sHS}, 128
    s_cbranch_scc1 L_x2_r1
    buffer_load_dwordx4 {vr(RS,4)}, v{vRes}, {XIN}, {sX} offen
    L_x2_r2:''')
    tail(f'''L_x2_r1:
    s_lshl_b32 s30, {sNB}, 10
    s_add_u32 s30, s30, {sX}
    s_add_u32 s30, s30, {LB0 + O_X2}
    buffer_load_dwordx4 {vr(RS,4)}, v{vL16}, {WS}, s30 offen sc1
    s_branch L_x2_r2''')
    AH = opts.get('x2ah', 6)
    def ld(ks):
        if ks and ks & 3 == 0: s(f's_add_u32 {sO}, {sO}, 4096')
        s(f'buffer_load_dwordx4 {vr(OB+4*ks,4)}, v{vL16}, {WS}, {sO} offen offset:{1024*(ks & 3)} sc1', f'o{ks}')
    for ks in range(AH): ld(ks)
    for ks in range(32):
        tl(s, f'w{ks}'); s.W('vm', f'o{ks}'); tl(s, f'g{ks}')
        for t in range(2):
            s(f'v_mfma_f32_16x16x32_bf16 {vr(AC+4*t,4)}, a[{8*ks+4*t}:{8*ks+4*t+3}], {vr(OB+4*ks,4)}, {"0" if ks == 0 else vr(AC+4*t,4)}')
            if t == 0 and ks + AH < 32: ld(ks + AH)
    s(f'''s_nop 7
    ds_write_b128 v{vLW}, {vr(AC,4)}
    ds_write_b128 v{vLW}, {vr(AC+4,4)} offset:1024
    s_waitcnt lgkmcnt(0)
    s_barrier
    s_cmp_lg_u32 {sW}, 0
    s_cbranch_scc1 L_x2_next''')
    tl(s, 'bar')
    for i in range(6): s(f'ds_read_b128 {vr(PT+4*i,4)}, v{vLR} offset:{2048 + 1024*i}', f'p{i}')
    s('s_waitcnt vmcnt(0)')
    for r in range(4):
        s(f'v_lshlrev_b32 v10, 16, v{RS+r}\nv_and_b32 v11, 0xffff0000, v{RS+r}\nv_add_f32 v{AC+r}, v{AC+r}, v10\nv_add_f32 v{AC+4+r}, v{AC+4+r}, v11')
    for i in range(6):
        s.W('ds', f'p{i}')
        for r in (0, 2): s(f'v_pk_add_f32 {vr(AC+4*(i&1)+r,2)}, {vr(AC+4*(i&1)+r,2)}, {vr(PT+4*i+r,2)}')
    for r in range(4): s(f'v_cvt_pk_bf16_f32 v{RS+r}, v{AC+r}, v{AC+4+r}')
    s(f'''s_lshl_b32 s30, {sNB}, 10
    s_add_u32 s30, s30, {sX}
    s_add_u32 s30, s30, {sLB}
    s_add_u32 s30, s30, {O_X1L}''')
    dual(s, sM, tail, f'buffer_store_dwordx4 {vr(RS,4)}, v{vL16}, {WS}, s30 offen @')
    s('s_waitcnt vmcnt(0)')
    tl(s, 'ack'); lflag(s, sM, tail, 10, sT, vF, sFO); tstamp(s, opts, sHS, 10)
    s('L_x2_next:'); tl.dump(s, f's_sub_u32 s30, {sHS}, {tl.at or 60}\ns_cmp_lt_u32 s30, 3', 10)
    s(f'''
    v_xor_b32 v{vLW}, 0x2000, v{vLW}
    v_xor_b32 v{vLR}, 0x2000, v{vLR}
    s_add_u32 {sHS}, {sHS}, 3
    s_cmp_lt_u32 {sHS}, {128*opts.get('nl', 2)}
    s_cbranch_scc1 L_x2_loop
    {fail}:
    s_endpgm''')
    return resolve(s)[0] + resolve(tail)[0]

def role_x3(opts):
    s = S(); fail = 'L_x3_fail'; tl = TL(opts, 'x3')
    sR, sNB, sHS, sLB, sHL, sO, sT, sFI, sFO, sH, sC, sB, sW4, sG = [f's{i}' for i in range(32, 46)]
    sX = ['s46', 's47', 's48']
    vF, vFt, vA, vL16, vLR, vSF, vSW, vSR, vBP, vQK, vV, vCP = range(1, 13); vTA, vTS, vTT = 122, 123, 124
    AF, SF, GM, ONES, AC, CS, ST, CP = 16, 32, 48, 56, 60, 84, 108, 120
    U = SF; RQ, NQ = 118, 119
    st = Stats(vSF, SF, GM, ONES, vSW, vSR, vBP, ST, 50)
    def mm(d, m, ks, a):
        wv = f'a[{64*m+4*ks}:{64*m+4*ks+3}]'
        return f'v_mfma_f32_16x16x32_bf16 {vr(d+4*m,4)}, {wv if m < 2 else a}, {a if m < 2 else wv}, {"0" if ks == 0 else vr(d+4*m,4)}'
    s('L_role_x3:'); rep_rank(s, sR, sNB, 16)
    s(f"""s_lshl_b32 {sH}, {sNB}, 2
    s_add_u32 {sH}, {sH}, {sW}
    v_lshrrev_b32 v13, 4, v0
    v_and_b32 v14, 15, v0
    v_mul_u32_u24 v{vA}, {8*3072}, v13
    v_lshl_add_u32 v{vA}, v14, 1, v{vA}
    s_lshl_b32 s30, {sH}, 5
    v_add_u32 v{vA}, s30, v{vA}
    v_lshlrev_b32 v{vF}, 2, v14
    v_lshlrev_b32 v14, 4, v14
    v_and_b32 v15, 1, v13
    v_lshl_add_u32 v14, v15, 3, v14
    v_lshrrev_b32 v13, 1, v13
    v_lshl_add_u32 v{vQK}, v13, 9, v14
    v_lshl_add_u32 v{vV}, v13, 8, v14
    v_lshlrev_b32 v{vL16}, 4, v0
    s_lshl_b32 {sFI}, {sR}, 7
    s_add_u32 {sFI}, {sFI}, {F_X2}
    s_lshl_b32 {sFO}, {sH}, 7
    s_lshl_b32 s30, {sR}, 2
    s_add_u32 {sFO}, {sFO}, s30
    s_add_u32 {sFO}, {sFO}, {F_X3}
    s_mov_b32 {sC}, {f32(0.25 * LOG2E)}
    s_lshl_b32 {sW4}, {sW}, 12
    s_mov_b32 {sB}, 0
    s_mov_b32 {sHS}, {sR}""")
    set_srd(s, 16, 'wqkv', 512*3072)
    items = [((32*ks + 2*jr)*3072 + 1024*m, 64*m + 4*ks + jr) for m in range(3) for ks in range(16) for jr in range(4)]
    D = 30
    def issue(i):
        b = 16 + 2*(i % D)
        s(f's_mov_b32 s30, {items[i][0]}\nbuffer_load_ushort v{b}, v{vA}, {WSR}, s30 offen\nbuffer_load_ushort v{b+1}, v{vA}, {WSR}, s30 offen offset:3072')
    for i in range(D): issue(i)
    for i in range(len(items)):
        b = 16 + 2*(i % D)
        s(f's_waitcnt vmcnt({2*(min(len(items), i+D) - i - 1)})\nv_perm_b32 v13, v{b+1}, v{b}, {sSEL0}\nv_accvgpr_write_b32 a{items[i][1]}, v13')
        if i + D < len(items): issue(i + D)
    st.setup(s, 32768, 13); s('s_nop 1')
    for ks in range(16):
        for m in range(3): s(mm(CS, m, ks, vr(ONES, 4)))
    s(f"""v_cmp_gt_u32 vcc, 32, v0
    v_lshlrev_b32 v13, 7, v0
    s_lshl_b32 s30, {sH}, 12
    s_add_u32 s30, s30, {LB0 + O_O}
    v_add_u32 v13, s30, v13
    v_and_b32 v14, 3, v0
    v_lshlrev_b32 v14, 7, v14
    s_lshl_b32 s30, {sH}, 9
    s_add_u32 s30, s30, {LB0 + O_X1L}
    v_add_u32 v14, s30, v14
    v_cndmask_b32 v{vTA}, v14, v13, vcc
    v_mov_b32 v13, 14
    v_cndmask_b32 v{vTS}, v13, 17, vcc""")
    def touch(t, k):
        t(f"""s_add_u32 s30, {sHS}, {k}
        s_min_u32 s30, s30, 255
        s_and_b32 s31, s30, 127
        v_lshlrev_b32 v{vTT}, v{vTS}, s31
        v_add_u32 v{vTT}, v{vTA}, v{vTT}
        s_lshr_b32 s30, s30, 7
        s_mul_i32 s30, s30, {LSTR}
        buffer_load_dword v{vTT}, v{vTT}, {WS}, s30 offen sc1""")
    xpt(s, opts, 13)
    for k in (0, 3, 6): touch(s, k); s('s_waitcnt vmcnt(0)')
    wait_init(s, 13, 14, fail)
    s('L_x3_loop:'); layer_base(s, sHS, sLB, sHL)
    s(f"""s_lshl_b32 s30, {sHL}, 14
    s_lshl_b32 s31, {sH}, 9
    s_add_u32 {sG}, s30, s31
    s_add_u32 {sG}, {sG}, {LB0 + O_X1}
    s_add_u32 s30, s30, {sLB}
    s_add_u32 s31, s31, {sB}
    v_lshrrev_b32 v{vCP}, 1, v{vL16}
    v_add_u32 v{vCP}, s31, v{vCP}
    s_add_u32 s30, s30, {sW4}
    s_mov_b32 {sLB}, {LB0 + O_BQ}
    s_add_u32 {sO}, s30, {O_X1L}
    s_add_u32 {sT}, {sHS}, 1
    s_mul_i32 s30, {sH}, {3*65536}
    s_add_u32 s30, s30, {sLB}
    s_lshr_b32 s31, {sHL}, 1
    s_lshl_b32 s31, s31, 10
    s_add_u32 s30, s30, s31
    s_and_b32 s31, {sHL}, 1
    s_lshl_b32 s31, s31, 8
    s_add_u32 {sX[0]}, s30, s31
    s_add_u32 {sX[1]}, {sX[0]}, 65536
    s_add_u32 {sX[2]}, {sX[1]}, 65536
    s_add_u32 {sX[2]}, {sX[2]}, s31
    s_add_u32 m0, {sB}, {sW4}
    v_add_u32 v{vSF}, m0, v{vL16}
    v_add_u32 v{vLR}, {sB}, v{vL16}
    s_xor_b32 {sB}, {sB}, 0x4000""")
    tl(s, 'top'); poll(s, vF, sFI, vFt, sT, fail, sleep=0); tl(s, 'poll')
    for i in range(4): s(f'buffer_load_dwordx4 v{vL16}, {WS}, {sO} offen offset:{1024*i} sc1 lds')
    s('s_waitcnt vmcnt(0)'); tl(s, 'ld'); s('s_barrier'); tl(s, 'bar')
    m = S(); f = S()
    def rd(ks): m(f'ds_read_b128 {vr(AF+4*(ks%4),4)}, v{vLR} offset:{1024*ks}', f'a{ks}')
    st.reads(m); touch(m, 9); st.mfmas(m, after=lambda i: rd(i) if i < 3 else m(f'ds_read_b64 {vr(CP,2)}, v{vCP}', 'cp'))
    for ks in range(16):
        m.W('ds', f'a{ks}'); a = vr(AF+4*(ks%4), 4)
        for t in range(3):
            m(mm(AC, t, ks, a))
            if t == 0 and ks + 3 < 16: rd(ks + 3)
        if ks == 0: st.part1(m)
        if ks == 1:
            m.W('ds', 'cp'); m(f'v_lshrrev_b32 v{vCP}, 1, v{vL16}\nbuffer_store_dwordx2 {vr(CP,2)}, v{vCP}, {WS}, {sG} offen sc1')
        if ks == 2: m.W('ds', 'sw'); m('s_barrier'); st.part2(m)
    st.part3(f)
    f(f'v_mul_f32 v{RQ}, {sC}, v{st.RS}\nv_mul_f32 v{NQ}, {sC}, v{st.NM}')
    for r in range(4): f(f'v_mul_f32 v{U+r}, v{NQ}, v{CS+r}\nv_mul_f32 v{U+4+r}, v{st.NM}, v{CS+4+r}')
    f.W('ds', 'bp')
    for r in range(4): f(f'v_mul_f32 v{U+8+r}, v{st.NMr+r}, v{CS+8+r}')
    s.extend(weave(m, f, start=8 + 13))
    s('s_nop 5')
    for t in range(3):
        for r in range(4): s(f'v_fmac_f32 v{U+4*t+r}, v{(RQ, st.RS, st.RSr+r)[t]}, v{AC+4*t+r}')
        s(f'v_cvt_pk_bf16_f32 v{AC+4*t}, v{U+4*t}, v{U+4*t+1}\nv_cvt_pk_bf16_f32 v{AC+4*t+1}, v{U+4*t+2}, v{U+4*t+3}')
        s(f'buffer_store_dwordx2 {vr(AC+4*t,2)}, v{vQK if t < 2 else vV}, {WS}, {sX[t]} offen sc1')
    tl(s, 'st'); s('s_waitcnt vmcnt(0)'); tl(s, 'ack')
    flag(s, 13, sT, vF, sFO); tstamp(s, opts, sHS, 13); tl.dump(s, f's_sub_u32 s30, {sHS}, {tl.at or 60}\ns_cmp_lt_u32 s30, 3', 13)
    s(f"""s_add_u32 {sHS}, {sHS}, 3
    s_cmp_lt_u32 {sHS}, {128*opts.get('nl', 2)}
    s_cbranch_scc1 L_x3_loop""")
    if opts.get('wb', 1):
        s(f's_cmp_lg_u32 {sH}, 0\ns_cbranch_scc1 {fail}\ns_waitcnt vmcnt(0)\ns_sleep {opts.get("wbs", 8)}\nbuffer_wbl2 sc1\ns_waitcnt vmcnt(0)')
    s(f"""{fail}:
    s_endpgm""")
    return resolve(s)[0]

sBI, sBN, sBC, sBL = 's60', 's61', 's62', 's63'
def load_wo(s):
    set_srd(s, 16, 'wo', 512*1024)
    s(f's_lshl_b32 s92, {sBC}, 9\ns_lshl_b32 s31, {sW}, 7\ns_add_u32 s92, s92, s31\ns_lshl_b32 s93, {sW}, 15')
    groups = [(WSR, (32*ks + 8*jp)*1024 + 64*p, [(('a', 16*ks + 8*p + 2*jp + jj), ('a', 16*ks + 8*p + 4 + 2*jp + jj)) for jj in range(2)]) for ks in range(16) for p in range(2) for jp in range(2)]
    load_pairs_lds(s, groups, (16, 4), 1024, 2, 's92', 's93', 32, 14, 16)
    s('s_barrier')

BO_X = 36
sBE, sBR = 's64', 's101'
def role_bo(opts):
    s = S(); fail = 'L_bo_fail'; tl = TL(opts, 'bo')
    sHS, sLB, sA, sX, sT, sF, sM, sHV, sN = 's66', 's67', 's68', 's70', 's71', 's94', 's95', 's96', 's97'
    vL16, vF, vFt, vLR, vOut = 248, 249, 250, 251, 252
    AF, AC, RS, RN = 200, 216, 232, 240
    s(f"""L_bo:
    v_lshlrev_b32 v{vL16}, 4, v0
    v_mov_b32 v{vLR}, v{vL16}
    v_and_b32 v{vF}, 31, v0
    v_lshlrev_b32 v{vF}, 5, v{vF}
    v_lshrrev_b32 v{vFt}, 4, v0
    v_and_b32 v{vOut}, 15, v0
    v_lshlrev_b32 v{vOut}, 10, v{vOut}
    v_lshl_add_u32 v{vOut}, v{vFt}, 4, v{vOut}
    s_mov_b32 {sLB}, {LB0}
    s_add_u32 {sT}, {sBL}, 1
    s_lshl_b32 {sM}, {sW}, 12
    s_mov_b32 {sHS}, {sBI}""")
    set_srd(s, 20, 'out', 2*MB)
    def faddr(t, hs): t(f's_min_u32 {sF}, {hs}, 127\ns_lshr_b32 {sF}, {sF}, 1\ns_lshl_b32 {sF}, {sF}, 10\ns_add_u32 {sF}, {sF}, {F_B}')
    def loads(t, hs):
        t(f"""s_lshl_b32 s30, {hs}, 14
        s_add_u32 s30, s30, {sLB}
        s_lshl_b32 s31, {sW}, 12
        s_add_u32 {sA}, s30, s31
        s_add_u32 {sA}, {sA}, {O_OB}
        s_mov_b32 m0, {sM}
        s_lshl_b32 s31, {sBC}, 13
        s_add_u32 s30, s30, s31""")
        for i in range(4): t(f'buffer_load_dwordx4 v{vL16}, {WS}, {sA} offen offset:{1024*i} sc1 lds')
        t(f's_lshl_b32 s31, {sW}, 11\ns_add_u32 s30, s30, s31\ns_add_u32 s30, s30, {O_X1}\ns_xor_b32 {sM}, {sM}, 0x4000')
        for p in range(2): t(f'buffer_load_dwordx4 {vr(RN+4*p,4)}, v{vL16}, {WS}, s30 offen offset:{1024*p} sc1')
        t(f's_add_u32 s30, {hs}, {sBN}'); faddr(t, 's30')
        t(f'buffer_load_dword v{vFt}, v{vF}, {WS}, {sF} offen sc1')
    faddr(s, sHS); tl(s, 'top'); poll1(s, vF, sF, vFt, sT, fail); s('s_branch L_bo_fetch')
    s(f'L_bo_loop:\ns_cmp_eq_u32 {sHV}, 1\ns_cbranch_scc1 L_bo_have'); faddr(s, sHS); poll(s, vF, sF, vFt, sT, fail)
    s('L_bo_fetch:'); tl(s, 'poll'); loads(s, sHS); s('s_waitcnt vmcnt(0)\ns_branch L_bo_go')
    s(f'L_bo_have:\ns_waitcnt vmcnt(2)\nL_bo_go:\nv_cmp_gt_u32 vcc, {sT}, v{vFt}\ns_barrier'); tl(s, 'bar')
    def rd(ks): s(f'ds_read_b128 {vr(AF+4*(ks%4),4)}, v{vLR} offset:{1024*ks}', f'a{ks}')
    rd(0); rd(1); rd(2)
    for r in range(0, 8, 2): s(f'v_mov_b64 {vr(RS+r,2)}, {vr(RN+r,2)}')
    for ks in range(16):
        s.W('ds', f'a{ks}')
        for t in range(4):
            s(f'v_mfma_f32_16x16x32_bf16 {vr(AC+4*t,4)}, a[{16*ks+4*t}:{16*ks+4*t+3}], {vr(AF+4*(ks%4),4)}, {"0" if ks == 0 else vr(AC+4*t,4)}')
            if t == 0 and ks + 3 < 16: rd(ks + 3)
        if ks == 0:
            s(f's_add_u32 {sN}, {sHS}, {sBN}\ns_mov_b32 {sHV}, 0\ns_cmp_lt_u32 {sN}, {sBE}\ns_cbranch_scc0 L_bo_nopf\ns_cbranch_vccnz L_bo_nopf\ns_mov_b32 {sHV}, 1')
            loads(s, sN); s('L_bo_nopf:')
    s(f'v_xor_b32 v{vLR}, 0x4000, v{vLR}\ns_lshl_b32 s30, {sHS}, 14\ns_nop 2')
    for p in range(2):
        for r in range(4):
            a0, a1, x = AC+8*p+r, AC+8*p+4+r, RS+4*p+r
            s(f'v_lshlrev_b32 v{AF}, 16, v{x}\nv_and_b32 v{AF+1}, 0xffff0000, v{x}\nv_add_f32 v{a0}, v{a0}, v{AF}\nv_add_f32 v{a1}, v{a1}, v{AF+1}\nv_cvt_pk_bf16_f32 v{x}, v{a0}, v{a1}')
    tl(s, 'st')
    s(f"""s_cmp_eq_u32 {sBL}, 0
    s_cbranch_scc1 L_bo_mid
    s_lshl_b32 s31, {sBC}, 9
    s_add_u32 s30, s30, s31
    s_lshl_b32 s31, {sW}, 7
    s_add_u32 s30, s30, s31
    buffer_store_dwordx4 {vr(RS,4)}, v{vOut}, {OUT}, s30 offen {opts.get('ofl', '')}
    buffer_store_dwordx4 {vr(RS+4,4)}, v{vOut}, {OUT}, s30 offen offset:64 {opts.get('ofl', '')}
    s_branch L_bo_next
    L_bo_mid:
    s_lshl_b32 s31, {sBC}, 13
    s_add_u32 s30, s30, s31
    s_lshl_b32 s31, {sW}, 11
    s_add_u32 s30, s30, s31
    s_add_u32 s30, s30, {LB0 + O_X2}
    buffer_store_dwordx4 {vr(RS,4)}, v{vL16}, {WS}, s30 offen sc1
    buffer_store_dwordx4 {vr(RS+4,4)}, v{vL16}, {WS}, s30 offen offset:1024 sc1
    s_lshl_b32 s30, {sHS}, 7
    s_lshl_b32 s31, {sBC}, 2
    s_add_u32 s30, s30, s31
    s_add_u32 s30, s30, {F_O}
    s_cmp_lg_u32 {sW}, 1
    s_waitcnt vmcnt(0)
    s_barrier
    s_cbranch_scc1 L_bo_next""")
    flag(s, AF, 1, vF, 's30')
    s('L_bo_next:'); tl(s, 'end'); tl.dump(s, f's_lshl_b32 s30, {sBL}, 8\ns_add_u32 s30, s30, {sHS}\ns_sub_u32 s30, s30, {sBI}\ns_cmp_eq_u32 s30, {tl.at or 0}', AF)
    if opts.get('trace'):
        s(f's_cmp_eq_u32 {sHS}, {sBI}\ns_cselect_b32 s69, 0, 1\ns_add_u32 s69, s69, 100\ns_lshl_b32 s30, {sBL}, 1\ns_add_u32 s69, s69, s30'); stamp(s, opts, 's69', AF)
    s(f"""s_mov_b32 {sHS}, {sN}
    s_cmp_lt_u32 {sHS}, {sBE}
    s_cbranch_scc1 L_bo_loop
    s_cmp_eq_u32 {sBR}, 1
    s_cbranch_scc1 L_x1_second
    s_cmp_eq_u32 {sBR}, 2
    s_cbranch_scc0 {fail}
    s_branch L_b_second
    {fail}:""")
    if opts.get('dbgt'): s(f's_waitcnt vmcnt(0)\ns_memrealtime s[98:99]\ns_waitcnt lgkmcnt(0)\nv_mov_b32 v2, s98\nv_mov_b32 v3, 44\ns_cmp_lg_u32 {sW}, 0\ns_cbranch_scc1 L_bo_x\ns_mov_b64 exec, 1\nglobal_atomic_umax v3, v2, s[6:7]\nL_bo_x:')
    s(f"""    s_endpgm""")
    return resolve(s)[0]

def role_x1(with_bo, opts):
    s = S(); fail = 'L_x1_fail'; tl = TL(opts, 'x1')
    sR, sJ, sHS, sLB, sHL, sH, sQ, sKM, sO, sT, sFP, sFC, sFO, sPT, sCT, sEND, sPF, sM = [f's{i}' for i in range(32, 50)]; tail = S()
    MK = [f's[{50+2*r}:{51+2*r}]' for r in range(4)]
    vL16, vL8, vF, vZ, vFt, vFP, vKM, vNEG, vKS = range(1, 10); vRT = 188
    Q = [16, 32]; V = [48, 80]; K = 112; KM = 144; VM = 160; SD, SP, SMm = 168, 172, 176; PB, PMm = 180, 184; AC = 192; TT = 10
    s('L_role_x1:'); rep_rank(s, sR, sJ, 24)
    s(f'''s_lshl_b32 {sH}, {sJ}, 2
    s_add_u32 {sH}, {sH}, {sW}
    s_lshl_b32 s30, {sR}, 3
    s_add_u32 s30, s30, {sJ}
    s_and_b32 {sBC}, s30, 1
    s_lshr_b32 {sBI}, s30, 1
    s_mov_b32 {sBL}, 0
    s_mov_b32 {sBN}, 12
    s_mov_b32 {sBE}, {BO_X}
    s_mov_b32 {sBR}, {1 if opts.get('nl', 2) == 2 else 0}''')
    if with_bo: load_wo(s)
    xpt(s, opts, 10)
    wait_init(s, 10, 11, fail); die_mode(s, sM, 10, 11)
    s(f'''v_lshlrev_b32 v{vL16}, 4, v0
    v_lshlrev_b32 v{vL8}, 3, v0
    v_and_b32 v{vF}, 7, v0
    v_lshlrev_b32 v{vF}, 2, v{vF}
    v_mov_b32 v{vZ}, 0
    v_mov_b32 v{vNEG}, {f32(-1e30)}
    v_lshrrev_b32 v10, 4, v0
    v_and_b32 v11, 15, v0
    v_lshrrev_b32 v12, 1, v10
    v_and_b32 v13, 1, v10
    v_lshrrev_b32 v14, 2, v11
    v_and_b32 v15, 1, v11
    v_lshlrev_b32 v{vKM}, 8, v12
    v_lshl_add_u32 v{vKM}, v13, 5, v{vKM}
    v_lshl_add_u32 v{vKM}, v14, 6, v{vKM}
    v_lshl_add_u32 v{vKM}, v15, 4, v{vKM}
    v_lshlrev_b32 v{vKS}, 9, v12
    v_lshl_add_u32 v{vKS}, v14, 7, v{vKS}
    v_lshl_add_u32 v{vKS}, v13, 6, v{vKS}
    v_and_b32 v15, 3, v11
    v_lshl_add_u32 v{vKS}, v15, 4, v{vKS}
    v_lshlrev_b32 v{vRT}, 7, v15
    s_lshl_b32 s30, {sH}, 9
    v_add_u32 v{vRT}, s30, v{vRT}
    v_lshlrev_b32 v10, 2, v10''')
    set_srd(s, 12, 'x', 2*MB)
    for r in range(4): s(f'v_add_u32 v12, {r}, v10\nv_cmp_le_u32 {MK[r]}, v12, v11')
    s(f'''s_lshl_b32 s30, {sH}, 7
    s_add_u32 {sFP}, s30, {F_P}
    s_add_u32 {sFC}, s30, {F_C}
    s_lshl_b32 s30, {sR}, 7
    s_lshl_b32 s31, {sH}, 2
    s_add_u32 {sFO}, s30, s31
    s_add_u32 {sFO}, {sFO}, {F_X1}
    s_mov_b32 {sHS}, {sR}
    s_branch L_x1_layer
    L_x1_second:
    s_mov_b32 {sBL}, 1
    s_mov_b32 {sBN}, 44
    s_mov_b32 {sBE}, 128
    s_mov_b32 {sBR}, 0
    L_x1_layer:
    v_mov_b32 v{PMm+1}, 0
    v_mov_b32 v{PMm+2}, 0
    s_and_b32 {sEND}, {sHS}, 128
    s_add_u32 {sEND}, {sEND}, 128''')
    def qaddr(t, hs):
        t(f'''s_lshr_b32 s30, {hs}, 7
              s_mov_b32 {sQ}, 0
              s_lshl_b32 {sPT}, s30, 7
              s_bfe_u32 s30, {hs}, 0x60001
              s_add_u32 {sPT}, {sPT}, s30
              s_add_u32 {sPT}, {sPT}, 2
              s_lshl_b32 s30, s30, 5
              s_add_u32 s30, s30, {sH}
              s_mul_i32 s30, s30, {24*1024}
              s_add_u32 {sQ}, {sQ}, s30
              s_add_u32 {sQ}, {sQ}, {LB0 + O_QKV}''')
    def loads(t, u):
        def four(reg, off, step=4, va=vL16):
            t(f's_add_u32 s30, {sQ}, {off}')
            for i in range(4): t(f'buffer_load_dwordx4 {vr(reg+step*i,4)}, v{va}, {WS}, s30 offen offset:{1024*i} sc1', 'pf')
        a, b = L('rt'), L('rt')
        t(f's_lshl_b32 s30, {sHS}, 14\ns_and_b32 s30, s30, {hex(2*MB - 1)}\ns_cmp_ge_u32 {sHS}, 128\ns_cbranch_scc1 {a}')
        t(f'buffer_load_dword v{vFt}, v{vRT}, {XIN}, s30 offen\ns_branch {b}\n{a}:\ns_add_u32 s30, s30, {LB0 + O_X2}')
        t.append(Op(f'buffer_load_dword v{vFt}, v{vRT}, {WS}, s30 offen sc1')); t(f'{b}:')
        four(Q[u], 4096*u); four(K, 8192 + 4096*u, 4, vKS)
        if u: four(K+16, 8192, 4, vKS); four(V[u], 16384, 8); four(V[u]+4, 16384 + 4096, 8)
        else: four(V[u], 16384)
    s('L_x1_pro:'); qaddr(s, sHS); poll(s, vF, sFP, vFP, sPT, fail)
    s(f's_bitcmp1_b32 {sHS}, 0\ns_cbranch_scc1 L_x1_pro1\nL_x1_pro0:')
    loads(s, 0); s('s_waitcnt vmcnt(0)\ns_branch L_x1_task0\nL_x1_pro1:'); loads(s, 1); s('s_waitcnt vmcnt(0)\ns_branch L_x1_task1')
    out = resolve(s)[0]
    for u in range(2):
        s = S()
        s(f'L_x1_task{u}:'); tl(s, 'top')
        for ks in range(4):
            s(f'v_mfma_f32_16x16x32_bf16 {vr(SD,4)}, {vr(K+4*ks,4)}, {vr(Q[u]+4*ks,4)}, {"0" if ks == 0 else vr(SD,4)}')
            if u:
                s(f'v_mfma_f32_16x16x32_bf16 {vr(SP,4)}, {vr(K+16+4*ks,4)}, {vr(Q[u]+4*ks,4)}, {"0" if ks == 0 else vr(SP,4)}')
                s(f'v_swap_b32 v{V[u]+8*ks+2}, v{V[u]+8*ks+4}\nv_swap_b32 v{V[u]+8*ks+3}, v{V[u]+8*ks+5}')
        layer_base(s, sHS, sLB, sHL)
        s(f'''s_lshr_b32 {sCT}, {sHS}, 1
        s_add_u32 {sCT}, {sCT}, 1
        s_lshr_b32 s30, {sHL}, 1
        s_lshl_b32 s30, s30, 5
        s_add_u32 s30, s30, {sH}
        s_lshl_b32 {sKM}, s30, 12
        s_add_u32 {sKM}, {sKM}, {LB0}
        s_add_u32 {sKM}, {sKM}, {O_KVM}
        s_lshl_b32 {sO}, {sHL}, 17
        s_lshl_b32 s30, {sH}, 12
        s_add_u32 {sO}, {sO}, s30
        s_add_u32 {sO}, {sO}, {sLB}
        s_add_u32 {sO}, {sO}, {O_O}
        s_add_u32 {sT}, {sHS}, 1
        s_add_u32 {sHS}, {sHS}, 3''')
        qaddr(s, sHS)
        for r in range(4): s(f'v_cndmask_b32 v{SD+r}, v{vNEG}, v{SD+r}, {MK[r]}')
        m = TT
        s(f'v_max3_f32 v{m}, v{SD}, v{SD+1}, v{SD+2}\nv_max_f32 v{m}, v{m}, v{SD+3}')
        if u: s(f'v_max3_f32 v{m}, v{m}, v{SP}, v{SP+1}\nv_max3_f32 v{m}, v{m}, v{SP+2}, v{SP+3}')
        s(f'''v_cmp_gt_u32 vcc, {sPT}, v{vFP}
        s_mov_b32 {sPF}, 0
        s_cmp_lt_u32 {sHS}, {sEND}
        s_cbranch_scc0 L_x1_nopf{u}
        s_cbranch_vccnz L_x1_nopf{u}
        s_mov_b32 {sPF}, 1''')
        loads(s, 1 - u)
        s(f'L_x1_nopf{u}:')
        tl(s, 'pre'); s(f's_mov_b32 {sSPIN}, 0\nL_x1_kv{u}:')
        for ks in range(4): s(f'buffer_load_dwordx4 {vr(KM+4*ks,4)}, v{vKM}, {WS}, {sKM} offen offset:{512*ks} sc1', f'km{ks}')
        for i in range(4): s(f'buffer_load_dwordx2 {vr(VM+2*i,2)}, v{vL8}, {WS}, {sKM} offen offset:{2048 + 512*i} sc1', 'vm')
        s(f's_add_u32 {sSPIN}, {sSPIN}, 1\ns_cmp_lt_u32 {sSPIN}, {SPIN_MAX}\ns_cbranch_scc0 {fail}')
        for ks in range(4):
            s.W('vm', f'km{ks}')
            s(f'v_mfma_f32_16x16x32_bf16 {vr(SMm,4)}, {vr(KM+4*ks,4)}, {vr(Q[u]+4*ks,4)}, {"0" if ks == 0 else vr(SMm,4)}')
            s(f'v_max3_u32 v{vFt}, v{KM+4*ks}, v{KM+4*ks+1}, {"v" + str(vFt) if ks else 0}\nv_max3_u32 v{vFt}, v{KM+4*ks+2}, v{KM+4*ks+3}, v{vFt}')
        s.W('vm', 'vm')
        for i in range(4): s(f'v_max3_u32 v{vFt}, v{VM+2*i}, v{VM+2*i+1}, v{vFt}')
        s(f'v_cmp_eq_u32 vcc, -1, v{vFt}\ns_cbranch_vccnz L_x1_kw{u}'); tl(s, 'poll')
        tail(f'L_x1_kw{u}:\ns_sleep {opts.get("x1s", 0)}\ns_branch L_x1_kv{u}')
        s(f'buffer_load_dword v{vFP}, v{vF}, {WS}, {sFP} offen sc1')
        tl(s, 'km'); s(f'v_max3_f32 v{m}, v{m}, v{SMm}, v{SMm+1}')
        xreduce(s, m, m+1, 'v_max_f32', dpp=())
        regs = [SMm, SMm+1] + list(range(SD, SD+4)) + (list(range(SP, SP+4)) if u else [])
        for r in regs: s(f'v_sub_f32 v{r}, v{r}, v{m}')
        for r in regs: s(f'v_exp_f32 v{r}, v{r}')
        s(f'v_cvt_pk_bf16_f32 v{PMm}, v{SMm}, v{SMm+1}\nv_cvt_pk_bf16_f32 v{PMm+3}, v{SMm}, v{SMm+1}')
        s(f'v_cvt_pk_bf16_f32 v{PB+2}, v{SD}, v{SD+1}\nv_cvt_pk_bf16_f32 v{PB+3}, v{SD+2}, v{SD+3}')
        if u: s(f'v_cvt_pk_bf16_f32 v{PB}, v{SP}, v{SP+1}\nv_cvt_pk_bf16_f32 v{PB+1}, v{SP+2}, v{SP+3}')
        s('s_nop 1')
        mm = S(); f = S()
        for i in range(8):
            if u: mm(f'v_mfma_f32_16x16x32_bf16 {vr(AC+4*i,4)}, {vr(V[u]+4*i,4)}, {vr(PB,4)}, 0')
            else: mm(f'v_mfma_f32_16x16x16_bf16 {vr(AC+4*i,4)}, {vr(V[u]+2*i,2)}, {vr(PB+2,2)}, 0')
        for i in range(8):
            mm(f'v_mfma_f32_16x16x16_bf16 {vr(AC+4*i,4)}, {vr(VM+2*(i>>1),2)}, {vr(PMm+2*(i&1),2)}, {vr(AC+4*i,4)}')
        f(f'v_add_f32 v{m}, v{regs[0]}, v{regs[1]}')
        for r in regs[2:]: f(f'v_add_f32 v{m}, v{m}, v{r}')
        xreduce(f, m, m+1, 'v_add_f32', dpp=())
        f(f'v_rcp_f32 v{m}, v{m}')
        s.extend(merge(mm, f, 2))
        for b in range(4):
            if b == 0: s('s_nop 1')
            for r in range(8): s(f'v_mul_f32 v{AC+8*b+r}, v{m}, v{AC+8*b+r}')
            for r in range(4): s(f'v_cvt_pk_bf16_f32 v{AC+8*b+r}, v{AC+8*b+r}, v{AC+8*b+4+r}')
            dual(s, sM, tail, f'buffer_store_dwordx4 {vr(AC+8*b,4)}, v{vL16}, {WS}, {sO} offen offset:{1024*b} @')
        tl(s, 'st'); s('s_waitcnt vmcnt(0)'); tl(s, 'ack')
        lflag(s, sM, tail, TT, sT, vZ, sFO); tl.dump(s, f's_sub_u32 s30, {sHS}, {(tl.at or 60) + 3}\ns_cmp_lt_u32 s30, 3', TT)
        if opts.get('trace'): s(f's_sub_u32 s31, {sHS}, 3'); tstamp(s, opts, 's31', TT)
        s(f'''s_cmp_eq_u32 {sPF}, 1
        s_cbranch_scc1 L_x1_task{1-u}
        s_cmp_lt_u32 {sHS}, {sEND}
        s_cbranch_scc1 L_x1_pro
        s_branch {"L_bo" if with_bo else fail}''')
        out += resolve(s)[0]
    return out + [f'{fail}:', 's_endpgm'] + resolve(tail)[0]
```

```python
from asmlib import *
NAME = 'interleave_layers__memory_aug_recurrent_mem_tr__softmax_full_mha__prompt'
KA = dict(x=0, mem0=8, Wq=16, Wk=24, Wv=32, Wo=40, wqkv=64, wo=72, out=80, dbg=88, ws=96)
F_P, F_C, F_X1, F_X2, F_AL, F_X3, F_O, F_B = 0x0, 0x1000, 0x2000, 0x2200, 0x2400, 0x3000, 0x4000, 0x10000
CH_MEM, CH_IN = 0x20000, 0x40000
MB = 1 << 20
LB0, LSTR = MB, 32 * MB
O_QKV, O_KVM, O_O, O_X1, O_BQ, O_OB, O_X2, O_X1L = 0, 48*MB, 68*MB, 56*MB, 58*MB, 64*MB, 66*MB, 84*MB
WS_BYTES = 256 * MB
WS, XIN, WSR, OUT = 's[8:11]', 's[12:15]', 's[16:19]', 's[20:23]'
sW, sROLE, sXCC, sSPIN = 's24', 's25', 's26', 's27'
sSEL0, sSEL1 = 's28', 's29'
SPIN_MAX = 200000
LOG2E = 1.4426950408889634
import struct
def f32(x): return hex(struct.unpack('<I', struct.pack('<f', x))[0])

_lbl = [0]
def L(p):
    _lbl[0] += 1
    return f'L_{p}_{_lbl[0]}'

def set_srd(s, srd_base, key, nbytes):
    s(f'''s_load_dwordx2 s[4:5], s[0:1], {KA[key]}
          s_waitcnt lgkmcnt(0)
          s_mov_b32 s{srd_base}, s4
          s_mov_b32 s{srd_base+1}, s5
          s_mov_b32 s{srd_base+2}, {nbytes}
          s_mov_b32 s{srd_base+3}, 0x20000''')

def poll(s, vaddr, soff, vtmp, target, fail, sleep=1):
    a, b = L('poll'), L('pollok')
    s(f'''s_mov_b32 {sSPIN}, 0
          {a}:
          buffer_load_dword v{vtmp}, v{vaddr}, {WS}, {soff} offen sc1
          s_waitcnt vmcnt(0)
          v_cmp_gt_u32 vcc, {target}, v{vtmp}
          s_cbranch_vccz {b}
          s_sleep {sleep}
          s_add_u32 {sSPIN}, {sSPIN}, 1
          s_cmp_lt_u32 {sSPIN}, {SPIN_MAX}
          s_cbranch_scc1 {a}
          s_branch {fail}
          {b}:''')

def poll1(s, vaddr, soff, vtmp, target, fail, sleep=1):
    l = L('p1'); s(f's_cmp_lg_u32 {sW}, 0\ns_cbranch_scc1 {l}'); poll(s, vaddr, soff, vtmp, target, fail, sleep); s(f'{l}:\ns_barrier')

def wait_init(s, v0, v1, fail):
    a, b = L('wi'), L('wiok')
    s(f'''v_mov_b32 v{v0}, 0
          s_mov_b32 {sSPIN}, 0
          {a}:
          global_load_dword v{v1}, v{v0}, s[6:7] offset:64 sc1
          s_waitcnt vmcnt(0)
          v_cmp_gt_u32 vcc, 0x100, v{v1}
          s_cbranch_vccz {b}
          s_sleep 2
          s_add_u32 {sSPIN}, {sSPIN}, 1
          s_cmp_lt_u32 {sSPIN}, {SPIN_MAX}
          s_cbranch_scc1 {a}
          s_branch {fail}
          {b}:''')

def load_pairs(s, pairs, vA, vB, tmp, ntmp, ssoff='s30', post=None, lds=None):
    depth = min(ntmp // 2 - 1, 31)
    t0 = tmp + 2 * depth
    n = len(pairs)
    def issue(i):
        b = tmp + 2 * (i % depth)
        s(f's_mov_b32 {ssoff}, {pairs[i][0]}')
        s(f'buffer_load_dword v{b}, v{vA}, {WSR}, {ssoff} offen')
        s(f'buffer_load_dword v{b+1}, v{vB}, {WSR}, {ssoff} offen')
    for i in range(min(depth, n)): issue(i)
    for i in range(n):
        b = tmp + 2 * (i % depth)
        s(f's_waitcnt vmcnt({2 * (min(n, i + depth) - i - 1)})')
        for j, sel in ((0, sSEL0), (1, sSEL1)):
            d = pairs[i][1 + j]
            if isinstance(d, tuple):
                s(f'v_perm_b32 v{t0+j}, v{b+1}, v{b}, {sel}')
            else:
                s(f'v_perm_b32 v{d}, v{b+1}, v{b}, {sel}')
        for j in (0, 1):
            d = pairs[i][1 + j]
            if isinstance(d, tuple): s(f'v_accvgpr_write_b32 a{d[1]}, v{t0+j}')
        if i + depth < n: issue(i + depth)
        if post: post(i)

def xreduce(s, v, t, op='v_add_f32', dpp=(4, 8)):
    for r in dpp:
        s(f's_nop 1\n{op}_dpp v{v}, v{v}, v{v} row_ror:{r} row_mask:0xf bank_mask:0xf')
    for w in (16, 32):
        s(f'v_mov_b32 v{t}, v{v}\ns_nop 1\nv_permlane{w}_swap_b32 v{v}, v{t}\ns_nop 1\n{op} v{v}, v{v}, v{t}')

def ln_unpack(s, X, F):
    for i in range(16):
        s(f'v_lshlrev_b32 v{F+2*i}, 16, v{X+i}\nv_and_b32 v{F+2*i+1}, 0xffff0000, v{X+i}')

def ln_rest_np(s, F, T, vLW):
    for i in range(4): s(f'v_add_f32 v{T+i}, v{F+i}, v{F+4+i}')
    for i in range(8, 32): s(f'v_add_f32 v{T+i%4}, v{T+i%4}, v{F+i}')
    s(f'v_add_f32 v{T}, v{T}, v{T+1}\nv_add_f32 v{T+2}, v{T+2}, v{T+3}\nv_add_f32 v{T}, v{T}, v{T+2}')
    xreduce(s, T, T + 1)
    s(f'v_mul_f32 v{T}, {f32(-1.0/512)}, v{T}')
    for i in range(32): s(f'v_add_f32 v{F+i}, v{F+i}, v{T}')
    for i in range(32):
        s(f'v_mul_f32 v{T+2+i}, v{F+i}, v{F+i}' if i < 4 else f'v_fmac_f32 v{T+2+i%4}, v{F+i}, v{F+i}')
    s(f'v_add_f32 v{T}, v{T+2}, v{T+3}\nv_add_f32 v{T+4}, v{T+4}, v{T+5}\nv_add_f32 v{T}, v{T}, v{T+4}')
    xreduce(s, T, T + 1)
    s(f'v_mov_b32 v{T+1}, {f32(1e-5)}\nv_fmac_f32 v{T+1}, {f32(1.0/512)}, v{T}\nv_rsq_f32 v{T}, v{T+1}\ns_nop 0')
    for i in range(4):
        for j in range(8): s(f'v_mul_f32 v{F+8*i+j}, v{F+8*i+j}, v{T}')
        for j in range(4): s(f'v_cvt_pk_bf16_f32 v{F+8*i+j}, v{F+8*i+2*j}, v{F+8*i+2*j+1}')
        s(f'ds_write_b128 v{vLW}, v[{F+8*i}:{F+8*i+3}] offset:{4096*i}', 'lnw')

def ln_rest(s, F, T, vLW):
    s(f'v_pk_add_f32 v[{T}:{T+1}], v[{F}:{F+1}], v[{F+2}:{F+3}]')
    s(f'v_pk_add_f32 v[{T+2}:{T+3}], v[{F+4}:{F+5}], v[{F+6}:{F+7}]')
    for i in range(4, 16):
        t = T + 2 * (i & 1)
        s(f'v_pk_add_f32 v[{t}:{t+1}], v[{t}:{t+1}], v[{F+2*i}:{F+2*i+1}]')
    s(f'v_pk_add_f32 v[{T}:{T+1}], v[{T}:{T+1}], v[{T+2}:{T+3}]\nv_add_f32 v{T}, v{T}, v{T+1}')
    xreduce(s, T, T + 1)
    s(f'v_mul_f32 v{T}, {f32(-1.0/512)}, v{T}')
    for i in range(16):
        s(f'v_pk_add_f32 v[{F+2*i}:{F+2*i+1}], v[{F+2*i}:{F+2*i+1}], v[{T}:{T+1}] op_sel_hi:[1,0]')
    for i in range(16):
        t = T + 2 + 2 * (i & 1); f = f'v[{F+2*i}:{F+2*i+1}]'
        if i < 2: s(f'v_pk_mul_f32 v[{t}:{t+1}], {f}, {f}')
        else: s(f'v_pk_fma_f32 v[{t}:{t+1}], {f}, {f}, v[{t}:{t+1}]')
    s(f'v_pk_add_f32 v[{T}:{T+1}], v[{T+2}:{T+3}], v[{T+4}:{T+5}]\nv_add_f32 v{T}, v{T}, v{T+1}')
    xreduce(s, T, T + 1)
    s(f'v_mov_b32 v{T+1}, {f32(1e-5)}\nv_fmac_f32 v{T+1}, {f32(1.0/512)}, v{T}\nv_rsq_f32 v{T}, v{T+1}\ns_nop 0')
    for i in range(4):
        for j in range(4):
            f = F + 8 * i + 2 * j
            s(f'v_pk_mul_f32 v[{f}:{f+1}], v[{f}:{f+1}], v[{T}:{T+1}] op_sel_hi:[1,0]')
        for j in range(4):
            s(f'v_cvt_pk_bf16_f32 v{F+8*i+j}, v{F+8*i+2*j}, v{F+8*i+2*j+1}')
        s(f'ds_write_b128 v{vLW}, v[{F+8*i}:{F+8*i+3}] offset:{4096*i}', 'lnw')

def prologue(s, opts):
    s(f'''
    s_cmp_ge_u32 s2, 0x100
    s_cbranch_scc0 L_start
    s_endpgm
    L_start:
    s_load_dwordx2 s[6:7], s[0:1], {KA['dbg']}
    s_load_dwordx2 s[4:5], s[0:1], {KA['ws']}
    s_getreg_b32 {sXCC}, hwreg(HW_REG_XCC_ID)
    s_and_b32 {sXCC}, {sXCC}, 7
    v_lshrrev_b32 v1, 6, v0
    v_and_b32 v0, 63, v0
    s_mov_b32 {sSEL0}, 0x05040100
    v_readfirstlane_b32 {sW}, v1
    s_mov_b32 {sSEL1}, 0x07060302
    s_waitcnt lgkmcnt(0)
    s_mov_b32 s8, s4
    s_mov_b32 s9, s5
    s_mov_b32 s10, {WS_BYTES}
    s_mov_b32 s11, 0x20000
    s_getreg_b32 s3, hwreg(HW_REG_HW_ID, 4, 2)
    s_lshl_b32 s30, 1, s3
    v_lshlrev_b32 v2, 2, v1
    v_mov_b32 v3, s30
    ds_write_b32 v2, v3 offset:16
    s_cmp_eq_u32 {sW}, 0
    s_cbranch_scc1 L_rank
    s_cmp_lg_u32 {sW}, 1
    s_cbranch_scc1 L_rank_done
    s_getpc_b64 s[30:31]
    L_pc:
    s_bfe_u32 s32, s2, 0x40003
    s_lshl_b32 s32, s32, 13
    v_lshlrev_b32 v2, 7, v0
    v_add_u32 v2, s32, v2
    v_min_u32 v2, L_code_end - L_pc - 4, v2
    global_load_dword v143, v2, s[30:31]
    s_branch L_rank_done
    L_rank:
    s_lshl_b32 s30, {sXCC}, 2
    s_add_u32 s30, s30, 128
    s_cmp_eq_u32 {sXCC}, 0
    s_cselect_b32 s30, 0, s30
    v_mov_b32 v2, s30
    v_mov_b32 v3, 1
    v_mov_b32 v5, 0
    v_mov_b64 v[8:9], 0
    v_lshlrev_b32 v6, 3, v0
    s_lshl_b32 s31, s2, 9
    s_mov_b64 exec, 1
    global_atomic_add v4, v2, v3, s[6:7] sc0
    s_mov_b64 exec, -1
    buffer_store_dwordx2 v[8:9], v6, {WS}, s31 offen sc1
    ; the chain's hand-off buffers start out empty (all ones)
    v_mov_b64 v[12:13], -1
    v_mov_b64 v[14:15], -1
    v_lshlrev_b32 v6, 4, v0
    v_lshlrev_b32 v7, 2, v0
    s_lshl_b32 s31, s2, 10
    s_add_u32 s31, s31, {CH_IN}
    buffer_store_dwordx4 v[12:15], v6, {WS}, s31 offen sc1
    s_lshl_b32 s31, s2, 8
    s_add_u32 s31, s31, {CH_MEM}
    buffer_store_dword v12, v7, {WS}, s31 offen sc1
    s_mov_b64 exec, 1
    s_waitcnt vmcnt(0)
    global_atomic_add v5, v3, s[6:7] offset:64
    v_readfirstlane_b32 s30, v4
    s_mov_b64 exec, -1
    s_lshl_b32 {sROLE}, {sXCC}, 5
    s_add_u32 {sROLE}, {sROLE}, s30
    s_cmp_lt_u32 s30, 32
    s_cbranch_scc1 L_rank_put
    ''')
    wait_init(s, 5, 4, 'L_exit')
    s(f'''
    s_mov_b64 exec, 1
    global_atomic_add v4, v5, v3, s[6:7] offset:68 sc0
    s_mov_b64 exec, -1
    v_lshlrev_b32 v6, 2, v0
    v_add_u32 v6, 128, v6
    v_cmp_eq_u32 vcc, 0, v0
    s_nop 1
    v_cndmask_b32 v6, v6, v5, vcc
    v_and_b32 v6, 0xbf, v6
    global_load_dword v7, v6, s[6:7] sc1
    s_waitcnt vmcnt(0)
    v_readfirstlane_b32 s30, v4
    s_mov_b32 s31, 0
    L_hole:
    s_nop 3
    v_readlane_b32 s32, v7, s31
    s_min_u32 s32, s32, 32
    s_sub_u32 s33, 32, s32
    s_lshl_b32 {sROLE}, s31, 5
    s_add_u32 {sROLE}, {sROLE}, s32
    s_add_u32 {sROLE}, {sROLE}, s30
    s_cmp_lt_u32 s30, s33
    s_cbranch_scc1 L_rank_put
    s_sub_u32 s30, s30, s33
    s_add_u32 s31, s31, 1
    s_cmp_lt_u32 s31, 8
    s_cbranch_scc1 L_hole
    s_mov_b32 {sROLE}, 0x100
    L_rank_put:
    v_mov_b32 v2, 0
    v_mov_b32 v3, {sROLE}
    ds_write_b32 v2, v3
    L_rank_done:
    s_waitcnt lgkmcnt(0)
    s_barrier
    v_mov_b32 v2, 0
    ds_read_b32 v3, v2
    ds_read_b128 v[4:7], v2 offset:16
    s_waitcnt lgkmcnt(0)
    v_readfirstlane_b32 {sROLE}, v3
    v_or3_b32 v4, v4, v5, v6
    v_or_b32 v4, v4, v7
    s_barrier
    v_readfirstlane_b32 s30, v4
    s_lshl_b32 s3, s3, 2
    s_lshr_b32 s3, {hex(sum(v << 4*i for i, v in enumerate(opts.get('smap') or (0, 2, 1, 3))))}, s3
    s_and_b32 s3, s3, 3
    s_cmp_eq_u32 s30, {15 if opts.get('smap', 1) else 99}
    s_cselect_b32 {sW}, s3, {sW}
    s_cmp_lt_u32 {sROLE}, 0x100
    s_cbranch_scc1 L_dispatch
    L_exit:
    s_endpgm
    L_dispatch:
    ''')

TRACE = 0x80000
def stamp(s, opts, idx, vt):
    if not opts.get('trace'): return
    if opts.get('dbgt'):
        s(f'''s_memrealtime s[98:99]
              s_lshr_b32 s100, {idx}, 2
              s_and_b32 s100, s100, 4
              s_waitcnt lgkmcnt(0)
              s_and_b32 s99, {idx}, 3
              s_add_u32 s100, s100, s99
              s_add_u32 s100, s100, 1
              s_cmp_lt_u32 {sROLE}, 32
              s_cselect_b32 s100, s100, 9
              s_cmp_eq_u32 {idx}, 126
              s_cselect_b32 s100, 10, s100
              s_cmp_eq_u32 {idx}, 10
              s_cselect_b32 s100, 11, s100
              s_lshl_b32 s100, s100, 2
              v_mov_b32 v{vt}, s98
              v_mov_b32 v{vt+1}, s100
              s_mov_b64 exec, 1
              global_atomic_umax v{vt+1}, v{vt}, s[6:7]
              s_mov_b64 exec, -1'''.replace('s_cmp_eq_u32 126, 126', 's_cmp_eq_u32 0, 0').replace('s_lshr_b32 s100, 126', 's_lshr_b32 s100, 0').replace('s_and_b32 s99, 126', 's_and_b32 s99, 0').replace('s_cmp_eq_u32 126, 10', 's_cmp_eq_u32 1, 0'))
    s(f'''s_memrealtime s[98:99]
          s_lshl_b32 s100, {sROLE}, 2
          s_add_u32 s100, s100, {sW}
          s_lshl_b32 s100, s100, 7
          s_add_u32 s100, s100, {idx}
          s_lshl_b32 s100, s100, 2
          s_add_u32 s100, s100, {TRACE}
          s_waitcnt lgkmcnt(0)
          v_mov_b32 v{vt}, s98
          v_mov_b32 v{vt+1}, s100
          buffer_store_dword v{vt}, v{vt+1}, {WS}, 0 offen''')

class TL:
    def __init__(self, opts, role):
        self.pts = list(opts.get('tl_' + role) or []); self.ins = 's_memrealtime' if opts.get('rt') else 's_memtime'; self.at = opts.get('at_' + role)
    def __call__(self, s, k):
        if k in self.pts: s(f'{self.ins} s[{72+2*self.pts.index(k)}:{73+2*self.pts.index(k)}]')
    def dump(self, s, cond, vt):
        if not self.pts: return
        l = L('tl')
        s(f's_waitcnt lgkmcnt(0)\n{cond}\ns_cbranch_scc0 {l}')
        s(f's_lshl_b32 s100, {sROLE}, 2\ns_add_u32 s100, s100, {sW}\ns_lshl_b32 s100, s100, 9\ns_add_u32 s100, s100, {TRACE+4*108}\nv_mov_b32 v{vt}, s100')
        for i in range(len(self.pts)):
            s.append(Op(f'v_mov_b32 v{vt+1}, s{72+2*i}')); s.append(Op(f'buffer_store_dword v{vt+1}, v{vt}, {WS}, 0 offen offset:{4*i}')); s.append(Op('s_nop 1'))
        s(f'{l}:')

class Stats:
    def __init__(self, vSF, SF, GM, ONES, vSW, vSR, vBP, ST, masks):
        self.__dict__.update(locals())
        self.RS, self.NM, self.RSr, self.NMr = ST, ST+1, ST+2, ST+6
    def setup(self, s, lds_off, t0):
        m = self.masks
        s(f'''v_and_b32 v{t0}, 15, v0
              v_lshrrev_b32 v{t0+1}, 4, v0
              v_lshlrev_b32 v{self.vSR}, 5, v{t0}
              v_add_u32 v{self.vSR}, {lds_off}, v{self.vSR}
              s_lshl_b32 s30, {sW}, 3
              v_add_u32 v{self.vSW}, s30, v{self.vSR}
              v_mul_u32_u24 v{self.vBP}, 80, v{t0+1}
              v_lshrrev_b32 v{t0+2}, 2, v{t0}
              v_cmp_eq_u32 s[{m}:{m+1}], v{t0+2}, v{t0+1}
              v_and_b32 v{t0+2}, 3, v{t0}''')
        for r in (1, 2, 3): s(f'v_cmp_eq_u32 s[{m+2*r}:{m+2*r+1}], {r}, v{t0+2}')
        for r in range(4): s(f'v_mov_b32 v{self.ONES+r}, 0x3f803f80')
    def reads(self, s):
        for i in range(4): s(f'ds_read_b128 {vr(self.SF+4*i,4)}, v{self.vSF} offset:{1024*i}', f'sf{i}')
    def mfmas(self, s, after=None):
        G, M = self.GM + 4, self.GM
        for i in range(4):
            s.W('ds', f'sf{i}'); a = vr(self.SF+4*i, 4)
            s(f'v_mfma_f32_16x16x32_bf16 {vr(G,4)}, {a}, {a}, {"0" if i == 0 else vr(G,4)}')
            if after: after(i)
            s(f'v_mfma_f32_16x16x32_bf16 {vr(M,4)}, {vr(self.ONES,4)}, {a}, {"0" if i == 0 else vr(M,4)}')
    def part1(self, f):
        G, M, m = self.GM + 4, self.GM, self.masks
        for r in (1, 2, 3): f(f'v_cndmask_b32 v{M+1 if r == 3 else G}, v{G}, v{G+r}, s[{m+2*r}:{m+2*r+1}]')
        f(f's_mov_b64 exec, s[{m}:{m+1}]'); f(f'ds_write_b64 v{self.vSW}, {vr(M,2)}', 'sw'); f('s_mov_b64 exec, -1')
    def part2(self, f):
        T = self.SF; RS, NM = self.RS, self.NM
        f(f'ds_read_b128 {vr(T,4)}, v{self.vSR}', 'sr0'); f(f'ds_read_b128 {vr(T+4,4)}, v{self.vSR} offset:16', 'sr1')
    def part3(self, f):
        T = self.SF; RS, NM = self.RS, self.NM
        f.W('ds', 'sr1')
        for r in range(4): f(f'v_add_f32 v{T+r}, v{T+r}, v{T+4+r}')
        f(f'''v_add_f32 v{T}, v{T}, v{T+2}
              v_add_f32 v{T+1}, v{T+1}, v{T+3}
              v_mul_f32 v{T}, {f32(-1.0/512)}, v{T}
              v_mul_f32 v{T+1}, {f32(1.0/512)}, v{T+1}
              v_fma_f32 v{T+1}, -v{T}, v{T}, v{T+1}
              v_max_f32 v{T+1}, 0, v{T+1}
              v_add_f32 v{T+1}, {f32(1e-5)}, v{T+1}
              v_rsq_f32 v{RS}, v{T+1}
              s_nop 0
              v_mul_f32 v{NM}, v{T}, v{RS}''')
        for r in range(4):
            f(f'ds_bpermute_b32 v{self.RSr+r}, v{self.vBP}, v{RS} offset:{4*r}', 'bp'); f(f'ds_bpermute_b32 v{self.NMr+r}, v{self.vBP}, v{NM} offset:{4*r}', 'bp')

sMODE = 's31'
def die_mode(s, sM, v0, v1):
    s(f"""s_lshr_b32 s30, {sROLE}, 5
          s_lshl_b32 s30, s30, 2
          s_add_u32 s30, s30, 128
          v_mov_b32 v{v0}, s30
          global_load_dword v{v1}, v{v0}, s[6:7] sc1
          s_waitcnt vmcnt(0)
          v_readfirstlane_b32 s30, v{v1}
          s_cmp_ge_u32 s30, 32
          s_cselect_b32 {sM}, 1, 0""")
def dual(s, sM, tail, lines, tag=None):
    a, b = L('far'), L('join')
    s(f's_cmp_eq_u32 {sM}, 0\ns_cbranch_scc1 {a}')
    s(lines.replace('@', ''), tag); s(f'{b}:')
    tail(f'{a}:'); tail(lines.replace('@', 'sc1')); tail(f's_branch {b}')

def load_pairs_lds(s, groups, grow, rowbytes, delta, scol, lbase, ring, v, tmp, fl=''):
    vG, vR = v, v + 1
    s(f"""v_bfe_u32 v{tmp}, v0, 3, 1
          v_mul_u32_u24 v{vG}, {grow[0]}, v{tmp}
          v_bfe_u32 v{tmp}, v0, 2, 1
          v_mul_u32_u24 v{tmp}, {grow[1]}, v{tmp}
          v_add_u32 v{vG}, v{vG}, v{tmp}
          v_bfe_u32 v{tmp}, v0, 4, 1
          v_add_u32 v{vG}, v{vG}, v{tmp}
          v_lshrrev_b32 v{tmp}, 5, v0
          v_mul_u32_u24 v{tmp}, {delta}, v{tmp}
          v_add_u32 v{vG}, v{vG}, v{tmp}
          v_mul_u32_u24 v{vG}, {rowbytes}, v{vG}
          v_and_b32 v{tmp}, 3, v0
          v_lshl_add_u32 v{vG}, v{tmp}, 4, v{vG}
          v_add_u32 v{vG}, {scol}, v{vG}
          v_lshlrev_b32 v{vR}, 2, v0
          v_add_u32 v{vR}, {lbase}, v{vR}""")
    n = len(groups)
    def issue(i):
        s(f's_add_u32 m0, {lbase}, {1024 * (i % ring)}\ns_mov_b32 s30, {groups[i][1]}\nbuffer_load_dwordx4 v{vG}, {groups[i][0]}, s30 offen {fl} lds')
    def read(i):
        s(f's_waitcnt vmcnt({min(n, i + ring - 2) - i - 1})')
        for jj in range(2):
            b = tmp + 4 * (i % 4) + 2 * jj; o = 4 * (i % ring) + 2 * jj
            s(f'ds_read2st64_b32 v[{b}:{b+1}], v{vR} offset0:{o} offset1:{o+1}')
    for i in range(min(ring - 2, n)): issue(i)
    read(0)
    for i in range(n):
        if i + ring - 2 < n: issue(i + ring - 2)
        if i + 1 < n: read(i + 1)
        s(f's_waitcnt lgkmcnt({2 if i + 1 < n else 0})')
        for jj in range(2):
            b = tmp + 4 * (i % 4) + 2 * jj
            for j, sel in ((0, sSEL0), (1, sSEL1)):
                d = groups[i][2][jj][j]
                if isinstance(d, tuple): s(f'v_perm_b32 v{tmp+16+j}, v{b+1}, v{b}, {sel}\nv_accvgpr_write_b32 a{d[1]}, v{tmp+16+j}')
                else: s(f'v_perm_b32 v{d}, v{b+1}, v{b}, {sel}')

def set_srds(s, items):
    for b, key, n in items: s(f's_load_dwordx2 s[{b}:{b+1}], s[0:1], {KA[key]}')
    s('s_waitcnt lgkmcnt(0)')
    for b, key, n in items: s(f's_mov_b32 s{b+2}, {n}\ns_mov_b32 s{b+3}, 0x20000')

def load_pairs_wg(s, stages, grow, wrow, delta, scol, lbase, v, tmp):
    vG, vR = v, v + 1; RB = 8192; ring = 8; ahead = ring - 2
    s(f"""v_lshrrev_b32 v{tmp}, 5, v0
          v_mul_u32_u24 v{vG}, {grow[0]}, v{tmp}
          v_bfe_u32 v{tmp}, v0, 4, 1
          v_mul_u32_u24 v{tmp}, {grow[1]}, v{tmp}
          v_add_u32 v{vG}, v{vG}, v{tmp}
          s_lshr_b32 s30, {sW}, 1
          s_mul_i32 s30, s30, {wrow[0]}
          s_and_b32 s31, {sW}, 1
          s_mul_i32 s31, s31, {wrow[1]}
          s_add_u32 s30, s30, s31
          v_add_u32 v{vG}, s30, v{vG}
          v_lshlrev_b32 v{vG}, 13, v{vG}
          v_and_b32 v{tmp}, 15, v0
          v_lshl_add_u32 v{vG}, v{tmp}, 4, v{vG}
          v_add_u32 v{vG}, {scol}, v{vG}
          v_lshrrev_b32 v{vR}, 4, v0
          v_lshlrev_b32 v{vR}, 8, v{vR}
          v_lshl_add_u32 v{vR}, v{tmp}, 2, v{vR}
          s_lshl_b32 s30, {sW}, 6
          s_add_u32 s30, s30, {lbase}
          v_add_u32 v{vR}, s30, v{vR}
          v_add_u32 v{vR+1}, 0x10000, v{vR}
          s_lshl_b32 s31, {sW}, 12""")
    n = len(stages)
    def issue(i):
        for k in range(4):
            s(f's_add_u32 m0, s31, {lbase + 16384 * (i % ring) + 1024 * k}\ns_mov_b32 s30, {stages[i][1] + ((k & 1) + (k >> 1) * delta) * RB}\nbuffer_load_dwordx4 v{vG}, {stages[i][0]}, s30 offen lds')
    for i in range(min(ahead, n)): issue(i)
    for i in range(n):
        s(f's_waitcnt vmcnt({4 * (min(n, i + ahead) - i - 1)})\ns_barrier')
        for q in range(4):
            for jj in range(2):
                b = tmp + 4 * q + 2 * jj; o = 64 * (i % 4) + 16 * q + 8 * jj
                s(f'ds_read2st64_b32 v[{b}:{b+1}], v{vR + ((i % ring) >> 2)} offset0:{o} offset1:{o+4}')
        if i + ahead < n: issue(i + ahead)
        for q in range(4):
            s(f's_waitcnt lgkmcnt({6 - 2 * q})')
            for jj in range(2):
                b = tmp + 4 * q + 2 * jj
                for j, sel in ((0, sSEL0), (1, sSEL1)):
                    d = stages[i][2][q][jj][j]
                    if isinstance(d, tuple): s(f'v_perm_b32 v{tmp+16+j}, v{b+1}, v{b}, {sel}\nv_accvgpr_write_b32 a{d[1]}, v{tmp+16+j}')
                    else: s(f'v_perm_b32 v{d}, v{b+1}, v{b}, {sel}')
    s('s_barrier')

def pretouch(s, opts, idx, n, vt):
    if not opts.get('pt', 0): return
    a, b = L('pt'), L('pt')
    s(f"""v_lshlrev_b32 v{vt}, 6, v0
          s_mov_b32 s31, {idx}
          {a}:
          s_lshl_b32 s30, s31, 12
          s_add_u32 s30, s30, {LB0 + O_X1}
          buffer_load_dword v{vt+1}, v{vt}, {WS}, s30 offen nt
          s_add_u32 s31, s31, {n}
          s_cmp_lt_u32 s31, {12*MB // 4096}
          s_cbranch_scc1 {a}""")
    if opts.get('pt', 0) > 1:
        s(f"""s_mov_b32 s31, {idx}
          {b}:
          s_lshr_b32 s30, s31, 2
          s_mul_i32 s30, s30, 6
          s_and_b32 s3, s31, 3
          s_add_u32 s30, s30, s3
          s_lshl_b32 s30, s30, 12
          s_add_u32 s30, s30, {LB0 + O_QKV + 8192}
          buffer_load_dword v{vt+1}, v{vt}, {WS}, s30 offen nt
          s_waitcnt vmcnt({opts.get('ptd', 1)})
          s_add_u32 s31, s31, {n}
          s_cmp_lt_u32 s31, {32*MB // 4096}
          s_cbranch_scc1 {b}""")
    s('s_waitcnt vmcnt(0)')
```

```python
from asmlib import *
NAME = 'interleave_layers__memory_aug_recurrent_mem_tr__softmax_full_mha__prompt'
KA = dict(x=0, mem0=8, Wq=16, Wk=24, Wv=32, Wo=40, wqkv=64, wo=72, out=80, dbg=88, ws=96)
F_P, F_C, F_X1, F_X2, F_AL, F_X3, F_O, F_B = 0x0, 0x1000, 0x2000, 0x2200, 0x2400, 0x3000, 0x4000, 0x10000
CH_MEM, CH_IN = 0x20000, 0x40000
MB = 1 << 20
LB0, LSTR = MB, 32 * MB
O_QKV, O_KVM, O_O, O_X1, O_BQ, O_OB, O_X2, O_X1L = 0, 48*MB, 68*MB, 56*MB, 58*MB, 64*MB, 66*MB, 84*MB
WS_BYTES = 256 * MB
WS, XIN, WSR, OUT = 's[8:11]', 's[12:15]', 's[16:19]', 's[20:23]'
sW, sROLE, sXCC, sSPIN = 's24', 's25', 's26', 's27'
sSEL0, sSEL1 = 's28', 's29'
SPIN_MAX = 200000
LOG2E = 1.4426950408889634
import struct
def f32(x): return hex(struct.unpack('<I', struct.pack('<f', x))[0])

_lbl = [0]
def L(p):
    _lbl[0] += 1
    return f'L_{p}_{_lbl[0]}'

def set_srd(s, srd_base, key, nbytes):
    s(f'''s_load_dwordx2 s[4:5], s[0:1], {KA[key]}
          s_waitcnt lgkmcnt(0)
          s_mov_b32 s{srd_base}, s4
          s_mov_b32 s{srd_base+1}, s5
          s_mov_b32 s{srd_base+2}, {nbytes}
          s_mov_b32 s{srd_base+3}, 0x20000''')

def poll(s, vaddr, soff, vtmp, target, fail, sleep=1):
    a, b = L('poll'), L('pollok')
    s(f'''s_mov_b32 {sSPIN}, 0
          {a}:
          buffer_load_dword v{vtmp}, v{vaddr}, {WS}, {soff} offen sc1
          s_waitcnt vmcnt(0)
          v_cmp_gt_u32 vcc, {target}, v{vtmp}
          s_cbranch_vccz {b}
          s_sleep {sleep}
          s_add_u32 {sSPIN}, {sSPIN}, 1
          s_cmp_lt_u32 {sSPIN}, {SPIN_MAX}
          s_cbranch_scc1 {a}
          s_branch {fail}
          {b}:''')

def poll1(s, vaddr, soff, vtmp, target, fail, sleep=1):
    l = L('p1'); s(f's_cmp_lg_u32 {sW}, 0\ns_cbranch_scc1 {l}'); poll(s, vaddr, soff, vtmp, target, fail, sleep); s(f'{l}:\ns_barrier')

def wait_init(s, v0, v1, fail):
    a, b = L('wi'), L('wiok')
    s(f'''v_mov_b32 v{v0}, 0
          s_mov_b32 {sSPIN}, 0
          {a}:
          global_load_dword v{v1}, v{v0}, s[6:7] offset:64 sc1
          s_waitcnt vmcnt(0)
          v_cmp_gt_u32 vcc, 0x100, v{v1}
          s_cbranch_vccz {b}
          s_sleep 2
          s_add_u32 {sSPIN}, {sSPIN}, 1
          s_cmp_lt_u32 {sSPIN}, {SPIN_MAX}
          s_cbranch_scc1 {a}
          s_branch {fail}
          {b}:''')

def load_pairs(s, pairs, vA, vB, tmp, ntmp, ssoff='s30', post=None, lds=None):
    depth = min(ntmp // 2 - 1, 31)
    t0 = tmp + 2 * depth
    n = len(pairs)
    def issue(i):
        b = tmp + 2 * (i % depth)
        s(f's_mov_b32 {ssoff}, {pairs[i][0]}')
        s(f'buffer_load_dword v{b}, v{vA}, {WSR}, {ssoff} offen')
        s(f'buffer_load_dword v{b+1}, v{vB}, {WSR}, {ssoff} offen')
    for i in range(min(depth, n)): issue(i)
    for i in range(n):
        b = tmp + 2 * (i % depth)
        s(f's_waitcnt vmcnt({2 * (min(n, i + depth) - i - 1)})')
        for j, sel in ((0, sSEL0), (1, sSEL1)):
            d = pairs[i][1 + j]
            if isinstance(d, tuple):
                s(f'v_perm_b32 v{t0+j}, v{b+1}, v{b}, {sel}')
            else:
                s(f'v_perm_b32 v{d}, v{b+1}, v{b}, {sel}')
        for j in (0, 1):
            d = pairs[i][1 + j]
            if isinstance(d, tuple): s(f'v_accvgpr_write_b32 a{d[1]}, v{t0+j}')
        if i + depth < n: issue(i + depth)
        if post: post(i)

def xreduce(s, v, t, op='v_add_f32', dpp=(4, 8)):
    for r in dpp:
        s(f's_nop 1\n{op}_dpp v{v}, v{v}, v{v} row_ror:{r} row_mask:0xf bank_mask:0xf')
    for w in (16, 32):
        s(f'v_mov_b32 v{t}, v{v}\ns_nop 1\nv_permlane{w}_swap_b32 v{v}, v{t}\ns_nop 1\n{op} v{v}, v{v}, v{t}')

def ln_unpack(s, X, F):
    for i in range(16):
        s(f'v_lshlrev_b32 v{F+2*i}, 16, v{X+i}\nv_and_b32 v{F+2*i+1}, 0xffff0000, v{X+i}')

def ln_rest_np(s, F, T, vLW):
    for i in range(4): s(f'v_add_f32 v{T+i}, v{F+i}, v{F+4+i}')
    for i in range(8, 32): s(f'v_add_f32 v{T+i%4}, v{T+i%4}, v{F+i}')
    s(f'v_add_f32 v{T}, v{T}, v{T+1}\nv_add_f32 v{T+2}, v{T+2}, v{T+3}\nv_add_f32 v{T}, v{T}, v{T+2}')
    xreduce(s, T, T + 1)
    s(f'v_mul_f32 v{T}, {f32(-1.0/512)}, v{T}')
    for i in range(32): s(f'v_add_f32 v{F+i}, v{F+i}, v{T}')
    for i in range(32):
        s(f'v_mul_f32 v{T+2+i}, v{F+i}, v{F+i}' if i < 4 else f'v_fmac_f32 v{T+2+i%4}, v{F+i}, v{F+i}')
    s(f'v_add_f32 v{T}, v{T+2}, v{T+3}\nv_add_f32 v{T+4}, v{T+4}, v{T+5}\nv_add_f32 v{T}, v{T}, v{T+4}')
    xreduce(s, T, T + 1)
    s(f'v_mov_b32 v{T+1}, {f32(1e-5)}\nv_fmac_f32 v{T+1}, {f32(1.0/512)}, v{T}\nv_rsq_f32 v{T}, v{T+1}\ns_nop 0')
    for i in range(4):
        for j in range(8): s(f'v_mul_f32 v{F+8*i+j}, v{F+8*i+j}, v{T}')
        for j in range(4): s(f'v_cvt_pk_bf16_f32 v{F+8*i+j}, v{F+8*i+2*j}, v{F+8*i+2*j+1}')
        s(f'ds_write_b128 v{vLW}, v[{F+8*i}:{F+8*i+3}] offset:{4096*i}', 'lnw')

def ln_rest(s, F, T, vLW):
    s(f'v_pk_add_f32 v[{T}:{T+1}], v[{F}:{F+1}], v[{F+2}:{F+3}]')
    s(f'v_pk_add_f32 v[{T+2}:{T+3}], v[{F+4}:{F+5}], v[{F+6}:{F+7}]')
    for i in range(4, 16):
        t = T + 2 * (i & 1)
        s(f'v_pk_add_f32 v[{t}:{t+1}], v[{t}:{t+1}], v[{F+2*i}:{F+2*i+1}]')
    s(f'v_pk_add_f32 v[{T}:{T+1}], v[{T}:{T+1}], v[{T+2}:{T+3}]\nv_add_f32 v{T}, v{T}, v{T+1}')
    xreduce(s, T, T + 1)
    s(f'v_mul_f32 v{T}, {f32(-1.0/512)}, v{T}')
    for i in range(16):
        s(f'v_pk_add_f32 v[{F+2*i}:{F+2*i+1}], v[{F+2*i}:{F+2*i+1}], v[{T}:{T+1}] op_sel_hi:[1,0]')
    for i in range(16):
        t = T + 2 + 2 * (i & 1); f = f'v[{F+2*i}:{F+2*i+1}]'
        if i < 2: s(f'v_pk_mul_f32 v[{t}:{t+1}], {f}, {f}')
        else: s(f'v_pk_fma_f32 v[{t}:{t+1}], {f}, {f}, v[{t}:{t+1}]')
    s(f'v_pk_add_f32 v[{T}:{T+1}], v[{T+2}:{T+3}], v[{T+4}:{T+5}]\nv_add_f32 v{T}, v{T}, v{T+1}')
    xreduce(s, T, T + 1)
    s(f'v_mov_b32 v{T+1}, {f32(1e-5)}\nv_fmac_f32 v{T+1}, {f32(1.0/512)}, v{T}\nv_rsq_f32 v{T}, v{T+1}\ns_nop 0')
    for i in range(4):
        for j in range(4):
            f = F + 8 * i + 2 * j
            s(f'v_pk_mul_f32 v[{f}:{f+1}], v[{f}:{f+1}], v[{T}:{T+1}] op_sel_hi:[1,0]')
        for j in range(4):
            s(f'v_cvt_pk_bf16_f32 v{F+8*i+j}, v{F+8*i+2*j}, v{F+8*i+2*j+1}')
        s(f'ds_write_b128 v{vLW}, v[{F+8*i}:{F+8*i+3}] offset:{4096*i}', 'lnw')

def prologue(s, opts):
    s(f'''
    s_cmp_ge_u32 s2, 0x100
    s_cbranch_scc0 L_start
    s_endpgm
    L_start:
    s_load_dwordx2 s[6:7], s[0:1], {KA['dbg']}
    s_load_dwordx2 s[4:5], s[0:1], {KA['ws']}
    s_getreg_b32 {sXCC}, hwreg(HW_REG_XCC_ID)
    s_and_b32 {sXCC}, {sXCC}, 7
    v_lshrrev_b32 v1, 6, v0
    v_and_b32 v0, 63, v0
    s_mov_b32 {sSEL0}, 0x05040100
    v_readfirstlane_b32 {sW}, v1
    s_mov_b32 {sSEL1}, 0x07060302
    s_waitcnt lgkmcnt(0)
    s_mov_b32 s8, s4
    s_mov_b32 s9, s5
    s_mov_b32 s10, {WS_BYTES}
    s_mov_b32 s11, 0x20000
    s_getreg_b32 s3, hwreg(HW_REG_HW_ID, 4, 2)
    s_lshl_b32 s30, 1, s3
    v_lshlrev_b32 v2, 2, v1
    v_mov_b32 v3, s30
    ds_write_b32 v2, v3 offset:16
    s_cmp_eq_u32 {sW}, 0
    s_cbranch_scc1 L_rank
    s_cmp_lg_u32 {sW}, 1
    s_cbranch_scc1 L_rank_done
    s_getpc_b64 s[30:31]
    L_pc:
    s_bfe_u32 s32, s2, 0x40003
    s_lshl_b32 s32, s32, 13
    v_lshlrev_b32 v2, 7, v0
    v_add_u32 v2, s32, v2
    v_min_u32 v2, L_code_end - L_pc - 4, v2
    global_load_dword v143, v2, s[30:31]
    s_branch L_rank_done
    L_rank:
    s_lshl_b32 s30, {sXCC}, 2
    s_add_u32 s30, s30, 128
    s_cmp_eq_u32 {sXCC}, 0
    s_cselect_b32 s30, 0, s30
    v_mov_b32 v2, s30
    v_mov_b32 v3, 1
    v_mov_b32 v5, 0
    v_mov_b64 v[8:9], 0
    v_lshlrev_b32 v6, 3, v0
    s_lshl_b32 s31, s2, 9
    s_mov_b64 exec, 1
    global_atomic_add v4, v2, v3, s[6:7] sc0
    s_mov_b64 exec, -1
    buffer_store_dwordx2 v[8:9], v6, {WS}, s31 offen sc1
    ; the chain's hand-off buffers start out empty (all ones)
    v_mov_b64 v[12:13], -1
    v_mov_b64 v[14:15], -1
    v_lshlrev_b32 v6, 4, v0
    v_lshlrev_b32 v7, 2, v0
    s_lshl_b32 s31, s2, 10
    s_add_u32 s31, s31, {CH_IN}
    buffer_store_dwordx4 v[12:15], v6, {WS}, s31 offen sc1
    s_lshl_b32 s31, s2, 8
    s_add_u32 s31, s31, {CH_MEM}
    buffer_store_dword v12, v7, {WS}, s31 offen sc1
    s_mov_b64 exec, 1
    s_waitcnt vmcnt(0)
    global_atomic_add v5, v3, s[6:7] offset:64
    v_readfirstlane_b32 s30, v4
    s_mov_b64 exec, -1
    s_lshl_b32 {sROLE}, {sXCC}, 5
    s_add_u32 {sROLE}, {sROLE}, s30
    s_cmp_lt_u32 s30, 32
    s_cbranch_scc1 L_rank_put
    ''')
    wait_init(s, 5, 4, 'L_exit')
    s(f'''
    s_mov_b64 exec, 1
    global_atomic_add v4, v5, v3, s[6:7] offset:68 sc0
    s_mov_b64 exec, -1
    v_lshlrev_b32 v6, 2, v0
    v_add_u32 v6, 128, v6
    v_cmp_eq_u32 vcc, 0, v0
    s_nop 1
    v_cndmask_b32 v6, v6, v5, vcc
    v_and_b32 v6, 0xbf, v6
    global_load_dword v7, v6, s[6:7] sc1
    s_waitcnt vmcnt(0)
    v_readfirstlane_b32 s30, v4
    s_mov_b32 s31, 0
    L_hole:
    s_nop 3
    v_readlane_b32 s32, v7, s31
    s_min_u32 s32, s32, 32
    s_sub_u32 s33, 32, s32
    s_lshl_b32 {sROLE}, s31, 5
    s_add_u32 {sROLE}, {sROLE}, s32
    s_add_u32 {sROLE}, {sROLE}, s30
    s_cmp_lt_u32 s30, s33
    s_cbranch_scc1 L_rank_put
    s_sub_u32 s30, s30, s33
    s_add_u32 s31, s31, 1
    s_cmp_lt_u32 s31, 8
    s_cbranch_scc1 L_hole
    s_mov_b32 {sROLE}, 0x100
    L_rank_put:
    v_mov_b32 v2, 0
    v_mov_b32 v3, {sROLE}
    ds_write_b32 v2, v3
    L_rank_done:
    s_waitcnt lgkmcnt(0)
    s_barrier
    v_mov_b32 v2, 0
    ds_read_b32 v3, v2
    ds_read_b128 v[4:7], v2 offset:16
    s_waitcnt lgkmcnt(0)
    v_readfirstlane_b32 {sROLE}, v3
    v_or3_b32 v4, v4, v5, v6
    v_or_b32 v4, v4, v7
    s_barrier
    v_readfirstlane_b32 s30, v4
    s_lshl_b32 s3, s3, 2
    s_lshr_b32 s3, {hex(sum(v << 4*i for i, v in enumerate(opts.get('smap') or (0, 2, 1, 3))))}, s3
    s_and_b32 s3, s3, 3
    s_cmp_eq_u32 s30, {15 if opts.get('smap', 1) else 99}
    s_cselect_b32 {sW}, s3, {sW}
    s_cmp_lt_u32 {sROLE}, 0x100
    s_cbranch_scc1 L_dispatch
    L_exit:
    s_endpgm
    L_dispatch:
    ''')

TRACE = 0x80000
def stamp(s, opts, idx, vt):
    if not opts.get('trace'): return
    if opts.get('dbgt'):
        l = L('dt')
        s(f'''s_lshl_b32 s100, {sROLE}, 2
              s_add_u32 s100, s100, {sW}
              s_cmp_lg_u32 s100, 0
              s_cbranch_scc1 {l}
              s_memrealtime s[98:99]
              s_mov_b32 s100, {idx}
              s_waitcnt lgkmcnt(0)
              s_and_b32 s99, s100, 3
              s_lshr_b32 s100, s100, 3
              s_and_b32 s100, s100, 3
              s_lshl_b32 s100, s100, 1
              s_add_u32 s100, s100, s99
              s_add_u32 s100, s100, 1
              s_lshl_b32 s100, s100, 2
              s_sub_u32 s98, s98, s96
              v_mov_b32 v{vt}, s98
              v_mov_b32 v{vt+1}, s100
              global_store_dword v{vt+1}, v{vt}, s[6:7]
              v_mov_b32 v{vt}, s96
              v_mov_b32 v{vt+1}, 40
              global_store_dword v{vt+1}, v{vt}, s[6:7]
              {l}:
              v_mov_b32 v{vt+1}, {TRACE}''')
        return
    s(f'''s_memrealtime s[98:99]
          s_lshl_b32 s100, {sROLE}, 2
          s_add_u32 s100, s100, {sW}
          s_lshl_b32 s100, s100, 7
          s_add_u32 s100, s100, {idx}
          s_lshl_b32 s100, s100, 2
          s_add_u32 s100, s100, {TRACE}
          s_waitcnt lgkmcnt(0)
          v_mov_b32 v{vt}, s98
          v_mov_b32 v{vt+1}, s100
          buffer_store_dword v{vt}, v{vt+1}, {WS}, 0 offen''')

class TL:
    def __init__(self, opts, role):
        self.pts = list(opts.get('tl_' + role) or []); self.ins = 's_memrealtime' if opts.get('rt') else 's_memtime'; self.at = opts.get('at_' + role)
    def __call__(self, s, k):
        if k in self.pts: s(f'{self.ins} s[{72+2*self.pts.index(k)}:{73+2*self.pts.index(k)}]')
    def dump(self, s, cond, vt):
        if not self.pts: return
        l = L('tl')
        s(f's_waitcnt lgkmcnt(0)\n{cond}\ns_cbranch_scc0 {l}')
        s(f's_lshl_b32 s100, {sROLE}, 2\ns_add_u32 s100, s100, {sW}\ns_lshl_b32 s100, s100, 9\ns_add_u32 s100, s100, {TRACE+4*108}\nv_mov_b32 v{vt}, s100')
        for i in range(len(self.pts)):
            s.append(Op(f'v_mov_b32 v{vt+1}, s{72+2*i}')); s.append(Op(f'buffer_store_dword v{vt+1}, v{vt}, {WS}, 0 offen offset:{4*i}')); s.append(Op('s_nop 1'))
        s(f'{l}:')

class Stats:
    def __init__(self, vSF, SF, GM, ONES, vSW, vSR, vBP, ST, masks):
        self.__dict__.update(locals())
        self.RS, self.NM, self.RSr, self.NMr = ST, ST+1, ST+2, ST+6
    def setup(self, s, lds_off, t0):
        m = self.masks
        s(f'''v_and_b32 v{t0}, 15, v0
              v_lshrrev_b32 v{t0+1}, 4, v0
              v_lshlrev_b32 v{self.vSR}, 5, v{t0}
              v_add_u32 v{self.vSR}, {lds_off}, v{self.vSR}
              s_lshl_b32 s30, {sW}, 3
              v_add_u32 v{self.vSW}, s30, v{self.vSR}
              v_mul_u32_u24 v{self.vBP}, 80, v{t0+1}
              v_lshrrev_b32 v{t0+2}, 2, v{t0}
              v_cmp_eq_u32 s[{m}:{m+1}], v{t0+2}, v{t0+1}
              v_and_b32 v{t0+2}, 3, v{t0}''')
        for r in (1, 2, 3): s(f'v_cmp_eq_u32 s[{m+2*r}:{m+2*r+1}], {r}, v{t0+2}')
        for r in range(4): s(f'v_mov_b32 v{self.ONES+r}, 0x3f803f80')
    def reads(self, s):
        for i in range(4): s(f'ds_read_b128 {vr(self.SF+4*i,4)}, v{self.vSF} offset:{1024*i}', f'sf{i}')
    def mfmas(self, s, after=None):
        G, M = self.GM + 4, self.GM
        for i in range(4):
            s.W('ds', f'sf{i}'); a = vr(self.SF+4*i, 4)
            s(f'v_mfma_f32_16x16x32_bf16 {vr(G,4)}, {a}, {a}, {"0" if i == 0 else vr(G,4)}')
            if after: after(i)
            s(f'v_mfma_f32_16x16x32_bf16 {vr(M,4)}, {vr(self.ONES,4)}, {a}, {"0" if i == 0 else vr(M,4)}')
    def part1(self, f):
        G, M, m = self.GM + 4, self.GM, self.masks
        for r in (1, 2, 3): f(f'v_cndmask_b32 v{M+1 if r == 3 else G}, v{G}, v{G+r}, s[{m+2*r}:{m+2*r+1}]')
        f(f's_mov_b64 exec, s[{m}:{m+1}]'); f(f'ds_write_b64 v{self.vSW}, {vr(M,2)}', 'sw'); f('s_mov_b64 exec, -1')
    def part2(self, f):
        T = self.SF; RS, NM = self.RS, self.NM
        f(f'ds_read_b128 {vr(T,4)}, v{self.vSR}', 'sr0'); f(f'ds_read_b128 {vr(T+4,4)}, v{self.vSR} offset:16', 'sr1')
    def part3(self, f):
        T = self.SF; RS, NM = self.RS, self.NM
        f.W('ds', 'sr1')
        for r in range(4): f(f'v_add_f32 v{T+r}, v{T+r}, v{T+4+r}')
        f(f'''v_add_f32 v{T}, v{T}, v{T+2}
              v_add_f32 v{T+1}, v{T+1}, v{T+3}
              v_mul_f32 v{T}, {f32(-1.0/512)}, v{T}
              v_mul_f32 v{T+1}, {f32(1.0/512)}, v{T+1}
              v_fma_f32 v{T+1}, -v{T}, v{T}, v{T+1}
              v_max_f32 v{T+1}, 0, v{T+1}
              v_add_f32 v{T+1}, {f32(1e-5)}, v{T+1}
              v_rsq_f32 v{RS}, v{T+1}
              s_nop 0
              v_mul_f32 v{NM}, v{T}, v{RS}''')
        for r in range(4):
            f(f'ds_bpermute_b32 v{self.RSr+r}, v{self.vBP}, v{RS} offset:{4*r}', 'bp'); f(f'ds_bpermute_b32 v{self.NMr+r}, v{self.vBP}, v{NM} offset:{4*r}', 'bp')

sMODE = 's31'
def die_mode(s, sM, v0, v1):
    s(f"""s_lshr_b32 s30, {sROLE}, 5
          s_lshl_b32 s30, s30, 2
          s_add_u32 s30, s30, 128
          v_mov_b32 v{v0}, s30
          global_load_dword v{v1}, v{v0}, s[6:7] sc1
          s_waitcnt vmcnt(0)
          v_readfirstlane_b32 s30, v{v1}
          s_cmp_ge_u32 s30, 32
          s_cselect_b32 {sM}, 1, 0""")
def dual(s, sM, tail, lines, tag=None):
    a, b = L('far'), L('join')
    s(f's_cmp_eq_u32 {sM}, 0\ns_cbranch_scc1 {a}')
    s(lines.replace('@', ''), tag); s(f'{b}:')
    tail(f'{a}:'); tail(lines.replace('@', 'sc1')); tail(f's_branch {b}')

def load_pairs_lds(s, groups, grow, rowbytes, delta, scol, lbase, ring, v, tmp, fl=''):
    vG, vR = v, v + 1
    s(f"""v_bfe_u32 v{tmp}, v0, 3, 1
          v_mul_u32_u24 v{vG}, {grow[0]}, v{tmp}
          v_bfe_u32 v{tmp}, v0, 2, 1
          v_mul_u32_u24 v{tmp}, {grow[1]}, v{tmp}
          v_add_u32 v{vG}, v{vG}, v{tmp}
          v_bfe_u32 v{tmp}, v0, 4, 1
          v_add_u32 v{vG}, v{vG}, v{tmp}
          v_lshrrev_b32 v{tmp}, 5, v0
          v_mul_u32_u24 v{tmp}, {delta}, v{tmp}
          v_add_u32 v{vG}, v{vG}, v{tmp}
          v_mul_u32_u24 v{vG}, {rowbytes}, v{vG}
          v_and_b32 v{tmp}, 3, v0
          v_lshl_add_u32 v{vG}, v{tmp}, 4, v{vG}
          v_add_u32 v{vG}, {scol}, v{vG}
          v_lshlrev_b32 v{vR}, 2, v0
          v_add_u32 v{vR}, {lbase}, v{vR}""")
    n = len(groups)
    def issue(i):
        s(f's_add_u32 m0, {lbase}, {1024 * (i % ring)}\ns_mov_b32 s30, {groups[i][1]}\nbuffer_load_dwordx4 v{vG}, {groups[i][0]}, s30 offen {fl} lds')
    def read(i):
        s(f's_waitcnt vmcnt({min(n, i + ring - 2) - i - 1})')
        for jj in range(2):
            b = tmp + 4 * (i % 4) + 2 * jj; o = 4 * (i % ring) + 2 * jj
            s(f'ds_read2st64_b32 v[{b}:{b+1}], v{vR} offset0:{o} offset1:{o+1}')
    for i in range(min(ring - 2, n)): issue(i)
    read(0)
    for i in range(n):
        if i + ring - 2 < n: issue(i + ring - 2)
        if i + 1 < n: read(i + 1)
        s(f's_waitcnt lgkmcnt({2 if i + 1 < n else 0})')
        for jj in range(2):
            b = tmp + 4 * (i % 4) + 2 * jj
            for j, sel in ((0, sSEL0), (1, sSEL1)):
                d = groups[i][2][jj][j]
                if isinstance(d, tuple): s(f'v_perm_b32 v{tmp+16+j}, v{b+1}, v{b}, {sel}\nv_accvgpr_write_b32 a{d[1]}, v{tmp+16+j}')
                else: s(f'v_perm_b32 v{d}, v{b+1}, v{b}, {sel}')

def set_srds(s, items):
    for b, key, n in items: s(f's_load_dwordx2 s[{b}:{b+1}], s[0:1], {KA[key]}')
    s('s_waitcnt lgkmcnt(0)')
    for b, key, n in items: s(f's_mov_b32 s{b+2}, {n}\ns_mov_b32 s{b+3}, 0x20000')

def load_pairs_wg(s, stages, grow, wrow, delta, scol, lbase, v, tmp):
    vG, vR = v, v + 1; RB = 8192; ring = 8; ahead = ring - 2
    s(f"""v_lshrrev_b32 v{tmp}, 5, v0
          v_mul_u32_u24 v{vG}, {grow[0]}, v{tmp}
          v_bfe_u32 v{tmp}, v0, 4, 1
          v_mul_u32_u24 v{tmp}, {grow[1]}, v{tmp}
          v_add_u32 v{vG}, v{vG}, v{tmp}
          s_lshr_b32 s30, {sW}, 1
          s_mul_i32 s30, s30, {wrow[0]}
          s_and_b32 s31, {sW}, 1
          s_mul_i32 s31, s31, {wrow[1]}
          s_add_u32 s30, s30, s31
          v_add_u32 v{vG}, s30, v{vG}
          v_lshlrev_b32 v{vG}, 13, v{vG}
          v_and_b32 v{tmp}, 15, v0
          v_lshl_add_u32 v{vG}, v{tmp}, 4, v{vG}
          v_add_u32 v{vG}, {scol}, v{vG}
          v_lshrrev_b32 v{vR}, 4, v0
          v_lshlrev_b32 v{vR}, 8, v{vR}
          v_lshl_add_u32 v{vR}, v{tmp}, 2, v{vR}
          s_lshl_b32 s30, {sW}, 6
          s_add_u32 s30, s30, {lbase}
          v_add_u32 v{vR}, s30, v{vR}
          v_add_u32 v{vR+1}, 0x10000, v{vR}
          s_lshl_b32 s31, {sW}, 12""")
    n = len(stages)
    def issue(i):
        for k in range(4):
            s(f's_add_u32 m0, s31, {lbase + 16384 * (i % ring) + 1024 * k}\ns_mov_b32 s30, {stages[i][1] + ((k & 1) + (k >> 1) * delta) * RB}\nbuffer_load_dwordx4 v{vG}, {stages[i][0]}, s30 offen lds')
    for i in range(min(ahead, n)): issue(i)
    for i in range(n):
        s(f's_waitcnt vmcnt({4 * (min(n, i + ahead) - i - 1)})\ns_barrier')
        for q in range(4):
            for jj in range(2):
                b = tmp + 4 * q + 2 * jj; o = 64 * (i % 4) + 16 * q + 8 * jj
                s(f'ds_read2st64_b32 v[{b}:{b+1}], v{vR + ((i % ring) >> 2)} offset0:{o} offset1:{o+4}')
        if i + ahead < n: issue(i + ahead)
        for q in range(4):
            s(f's_waitcnt lgkmcnt({6 - 2 * q})')
            for jj in range(2):
                b = tmp + 4 * q + 2 * jj
                for j, sel in ((0, sSEL0), (1, sSEL1)):
                    d = stages[i][2][q][jj][j]
                    if isinstance(d, tuple): s(f'v_perm_b32 v{tmp+16+j}, v{b+1}, v{b}, {sel}\nv_accvgpr_write_b32 a{d[1]}, v{tmp+16+j}')
                    else: s(f'v_perm_b32 v{d}, v{b+1}, v{b}, {sel}')
    s('s_barrier')

def pretouch(s, opts, idx, n, vt):
    if not opts.get('pt', 0): return
    a, b = L('pt'), L('pt')
    s(f"""v_lshlrev_b32 v{vt}, 6, v0
          s_mov_b32 s31, {idx}
          {a}:
          s_lshl_b32 s30, s31, 12
          s_add_u32 s30, s30, {LB0 + O_X1}
          buffer_load_dword v{vt+1}, v{vt}, {WS}, s30 offen nt
          s_add_u32 s31, s31, {n}
          s_cmp_lt_u32 s31, {12*MB // 4096}
          s_cbranch_scc1 {a}""")
    if opts.get('pt', 0) > 1:
        s(f"""s_mov_b32 s31, {idx}
          {b}:
          s_lshr_b32 s30, s31, 2
          s_mul_i32 s30, s30, 6
          s_and_b32 s3, s31, 3
          s_add_u32 s30, s30, s3
          s_lshl_b32 s30, s30, 12
          s_add_u32 s30, s30, {LB0 + O_QKV + 8192}
          buffer_load_dword v{vt+1}, v{vt}, {WS}, s30 offen nt
          s_waitcnt vmcnt({opts.get('ptd', 1)})
          s_add_u32 s31, s31, {n}
          s_cmp_lt_u32 s31, {32*MB // 4096}
          s_cbranch_scc1 {b}""")
    s('s_waitcnt vmcnt(0)')
```

```python
from asmlib import *
NAME = 'interleave_layers__memory_aug_recurrent_mem_tr__softmax_full_mha__prompt'
KA = dict(x=0, mem0=8, Wq=16, Wk=24, Wv=32, Wo=40, wqkv=64, wo=72, out=80, dbg=88, ws=96)
F_X3L = 0x1000; RD = 4
F_P, F_C, F_X1, F_X2, F_AL, F_X3, F_O, F_B = 0x0, 0x1000, 0x2000, 0x2200, 0x2400, 0x3000, 0x4000, 0x10000
CH_MEM, CH_IN = 0x20000, 0x40000
MB = 1 << 20
LB0, LSTR = MB, 32 * MB
O_QKV, O_KVM, O_O, O_X1, O_BQ, O_OB, O_X2, O_X1L = 0, 49*MB, 70*MB, 58*MB, 60*MB, 66*MB, 68*MB, 86*MB
HS, SS = 1, 32
JUNK = LB0 + 57*MB + MB//2
WS_BYTES = 256 * MB
WS, XIN, WSR, OUT = 's[8:11]', 's[12:15]', 's[16:19]', 's[20:23]'
sW, sROLE, sXCC, sSPIN = 's24', 's25', 's26', 's27'
sSEL0, sSEL1 = 's28', 's29'
SPIN_MAX = 200000
LOG2E = 1.4426950408889634
import struct
def f32(x): return hex(struct.unpack('<I', struct.pack('<f', x))[0])

_lbl = [0]
def L(p):
    _lbl[0] += 1
    return f'L_{p}_{_lbl[0]}'

def set_srd(s, srd_base, key, nbytes):
    s(f'''s_load_dwordx2 s[4:5], s[0:1], {KA[key]}
          s_waitcnt lgkmcnt(0)
          s_mov_b32 s{srd_base}, s4
          s_mov_b32 s{srd_base+1}, s5
          s_mov_b32 s{srd_base+2}, {nbytes}
          s_mov_b32 s{srd_base+3}, 0x20000''')

def nap(lazy, sleep):
    if not lazy or not lazy[2]: return f's_sleep {sleep}'
    l = L('nap'); return f's_cmp_lt_u32 {lazy[0]}, {lazy[1]}\ns_cbranch_scc0 {l}\ns_sleep {lazy[2]}\n{l}:'

def poll(s, vaddr, soff, vtmp, target, fail, sleep=1, lazy=None):
    a, b = L('poll'), L('pollok')
    s(f'''s_mov_b32 {sSPIN}, 0
          {a}:
          buffer_load_dword v{vtmp}, v{vaddr}, {WS}, {soff} offen sc1
          s_waitcnt vmcnt(0)
          v_cmp_gt_u32 vcc, {target}, v{vtmp}
          s_cbranch_vccz {b}
          {nap(lazy, sleep)}
          s_add_u32 {sSPIN}, {sSPIN}, 1
          s_cmp_lt_u32 {sSPIN}, {SPIN_MAX}
          s_cbranch_scc1 {a}
          s_branch {fail}
          {b}:''')

def poll1(s, vaddr, soff, vtmp, target, fail, sleep=1):
    l = L('p1'); s(f's_cmp_lg_u32 {sW}, 0\ns_cbranch_scc1 {l}'); poll(s, vaddr, soff, vtmp, target, fail, sleep); s(f'{l}:\ns_barrier')

def wait_init(s, v0, v1, fail):
    a, b = L('wi'), L('wiok')
    s(f'''v_mov_b32 v{v0}, 0
          s_mov_b32 {sSPIN}, 0
          {a}:
          global_load_dword v{v1}, v{v0}, s[6:7] offset:64 sc1
          s_waitcnt vmcnt(0)
          v_cmp_gt_u32 vcc, 0x100, v{v1}
          s_cbranch_vccz {b}
          s_sleep 2
          s_add_u32 {sSPIN}, {sSPIN}, 1
          s_cmp_lt_u32 {sSPIN}, {SPIN_MAX}
          s_cbranch_scc1 {a}
          s_branch {fail}
          {b}:''')

def load_pairs(s, pairs, vA, vB, tmp, ntmp, ssoff='s30', post=None, lds=None):
    depth = min(ntmp // 2 - 1, 31)
    t0 = tmp + 2 * depth
    n = len(pairs)
    def issue(i):
        b = tmp + 2 * (i % depth)
        s(f's_mov_b32 {ssoff}, {pairs[i][0]}')
        s(f'buffer_load_dword v{b}, v{vA}, {WSR}, {ssoff} offen')
        s(f'buffer_load_dword v{b+1}, v{vB}, {WSR}, {ssoff} offen')
    for i in range(min(depth, n)): issue(i)
    for i in range(n):
        b = tmp + 2 * (i % depth)
        s(f's_waitcnt vmcnt({2 * (min(n, i + depth) - i - 1)})')
        for j, sel in ((0, sSEL0), (1, sSEL1)):
            d = pairs[i][1 + j]
            if isinstance(d, tuple):
                s(f'v_perm_b32 v{t0+j}, v{b+1}, v{b}, {sel}')
            else:
                s(f'v_perm_b32 v{d}, v{b+1}, v{b}, {sel}')
        for j in (0, 1):
            d = pairs[i][1 + j]
            if isinstance(d, tuple): s(f'v_accvgpr_write_b32 a{d[1]}, v{t0+j}')
        if i + depth < n: issue(i + depth)
        if post: post(i)

def xreduce(s, v, t, op='v_add_f32', dpp=(4, 8)):
    for r in dpp:
        s(f's_nop 1\n{op}_dpp v{v}, v{v}, v{v} row_ror:{r} row_mask:0xf bank_mask:0xf')
    for w in (16, 32):
        s(f'v_mov_b32 v{t}, v{v}\ns_nop 1\nv_permlane{w}_swap_b32 v{v}, v{t}\ns_nop 1\n{op} v{v}, v{v}, v{t}')

def ln_unpack(s, X, F):
    for i in range(16):
        s(f'v_lshlrev_b32 v{F+2*i}, 16, v{X+i}\nv_and_b32 v{F+2*i+1}, 0xffff0000, v{X+i}')

def ln_rest_np(s, F, T, vLW):
    for i in range(4): s(f'v_add_f32 v{T+i}, v{F+i}, v{F+4+i}')
    for i in range(8, 32): s(f'v_add_f32 v{T+i%4}, v{T+i%4}, v{F+i}')
    s(f'v_add_f32 v{T}, v{T}, v{T+1}\nv_add_f32 v{T+2}, v{T+2}, v{T+3}\nv_add_f32 v{T}, v{T}, v{T+2}')
    xreduce(s, T, T + 1)
    s(f'v_mul_f32 v{T}, {f32(-1.0/512)}, v{T}')
    for i in range(32): s(f'v_add_f32 v{F+i}, v{F+i}, v{T}')
    for i in range(32):
        s(f'v_mul_f32 v{T+2+i}, v{F+i}, v{F+i}' if i < 4 else f'v_fmac_f32 v{T+2+i%4}, v{F+i}, v{F+i}')
    s(f'v_add_f32 v{T}, v{T+2}, v{T+3}\nv_add_f32 v{T+4}, v{T+4}, v{T+5}\nv_add_f32 v{T}, v{T}, v{T+4}')
    xreduce(s, T, T + 1)
    s(f'v_mov_b32 v{T+1}, {f32(1e-5)}\nv_fmac_f32 v{T+1}, {f32(1.0/512)}, v{T}\nv_rsq_f32 v{T}, v{T+1}\ns_nop 0')
    for i in range(4):
        for j in range(8): s(f'v_mul_f32 v{F+8*i+j}, v{F+8*i+j}, v{T}')
        for j in range(4): s(f'v_cvt_pk_bf16_f32 v{F+8*i+j}, v{F+8*i+2*j}, v{F+8*i+2*j+1}')
        s(f'ds_write_b128 v{vLW}, v[{F+8*i}:{F+8*i+3}] offset:{4096*i}', 'lnw')

def ln_rest(s, F, T, vLW):
    s(f'v_pk_add_f32 v[{T}:{T+1}], v[{F}:{F+1}], v[{F+2}:{F+3}]')
    s(f'v_pk_add_f32 v[{T+2}:{T+3}], v[{F+4}:{F+5}], v[{F+6}:{F+7}]')
    for i in range(4, 16):
        t = T + 2 * (i & 1)
        s(f'v_pk_add_f32 v[{t}:{t+1}], v[{t}:{t+1}], v[{F+2*i}:{F+2*i+1}]')
    s(f'v_pk_add_f32 v[{T}:{T+1}], v[{T}:{T+1}], v[{T+2}:{T+3}]\nv_add_f32 v{T}, v{T}, v{T+1}')
    xreduce(s, T, T + 1)
    s(f'v_mul_f32 v{T}, {f32(-1.0/512)}, v{T}')
    for i in range(16):
        s(f'v_pk_add_f32 v[{F+2*i}:{F+2*i+1}], v[{F+2*i}:{F+2*i+1}], v[{T}:{T+1}] op_sel_hi:[1,0]')
    for i in range(16):
        t = T + 2 + 2 * (i & 1); f = f'v[{F+2*i}:{F+2*i+1}]'
        if i < 2: s(f'v_pk_mul_f32 v[{t}:{t+1}], {f}, {f}')
        else: s(f'v_pk_fma_f32 v[{t}:{t+1}], {f}, {f}, v[{t}:{t+1}]')
    s(f'v_pk_add_f32 v[{T}:{T+1}], v[{T+2}:{T+3}], v[{T+4}:{T+5}]\nv_add_f32 v{T}, v{T}, v{T+1}')
    xreduce(s, T, T + 1)
    s(f'v_mov_b32 v{T+1}, {f32(1e-5)}\nv_fmac_f32 v{T+1}, {f32(1.0/512)}, v{T}\nv_rsq_f32 v{T}, v{T+1}\ns_nop 0')
    for i in range(4):
        for j in range(4):
            f = F + 8 * i + 2 * j
            s(f'v_pk_mul_f32 v[{f}:{f+1}], v[{f}:{f+1}], v[{T}:{T+1}] op_sel_hi:[1,0]')
        for j in range(4):
            s(f'v_cvt_pk_bf16_f32 v{F+8*i+j}, v{F+8*i+2*j}, v{F+8*i+2*j+1}')
        s(f'ds_write_b128 v{vLW}, v[{F+8*i}:{F+8*i+3}] offset:{4096*i}', 'lnw')

def prologue(s, opts):
    s(f'''
    s_cmp_ge_u32 s2, 0x100
    s_cbranch_scc0 L_start
    s_endpgm
    L_start:
    s_load_dwordx2 s[6:7], s[0:1], {KA['dbg']}
    s_load_dwordx2 s[4:5], s[0:1], {KA['ws']}
    s_getreg_b32 {sXCC}, hwreg(HW_REG_XCC_ID)
    s_and_b32 {sXCC}, {sXCC}, 7
    s_lshl_b32 {sXCC}, {sXCC}, 2
    s_lshr_b32 {sXCC}, {hex(sum(v << 4*i for i, v in enumerate(opts.get('xmap', (1, 2, 5, 0, 3, 4, 6, 7)))))}, {sXCC}
    s_and_b32 {sXCC}, {sXCC}, 7
    v_lshrrev_b32 v1, 6, v0
    v_and_b32 v0, 63, v0
    s_mov_b32 {sSEL0}, 0x05040100
    v_readfirstlane_b32 {sW}, v1
    s_mov_b32 {sSEL1}, 0x07060302
    s_waitcnt lgkmcnt(0)
    s_mov_b32 s8, s4
    s_mov_b32 s9, s5
    s_mov_b32 s10, {WS_BYTES}
    s_mov_b32 s11, 0x20000
    s_getreg_b32 s3, hwreg(HW_REG_HW_ID, 4, 2)
    s_lshl_b32 s30, 1, s3
    v_lshlrev_b32 v2, 2, v1
    v_mov_b32 v3, s30
    ds_write_b32 v2, v3 offset:16
    s_cmp_eq_u32 {sW}, 0
    s_cbranch_scc1 L_rank
    s_cmp_lg_u32 {sW}, 1
    s_cbranch_scc1 L_rank_done
    s_getpc_b64 s[30:31]
    L_pc:
    s_bfe_u32 s32, s2, 0x40003
    s_lshl_b32 s32, s32, 13
    v_lshlrev_b32 v2, 7, v0
    v_add_u32 v2, s32, v2
    v_min_u32 v2, L_code_end - L_pc - 4, v2
    global_load_dword v143, v2, s[30:31]
    s_branch L_rank_done
    L_rank:
    s_lshl_b32 s30, {sXCC}, 2
    s_add_u32 s30, s30, 128
    s_cmp_eq_u32 {sXCC}, 0
    s_cselect_b32 s30, 0, s30
    v_mov_b32 v2, s30
    v_mov_b32 v3, 1
    v_mov_b32 v5, 0
    v_mov_b64 v[8:9], 0
    v_lshlrev_b32 v6, 3, v0
    s_lshl_b32 s31, s2, 9
    s_mov_b64 exec, 1
    global_atomic_add v4, v2, v3, s[6:7] sc0
    s_mov_b64 exec, -1
    buffer_store_dwordx2 v[8:9], v6, {WS}, s31 offen sc1
    ; the chain's hand-off buffers start out empty (all ones)
    v_mov_b64 v[12:13], -1
    v_mov_b64 v[14:15], -1
    v_lshlrev_b32 v6, 4, v0
    v_lshlrev_b32 v7, 2, v0
    s_lshl_b32 s31, s2, 10
    s_add_u32 s31, s31, {CH_IN}
    buffer_store_dwordx4 v[12:15], v6, {WS}, s31 offen sc1
    s_lshl_b32 s31, s2, 8
    s_add_u32 s31, s31, {CH_MEM}
    buffer_store_dword v12, v7, {WS}, s31 offen sc1
    s_mov_b64 exec, 1
    s_waitcnt vmcnt(0)
    global_atomic_add v5, v3, s[6:7] offset:64
    v_readfirstlane_b32 s30, v4
    s_mov_b64 exec, -1
    s_lshl_b32 {sROLE}, {sXCC}, 5
    s_add_u32 {sROLE}, {sROLE}, s30
    s_cmp_lt_u32 s30, 32
    s_cbranch_scc1 L_rank_put
    ''')
    wait_init(s, 5, 4, 'L_exit')
    s(f'''
    s_mov_b64 exec, 1
    global_atomic_add v4, v5, v3, s[6:7] offset:68 sc0
    s_mov_b64 exec, -1
    v_lshlrev_b32 v6, 2, v0
    v_add_u32 v6, 128, v6
    v_cmp_eq_u32 vcc, 0, v0
    s_nop 1
    v_cndmask_b32 v6, v6, v5, vcc
    v_and_b32 v6, 0xbf, v6
    global_load_dword v7, v6, s[6:7] sc1
    s_waitcnt vmcnt(0)
    v_readfirstlane_b32 s30, v4
    s_mov_b32 s31, 0
    L_hole:
    s_nop 3
    v_readlane_b32 s32, v7, s31
    s_min_u32 s32, s32, 32
    s_sub_u32 s33, 32, s32
    s_lshl_b32 {sROLE}, s31, 5
    s_add_u32 {sROLE}, {sROLE}, s32
    s_add_u32 {sROLE}, {sROLE}, s30
    s_cmp_lt_u32 s30, s33
    s_cbranch_scc1 L_rank_put
    s_sub_u32 s30, s30, s33
    s_add_u32 s31, s31, 1
    s_cmp_lt_u32 s31, 8
    s_cbranch_scc1 L_hole
    s_mov_b32 {sROLE}, 0x100
    L_rank_put:
    v_mov_b32 v2, 0
    v_mov_b32 v3, {sROLE}
    ds_write_b32 v2, v3
    L_rank_done:
    s_waitcnt lgkmcnt(0)
    s_barrier
    v_mov_b32 v2, 0
    ds_read_b32 v3, v2
    ds_read_b128 v[4:7], v2 offset:16
    s_waitcnt lgkmcnt(0)
    v_readfirstlane_b32 {sROLE}, v3
    v_or3_b32 v4, v4, v5, v6
    v_or_b32 v4, v4, v7
    s_barrier
    v_readfirstlane_b32 s30, v4
    s_lshl_b32 s3, s3, 2
    s_lshr_b32 s3, {hex(sum(v << 4*i for i, v in enumerate(opts.get('smap') or (0, 2, 1, 3))))}, s3
    s_and_b32 s3, s3, 3
    s_cmp_eq_u32 s30, {15 if opts.get('smap', 1) else 99}
    s_cselect_b32 {sW}, s3, {sW}
    s_cmp_lt_u32 {sROLE}, 0x100
    s_cbranch_scc1 L_dispatch
    L_exit:
    s_endpgm
    L_dispatch:
    ''')

TRACE = 0x80000
def stamp(s, opts, idx, vt):
    if not opts.get('trace'): return
    if opts.get('dbgt'):
        l = L('dt')
        s(f'''s_lshl_b32 s100, {sROLE}, 2
              s_add_u32 s100, s100, {sW}
              s_cmp_lg_u32 s100, 0
              s_cbranch_scc1 {l}
              s_memrealtime s[98:99]
              s_mov_b32 s100, {idx}
              s_waitcnt lgkmcnt(0)
              s_and_b32 s99, s100, 3
              s_lshr_b32 s100, s100, 3
              s_and_b32 s100, s100, 3
              s_lshl_b32 s100, s100, 1
              s_add_u32 s100, s100, s99
              s_add_u32 s100, s100, 1
              s_lshl_b32 s100, s100, 2
              s_sub_u32 s98, s98, s96
              v_mov_b32 v{vt}, s98
              v_mov_b32 v{vt+1}, s100
              global_store_dword v{vt+1}, v{vt}, s[6:7]
              v_mov_b32 v{vt}, s96
              v_mov_b32 v{vt+1}, 40
              global_store_dword v{vt+1}, v{vt}, s[6:7]
              {l}:
              v_mov_b32 v{vt+1}, {TRACE}''')
        return
    s(f'''s_memrealtime s[98:99]
          s_lshl_b32 s100, {sROLE}, 2
          s_add_u32 s100, s100, {sW}
          s_lshl_b32 s100, s100, 7
          s_add_u32 s100, s100, {idx}
          s_lshl_b32 s100, s100, 2
          s_add_u32 s100, s100, {TRACE}
          s_waitcnt lgkmcnt(0)
          v_mov_b32 v{vt}, s98
          v_mov_b32 v{vt+1}, s100
          buffer_store_dword v{vt}, v{vt+1}, {WS}, 0 offen''')

class TL:
    def __init__(self, opts, role):
        self.pts = list(opts.get('tl_' + role) or []); self.ins = 's_memrealtime' if opts.get('rt') else 's_memtime'; self.at = opts.get('at_' + role)
    def __call__(self, s, k):
        if k in self.pts: s(f'{self.ins} s[{72+2*self.pts.index(k)}:{73+2*self.pts.index(k)}]')
    def dump(self, s, cond, vt):
        if not self.pts: return
        l = L('tl')
        s(f's_waitcnt lgkmcnt(0)\n{cond}\ns_cbranch_scc0 {l}')
        s(f's_lshl_b32 s100, {sROLE}, 2\ns_add_u32 s100, s100, {sW}\ns_lshl_b32 s100, s100, 9\ns_add_u32 s100, s100, {TRACE+4*108}\nv_mov_b32 v{vt}, s100')
        for i in range(len(self.pts)):
            s.append(Op(f'v_mov_b32 v{vt+1}, s{72+2*i}')); s.append(Op(f'buffer_store_dword v{vt+1}, v{vt}, {WS}, 0 offen offset:{4*i}')); s.append(Op('s_nop 1'))
        s(f'{l}:')

class Stats:
    def __init__(self, vSF, SF, GM, ONES, vSW, vSR, vBP, ST, masks):
        self.__dict__.update(locals())
        self.RS, self.NM, self.RSr, self.NMr = ST, ST+1, ST+2, ST+6
    def setup(self, s, lds_off, t0):
        m = self.masks
        s(f'''v_and_b32 v{t0}, 15, v0
              v_lshrrev_b32 v{t0+1}, 4, v0
              v_lshlrev_b32 v{self.vSR}, 5, v{t0}
              v_add_u32 v{self.vSR}, {lds_off}, v{self.vSR}
              s_lshl_b32 s30, {sW}, 3
              v_add_u32 v{self.vSW}, s30, v{self.vSR}
              v_mul_u32_u24 v{self.vBP}, 80, v{t0+1}
              v_lshrrev_b32 v{t0+2}, 2, v{t0}
              v_cmp_eq_u32 s[{m}:{m+1}], v{t0+2}, v{t0+1}
              v_and_b32 v{t0+2}, 3, v{t0}''')
        for r in (1, 2, 3): s(f'v_cmp_eq_u32 s[{m+2*r}:{m+2*r+1}], {r}, v{t0+2}')
        for r in range(4): s(f'v_mov_b32 v{self.ONES+r}, 0x3f803f80')
    def reads(self, s):
        for i in range(4): s(f'ds_read_b128 {vr(self.SF+4*i,4)}, v{self.vSF} offset:{1024*i}', f'sf{i}')
    def mfmas(self, s, after=None):
        G, M = self.GM + 4, self.GM
        for i in range(4):
            s.W('ds', f'sf{i}'); a = vr(self.SF+4*i, 4)
            s(f'v_mfma_f32_16x16x32_bf16 {vr(G,4)}, {a}, {a}, {"0" if i == 0 else vr(G,4)}')
            if after: after(i)
            s(f'v_mfma_f32_16x16x32_bf16 {vr(M,4)}, {vr(self.ONES,4)}, {a}, {"0" if i == 0 else vr(M,4)}')
    def part1(self, f):
        G, M, m = self.GM + 4, self.GM, self.masks
        for r in (1, 2, 3): f(f'v_cndmask_b32 v{M+1 if r == 3 else G}, v{G}, v{G+r}, s[{m+2*r}:{m+2*r+1}]')
        f(f's_mov_b64 exec, s[{m}:{m+1}]'); f(f'ds_write_b64 v{self.vSW}, {vr(M,2)}', 'sw'); f('s_mov_b64 exec, -1')
    def part2(self, f):
        T = self.SF; RS, NM = self.RS, self.NM
        f(f'ds_read_b128 {vr(T,4)}, v{self.vSR}', 'sr0'); f(f'ds_read_b128 {vr(T+4,4)}, v{self.vSR} offset:16', 'sr1')
    def part3(self, f):
        T = self.SF; RS, NM = self.RS, self.NM
        f.W('ds', 'sr1')
        for r in range(4): f(f'v_add_f32 v{T+r}, v{T+r}, v{T+4+r}')
        f(f'''v_add_f32 v{T}, v{T}, v{T+2}
              v_add_f32 v{T+1}, v{T+1}, v{T+3}
              v_mul_f32 v{T}, {f32(-1.0/512)}, v{T}
              v_mul_f32 v{T+1}, {f32(1.0/512)}, v{T+1}
              v_fma_f32 v{T+1}, -v{T}, v{T}, v{T+1}
              v_max_f32 v{T+1}, 0, v{T+1}
              v_add_f32 v{T+1}, {f32(1e-5)}, v{T+1}
              v_rsq_f32 v{RS}, v{T+1}
              s_nop 0
              v_mul_f32 v{NM}, v{T}, v{RS}''')
        for r in range(4):
            f(f'ds_bpermute_b32 v{self.RSr+r}, v{self.vBP}, v{RS} offset:{4*r}', 'bp'); f(f'ds_bpermute_b32 v{self.NMr+r}, v{self.vBP}, v{NM} offset:{4*r}', 'bp')

sMODE = 's31'
def die_mode(s, sM, v0, v1):
    s(f"""s_lshr_b32 s30, {sROLE}, 5
          s_lshl_b32 s30, s30, 2
          s_add_u32 s30, s30, 128
          v_mov_b32 v{v0}, s30
          global_load_dword v{v1}, v{v0}, s[6:7] sc1
          s_waitcnt vmcnt(0)
          v_readfirstlane_b32 s30, v{v1}
          s_cmp_ge_u32 s30, 32
          s_cselect_b32 {sM}, 1, 0""")
def dual(s, sM, tail, lines, tag=None):
    a, b = L('far'), L('join')
    s(f's_cmp_eq_u32 {sM}, 0\ns_cbranch_scc1 {a}')
    s(lines.replace('@', ''), tag); s(f'{b}:')
    tail(f'{a}:'); tail(lines.replace('@', 'sc1')); tail(f's_branch {b}')

def load_pairs_lds(s, groups, grow, rowbytes, delta, scol, lbase, ring, v, tmp, fl=''):
    vG, vR = v, v + 1
    s(f"""v_bfe_u32 v{tmp}, v0, 3, 1
          v_mul_u32_u24 v{vG}, {grow[0]}, v{tmp}
          v_bfe_u32 v{tmp}, v0, 2, 1
          v_mul_u32_u24 v{tmp}, {grow[1]}, v{tmp}
          v_add_u32 v{vG}, v{vG}, v{tmp}
          v_bfe_u32 v{tmp}, v0, 4, 1
          v_add_u32 v{vG}, v{vG}, v{tmp}
          v_lshrrev_b32 v{tmp}, 5, v0
          v_mul_u32_u24 v{tmp}, {delta}, v{tmp}
          v_add_u32 v{vG}, v{vG}, v{tmp}
          v_mul_u32_u24 v{vG}, {rowbytes}, v{vG}
          v_and_b32 v{tmp}, 3, v0
          v_lshl_add_u32 v{vG}, v{tmp}, 4, v{vG}
          v_add_u32 v{vG}, {scol}, v{vG}
          v_lshlrev_b32 v{vR}, 2, v0
          v_add_u32 v{vR}, {lbase}, v{vR}""")
    n = len(groups)
    def issue(i):
        s(f's_add_u32 m0, {lbase}, {1024 * (i % ring)}\ns_mov_b32 s30, {groups[i][1]}\nbuffer_load_dwordx4 v{vG}, {groups[i][0]}, s30 offen {fl} lds')
    def read(i):
        s(f's_waitcnt vmcnt({min(n, i + ring - 2) - i - 1})')
        for jj in range(2):
            b = tmp + 4 * (i % 4) + 2 * jj; o = 4 * (i % ring) + 2 * jj
            s(f'ds_read2st64_b32 v[{b}:{b+1}], v{vR} offset0:{o} offset1:{o+1}')
    for i in range(min(ring - 2, n)): issue(i)
    read(0)
    for i in range(n):
        if i + ring - 2 < n: issue(i + ring - 2)
        if i + 1 < n: read(i + 1)
        s(f's_waitcnt lgkmcnt({2 if i + 1 < n else 0})')
        for jj in range(2):
            b = tmp + 4 * (i % 4) + 2 * jj
            for j, sel in ((0, sSEL0), (1, sSEL1)):
                d = groups[i][2][jj][j]
                if isinstance(d, tuple): s(f'v_perm_b32 v{tmp+16+j}, v{b+1}, v{b}, {sel}\nv_accvgpr_write_b32 a{d[1]}, v{tmp+16+j}')
                else: s(f'v_perm_b32 v{d}, v{b+1}, v{b}, {sel}')

def set_srds(s, items):
    for b, key, n in items: s(f's_load_dwordx2 s[{b}:{b+1}], s[0:1], {KA[key]}')
    s('s_waitcnt lgkmcnt(0)')
    for b, key, n in items: s(f's_mov_b32 s{b+2}, {n}\ns_mov_b32 s{b+3}, 0x20000')

def load_pairs_wg(s, stages, grow, wrow, delta, scol, lbase, v, tmp):
    vG, vR = v, v + 1; RB = 8192; ring = 8; ahead = ring - 2
    s(f"""v_lshrrev_b32 v{tmp}, 5, v0
          v_mul_u32_u24 v{vG}, {grow[0]}, v{tmp}
          v_bfe_u32 v{tmp}, v0, 4, 1
          v_mul_u32_u24 v{tmp}, {grow[1]}, v{tmp}
          v_add_u32 v{vG}, v{vG}, v{tmp}
          s_lshr_b32 s30, {sW}, 1
          s_mul_i32 s30, s30, {wrow[0]}
          s_and_b32 s31, {sW}, 1
          s_mul_i32 s31, s31, {wrow[1]}
          s_add_u32 s30, s30, s31
          v_add_u32 v{vG}, s30, v{vG}
          v_lshlrev_b32 v{vG}, 13, v{vG}
          v_and_b32 v{tmp}, 15, v0
          v_lshl_add_u32 v{vG}, v{tmp}, 4, v{vG}
          v_add_u32 v{vG}, {scol}, v{vG}
          v_lshrrev_b32 v{vR}, 4, v0
          v_lshlrev_b32 v{vR}, 8, v{vR}
          v_lshl_add_u32 v{vR}, v{tmp}, 2, v{vR}
          s_lshl_b32 s30, {sW}, 6
          s_add_u32 s30, s30, {lbase}
          v_add_u32 v{vR}, s30, v{vR}
          v_add_u32 v{vR+1}, 0x10000, v{vR}
          s_lshl_b32 s31, {sW}, 12""")
    n = len(stages)
    def issue(i):
        for k in range(4):
            s(f's_add_u32 m0, s31, {lbase + 16384 * (i % ring) + 1024 * k}\ns_mov_b32 s30, {stages[i][1] + ((k & 1) + (k >> 1) * delta) * RB}\nbuffer_load_dwordx4 v{vG}, {stages[i][0]}, s30 offen lds')
    for i in range(min(ahead, n)): issue(i)
    for i in range(n):
        s(f's_waitcnt vmcnt({4 * (min(n, i + ahead) - i - 1)})\ns_barrier')
        for q in range(4):
            for jj in range(2):
                b = tmp + 4 * q + 2 * jj; o = 64 * (i % 4) + 16 * q + 8 * jj
                s(f'ds_read2st64_b32 v[{b}:{b+1}], v{vR + ((i % ring) >> 2)} offset0:{o} offset1:{o+4}')
        if i + ahead < n: issue(i + ahead)
        for q in range(4):
            s(f's_waitcnt lgkmcnt({6 - 2 * q})')
            for jj in range(2):
                b = tmp + 4 * q + 2 * jj
                for j, sel in ((0, sSEL0), (1, sSEL1)):
                    d = stages[i][2][q][jj][j]
                    if isinstance(d, tuple): s(f'v_perm_b32 v{tmp+16+j}, v{b+1}, v{b}, {sel}\nv_accvgpr_write_b32 a{d[1]}, v{tmp+16+j}')
                    else: s(f'v_perm_b32 v{d}, v{b+1}, v{b}, {sel}')
    s('s_barrier')

def pretouch(s, opts, idx, n, vt):
    if not opts.get('pt', 0): return
    a, b = L('pt'), L('pt')
    s(f"""v_lshlrev_b32 v{vt}, 6, v0
          s_mov_b32 s31, {idx}
          {a}:
          s_lshl_b32 s30, s31, 12
          s_add_u32 s30, s30, {LB0 + O_X1}
          buffer_load_dword v{vt+1}, v{vt}, {WS}, s30 offen nt
          s_add_u32 s31, s31, {n}
          s_cmp_lt_u32 s31, {12*MB // 4096}
          s_cbranch_scc1 {a}""")
    if opts.get('pt', 0) > 1:
        s(f"""s_mov_b32 s31, {idx}
          {b}:
          s_lshr_b32 s30, s31, 2
          s_mul_i32 s30, s30, 6
          s_and_b32 s3, s31, 3
          s_add_u32 s30, s30, s3
          s_lshl_b32 s30, s30, 12
          s_add_u32 s30, s30, {LB0 + O_QKV + 8192}
          buffer_load_dword v{vt+1}, v{vt}, {WS}, s30 offen nt
          s_waitcnt vmcnt({opts.get('ptd', 1)})
          s_add_u32 s31, s31, {n}
          s_cmp_lt_u32 s31, {32*MB // 4096}
          s_cbranch_scc1 {b}""")
    s('s_waitcnt vmcnt(0)')

def tlb_touch(s, vt, with_out=False):
    s(f'v_lshlrev_b32 v{vt}, 21, v0\nbuffer_load_dword v{vt+1}, v{vt}, {WS}, 0 offen offset:4092 sc1')
```

```python
from common import *
LM, LK, LP, LSEL, LQ, LW = 0, 8192, 10240, 11264, 12288, 16384
LO, LMX = LQ, LM + 4096
WSTR = 18 * 2048
vIDX, vG16, vWL, vQW, vKW, vQR, vST, vPUB, vKX, vG8, vF8, vF32, vFV, vFP, vSEN = range(1, 16)
ONES, PM, KX, VX, MA, AQ, AK, AV, SX, SM, POOL = 16, 20, 24, 32, 40, 72, 80, 88, 96, 100, 104
QB, KA, PX, LL, OX = POOL, POOL+16, POOL+24, POOL+28, POOL+32
NWORK = 144
sH, sL, sS, sN, sTAG, sMS, sMC, sG1, sG2, sKV, sKM, sPT, sCV, sC, sFPO, sFCO, sALO, sAL, s4K = [f's{i}' for i in range(32, 51)]
sTCH = 's51'; sTC2 = 's3'; vSEN2 = PM + 3; sKN = 's56'; sMN = 's57'; CH_JUNK = 200*MB; vTC = 0; sH2, sH2O = 's4', 's5'
sPW = 's[20:21]'
sPUBX = 's[52:53]'; sGL, sGH = 's54', 's55'
LDS_Q = [(0,0),(0,1),(1,0),(1,1),(2,0)]
LDS_K = [(1,0),(2,0),(5,1),(6,1),(7,1)]
LDS_O = [(1,2),(1,3),(2,1),(2,2),(2,3),(3,1),(3,2),(3,3)]
home = {}
def _alloc():
    free = [NWORK + 8*i for i in range((256-NWORK)//8)] + [('a', 8*i) for i in range(32)]
    n = 0
    for m, ld in (('q', LDS_Q), ('k', LDS_K), ('v', [])):
        for t in range(8):
            for tau in range(2):
                if (t, tau) in ld: home[m, t, tau] = ('lds', n); n += 1
                else: home[m, t, tau] = free.pop()
    for u in range(4):
        for z in range(4):
            if (u, z) in LDS_O: home['o', u, z] = ('lds', 10 + LDS_O.index((u, z)))
            else: home['o', u, z] = free.pop()
    assert not free
_alloc()
def in_lds(k): return isinstance(home[k], tuple) and home[k][0] == 'lds'
def smf(d, a, b): return f'v_smfmac_f32_16x16x64_bf16 {vr(d,4)}, {vr(a,4)}, {R(b,8)}, v{vIDX}'
def stage(s, key, reg, half, tag):
    s(f'ds_read_b128 {vr(reg+4*half,4)}, v{vWL} offset:{home[key][1]*2048 + 1024*half}', tag)

def setup(s, opts, fail):
    s('L_role_chain:'); stamp(s, opts, 0, 126)
    if opts.get('trace'): s(f's_getreg_b32 s30, hwreg(HW_REG_HW_ID)\nv_mov_b32 v126, s30\nbuffer_store_dword v126, v127, {WS}, 0 offen offset:44')
    s(f'''
    s_mov_b32 {sH}, {sROLE}
    v_lshrrev_b32 v120, 4, v0          ; g
    v_and_b32 v121, 15, v0             ; c
    v_lshlrev_b32 v{vG16}, 4, v0
    s_mul_i32 s30, {sW}, {WSTR}
    s_add_u32 s30, s30, {LW}
    v_add_u32 v{vWL}, s30, v{vG16}
    v_lshrrev_b32 v122, 1, v120
    v_and_b32 v123, 1, v120
    v_lshlrev_b32 v16, 19, v122
    v_lshl_add_u32 v16, v123, 17, v16
    v_lshl_add_u32 v16, v121, 2, v16
    s_lshl_b32 s30, {sH}, 8
    s_lshl_b32 s31, {sW}, 6
    s_add_u32 s30, s30, s31
    v_add_u32 v16, s30, v16
    v_add_u32 v17, 0x2000, v16
    ''')
    TL = 88; TH = 40
    set_srds(s, [(16, 'Wo', 4*MB), (80, 'Wq', 4*MB), (84, 'Wk', 4*MB), (88, 'Wv', 4*MB)])
    s(f's_lshl_b32 s92, {sH}, 8')
    def dst(m, t, tau, jr): return TH + 8*home[m, t, tau][1] + jr if in_lds((m, t, tau)) else radd(home[m, t, tau], jr)
    stages = [(srd, (256*(t & 1) + 2*(t >> 1))*8192, [[(dst(m, t, 0, 2*jp+jj), dst(m, t, 1, 2*jp+jj)) for jj in range(2)] for jp in range(4)])
              for m, srd in (('q', 's[80:83]'), ('k', 's[84:87]'), ('v', 's[88:91]')) for t in range(8)]
    load_pairs_wg(s, stages, (64, 16), (128, 8), 32, 's92', 0, 16, 124)
    stamp(s, opts, 10, 126)
    for i in range(10): s(f'ds_write_b128 v{vWL}, {vr(TH+8*i,4)} offset:{2048*i}\nds_write_b128 v{vWL}, {vr(TH+8*i+4,4)} offset:{2048*i+1024}')
    s('s_waitcnt lgkmcnt(0)')
    s(f'''v_lshlrev_b32 v16, 12, v120
          v_lshl_add_u32 v16, v121, 4, v16
          s_lshl_b32 s30, {sH}, 17
          s_lshl_b32 s31, {sW}, 8
          s_add_u32 s30, s30, s31
          v_add_u32 v16, s30, v16''')
    def oissue(i):
        z, jp = i >> 2, i & 3; b = 24 + 8*(i % 8)
        s(f'''s_add_u32 s30, {sW}, {z}
              s_and_b32 s30, s30, 3
              s_lshl_b32 s30, s30, 15
              s_add_u32 s30, s30, {(16*(jp >> 1) + 2*(jp & 1)) * 1024}
              buffer_load_dwordx4 {vr(b,4)}, v16, {WSR}, s30 offen {opts.get('cfl', '')}
              buffer_load_dwordx4 {vr(b+4,4)}, v16, {WSR}, s30 offen offset:1024 {opts.get('cfl', '')}''', f'wo{i}')
    s('v_mov_b32 v20, 0\nglobal_load_dword v21, v20, s[6:7] offset:64 sc1\nglobal_load_dword v22, v20, s[6:7] sc1', 'ini')
    for i in range(8): oissue(i)
    s(f'''
    v_bfe_u32 v124, v0, 1, 1
    v_mov_b32 v{vIDX}, 0x44444444
    v_mov_b32 v125, 0xeeeeeeee
    v_cmp_eq_u32 vcc, 1, v124
    v_bfe_u32 v126, v0, 2, 1           ; (c>>2)&1
    v_bfe_u32 v127, v0, 3, 1           ; c>>3
    v_cndmask_b32 v{vIDX}, v{vIDX}, v125, vcc
    v_and_b32 v128, 1, v0              ; c&1
    v_and_b32 v129, 3, v0              ; c&3
    v_bfe_u32 v130, v0, 2, 2           ; c>>2
    ; q write: 576w + 144(2(c>>3) + ((c>>1)&1)) + 32g + 8(c&1) + 4((c>>2)&1)
    v_lshl_add_u32 v131, v127, 1, v124
    v_mul_u32_u24 v{vQW}, 144, v131
    v_lshl_add_u32 v{vQW}, v120, 5, v{vQW}
    v_lshl_add_u32 v{vQW}, v128, 3, v{vQW}
    v_lshl_add_u32 v{vQW}, v126, 2, v{vQW}
    s_mul_i32 s30, {sW}, 576
    s_add_u32 s30, s30, {LQ}
    v_add_u32 v{vQW}, s30, v{vQW}
    ; q read: 144g + 16(2(c>>2) + (c&1))
    v_lshl_add_u32 v132, v130, 1, v128          ; row r(c)
    v_mul_u32_u24 v{vQR}, 144, v120
    v_lshl_add_u32 v{vQR}, v132, 4, v{vQR}
    ; k write: 512w + 256(c>>3) + 64g + 32((c>>2)&1) + 4(c&3)
    v_lshlrev_b32 v{vKW}, 8, v127
    v_lshl_add_u32 v{vKW}, v120, 6, v{vKW}
    v_lshl_add_u32 v{vKW}, v126, 5, v{vKW}
    v_lshl_add_u32 v{vKW}, v129, 2, v{vKW}
    s_lshl_b32 s30, {sW}, 9
    s_add_u32 s30, s30, {LK}
    v_add_u32 v{vKW}, s30, v{vKW}
    v_lshrrev_b32 v131, 3, v0
    v_and_b32 v133, 7, v0
    v_lshlrev_b32 v{vST}, 13, v131
    v_lshl_add_u32 v{vST}, v133, 3, v{vST}
    s_lshl_b32 s30, {sW}, 16
    s_lshl_b32 s31, {sH}, 6
    s_add_u32 s30, s30, s31
    s_add_u32 s30, s30, {CH_IN}
    v_add_u32 v{vST}, s30, v{vST}
    v_lshlrev_b32 v{vPUB}, 5, v124
    v_lshl_add_u32 v{vPUB}, v123, 4, v{vPUB}
    v_lshl_add_u32 v{vPUB}, v128, 3, v{vPUB}
    v_lshl_add_u32 v{vPUB}, v122, 2, v{vPUB}
    s_lshr_b32 s30, {sH}, 3
    s_lshl_b32 s30, s30, 9
    s_and_b32 s31, {sH}, 1
    s_lshl_b32 s31, s31, 8
    s_add_u32 s30, s30, s31
    s_bfe_u32 s31, {sH}, 0x20001
    s_lshl_b32 s31, s31, 6
    s_add_u32 s30, s30, s31
    v_add_u32 v{vPUB}, s30, v{vPUB}
    v_lshlrev_b32 v{vKX}, 9, v120
    v_lshl_add_u32 v{vKX}, v124, 6, v{vKX}
    v_lshl_add_u32 v{vKX}, v130, 7, v{vKX}
    v_lshl_add_u32 v{vKX}, v128, 4, v{vKX}
    s_lshr_b32 s30, {sW}, 1
    s_lshl_b32 s30, s30, 12
    s_and_b32 s31, {sW}, 1
    s_lshl_b32 s31, s31, 5
    s_add_u32 s30, s30, s31
    s_add_u32 s30, s30, 8192
    v_add_u32 v{vKX}, s30, v{vKX}
    v_lshlrev_b32 v{vG8}, 3, v0
    v_lshlrev_b32 v{vF8}, 2, v133
    v_and_b32 v{vF32}, 31, v0
    v_lshlrev_b32 v{vF32}, 2, v{vF32}''')
    if opts.get('lc', 0): s(f'v_bfe_u32 v{vF32}, v0, 1, 4\nv_lshlrev_b32 v{vF32}, 2, v{vF32}\nv_lshl_add_u32 v{vF32}, v0, 6, v{vF32}')
    s(f'''
    v_mov_b32 v{vSEN}, -1
    v_mov_b32 v134, 0x3f80
    v_lshlrev_b32 v135, 4, v129
    v_lshlrev_b32 v134, v135, v134
    v_cmp_gt_u32 vcc, 2, v129
    v_mov_b32 v135, 0
    s_nop 0
    v_cndmask_b32 v134, v135, v134, vcc
    ''')
    for r in range(4): s(f'v_cmp_eq_u32 vcc, {r}, v130\ns_nop 1\nv_cndmask_b32 v{136+r}, v135, v134, vcc')
    s(f'ds_write_b128 v{vG16}, v[136:139] offset:{LSEL}')
    s(f'''
    s_mov_b32 s52, 0x000f000f
    s_mov_b32 s53, 0x000f000f
    s_mov_b32 {sC}, {f32(128**-0.5 * LOG2E)}
    s_mov_b32 {s4K}, 4096
    s_mov_b32 {sGL}, 0x17800000
    s_mov_b32 {sGH}, 0x50000000
    s_lshl_b32 s30, {sW}, 11
    s_lshl_b32 {sG1}, {sH}, 13
    s_add_u32 {sG1}, {sG1}, s30
    s_add_u32 {sG1}, {sG1}, {CH_IN}
    s_add_u32 {sG2}, s30, {CH_MEM}
    s_lshl_b32 {sFPO}, {sH}, 7
    s_add_u32 {sFCO}, {sFPO}, {F_C}
    s_add_u32 {sFPO}, {sFPO}, {F_P}
    s_lshl_b32 {sALO}, {sH}, 2
    s_add_u32 {sALO}, {sALO}, {F_AL}
    s_mov_b32 {sAL}, {F_AL}
    s_mov_b32 {sN}, 0
    s_mov_b32 {sL}, 0
    s_mov_b32 {sCV}, 0
    ''')
    set_srd(s, 12, 'mem0', 8192)
    s(f's_lshl_b32 s30, {sW}, 7\ns_add_u32 s30, s30, 128\ns_add_u32 {sH2}, s30, {sAL}\ns_add_u32 {sH2O}, s30, {sALO}')
    s.W('vm', 'ini'); s('v_cmp_gt_u32 vcc, 0x100, v21\ns_cbranch_vccz L_ch_inited')
    x = S(); wait_init(x, 20, 21, fail); x('global_load_dword v22, v20, s[6:7] sc1\ns_waitcnt vmcnt(0)')
    for o in x: s.append(Op(' ' + o.t if not o.t.endswith(':') else o.t))
    s('L_ch_inited:')
    for i in range(2): s(f'buffer_load_dwordx4 v[140:143], v{vG16}, {WS}, {sG1} offen offset:{1024*i} sc1')
    for i in range(4): s(f's_add_u32 s30, {sG2}, {8192*i}\nbuffer_load_dwordx4 v[140:143], v{vG16}, {WS}, s30 offen sc1\nbuffer_load_dwordx4 v[140:143], v{vG16}, {WS}, s30 offen offset:1024 sc1')
    s(f'buffer_load_dword v140, v{vF8}, {WS}, {sH2} offen sc1\nv_lshlrev_b32 v23, 7, v0\nbuffer_load_dword v140, v23, {XIN}, 0 offen')
    if opts.get('tlb', 0):
        s(f's_mul_i32 s30, {sH}, {HS}\nv_and_b32 v23, 1, v0\nv_mul_u32_u24 v23, {HS}, v23\nv_add_u32 v23, s30, v23\nv_add_u32 v23, -1, v23\nv_max_i32 v23, 64, v23\nv_bfe_u32 v124, v0, 1, 1\nv_mul_u32_u24 v125, {20*1024}, v124\nv_sub_u32 v125, {24*1024}, v125\nv_mul_u32_u24 v23, v23, v125\ns_mov_b32 s30, {O_KVM}\nv_mul_lo_u32 v124, v124, s30\nv_add_u32 v23, v23, v124\ns_mov_b32 s30, {LB0}\nbuffer_load_dword v139, v23, {WS}, s30 offen sc1')
    for i in range(16):
        z, jp = i >> 2, i & 3; b = 24 + 8*(i % 8)
        s.W('vm', f'wo{i}')
        if jp == 0: s('s_waitcnt lgkmcnt(0)')
        for u in range(4):
            for f, sel in ((0, sSEL0), (1, sSEL1)):
                d = TL + 8*u + 2*jp + f if in_lds(('o', u, z)) else radd(home['o', u, z], 2*jp + f)
                if isinstance(d, tuple): s(f'v_perm_b32 v{18+f}, v{b+4+u}, v{b+u}, {sel}\nv_accvgpr_write_b32 a{d[1]}, v{18+f}')
                else: s(f'v_perm_b32 v{d}, v{b+4+u}, v{b+u}, {sel}')
        if i + 8 < 16: oissue(i + 8)
        if jp == 3:
            for u in range(4):
                if in_lds(('o', u, z)):
                    slot = home['o', u, z][1]
                    s(f'ds_write_b128 v{vWL}, {vr(TL+8*u,4)} offset:{slot*2048}\nds_write_b128 v{vWL}, {vr(TL+8*u+4,4)} offset:{slot*2048+1024}')
    stamp(s, opts, 1, 126)
    s('v_readfirstlane_b32 s30, v22')
    for r in range(4): s(f'v_mov_b32 v{ONES+r}, 0x3f803f80\nv_mov_b32 v{PM+r}, 0')
    s(f'''s_waitcnt lgkmcnt(0)
          s_cmp_ge_u32 s30, 32
          s_cbranch_scc1 L_ch_initF
          s_branch L_ch_initS''')

def body(mode, opts, fail):
    st = 'sc1' if mode == 'S' else ''
    s = S()
    s(f'L_ch_init{mode}:')
    for w in range(3): s(f's_cmp_eq_u32 {sW}, {w}\ns_cbranch_scc1 L_ch_layer{mode}{w}')
    s(f's_branch L_ch_layer{mode}3')
    out = resolve(s)[0]
    for w in range(4): out += wave(mode, w, opts, fail, st)
    return out

def wave(mode, w, opts, fail, st):
    T = f'{mode}{w}'
    P1 = opts.get('p1', (11, 24, 37, 50)); D2 = opts.get('d2', (48, 54, 48, 43))[w]; AW = 1 if opts.get('align') else -1
    DIR = opts.get('direct', 1)
    DD = opts.get('DD', 2); DD = DD[w] if isinstance(DD, tuple) else DD; HR = VX if DIR else KX
    AN = vFV
    vZ = PM + 1
    tail = S()
    pts = opts.get('tl') or []
    clk = opts.get('clk')
    def P(s, k):
        if clk and k == clk[0]: s('s_memtime s[70:71]\ns_memrealtime s[72:73]')
        if clk and k == clk[1]: s('s_memtime s[74:75]\ns_memrealtime s[76:77]')
        if k in pts: s(f's_memtime s[{70+2*pts.index(k)}:{71+2*pts.index(k)}]')
    def cnt(s, r):
        if opts.get('trace'): s(f's_add_u32 {r}, {r}, 1')
    def zero(s, r, n):
        for i in range(0, n, 2): s(f'v_mov_b64 {vr(r+i,2)}, 0')
    def kxload(s):
        s(f'buffer_load_dwordx4 {vr(KX,4)}, v{vKX}, {WS}, {sKV} offen sc1\nbuffer_load_dwordx4 {vr(KX+4,4)}, v{vKX}, {WS}, {sKV} offen offset:2048 sc1', 'kx')
    def vxload(s):
        s(f's_add_u32 s30, {sKV}, {16384 + 1024*w}\ns_add_u32 s31, s30, 4096')
        s(f'buffer_load_dwordx4 {vr(VX,4)}, v{vG16}, {WS}, s30 offen sc1\nbuffer_load_dwordx4 {vr(VX+4,4)}, v{vG16}, {WS}, s31 offen sc1', 'vx')
    def prestage(s, lo=0, hi=5):
        for i, (t, tau) in list(enumerate(LDS_Q))[lo:hi]:
            for hf in range(2): stage(s, ('q', t, tau), POOL + 8*i, hf, 'pre')
    def kmstore(s):
        if not opts.get('nokv') and not opts.get('nokm'): s(f'buffer_store_dwordx2 {vr(AV+2,2)}, v{vG8}, {WS}, {sKN} offen offset:{512*w} sc1', 'far')
    def vmstore(s):
        if not opts.get('nokv') and not opts.get('novm'): s(f'buffer_store_dwordx2 {vr(AV,2)}, v{vG8}, {WS}, {sKN} offen offset:{2048 + 512*w} sc1', 'far')
    def cflag(s):
        pass
    def touchmask(s):
        if w == 0 and not DIR: s(f's_add_u32 s30, {sPT}, 1\nv_cmp_gt_u32 vcc, s30, v{vFP}\ns_nop 0\ns_cmp_eq_u64 vcc, 0\ns_cselect_b32 s30, {24*1024}, 0\ns_add_u32 {sTCH}, {sKV}, s30\ns_add_u32 {sTC2}, {sTCH}, 8192')
    def book(s):
        s(f"""s_add_u32 {sN}, {sN}, 1
              s_and_b32 {sTAG}, {sN}, 1
              s_xor_b32 {sTAG}, {sTAG}, 1
              s_add_u32 s30, {sN}, 3
              s_and_b32 s30, s30, 3
              s_lshl_b32 s30, s30, 13
              s_add_u32 {sMN}, s30, {sG2}
              s_xor_b32 s30, s30, 0x4000
              s_add_u32 {sMC}, s30, {sG2}""")
        s(f's_add_u32 {sCV}, {sCV}, 1' if not opts.get('lc', 0) else f's_mov_b32 {sSPIN}, 0')
        if DIR: s(f's_add_u32 {sTCH}, {sKV}, {16384 + 1024*w}\ns_add_u32 {sTC2}, {sTCH}, 4096\ns_add_u32 {sKV}, {sKV}, {0 if opts.get("samekv") else 24*1024*SS}\ns_add_u32 {sPT}, {sPT}, 1')
        if w == AW: s(f'v_mov_b32 v{vFV}, {sCV}')
    s = S()
    s(f"""L_ch_layer{T}:
    s_mov_b32 s30, 0
    s_mul_i32 {sKV}, {sH}, {24*1024*HS}
    {'' if opts.get('qre') else f's_add_u32 {sKV}, {sKV}, s30'}
    s_add_u32 {sKV}, {sKV}, {LB0 + O_QKV}
    s_lshl_b32 {sKN}, {sH}, 12
    s_add_u32 {sKN}, {sKN}, {JUNK}
    s_mul_i32 {sKM}, {sH}, {4096*HS}
    s_add_u32 {sKM}, {sKM}, s30
    s_add_u32 {sKM}, {sKM}, {LB0 + O_KVM}
    s_lshl_b32 {sPT}, {sL}, 7
    s_add_u32 {sPT}, {sPT}, 1
    s_mov_b32 {sS}, 0
    s_mov_b32 m0, {LM + 2048*w}""")
    if opts.get('trace'): s('s_mov_b32 s64, 0\ns_mov_b32 s65, 0\ns_mov_b32 s66, 0\ns_mov_b32 s67, 0\ns_mov_b32 s68, 0')
    s(f"""; mem0 gather: row*1024 + 128g + 64f + 4w
    v_bfe_u32 v{MA+8}, v{vG16}, 6, 2
    v_bfe_u32 v{MA+9}, v{vG16}, 4, 1
    v_lshl_add_u32 v{MA+8}, v{MA+8}, 1, v{MA+9}
    v_lshlrev_b32 v{MA+8}, 10, v{MA+8}
    v_lshrrev_b32 v{MA+9}, 8, v{vG16}
    v_lshl_add_u32 v{MA+8}, v{MA+9}, 7, v{MA+8}
    v_bfe_u32 v{MA+9}, v{vG16}, 5, 1
    v_lshl_add_u32 v{MA+8}, v{MA+9}, 6, v{MA+8}
    v_add_u32 v{MA+8}, {4*w}, v{MA+8}""")
    for i in range(8): s(f'buffer_load_dword v{MA+i}, v{MA+8}, {XIN}, 0 offen offset:{512*(i >> 2) + 16*(i & 3)}')
    zero(s, AQ, 32); prestage(s)
    s('s_waitcnt vmcnt(0)')
    for i in range(8): s(f'v_min_u32 v{MA+i}, -2, v{MA+i}')
    s(f'ds_write_b128 v{vG16}, {vr(MA,4)} offset:{LM + 2048*w}\nds_write_b128 v{vG16}, {vr(MA+4,4)} offset:{LM + 2048*w + 1024}')
    poll(s, vF8, sFPO, vFP, sPT, fail)
    if opts.get('trace'): s(f's_lshl_b32 s69, {sL}, 4\ns_add_u32 s69, s69, 2')
    stamp(s, opts, 's69', MA)
    if DIR: kxload(s)
    touchmask(s); book(s)
    s(f'v_mov_b32 v{HR}, -1\ns_waitcnt lgkmcnt(0)\ns_branch L_ch_in{T}')
    pre = resolve(s)[0]
    s = S()
    LC = opts.get('lc', 0)
    EW = opts.get('ew') if w in opts.get('eww', (3,)) else None
    ES = opts.get('es'); LATE = ES is not None and w >= 2
    s(f'L_ch_step{T}:')
    if not LATE:
        if LC: pass
        elif EW:
            s.W('vm', 'early'); s(f'v_cmp_gt_u32 vcc, v{AN}, v{HR+3}\ns_cbranch_vccnz L_ch_warn{T}\nL_ch_hok{T}:')
            tail(f'L_ch_warn{T}:'); cnt(tail, 's67')
            tail(f's_waitcnt vmcnt({3*(DD-1)+2})\nv_cmp_gt_u32 vcc, v{AN}, v{HR}\ns_cbranch_vccnz L_ch_hmiss{T}\ns_waitcnt vmcnt({3*(DD-1)})'); tail.nops(EW[1]); tail(f's_branch L_ch_in{T}')
        else:
            s.W('vm', 'hint'); s(f'v_cmp_gt_u32 vcc, v{AN}, v{HR}\ns_cbranch_vccnz L_ch_hmiss{T}\nL_ch_hok{T}:')
        s.W('vm', 'h2')
        s.append(Op('', 'vm', 'kx0'))
    P(s, 'b0in'); s(f'L_ch_in{T}:\ns_barrier'); P(s, 'b0')
    def rdma(t, x=None): (x or s)(f'ds_read_b128 {vr(MA+4*t,4)}, v{vG16} offset:{LM + 1024*t}', f'ma{t}')
    if LC:
        s(f'L_ch_again{T}:'); rdma(0); rdma(1)
        s(f'ds_read2st64_b32 {vr(AV+4,2)}, v{vF32} offset0:0 offset1:16', 'ck'); rdma(2)
    else: rdma(0); rdma(1); rdma(2)
    PRP = opts.get('prp', ['q5', 'q9', 'q12', 'q15']); CHK = opts.get('chk', 2)
    NQ = len(PRP); PR = AV
    def al(k, x=None):
        if w == AW and k in PRP: r = PRP.index(k); (x or s)(f'buffer_load_dword v{PR+r}, v{vF32}, {WS}, {sAL} offen sc1', f'pr{r}')
    if w == AW: s(f'buffer_store_dword v{vFV}, v{vZ}, {WS}, {sALO} offen {st}')
    if ES: rdma(3)
    elif LC: pass
    elif DIR: s(f'buffer_load_dwordx4 {vr(VX,4)}, v{vG16}, {WS}, {sTCH} offen sc1', 'vx')
    else: kxload(s); s(f's_add_u32 s30, {sKV}, {16384 + 1024*w}\ns_add_u32 s31, s30, 4096')
    def s1(m, i, tt, x=None):
        x = x or s
        t, tau = tt; key = (m, t, tau)
        acc = {'q': AQ, 'k': AK, 'v': AV}[m] + 4*tau
        if in_lds(key):
            j = (LDS_Q if m == 'q' else LDS_K).index((t, tau)); b = POOL + 8*j
            if m == 'k': x.W('ds', f'k{j}')
        else: b = home[key]
        if m == 'q': x.W('ds', f'ma{t}')
        x(smf(acc, MA + 4*t, b))
        if x is s: P(s, f'{m}{i}')
    ORD = [(t, tau) for t in range(4) for tau in range(2)] + [(t, 0) for t in range(4, 8)] + [(t, 1) for t in range(4, 8)]
    def add(d, j): return f'v_add_f32 v{d+j}, v{d+j}, v{d+2+j}'
    def mul(d): return f'v_mul_f32 v{d}, {sC}, v{d}'
    CK = vSEN2
    def sk(x, j, hf): stage(x, ('k',) + LDS_K[j], POOL + 8*j, hf, f'k{j}')
    SG = {n: (j >> 1, j & 1) for j, n in enumerate(opts.get('sg', (7, 9, 11, 12, 14, 16, 18, 21, 22, 23)))}
    NK = 0
    def qpass(x, first):
        rd = dict(zip(opts.get('rd', (0, 1, 3, 4, 6)), range(3, 8)))
        sg = SG
        seq = [('q', i) for i in range(16)] + [('k', 0), ('k', 1)]
        vx2 = opts.get('vxp', (5, 5, 5, 5) if LC else (2, 2, 2, 2))[w]; vms = opts.get('vms', (8, 10, 8, 10))[w]; kms = opts.get('kms', (13, 15, 13, 15))[w]; pc = 4
        if ES:
            e = ES[0]; rd = {e+1: 4, e+2: 5, e+3: 6, e+4: 7}
            sg = {e+7: (0, 0), e+8: (0, 1), e+9: (1, 0), e+10: (1, 1), 15: (2, 0)}
            seq = seq[:8] + seq[16:16+NK] + seq[8:16] + seq[16+NK:]
            vx2 = e+6; vms = -1; kms = -1; pc = 1
        for n, (m, i) in enumerate(seq):
            s1(m, i, ORD[i], x)
            if first and ES:
                if LATE and n == ES[0] - 3: x.W('vm', 'hint'); x(f'v_cmp_gt_u32 vcc, v{AN}, v{HR}')
                if LATE and n == ES[0] - 1: x(f's_cbranch_vccnz L_ch_hmiss{T}\nL_ch_hok{T}:')
                if n == ES[0]:
                    if LATE: x.W('vm', 'h2'); x.append(Op('', 'vm', 'kx0'))
                    x('s_barrier')
                if n == ES[0] + 5: x(f'buffer_load_dwordx4 {vr(VX,4)}, v{vG16}, {WS}, {sTCH} offen sc1', 'vx')
            if n in rd and first: rdma(rd[n], x)
            if first and LC:
                c0 = opts.get('lc0', 0)
                if n == c0: x.W('ds', 'ck'); x(f'v_max_u32 v{AV+4}, v{AV+4}, v{AV+5}\nv_cmp_eq_u32 vcc, -1, v{AV+4}')
                if n == c0 + 2: x(f's_cbranch_vccnz L_ch_hmiss{T}'); x(f'buffer_load_dwordx4 {vr(VX,4)}, v{vG16}, {WS}, {sTCH} offen sc1', 'vx')
            if n in sg: sk(x, *sg[n])
            if first:
                if n == vx2: x(f'buffer_load_dwordx4 {vr(VX+4,4)}, v{vG16}, {WS}, {sTC2} offen sc1', 'vx')
                if n == vms: vmstore(x)
                if n == kms: kmstore(x)
                if n == pc and opts.get('fpw', 0) in (None, w): x(f'v_cmp_gt_u32 {sPW}, {sPT}, v{vFP}')
                if n == 8 and opts.get('fpw', 0) == w: x(f's_cmp_lg_u64 {sPW}, 0')
                if n == 10 and opts.get('fpw', 0) == w: x(f's_cbranch_scc1 L_ch_pwait{T}\nL_ch_pok{T}:')
            if (m, i) == ('q', 13): x(add(AQ, 0))
            if (m, i) == ('q', 14): x(add(AQ, 1))
            if (m, i) == ('q', 15): x(f'v_cmp_u_f32 vcc, v{AQ}, v{AQ+1}')
            if (m, i) == ('k', 0): x(mul(AQ)); x(mul(AQ+1))
    qpass(s, True)
    s(f's_cbranch_vccnz L_ch_missb{T}\nL_ch_okb{T}:')
    if opts.get('fpw', 0) in (None, w): tail(f'L_ch_pwait{T}:'); cnt(tail, 's68'); poll(tail, vF8, sFPO, vFP, sPT, fail, sleep=0); tail(f's_branch L_ch_pok{T}')
    P(s, 'qend')
    ob = [('o',) + x for x in LDS_O]
    sreg = [MA, MA+8, POOL, POOL+8, POOL+16, MA+16, MA+24, POOL+24]
    def so(j, hf): stage(s, ob[j], sreg[j], hf, f'o{j}')
    FW = opts.get('fpw', 0)
    def fpl(k):
        if k != opts.get('fpp', 'k15') or FW not in (None, w): return
        if opts.get('nofp'): s(f'v_mov_b32 v{vFP}, -1')
        else: s(f'buffer_load_dword v{vFP}, v{vF8}, {WS}, {sFPO} offen sc1', 'fp')
    def K(i):
        s1('k', i, ORD[i]); fpl(f'k{i}')
        if 16 + i in SG: sk(s, *SG[16 + i])
        if 16 + i == opts.get('vms', (8, 10, 8, 10))[w]: vmstore(s)
        if 16 + i == opts.get('kms', (13, 15, 13, 15))[w]: kmstore(s)
    def V(i):
        s1('v', i, ORD[i]); fpl(f'v{i}')
        k0 = opts.get('kxp', (0, 0, 0, 0))[w]; k1 = opts.get('kxq', (2, 2, 2, 2))[w]
        if i == k0: s(f'buffer_load_dwordx4 {vr(KX,4)}, v{vKX}, {WS}, {sKV} offen sc1', 'kx')
        if i == k1: s(f'buffer_load_dwordx4 {vr(KX+4,4)}, v{vKX}, {WS}, {sKV} offen offset:2048 sc1', 'kx')
    s(add(AQ+4, 0)); s(add(AQ+4, 1))
    K(2); s(mul(AQ+4)); s(mul(AQ+5))
    K(3)
    if ES: (kmstore if w >= 2 else vmstore)(s)
    s(f'v_cvt_pk_bf16_f32 v{AQ}, v{AQ}, v{AQ+4}\nv_cvt_pk_bf16_f32 v{AQ+1}, v{AQ+1}, v{AQ+5}')
    K(4); s(f'ds_write2_b32 v{vQW}, v{AQ}, v{AQ+1} offset1:4', 'qw')
    K(5); zero(s, AQ+2, 2)
    K(6); zero(s, AQ+4, 2)
    K(7); zero(s, AQ+6, 2)
    K(8)
    if ES and w >= 2: vmstore(s)
    s.W('ds', 'qw'); s('s_barrier'); P(s, 'b1')
    fl = [f'v_mov_b64 {vr(AQ,2)}, 0', f'v_mov_b64 {vr(AV+4,2)}, 0' if LC else '', f'v_mov_b64 {vr(AV,2)}, 0', f'v_mov_b64 {vr(AV+2,2)}, 0']
    def qb(j): s(f'ds_read_b128 {vr(QB+4*j,4)}, v{vQR} offset:{LQ + 576*j}', f'qb{j}')
    QP = opts.get('qp', (9, 10, 11, 12))
    for j in range(4):
        if QP[j] == 8: qb(j)
    for i in range(9, 13):
        K(i)
        for j in range(4):
            if QP[j] == i: qb(j)
        s(fl[i-9])
    K(13); s.W('vm', 'kx0')
    if FW is None: s(f's_cmp_lg_u64 {sPW}, 0')
    s(add(AK, 0))
    K(14)
    if FW is None: s(f's_cbranch_scc1 L_ch_pwait{T}\nL_ch_pok{T}:')
    s(add(AK, 1))
    K(15)
    s(f's_mov_b32 {sKN}, {sKM}')
    s.W('ds', 'qb1'); s(smf(SX, KX, QB)); s(f's_mov_b32 {sMS}, {sMN}')
    s.W('ds', 'qb3'); s(smf(SX, KX+4, QB+8)); s(add(AK+4, 0)); s(add(AK+4, 1))
    V(0); s(f'v_cvt_pk_bf16_f32 v{AK}, v{AK}, v{AK+4}\nv_cvt_pk_bf16_f32 v{AK+1}, v{AK+1}, v{AK+5}')
    V(1); s(f'ds_write2_b32 v{vKW}, v{AK}, v{AK+1} offset1:4', 'kw'); s(add(SX, 0)); s(add(SX, 1))
    V(2); s(f'v_exp_f32 v{SX+2}, v{SX}\nv_exp_f32 v{SX+3}, v{SX+1}'); zero(s, AK+2, 2); s(f'v_cvt_pk_bf16_f32 v{SX+2}, v{SX+2}, v{SX+3}')
    V(3); s(f'ds_write_b32 v{vG16}, v{SX+2} offset:{LP + 4*w}', 'pw')
    V(4); s(f'buffer_store_dword v{vSEN}, v{vPUB}, {WS}, {sMC} offen {st}'); zero(s, AK+4, 2)
    V(5); so(0, 0); zero(s, AK+6, 2)
    V(6); so(0, 1); zero(s, AK, 2)
    V(7); s.W('ds', 'pw'); s('s_barrier'); P(s, 'b2')
    s(f'ds_read_b128 {vr(KA,4)}, v{vG16} offset:{LK}', 'ka0')
    V(8); s(f'ds_read_b128 {vr(KA+4,4)}, v{vG16} offset:{LK + 1024}', 'ka1')
    V(9); s(f'ds_read_b128 {vr(PX,4)}, v{vG16} offset:{LP}', 'px')
    LSW = opts.get('lsw', 1)
    V(10)
    if not LSW: s.W('vm', 'vx'); s(f'v_swap_b32 v{VX+2}, v{VX+4}')
    V(11); so(1, 0)
    if not LSW: s(f'v_swap_b32 v{VX+3}, v{VX+5}')
    s.W('ds', 'ka0'); s(smf(SM, KA, QB)); so(1, 1)
    s.W('ds', 'ka1'); s(smf(SM, KA+4, QB+8))
    fpl('m1')
    s(add(AV, 0))
    s.W('ds', 'px')
    s(f'v_mfma_f32_16x16x32_bf16 {vr(LL,4)}, {vr(ONES,4)}, {vr(PX,4)}, 0'); so(2, 0); s(add(AV, 1)); s(f'v_cvt_pk_bf16_f32 v{AV}, v{AV}, v{AV+1}')
    V(12); so(2, 1); s(add(SM, 0)); s(add(SM, 1))
    V(13); so(3, 0); s(f'v_exp_f32 v{SM+2}, v{SM}')
    V(14); so(3, 1); s(f'v_exp_f32 v{SM+3}, v{SM+1}')
    if not LSW:
        V(15); so(4, 0); s(f's_cmp_eq_u32 {sS}, 63'); s(f'v_cvt_pk_bf16_f32 v{PM}, v{SM+2}, v{SM+3}')
        P(s, 'vend')
        s(f'v_mfma_f32_16x16x32_bf16 {vr(OX,4)}, {vr(VX,4)}, {vr(PX,4)}, 0')
        so(4, 1); s(f'v_mov_b32 v{PM+3}, v{PM}')
        s(f'v_mfma_f32_16x16x32_bf16 {vr(OX+4,4)}, {vr(VX+4,4)}, {vr(PX,4)}, 0')
        s(f's_cselect_b32 s30, 0, {sGH}'); s(add(AV+4, 0)); s(add(AV+4, 1)); s(f'v_cvt_pk_bf16_f32 v{AV+1}, v{AV+4}, v{AV+5}')
        s(f'v_mfma_f32_16x16x16_bf16 {vr(LL,4)}, {vr(ONES,2)}, {vr(PM,2)}, {vr(LL,4)}')
        s('s_nop 0')
        s(f'v_mfma_f32_16x16x16_bf16 {vr(OX,4)}, {vr(AV,2)}, {vr(PM,2)}, {vr(OX,4)}')
        s(f'v_mfma_f32_16x16x16_bf16 {vr(OX+4,4)}, {vr(AV,2)}, {vr(PM+2,2)}, {vr(OX+4,4)}')
    else:
        V(15); s.W('vm', 'vx'); s(f's_cmp_eq_u32 {sS}, 63'); s(f'v_cvt_pk_bf16_f32 v{PM}, v{SM+2}, v{SM+3}\nv_swap_b32 v{VX+2}, v{VX+4}\nv_swap_b32 v{VX+3}, v{VX+5}')
        P(s, 'vend')
        s(f'v_mfma_f32_16x16x16_bf16 {vr(LL,4)}, {vr(ONES,2)}, {vr(PM,2)}, {vr(LL,4)}')
        s(f's_cselect_b32 s30, 0, {sGH}'); s(add(AV+4, 0)); s(add(AV+4, 1))
        s(f'v_mfma_f32_16x16x32_bf16 {vr(OX,4)}, {vr(VX,4)}, {vr(PX,4)}, 0')
        so(4, 0); s(f'v_cvt_pk_bf16_f32 v{AV+1}, v{AV+4}, v{AV+5}')
        s(f'v_mfma_f32_16x16x32_bf16 {vr(OX+4,4)}, {vr(VX+4,4)}, {vr(PX,4)}, 0')
        so(4, 1); s(f'v_mov_b32 v{PM+3}, v{PM}\ns_nop 0')
        s(f'v_mfma_f32_16x16x16_bf16 {vr(OX,4)}, {vr(AV,2)}, {vr(PM,2)}, {vr(OX,4)}')
        s('s_nop 1')
        s(f'v_mfma_f32_16x16x16_bf16 {vr(OX+4,4)}, {vr(AV,2)}, {vr(PM+2,2)}, {vr(OX+4,4)}')
    s(f's_nop 0\nv_rcp_f32 v{LL+2}, v{LL}\nv_subrev_u32 v{LL+1}, {sGL}, v{LL}\nv_cmp_le_u32 vcc, s30, v{LL+1}')
    s(f'L_ch_norm{T}:'); P(s, 'norm')
    for r in range(4): s(f'v_mul_f32 v{OX+r}, v{LL+2}, v{OX+r}')
    for r in range(4): s(f'v_mul_f32 v{OX+4+r}, v{LL+2}, v{OX+4+r}')
    for r in range(4): s(f'v_cvt_pk_bf16_f32 v{OX+r}, v{OX+r}, v{OX+4+r}')
    s(f'ds_write_b128 v{vG16}, {vr(OX,4)} offset:{LO + 1024*w}', 'ow')
    P(s, 'ow')
    s(f's_cbranch_vccnz L_ch_safe{T}')
    AWO = AQ
    NOWN = opts.get('nown', 2)
    for u in range(NOWN):
        s(smf(AWO + 4*u, OX, home['o', u, 0]))
        if u == 0: s(f's_add_u32 {sS}, {sS}, 1\ns_add_u32 {sKM}, {sKM}, {4096*SS}')
    P(s, 'own'); s.W('ds', 'ow'); s('s_barrier'); P(s, 'b3')
    OA = [OX, OX+4, SX, SM]
    for z in (1, 2, 3): s(f'ds_read_b128 {vr(OA[z],4)}, v{vG16} offset:{LO + 1024*((w+z) & 3)}', f'oa{z}')
    for u in range(NOWN, 4): s(smf(AWO + 4*u, OX, home['o', u, 0]))
    def epi(u, part):
        d = AWO + 4*u
        if part == 0: s(f'v_cvt_pk_bf16_f32 v{d}, v{d}, v{d+2}\nv_cvt_pk_bf16_f32 v{d+1}, v{d+1}, v{d+3}\nv_and_or_b32 v{d}, v{d}, -2, {sTAG}')
        else: s(f'buffer_store_dwordx2 {vr(d,2)}, v{vST}, {WS}, {"0" if u < 2 else s4K} offen offset:{2048*(u & 1)} {st}')
    late = {(0,1): (5,0), (0,2): (5,1), (0,3): (6,0), (1,1): (6,1), (1,2): (7,0), (2,1): (7,1)}
    for u in range(4):
        for z in (1, 2, 3):
            key = ('o', u, z)
            if u == 0: s.W('ds', f'oa{z}')
            if in_lds(key): j = ob.index(key); s.W('ds', f'o{j}'); b = sreg[j]
            else: b = home[key]
            s(smf(AWO + 4*u, OA[z], b)); P(s, f'o{u}{z}')
            if (u, z) in late: so(*late[u, z])
            if u > 0 and z == 2: epi(u-1, 0)
            if u > 0 and z == 3: epi(u-1, 1)
    SEL, RA = OX, OX+4
    s(f'ds_read_b128 {vr(SEL,4)}, v{vG16} offset:{LSEL}', 'sel')
    s('s_nop 5')
    epi(3, 0); epi(3, 1); P(s, 'st3')
    idle = S()
    idle(f'v_mov_b32 v{AN}, {sCV}'); zero(idle, AQ, 12); zero(idle, AV+4, 12); zero(idle, AQ+12, 4)
    def fill(n):
        k = min(n, len(idle)); s.extend(idle[:k]); del idle[:k]; s.nops(n - k)
    G = [MA, MA+8, MA+16]
    def h1l(t, r): t(f'buffer_load_dwordx4 {vr(G[r],4)}, v{vG16}, {WS}, {sG1} offen sc1\nbuffer_load_dwordx4 {vr(G[r]+4,4)}, v{vG16}, {WS}, {sG1} offen offset:1024 sc1')
    def h2l(t, r): t(f'buffer_load_dwordx4 {vr(G[r],4)}, v{vG16}, {WS}, {sMS} offen sc1\nbuffer_load_dwordx4 {vr(G[r]+4,4)}, v{vG16}, {WS}, {sMS} offen offset:1024 sc1')
    TM = MA + 30
    def h1f(t, r, out):
        b = G[r]
        t(f"""s_waitcnt vmcnt({out+1})
              v_mfma_f32_16x16x32_bf16 {vr(RA,4)}, {vr(SEL,4)}, {vr(b,4)}, 0
              v_bitop3_b32 v{TM}, v{b}, v{b+2}, {sTAG} bitop3:0x7e
              s_waitcnt vmcnt({out})
              v_mfma_f32_16x16x32_bf16 {vr(RA,4)}, {vr(SEL,4)}, {vr(b+4,4)}, {vr(RA,4)}
              v_bitop3_b32 v{TM+1}, v{b+4}, v{b+6}, {sTAG} bitop3:0x7e
              v_bitop3_b32 v{TM}, v{TM}, v{TM+1}, 1 bitop3:0xa8
              v_cmp_ne_u32 vcc, 0, v{TM}""")
    def h2f(t, r, out):
        b = G[r]
        t(f"""s_waitcnt vmcnt({out})
              v_max3_u32 v{TM+1}, v{b}, v{b+1}, v{b+2}
              v_max3_u32 v{TM+1}, v{TM+1}, v{b+3}, v{b+4}
              v_max3_u32 v{TM+1}, v{TM+1}, v{b+5}, v{b+6}
              v_max_u32 v{TM+1}, v{TM+1}, v{b+7}
              v_cmp_eq_u32 vcc, -1, v{TM+1}
              ds_write_b128 v{vG16}, {vr(b,4)} offset:{LM + 2048*w}
              ds_write_b128 v{vG16}, {vr(b+4,4)} offset:{LM + 2048*w + 1024}""")
    def retry(tag, ld, fin, c):
        tail(f's_mov_b32 {sSPIN}, 0'); cnt(tail, c)
        for r in range(2): ld(tail, r); tail('s_nop 9')
        tail(f'L_ch_poll{tag}{T}:')
        for r in range(3):
            ld(tail, (r+2) % 3); fin(tail, r, 4); tail(f's_cbranch_vccz L_ch_got{tag}{T}')
        tail(f's_add_u32 {sSPIN}, {sSPIN}, 1\ns_cmp_lt_u32 {sSPIN}, {SPIN_MAX}\ns_cbranch_scc1 L_ch_poll{tag}{T}\ns_branch {fail}')
        tail(f'L_ch_got{tag}{T}:')
    if opts.get('solo'):
        s.extend(idle); del idle[:]; prestage(s); book(s); s(f's_waitcnt vmcnt(0)\ns_branch L_ch_solo{T}')
    D1 = opts.get('D1', 2); G1 = opts.get('g1', (42, 40, 38, 36)); G1 = G1[w] if isinstance(G1, tuple) else G1; D1 = D1[w] if isinstance(D1, tuple) else D1
    G2_ = opts.get('g2', (32, 32, 36, 28)); G2_ = G2_[w] if isinstance(G2_, tuple) else G2_
    PW = opts.get('pw', (0, 4, 1, 0)); PW = PW[w] if isinstance(PW[0], tuple) else PW
    if opts.get('pw0'): prestage(s, 0, PW[0])
    if opts.get('sbar', 1): s('s_barrier')
    if not opts.get('pw0'): x = S(); prestage(x, 0, PW[0]); idle[0:0] = x
    fill(P1[w])
    P(s, 'h1'); h1l(s, 0)
    for r in range(1, D1): fill(G1); h1l(s, r)
    s.extend(idle)
    s(f'ds_read_b64 {vr(AV+2,2)}, v{vG8} offset:{LK + 512*w}', 'kre')
    PS = PW[0] + PW[1]; prestage(s, PW[0], PS); s.nops(opts.get('t1', (0, 0, 0, 0))[w]); s.W('ds', 'sel')
    h1f(s, 0, 2*(D1-1)); s(f's_nop 3\ns_cbranch_vccnz L_ch_missa{T}\nL_ch_oka{T}:')
    tail(f'L_ch_missa{T}:\ns_mov_b32 {sSPIN}, 0\nL_ch_polla{T}:')
    for r in list(range(1, D1)) + [0]:
        cnt(tail, 's65'); h1l(tail, (r+D1-1) % D1); h1f(tail, r, 2*(D1-1)); tail(f's_nop 3\ns_cbranch_vccz L_ch_oka{T}')
    tail(f's_add_u32 {sSPIN}, {sSPIN}, 1\ns_cmp_lt_u32 {sSPIN}, {SPIN_MAX}\ns_cbranch_scc1 L_ch_polla{T}\ns_branch {fail}')
    P(s, 'h1ok')
    GATE = opts.get('gate')
    ann = f'buffer_store_dword v{AN}, v{vZ}, {WS}, {sH2O} offen {st}'
    if GATE: s(ann)
    s(f"""v_add_f32_dpp v{RA}, v{RA}, v{RA} row_ror:4 row_mask:0xf bank_mask:0xf
          v_add_f32_dpp v{RA+1}, v{RA+1}, v{RA+1} row_ror:4 row_mask:0xf bank_mask:0xf
          s_nop 0
          v_add_f32_dpp v{RA}, v{RA}, v{RA} row_ror:8 row_mask:0xf bank_mask:0xf
          v_add_f32_dpp v{RA+1}, v{RA+1}, v{RA+1} row_ror:8 row_mask:0xf bank_mask:0xf
          v_cvt_pk_bf16_f32 v{TM}, v{RA}, v{RA+1}
          {f'v_min_u32 v{TM}, -2, v{TM}' if opts.get('vmin', 1) else ''}
          buffer_store_dword v{TM}, v{vPUB}, {WS}, {sMS} offen {st}""")
    def dma(t, tag): t(f'buffer_load_dwordx4 v{vG16}, {WS}, {sMS} offen sc1 lds\nbuffer_load_dwordx4 v{vG16}, {WS}, {sMS} offen offset:1024 sc1 lds', tag)
    def prb(t, r, tag='x'): t(f'buffer_load_dword v{HR+r}, v{vF32}, {WS}, {sH2} offen sc1', tag)
    def clamp(t):
        for r in range(4): t(f'v_min_u32 v{AV+r}, -2, v{AV+r}')
    idle = S(); book(idle); idle.W('ds', 'kre'); clamp(idle)
    if GATE:
        NG, GG = GATE
        fill(D2)
        for r in range(NG):
            prb(s, r, f'g{r}')
            if r == 0: prestage(s, PS, 5)
            if r < NG-1: fill(GG)
        s.extend(idle); P(s, 'pub')
        s.W('vm', 'g0'); s(f'v_cmp_gt_u32 vcc, v{AN}, v{HR}\ns_cbranch_vccnz L_ch_g1{T}'); P(s, 'h2'); dma(s, 'h2'); s(f'L_ch_gok{T}:')
        for r in list(range(1, NG)) + [0]:
            tail(f'L_ch_g{r}{T}:'); cnt(tail, 's66'); prb(tail, (r+NG-1) % NG)
            if r == 0: tail(f's_add_u32 {sSPIN}, {sSPIN}, 1\ns_cmp_lt_u32 {sSPIN}, {SPIN_MAX}\ns_cbranch_scc0 {fail}')
            tail(f's_waitcnt vmcnt({NG-1})\nv_cmp_gt_u32 vcc, v{AN}, v{HR+r}\ns_cbranch_vccnz L_ch_g{(r+1) % NG}{T}'); dma(tail, 'x'); tail(f's_branch L_ch_gok{T}')
        s(f's_mov_b32 {sSPIN}, 0\nv_cmp_gt_u32 vcc, {sPT}, v{vFP}')
    else:
        if not LC: s.nops(opts.get('da', 4)); s(ann)
        P(s, 'pub')
        prestage(s, PS, PS + PW[2]); prestage(idle, PS + PW[2], 5); rest = max(0, D2 - 2*PW[2] - (0 if LC else opts.get('da', 4)))
        if EW: s.nops(rest - EW[0]); prb(s, 3, 'early'); s.nops(EW[0] - 3)
        else: s.nops(rest)
        P(s, 'h2')
        def shot(t, r):
            if not LC: prb(t, r, 'hint' if r == 0 else 'x')
            dma(t, 'h2' if r == 0 else 'x')
        shot(s, 0)
        for r in range(1, DD): fill(G2_); shot(s, r)
        s.extend(idle)
        if LC:
            tail(f'L_ch_hmiss{T}:'); cnt(tail, 's66'); shot(tail, 1)
            tail(f's_add_u32 {sSPIN}, {sSPIN}, 1\ns_cmp_lt_u32 {sSPIN}, {SPIN_MAX}\ns_cbranch_scc0 {fail}\ns_waitcnt lgkmcnt(0)\ns_nop 1'); zero(tail, AQ, 8); tail.nops(opts.get('lcd', 0)); tail(f's_branch L_ch_again{T}')
        else:
            tail(f'L_ch_hmiss{T}:\ns_mov_b32 {sSPIN}, 0\nL_ch_hpoll{T}:')
            for r in list(range(1, DD)) + [0]:
                cnt(tail, 's66'); shot(tail, (r+DD-1) % DD)
                tail(f's_waitcnt vmcnt({3*(DD-1)+2})\nv_cmp_gt_u32 vcc, v{AN}, v{HR+r}\ns_cbranch_vccz L_ch_hok{T}')
            tail(f's_add_u32 {sSPIN}, {sSPIN}, 1\ns_cmp_lt_u32 {sSPIN}, {SPIN_MAX}\ns_cbranch_scc1 L_ch_hpoll{T}\ns_branch {fail}')
    s.nops(opts.get('t2', (0, 0, 0, 0))[w])
    if opts.get('solo'): s(f'L_ch_solo{T}:\nv_mov_b32 v{HR}, -1')
    P(s, 'end')
    if opts.get('trace'):
        s(f's_cmp_eq_u32 {sS}, 13\ns_cbranch_scc1 L_ch_m0{T}\ns_cmp_eq_u32 {sS}, 63\ns_cbranch_scc1 L_ch_m1{T}\nL_ch_mb{T}:')
        tail(f'L_ch_m0{T}:\ns_memtime s[58:59]\ns_memrealtime s[60:61]\ns_mov_b32 s65, 0\ns_mov_b32 s66, 0\ns_mov_b32 s67, 0\ns_mov_b32 s68, 0\ns_branch L_ch_mb{T}')
        tail(f'L_ch_m1{T}:\ns_memtime s[62:63]\ns_memrealtime s[98:99]\ns_waitcnt lgkmcnt(0)\ns_sub_u32 s64, s62, s58\ns_sub_u32 s60, s98, s60\ns_branch L_ch_mb{T}')
    if opts.get('steps') and w == 0: s('s_memrealtime s[78:79]')
    s('s_waitcnt lgkmcnt(0)')
    if opts.get('steps') and w == 0:
        s(f's_lshl_b32 s100, {sROLE}, 9\ns_lshl_b32 s79, {sL}, 7\ns_add_u32 s100, s100, s79\ns_add_u32 s100, s100, {sS}\ns_lshl_b32 s100, s100, 2\ns_add_u32 s100, s100, {TRACE + 128*4 + 32*4}\nv_mov_b32 v{TM-3}, s78')
        s.append(Op(f'buffer_store_dword v{TM-3}, v{vZ}, {WS}, s100 offen'))
    if clk: s('s_sub_u32 s74, s74, s70\ns_sub_u32 s76, s76, s72\ns_add_u32 s67, s67, s74\ns_add_u32 s68, s68, s76')
    if pts:
        s(f's_cmp_eq_u32 {sS}, {opts.get("tls", 41)}\ns_cbranch_scc0 L_ch_step{T}')
        s(f's_lshl_b32 s100, {sROLE}, 2\ns_add_u32 s100, s100, {sW}\ns_lshl_b32 s100, s100, 9\ns_add_u32 s100, s100, {TRACE+256}\nv_mov_b32 v{TM-4}, s100')
        for i in range(len(pts)): s(f'v_mov_b32 v{TM-3}, s{70+2*i}\nbuffer_store_dword v{TM-3}, v{TM-4}, {WS}, 0 offen offset:{4*i}\ns_waitcnt vmcnt(0)')
    s(f's_branch L_ch_step{T}')
    if opts.get('hoist', 1): s = hoist_waits(s)
    for pat in opts.get('drop', []):
        lo = [i for i, o in enumerate(s) if o.t == f'L_ch_in{T}:'][0] + 2; hi = [i for i, o in enumerate(s) if o.tag == 'oa1'][0] - 2
        s = S(o for i, o in enumerate(s) if not (lo <= i < hi and o.t and o.t.startswith(pat) and 'safe' not in o.t))
    step = resolve(s, pre_vm=['h2']*2 if GATE else ['early', 'hint'] + ['h2']*2 + ['x']*((2 if LC else 3)*(DD-1)))[0]
    if opts.get('model') == T: model(step[step.index(f'L_ch_in{T}:'):], True)
    tail(f'L_ch_missb{T}:\ns_mov_b32 {sSPIN}, 0\ns_sub_u32 s30, {sMS}, {2048*w}\ns_add_u32 s31, s30, 4096\ns_waitcnt lgkmcnt(0)'); cnt(tail, 's68')
    for t in range(8): rdma(t, tail)
    tail('s_waitcnt lgkmcnt(0)'); prestage(tail); tail(f's_branch L_ch_chkb{T}\nL_ch_pollb{T}:')
    for t in range(8): tail(f'buffer_load_dwordx4 {vr(MA+4*t,4)}, v{vG16}, {WS}, s3{t >> 2} offen offset:{1024*(t & 3)} sc1')
    tail(f's_add_u32 {sSPIN}, {sSPIN}, 1\ns_cmp_lt_u32 {sSPIN}, {SPIN_MAX}\ns_cbranch_scc0 {fail}\ns_waitcnt vmcnt(0)\nL_ch_chkb{T}:\nv_max_u32 v{CK}, v{MA}, v{MA+1}')
    for r in range(2, 32, 2): tail(f'v_max3_u32 v{CK}, v{CK}, v{MA+r}, v{MA+r+1}')
    tail(f'v_cmp_eq_u32 vcc, -1, v{CK}\ns_cbranch_vccnz L_ch_pollb{T}')
    zero(tail, AQ, 16); tail('s_waitcnt lgkmcnt(0)\ns_nop 0')
    qpass(tail, False); tail(f's_branch L_ch_okb{T}')
    t = tail
    t(f'L_ch_last{T}:')
    t(f'ds_read_b64 {vr(AV+2,2)}, v{vG8} offset:{LK + 512*w}\ns_waitcnt lgkmcnt(0)')
    clamp(t); kmstore(t); vmstore(t)
    t(f's_sub_u32 {sN}, {sN}, 1')
    if opts.get('trace'): t('s_add_u32 s69, s69, 1')
    stamp(t, opts, 's69', MA)
    if opts.get('trace'):
        for i, r in enumerate(('s64', 's65', 's66', 's67', 's68', 's60')):
            t(f'v_mov_b32 v{MA}, {r}\nv_add_u32 v{MA+1}, 4, v{MA+1}\nbuffer_store_dword v{MA}, v{MA+1}, {WS}, 0 offen\ns_nop 1')
    if opts.get('dbgt'): t(f's_lshl_b32 s30, {sL}, 3\ns_add_u32 s30, s30, 48\nv_mov_b32 v{MA+2}, s30\nv_mov_b32 v{MA}, s64\nv_mov_b32 v{MA+1}, s60\nglobal_store_dwordx2 v{MA+2}, v[{MA}:{MA+1}], s[6:7]')
    t(f"""s_waitcnt vmcnt(0) lgkmcnt(0)
          s_barrier
          s_add_u32 {sL}, {sL}, 1
          s_cmp_lt_u32 {sL}, {opts.get('nl', 2)}
          s_cbranch_scc1 L_ch_layer{T}
          s_endpgm""")
    m, m2 = LL + 1, LL + 3
    t(f'L_ch_safe{T}:\ns_cmp_eq_u32 {sS}, 63\ns_cbranch_scc1 L_ch_last{T}\nv_max3_f32 v{m}, v{SX}, v{SX+1}, v{SM}\nv_max_f32 v{m}, v{m}, v{SM+1}')
    xreduce(t, m, m2, 'v_max_f32', dpp=())
    t(f'''ds_write_b32 v{vG16}, v{m} offset:{LMX + 4*w}
          s_waitcnt lgkmcnt(0)
          s_barrier
          ds_read_b128 {vr(PX,4)}, v{vG16} offset:{LMX}
          s_waitcnt lgkmcnt(0)
          v_max3_f32 v{m}, v{PX}, v{PX+1}, v{PX+2}
          v_max_f32 v{m}, v{m}, v{PX+3}''')
    for b in (SX, SM):
        for r in range(2): t(f'v_sub_f32 v{b+2+r}, v{b+r}, v{m}\nv_exp_f32 v{b+2+r}, v{b+2+r}')
    t(f'''s_nop 0
          v_cvt_pk_bf16_f32 v{SX+2}, v{SX+2}, v{SX+3}
          v_cvt_pk_bf16_f32 v{PM}, v{SM+2}, v{SM+3}
          v_cvt_pk_bf16_f32 v{PM+3}, v{SM+2}, v{SM+3}
          ds_write_b32 v{vG16}, v{SX+2} offset:{LP + 4*w}
          s_waitcnt lgkmcnt(0)
          s_barrier
          ds_read_b128 {vr(PX,4)}, v{vG16} offset:{LP}
          s_waitcnt lgkmcnt(0)
          v_mfma_f32_16x16x32_bf16 {vr(LL,4)}, {vr(ONES,4)}, {vr(PX,4)}, 0
          v_mfma_f32_16x16x32_bf16 {vr(OX,4)}, {vr(VX,4)}, {vr(PX,4)}, 0
          v_mfma_f32_16x16x32_bf16 {vr(OX+4,4)}, {vr(VX+4,4)}, {vr(PX,4)}, 0
          s_nop 7
          v_mfma_f32_16x16x16_bf16 {vr(LL,4)}, {vr(ONES,2)}, {vr(PM,2)}, {vr(LL,4)}
          v_mfma_f32_16x16x16_bf16 {vr(OX,4)}, {vr(AV,2)}, {vr(PM,2)}, {vr(OX,4)}
          v_mfma_f32_16x16x16_bf16 {vr(OX+4,4)}, {vr(AV,2)}, {vr(PM+2,2)}, {vr(OX+4,4)}
          s_nop 7
          v_rcp_f32 v{LL+2}, v{LL}
          s_mov_b64 vcc, 0
          s_branch L_ch_norm{T}''')
    return pre + step + resolve(tail)[0]

def role_chain(opts):
    fail = 'L_ch_fail'
    s = S(); setup(s, opts, fail)
    return resolve(s)[0] + body('F', opts, fail) + [f'{fail}:', 's_endpgm'] + (['L_ch_initS:', 's_endpgm'] if opts.get('fastonly') else body('S', opts, fail))
```

```python
from common import *

def dense_pairs(nks, rowbytes, dst, krow=lambda ks, jr: 32*ks + 2*jr):
    return [(krow(ks, jr) * rowbytes, dst(0, ks, jr), dst(1, ks, jr)) for ks in range(nks) for jr in range(4)]

def role_p(after, opts):
    s = S()
    fail = 'L_p_fail'; tl = TL(opts, 'p')
    sH, sU, sL, sS, sO, sIN, sSTR, sC, sFO, sFV, sRB, sWB, sW4 = [f's{i}' for i in range(32, 45)]
    sX = ['s46', 's47', 's48', 's49']
    vL16, vXa, vLR, vFo, vFp, vFt, vSF, vSW, vSR, vBP = range(1, 11)
    vA, vB, vKS, vL8, SEN, vRD, vKT = 12, 13, 120, 121, 122, 124, 126; sKC = 's45'; sOQ = 's58'; sOK, sOV = 's59', 's60'
    AF, SF, GM, ONES, aK, aV, aQ, CS, ST = 16, 32, 48, 56, 60, 68, 76, 84, 108
    U = SF; RQ, NQ = 118, 119
    st = Stats(vSF, SF, GM, ONES, vSW, vSR, vBP, ST, 50)
    WK = lambda t, ks, jr=0: ('a', 8*ks + 4*t + jr)
    WV = lambda t, ks, jr=0: ('a', 128 + 8*ks + 4*t + jr)
    WQ = lambda t, ks, jr=0: 128 + 8*ks + 4*t + jr
    def mk(d, t, ks, a): return f'v_mfma_f32_16x16x32_bf16 {vr(d+4*t,4)}, {R(WK(t,ks),4)}, {a}, {"0" if ks == 0 else vr(d+4*t,4)}'
    def mv(d, t, ks, a): return f'v_mfma_f32_16x16x32_bf16 {vr(d+4*t,4)}, {a}, {R(WV(t,ks),4)}, {"0" if ks == 0 else vr(d+4*t,4)}'
    def mq(d, t, ks, a): return f'v_mfma_f32_16x16x32_bf16 {vr(d+4*t,4)}, {R(WQ(t,ks),4)}, {a}, {"0" if ks == 0 else vr(d+4*t,4)}'
    s(f'''L_role_p:
    s_lshr_b32 s30, {sROLE}, 5
    s_sub_u32 s30, s30, 1
    s_lshl_b32 s30, s30, 3
    s_bfe_u32 s31, {sROLE}, 0x30001
    s_add_u32 {sH}, s30, s31
    s_and_b32 {sU}, {sROLE}, 1
    v_lshlrev_b32 v{vL16}, 4, v0
    v_lshrrev_b32 v14, 4, v0
    v_and_b32 v15, 15, v0
    v_lshlrev_b32 v{vA}, 16, v14
    v_lshl_add_u32 v{vA}, v15, 2, v{vA}
    s_lshl_b32 s30, {sH}, 8
    s_lshl_b32 s31, {sW}, 6
    s_add_u32 s30, s30, s31
    v_add_u32 v{vA}, s30, v{vA}
    v_add_u32 v{vB}, 0x2000, v{vA}
    v_sub_u32 v16, 0, v14
    v_xor_b32 v16, v16, v0
    v_and_b32 v16, 3, v16
    v_lshrrev_b32 v17, 2, v0
    v_lshlrev_b32 v{vXa}, 10, v17
    v_lshl_add_u32 v{vXa}, v16, 4, v{vXa}
    s_lshl_b32 s30, {sW}, 8
    v_add_u32 v{vXa}, s30, v{vXa}
    v_sub_u32 v16, 0, v17
    v_xor_b32 v16, v16, v14
    v_and_b32 v16, 3, v16
    v_lshlrev_b32 v{vRD}, 6, v15
    v_lshl_add_u32 v{vRD}, v16, 4, v{vRD}
    ''')
    set_srds(s, [(16, 'Wk', 4*MB), (84, 'Wv', 4*MB), (88, 'Wq', 4*MB)])
    s(f's_lshl_b32 s92, {sH}, 8')
    stages = [(srd, 64*k2*8192, [[(dst(0, 2*k2 + (q >> 1), 2*(q & 1)+jj), dst(1, 2*k2 + (q >> 1), 2*(q & 1)+jj)) for jj in range(2)] for q in range(4)])
              for srd, dst in (('s[16:19]', WK), ('s[84:87]', WV), ('s[88:91]', WQ)) for k2 in range(8)]
    load_pairs_wg(s, stages, (16, 8), (32, 4), 2, 's92', 0, vA, 16)
    set_srd(s, 12, 'x', 2*MB)
    st.setup(s, 49152, 12)
    s('s_nop 1')
    for ks in range(16):
        for t in range(2): s(mk(CS, t, ks, vr(ONES,4))); s(mv(CS+8, t, ks, vr(ONES,4))); s(mq(CS+16, t, ks, vr(ONES,4)))
    s(f'''; K fragment position: 512(g>>1) + 128(c>>2) + 64(g&1) + 16(c&3)
    v_lshrrev_b32 v12, 5, v0
    v_bfe_u32 v13, v0, 2, 2
    v_lshlrev_b32 v{vKS}, 9, v12
    v_lshl_add_u32 v{vKS}, v13, 7, v{vKS}
    v_bfe_u32 v12, v0, 4, 1
    v_and_b32 v13, 3, v0
    v_lshl_add_u32 v{vKS}, v12, 6, v{vKS}
    v_lshl_add_u32 v{vKS}, v13, 4, v{vKS}''')
    stamp(s, opts, 0, 12)
    wait_init(s, 12, 13, fail)
    s(f'''
    v_and_b32 v{vFo}, 1, v0
    v_lshlrev_b32 v{vFo}, 2, v{vFo}
    v_lshlrev_b32 v{vL8}, 3, v0
    v_bfe_u32 v12, v0, 4, 1
    v_add_u32 v12, 1, v12
    v_lshlrev_b32 v12, 13, v12
    v_and_b32 v13, 15, v0
    v_lshl_add_u32 v{vKT}, v13, 6, v12
    v_mov_b64 v[{SEN}:{SEN+1}], -1
    s_lshl_b32 s30, {sH}, 7
    s_lshl_b32 s31, {sU}, 4
    s_add_u32 s30, s30, s31
    s_lshl_b32 s31, {sW}, 2
    s_add_u32 s30, s30, s31
    s_add_u32 s30, s30, {F_P}
    v_mov_b32 v{vFp}, s30
    s_mov_b32 {sC}, {f32(128**-0.5 * LOG2E)}
    s_mov_b32 {sL}, 0
    s_lshl_b32 {sIN}, {sU}, 14
    s_mov_b32 {sSTR}, 64
    s_lshl_b32 {sW4}, {sW}, 12
    L_p_layer:
    s_mul_i32 {sO}, {sH}, {24*HS}
    s_lshl_b32 s30, {sU}, 2
    s_add_u32 {sO}, {sO}, s30
    s_add_u32 {sO}, {sO}, {sW}
    s_lshl_b32 {sO}, {sO}, 10
    s_mov_b32 s30, 0
    {'' if opts.get('qre') else f's_add_u32 {sO}, {sO}, s30'}
    s_add_u32 {sO}, {sO}, {LB0 + O_QKV}
    s_mul_i32 {sKC}, {sH}, {8*HS}
    s_lshl_b32 s31, {sU}, 2
    s_add_u32 {sKC}, {sKC}, s31
    s_add_u32 {sKC}, {sKC}, {sW}
    s_lshl_b32 {sKC}, {sKC}, 9
    s_add_u32 {sKC}, {sKC}, s30
    s_add_u32 {sKC}, {sKC}, {LB0 + O_KVM}
    s_lshl_b32 {sFV}, {sL}, 7
    s_mov_b32 {sS}, 0
    s_add_u32 {sOQ}, {sW4}, {JUNK + 0x20000}
    s_mov_b32 {sRB}, 0
    s_mov_b32 {sWB}, 0
    ''')
    def flag_offset(t, k):
        t(f'''s_add_u32 s30, {sS}, {k}
              s_min_u32 s30, s30, 63
              s_lshl_b32 s30, s30, 1
              s_add_u32 s30, s30, {sU}
              s_lshl_b32 {sFO}, s30, 7
              s_add_u32 {sFO}, {sFO}, {F_O}''')
    def ring(t, r): t(f's_add_u32 {r}, {r}, 0x4000\ns_cmp_eq_u32 {r}, 0xc000\ns_cselect_b32 {r}, 0, {r}')
    def dma(t, k):
        t(f'''s_add_u32 s30, {sS}, {k}
              s_min_u32 s30, s30, 63
              s_lshl_b32 s30, s30, 15
              s_add_u32 s30, s30, {sIN}
              s_add_u32 m0, {sWB}, {sW4}''')
        for i in range(4):
            if i: t(f's_add_u32 m0, m0, 1024\ns_add_u32 s30, s30, {sSTR}')
            else: t('s_nop 0')
            t(f'buffer_load_dwordx4 v{vXa}, {XIN}, s30 offen sc1 lds', 'x')
        ring(t, sWB)
    def flagload(t, k):
        flag_offset(t, k); t(f'buffer_load_dword v{vFt}, v{vFo}, {WS}, {sFO} offen sc1', 'fl')
    flag_offset(s, 0); poll1(s, vFo, sFO, vFt, sL, fail); tl(s, 'poll'); dma(s, 0); flagload(s, 1)
    s(f's_waitcnt vmcnt(0)\nv_cmp_gt_u32 vcc, {sL}, v{vFt}\ns_cbranch_vccnz L_p_slow0\nL_p_back0:')
    tl(s, 'ld'); dma(s, 1); flagload(s, 2)
    if opts.get('trace'): s(f's_add_u32 s69, {sL}, 1')
    stamp(s, opts, 's69', 12)
    s(f'buffer_load_dword v12, v{vFo}, {WS}, {sFO} offen sc1\nv_add_u32 v{vSF}, {sW4}, v{vRD}')
    pre, _ = resolve(s)
    m = S(); f = S()
    def rd(ks, tag): m(f'ds_read_b128 v[{AF+4*(ks%4)}:{AF+4*(ks%4)+3}], v{vLR} offset:{1024*(ks%16)}', tag)
    m(f'L_p_loop:\ns_barrier')
    tl(m, 'bar'); st.reads(m); m(f'v_add_u32 v{vLR}, {sRB}, v{vRD}'); ring(m, sRB)
    st.mfmas(m, after=lambda i: rd(i, f'a{i}') if i < 3 else None)
    for i in range(32):
        ks = i % 16
        tl(m, f'i{i}'); m.W('ds', f'a{i}')
        a = vr(AF + 4*(i % 4), 4)
        if i < 16:
            m(mk(aK, 0, ks, a))
            if i + 3 < 32: rd(i + 3, f'a{i+3}')
            m(mk(aK, 1, ks, a)); m(mv(aV, 0, ks, a)); m(mv(aV, 1, ks, a))
            if i == 0: st.part1(m)
            if i == 2: m.W('ds', 'sw'); m('s_barrier'); st.part2(m)
            if i == opts.get('pfi', 2):
                m(f's_cmp_eq_u32 {sS}, 0\ns_cbranch_scc1 L_p_nofl'); tl(m, 'qst'); m.W('vm', 'kv'); tl(m, 'ack')
                m(f's_mov_b64 exec, 1\nbuffer_store_dword v11, v{vFp}, {WS}, 0 offen sc1\ns_mov_b64 exec, -1', 'flag'); m('L_p_nofl:')
        else:
            m(mq(aQ, 0, ks, a))
            if i + 3 < 32: rd(i + 3, f'a{i+3}')
            m(mq(aQ, 1, ks, a))
    f('s_waitcnt vmcnt(2)'); f(f'v_cmp_gt_u32 vcc, {sL}, v{vFt}\ns_add_u32 {sFV}, {sFV}, 1\nv_mov_b32 v11, {sFV}\ns_cbranch_vccnz L_p_slow\nL_p_back:')
    dma(f, 2)
    if opts.get('kvt', 0): f(f'buffer_load_dword v125, v{vKT}, {WS}, {sOQ} offen {opts.get("kvtf", "sc1")}', 'x')
    flagload(f, 3)
    st.part3(f)
    for r in range(8): f(f'v_mul_f32 v{U+r}, v{st.NM}, v{CS+r}')
    f(f'v_mul_f32 v{RQ}, {sC}, v{st.RS}\nv_mul_f32 v{NQ}, {sC}, v{st.NM}')
    f.W('ds', 'bp')
    for r in range(8): f(f'v_mul_f32 v{U+8+r}, v{st.NMr + (r & 3)}, v{CS+8+r}')
    f(f'buffer_store_dwordx2 v[{SEN}:{SEN+1}], v{vL8}, {WS}, {sKC} offen sc1\ns_add_u32 {sKC}, {sKC}, {4096*SS}', 'kv')
    f(f's_add_u32 {sOK}, {sO}, 8192\ns_add_u32 {sOV}, {sO}, 16384')
    g = S()
    for r in range(8): g(f'v_fmac_f32 v{U+r}, v{st.RS}, v{aK+r}')
    for r in range(4): g(f'v_cvt_pk_bf16_f32 v{aK+r}, v{U+r}, v{U+4+r}')
    g(f'buffer_store_dwordx4 {vr(aK,4)}, v{vKS}, {WS}, {sOK} offen sc1', 'kv')
    for r in range(8): g(f'v_fmac_f32 v{U+8+r}, v{st.RSr + (r & 3)}, v{aV+r}')
    for r in range(4): g(f'v_cvt_pk_bf16_f32 v{aV+r}, v{U+8+2*r}, v{U+8+2*r+1}')
    g(f'buffer_store_dwordx4 {vr(aV,4)}, v{vL16}, {WS}, {sOV} offen sc1', 'kv')
    def qepi(t):
        for r in range(8): t(f'v_mul_f32 v{aQ+r}, v{RQ}, v{aQ+r}')
        for r in range(8): t(f'v_fmac_f32 v{aQ+r}, v{NQ}, v{CS+16+r}')
        for r in range(4): t(f'v_cvt_pk_bf16_f32 v{aQ+r}, v{aQ+r}, v{aQ+4+r}')
        t(f'buffer_store_dwordx4 {vr(aQ,4)}, v{vL16}, {WS}, {sOQ} offen sc1', 'q')
    g(f's_mov_b32 {sOQ}, {sO}\ns_add_u32 {sO}, {sO}, {24*1024*SS}\ns_add_u32 {sS}, {sS}, 1')
    g(f's_add_u32 s30, {sRB}, {sW4}\nv_add_u32 v{vSF}, s30, v{vRD}')
    q = S(); qepi(q); i0 = [i for i, o in enumerate(m) if o.kind == 'wait_ds'][0]; i1 = [i for i, o in enumerate(m) if is_mfma(o)][11]
    m = S(m[:i0] + q[:7] + weave(S(m[i0:i1]), S(q[7:])) + m[i1:])
    cut = [i for i, o in enumerate(m) if is_mfma(o)][8 + 64]
    b = weave(S(m[:cut]), f, start=8 + 4*opts.get('pfi', 2) + 4)
    b.extend(weave(S(m[cut:]), g, budget=opts.get('pb', 16)))
    tl(b, 'end'); tl.dump(b, f's_cmp_eq_u32 {sS}, {41 if tl.at is None else tl.at + 1}', 12)
    b(f'''s_cmp_lt_u32 {sS}, {opts.get('pseg', 64)}
          s_cbranch_scc1 L_p_loop''')
    if opts.get('model') == 'p': model(resolve(b)[0], True)
    body, q = resolve(b, pre_vm=['x']*4 + ['fl', 'kv', 'kv', 'kv'])
    e = S(); e('s_nop 7'); qepi(e)
    if opts.get('trace'): e(f's_add_u32 s69, {sL}, 3')
    stamp(e, opts, 's69', 12)
    e(f'''s_add_u32 {sFV}, {sFV}, 1
          v_mov_b32 v11, {sFV}
          s_waitcnt vmcnt(0) lgkmcnt(0)
          s_mov_b64 exec, 1
          buffer_store_dword v11, v{vFp}, {WS}, 0 offen sc1
          s_mov_b64 exec, -1
          s_barrier
          s_cmp_eq_u32 {sL}, {opts.get('nl', 2) - 1}
          s_cbranch_scc0 L_p_second
          s_branch {after}
          L_p_second:
          s_mov_b32 {sL}, 1
          s_mov_b32 s12, s8
          s_mov_b32 s13, s9
          s_mov_b32 s14, s10
          v_add_u32 v{vXa}, {sW4}, v{vL16}
          v_mov_b32 v{vRD}, v{vL16}
          s_add_u32 {sIN}, {sIN}, {LB0 + O_X2}
          s_mov_b32 {sSTR}, 1024
          s_branch L_p_layer
          L_p_slow:''')
    poll(e, vFo, sFO, vFt, sL, fail)
    e('s_branch L_p_back\nL_p_slow0:')
    poll(e, vFo, sFO, vFt, sL, fail)
    e(f's_branch L_p_back0\n{fail}:\ns_endpgm')
    return pre + body + resolve(e)[0]
```

```python
from common import *
from role_p import dense_pairs

def rep_rank(s, sR, sI, base):
    s(f's_lshr_b32 {sR}, {sROLE}, 5\ns_sub_u32 {sR}, {sR}, 5\ns_and_b32 {sI}, {sROLE}, 31\ns_sub_u32 {sI}, {sI}, {base}')
def layer_base(s, sHS, sLB, sHL):
    s(f's_mul_i32 s30, {sHS}, 21846\ns_bfe_u32 s30, s30, 0x20010\ns_lshl_b32 {sLB}, s32, 2\ns_add_u32 {sLB}, {sLB}, s30\ns_and_b32 {sHL}, {sHS}, 127')
def flag(s, vval, val, vzero, soff):
    s(f'v_mov_b32 v{vval}, {val}\ns_mov_b64 exec, 1\nbuffer_store_dword v{vval}, v{vzero}, {WS}, {soff} offen sc1\ns_mov_b64 exec, -1')
def lflag(s, sM, tail, vval, val, vzero, soff):
    s(f'v_mov_b32 v{vval}, {val}\ns_mov_b64 exec, 1'); dual(s, sM, tail, f'buffer_store_dword v{vval}, v{vzero}, {WS}, {soff} offen @'); s('s_mov_b64 exec, -1')
def xpt(s, opts, vt):
    s(f's_sub_u32 s92, {sROLE}, 160\ns_lshl_b32 s92, s92, 2\ns_add_u32 s92, s92, {sW}'); pretouch(s, opts, 's92', 384, vt)
def tstamp(s, opts, sHS, vt, k=0):
    if opts.get('trace') and not opts.get('dbgt'):
        s(f's_mul_i32 s69, {sHS}, 21846\ns_lshr_b32 s69, s69, 16\ns_add_u32 s69, s69, 2'); stamp(s, opts, 's69', vt)

def role_x2(opts):
    s = S(); fail = 'L_x2_fail'; tl = TL(opts, 'x2')
    sR, sNB, sHS, sLB, sHL, sO, sT, sFI, sFO, sX, sM, sBP, sF3 = [f's{i}' for i in range(32, 45)]; tail = S()
    vL16, vF, vFt, vA, vB, vRes, vLW, vLR = range(1, 9)
    AC, RS, PT, OB = 12, 20, 24, 128
    s('L_role_x2:'); rep_rank(s, sR, sNB, 0)
    s(f'''v_lshlrev_b32 v{vL16}, 4, v0
    v_lshrrev_b32 v10, 4, v0
    v_and_b32 v11, 15, v0
    v_lshlrev_b32 v{vA}, 13, v10
    v_lshl_add_u32 v{vA}, v11, 2, v{vA}
    s_lshl_b32 s30, {sW}, 20
    s_lshl_b32 s31, {sNB}, 6
    s_add_u32 s30, s30, s31
    v_add_u32 v{vA}, s30, v{vA}
    v_add_u32 v{vB}, 0x400, v{vA}
    v_lshlrev_b32 v{vRes}, 10, v11
    v_lshl_add_u32 v{vRes}, v10, 4, v{vRes}
    v_add_u32 v{vRes}, s31, v{vRes}
    s_lshl_b32 s30, {sW}, 11
    v_add_u32 v{vLW}, s30, v{vL16}
    v_mov_b32 v{vLR}, v{vL16}
    v_and_b32 v{vF}, 7, v0
    v_lshlrev_b32 v{vF}, 2, v{vF}
    s_lshl_b32 s30, {sR}, 7
    s_lshl_b32 s31, {sW}, 5
    s_add_u32 {sFI}, s30, s31
    s_add_u32 {sFI}, {sFI}, {F_X1}
    s_add_u32 {sF3}, s30, {F_X3L}
    s_lshl_b32 s31, {sNB}, 2
    s_add_u32 {sFO}, s30, s31
    s_add_u32 {sFO}, {sFO}, {F_X2}
    s_mov_b32 {sHS}, {sR}''')
    set_srd(s, 16, 'Wo', 4*MB)
    s(f's_lshl_b32 s92, {sW}, 20\ns_lshl_b32 s31, {sNB}, 6\ns_add_u32 s92, s92, s31\ns_lshl_b32 s93, {sW}, 15')
    load_pairs_lds(s, [(WSR, (32*ks + 4*jp)*1024, [(('a', 8*ks + 2*jp + jj), ('a', 8*ks + 4 + 2*jp + jj)) for jj in range(2)]) for ks in range(32) for jp in range(2)], (16, 8), 1024, 2, 's92', 's93', 32, vA, 16)
    s('s_barrier')
    set_srd(s, 12, 'x', 2*MB)
    xpt(s, opts, 10)
    wait_init(s, 10, 11, fail); die_mode(s, sM, 10, 11)
    s('L_x2_loop:'); layer_base(s, sHS, sLB, sHL)
    s(f'''s_lshl_b32 {sO}, {sLB}, 17
    s_lshl_b32 s30, {sW}, 15
    s_add_u32 {sO}, {sO}, s30
    s_add_u32 {sO}, {sO}, {LB0 + O_O}
    s_sub_u32 {sBP}, {sHS}, {3*RD - 1}
    s_max_i32 {sBP}, {sBP}, 0
    s_add_u32 {sT}, {sHS}, 1
    s_lshl_b32 {sX}, {sHL}, 14''')
    tl(s, 'top'); poll(s, vF, sFI, vFt, sT, fail, sleep=0, lazy=(sHL, 118, opts.get('lz', 0))); tl(s, 'poll')
    s(f'''s_cmp_lg_u32 {sW}, 0
    s_cbranch_scc1 L_x2_r2
    buffer_load_dword v{vFt}, v{vF}, {WS}, {sF3} offen sc1
    s_cmp_ge_u32 {sHS}, 128
    s_cbranch_scc1 L_x2_r1
    buffer_load_dwordx4 {vr(RS,4)}, v{vRes}, {XIN}, {sX} offen
    L_x2_r2:''')
    tail(f'''L_x2_r1:
    s_lshl_b32 s30, {sNB}, 10
    s_add_u32 s30, s30, {sX}
    s_add_u32 s30, s30, {LB0 + O_X2}
    buffer_load_dwordx4 {vr(RS,4)}, v{vL16}, {WS}, s30 offen sc1
    s_branch L_x2_r2''')
    AH = opts.get('x2ah', 6)
    def ld(ks):
        if ks and ks & 3 == 0: s(f's_add_u32 {sO}, {sO}, 4096')
        s(f'buffer_load_dwordx4 {vr(OB+4*ks,4)}, v{vL16}, {WS}, {sO} offen offset:{1024*(ks & 3)} sc1', f'o{ks}')
    for ks in range(AH): ld(ks)
    for ks in range(32):
        tl(s, f'w{ks}'); s.W('vm', f'o{ks}'); tl(s, f'g{ks}')
        for t in range(2):
            s(f'v_mfma_f32_16x16x32_bf16 {vr(AC+4*t,4)}, a[{8*ks+4*t}:{8*ks+4*t+3}], {vr(OB+4*ks,4)}, {"0" if ks == 0 else vr(AC+4*t,4)}')
            if t == 0 and ks + AH < 32: ld(ks + AH)
    s(f'''s_nop 7
    ds_write_b128 v{vLW}, {vr(AC,4)}
    ds_write_b128 v{vLW}, {vr(AC+4,4)} offset:1024
    s_waitcnt lgkmcnt(0)
    s_barrier
    s_cmp_lg_u32 {sW}, 0
    s_cbranch_scc1 L_x2_next''')
    tl(s, 'bar')
    for i in range(6): s(f'ds_read_b128 {vr(PT+4*i,4)}, v{vLR} offset:{2048 + 1024*i}', f'p{i}')
    s(f's_waitcnt vmcnt(0)\nv_cmp_gt_u32 vcc, {sBP}, v{vFt}')
    for r in range(4):
        s(f'v_lshlrev_b32 v10, 16, v{RS+r}\nv_and_b32 v11, 0xffff0000, v{RS+r}\nv_add_f32 v{AC+r}, v{AC+r}, v10\nv_add_f32 v{AC+4+r}, v{AC+4+r}, v11')
    for i in range(6):
        s.W('ds', f'p{i}')
        for r in (0, 2): s(f'v_pk_add_f32 {vr(AC+4*(i&1)+r,2)}, {vr(AC+4*(i&1)+r,2)}, {vr(PT+4*i+r,2)}')
    for r in range(4): s(f'v_cvt_pk_bf16_f32 v{RS+r}, v{AC+r}, v{AC+4+r}')
    tail('L_x2_bp:'); poll(tail, vF, sF3, vFt, sBP, fail); tail('s_branch L_x2_free')
    s(f'''s_cbranch_vccnz L_x2_bp
    L_x2_free:
    s_lshl_b32 s30, {sNB}, 10
    s_lshl_b32 s31, {sLB}, 14
    s_add_u32 s30, s30, s31
    s_add_u32 s30, s30, {LB0 + O_X1L}''')
    dual(s, sM, tail, f'buffer_store_dwordx4 {vr(RS,4)}, v{vL16}, {WS}, s30 offen @')
    s('s_waitcnt vmcnt(0)')
    tl(s, 'ack'); lflag(s, sM, tail, 10, sT, vF, sFO); tstamp(s, opts, sHS, 10)
    s('L_x2_next:'); tl.dump(s, f's_sub_u32 s30, {sHS}, {tl.at or 60}\ns_cmp_lt_u32 s30, 3', 10)
    s(f'''
    v_xor_b32 v{vLW}, 0x2000, v{vLW}
    v_xor_b32 v{vLR}, 0x2000, v{vLR}
    s_add_u32 {sHS}, {sHS}, 3
    s_cmp_lt_u32 {sHS}, {128*opts.get('nl', 2)}
    s_cbranch_scc1 L_x2_loop
    {fail}:
    s_endpgm''')
    return resolve(s)[0] + resolve(tail)[0]

def role_x3(opts):
    s = S(); fail = 'L_x3_fail'; tl = TL(opts, 'x3')
    sR, sNB, sHS, sLB, sHL, sO, sT, sFI, sFO, sH, sC, sB, sW4, sG = [f's{i}' for i in range(32, 46)]
    sX = ['s46', 's47', 's48']; sM, sF3 = 's49', 's58'; tail = S()
    vF, vFt, vA, vL16, vLR, vSF, vSW, vSR, vBP, vQK, vV, vCP = range(1, 13); vTA, vTS, vTT = 122, 123, 124
    AF, SF, GM, ONES, AC, CS, ST, CP = 16, 32, 48, 56, 60, 84, 108, 120
    U = SF; RQ, NQ = 118, 119
    st = Stats(vSF, SF, GM, ONES, vSW, vSR, vBP, ST, 50)
    def mm(d, m, ks, a):
        wv = f'a[{64*m+4*ks}:{64*m+4*ks+3}]'
        return f'v_mfma_f32_16x16x32_bf16 {vr(d+4*m,4)}, {wv if m < 2 else a}, {a if m < 2 else wv}, {"0" if ks == 0 else vr(d+4*m,4)}'
    s('L_role_x3:'); rep_rank(s, sR, sNB, 16)
    s(f"""s_lshl_b32 {sH}, {sNB}, 2
    s_add_u32 {sH}, {sH}, {sW}
    v_lshrrev_b32 v13, 4, v0
    v_and_b32 v14, 15, v0
    v_mul_u32_u24 v{vA}, {8*3072}, v13
    v_lshl_add_u32 v{vA}, v14, 1, v{vA}
    s_lshl_b32 s30, {sH}, 5
    v_add_u32 v{vA}, s30, v{vA}
    v_lshlrev_b32 v{vF}, 2, v14
    v_lshlrev_b32 v14, 4, v14
    v_and_b32 v15, 1, v13
    v_lshl_add_u32 v14, v15, 3, v14
    v_lshrrev_b32 v13, 1, v13
    v_lshl_add_u32 v{vQK}, v13, 9, v14
    v_lshl_add_u32 v{vV}, v13, 8, v14
    v_lshlrev_b32 v{vL16}, 4, v0
    s_lshl_b32 {sFI}, {sR}, 7
    s_add_u32 {sFI}, {sFI}, {F_X2}
    s_lshl_b32 {sFO}, {sH}, 7
    s_lshl_b32 s30, {sR}, 2
    s_add_u32 {sFO}, {sFO}, s30
    s_add_u32 {sFO}, {sFO}, {F_X3}
    s_mov_b32 {sC}, {f32(0.25 * LOG2E)}
    s_lshl_b32 {sW4}, {sW}, 12
    s_mov_b32 {sB}, 0
    s_mov_b32 {sHS}, {sR}""")
    set_srd(s, 16, 'wqkv', 512*3072)
    items = [((32*ks + 2*jr)*3072 + 1024*m, 64*m + 4*ks + jr) for m in range(3) for ks in range(16) for jr in range(4)]
    D = 30
    def issue(i):
        b = 16 + 2*(i % D)
        s(f's_mov_b32 s30, {items[i][0]}\nbuffer_load_ushort v{b}, v{vA}, {WSR}, s30 offen\nbuffer_load_ushort v{b+1}, v{vA}, {WSR}, s30 offen offset:3072')
    for i in range(D): issue(i)
    for i in range(len(items)):
        b = 16 + 2*(i % D)
        s(f's_waitcnt vmcnt({2*(min(len(items), i+D) - i - 1)})\nv_perm_b32 v13, v{b+1}, v{b}, {sSEL0}\nv_accvgpr_write_b32 a{items[i][1]}, v13')
        if i + D < len(items): issue(i + D)
    st.setup(s, 32768, 13); s('s_nop 1')
    for ks in range(16):
        for m in range(3): s(mm(CS, m, ks, vr(ONES, 4)))
    s(f"""v_cmp_gt_u32 vcc, 32, v0
    v_lshlrev_b32 v13, 7, v0
    s_lshl_b32 s30, {sH}, 12
    s_add_u32 s30, s30, {LB0 + O_O}
    v_add_u32 v13, s30, v13
    v_and_b32 v14, 3, v0
    v_lshlrev_b32 v14, 7, v14
    s_lshl_b32 s30, {sH}, 9
    s_add_u32 s30, s30, {LB0 + O_X1L}
    v_add_u32 v14, s30, v14
    v_cndmask_b32 v{vTA}, v14, v13, vcc
    v_mov_b32 v13, 14
    v_cndmask_b32 v{vTS}, v13, 17, vcc""")
    for k in range(RD):
        s(f"""s_lshl_b32 s31, {sR}, 2
        s_add_u32 s31, s31, {k}
        v_lshlrev_b32 v{vTT}, v{vTS}, s31
        v_add_u32 v{vTT}, v{vTA}, v{vTT}
        buffer_load_dword v{vTT}, v{vTT}, {WS}, 0 offen sc1
        s_waitcnt vmcnt(0)""")
    wait_init(s, 13, 14, fail); die_mode(s, sM, 13, 14)
    s(f's_lshl_b32 {sF3}, {sR}, 7\ns_lshl_b32 s30, {sNB}, 2\ns_add_u32 {sF3}, {sF3}, s30\ns_add_u32 {sF3}, {sF3}, {F_X3L}')
    s('L_x3_loop:'); layer_base(s, sHS, sLB, sHL)
    s(f"""s_lshl_b32 s30, {sHL}, 14
    s_lshl_b32 s31, {sH}, 9
    s_add_u32 {sG}, s30, s31
    s_add_u32 {sG}, {sG}, {LB0 + O_X1}
    s_lshl_b32 s30, {sLB}, 14
    s_add_u32 s31, s31, {sB}
    v_lshrrev_b32 v{vCP}, 1, v{vL16}
    v_add_u32 v{vCP}, s31, v{vCP}
    s_add_u32 s30, s30, {sW4}
    s_mov_b32 {sLB}, {LB0 + O_BQ}
    s_add_u32 {sO}, s30, {LB0 + O_X1L}
    s_add_u32 {sT}, {sHS}, 1
    s_mul_i32 s30, {sH}, {3*65536}
    s_add_u32 s30, s30, {sLB}
    s_lshr_b32 s31, {sHL}, 1
    s_lshl_b32 s31, s31, 10
    s_add_u32 s30, s30, s31
    s_and_b32 s31, {sHL}, 1
    s_lshl_b32 s31, s31, 8
    s_add_u32 {sX[0]}, s30, s31
    s_add_u32 {sX[1]}, {sX[0]}, 65536
    s_add_u32 {sX[2]}, {sX[1]}, 65536
    s_add_u32 {sX[2]}, {sX[2]}, s31
    s_add_u32 m0, {sB}, {sW4}
    v_add_u32 v{vSF}, m0, v{vL16}
    v_add_u32 v{vLR}, {sB}, v{vL16}
    s_xor_b32 {sB}, {sB}, 0x4000""")
    tl(s, 'top'); poll(s, vF, sFI, vFt, sT, fail, sleep=0, lazy=(sHL, 118, opts.get('lz', 0))); tl(s, 'poll')
    for i in range(4): s(f'buffer_load_dwordx4 v{vL16}, {WS}, {sO} offen offset:{1024*i} sc1 lds')
    s('s_waitcnt vmcnt(0)'); tl(s, 'ld'); s('s_barrier'); tl(s, 'bar')
    m = S(); f = S()
    def rd(ks): m(f'ds_read_b128 {vr(AF+4*(ks%4),4)}, v{vLR} offset:{1024*ks}', f'a{ks}')
    st.reads(m); m(f's_cmp_lg_u32 {sW}, 3\ns_cbranch_scc1 L_x3_nf'); lflag(m, sM, tail, vTT, sT, vF, sF3); m('L_x3_nf:'); st.mfmas(m, after=lambda i: rd(i) if i < 3 else m(f'ds_read_b64 {vr(CP,2)}, v{vCP}', 'cp'))
    for ks in range(16):
        m.W('ds', f'a{ks}'); a = vr(AF+4*(ks%4), 4)
        for t in range(3):
            m(mm(AC, t, ks, a))
            if t == 0 and ks + 3 < 16: rd(ks + 3)
        if ks == 0: st.part1(m)
        if ks == 1:
            m.W('ds', 'cp'); m(f'v_lshrrev_b32 v{vCP}, 1, v{vL16}\nbuffer_store_dwordx2 {vr(CP,2)}, v{vCP}, {WS}, {sG} offen sc1')
        if ks == 2: m.W('ds', 'sw'); m('s_barrier'); st.part2(m)
    st.part3(f)
    f(f'v_mul_f32 v{RQ}, {sC}, v{st.RS}\nv_mul_f32 v{NQ}, {sC}, v{st.NM}')
    for r in range(4): f(f'v_mul_f32 v{U+r}, v{NQ}, v{CS+r}\nv_mul_f32 v{U+4+r}, v{st.NM}, v{CS+4+r}')
    f.W('ds', 'bp')
    for r in range(4): f(f'v_mul_f32 v{U+8+r}, v{st.NMr+r}, v{CS+8+r}')
    s.extend(weave(m, f, start=8 + 13))
    s('s_nop 5')
    for t in range(3):
        for r in range(4): s(f'v_fmac_f32 v{U+4*t+r}, v{(RQ, st.RS, st.RSr+r)[t]}, v{AC+4*t+r}')
        s(f'v_cvt_pk_bf16_f32 v{AC+4*t}, v{U+4*t}, v{U+4*t+1}\nv_cvt_pk_bf16_f32 v{AC+4*t+1}, v{U+4*t+2}, v{U+4*t+3}')
        s(f'buffer_store_dwordx2 {vr(AC+4*t,2)}, v{vQK if t < 2 else vV}, {WS}, {sX[t]} offen sc1')
    tl(s, 'st'); s('s_waitcnt vmcnt(0)'); tl(s, 'ack')
    flag(s, 13, sT, vF, sFO); tstamp(s, opts, sHS, 13); tl.dump(s, f's_sub_u32 s30, {sHS}, {tl.at or 60}\ns_cmp_lt_u32 s30, 3', 13)
    s(f"""s_add_u32 {sHS}, {sHS}, 3
    s_cmp_lt_u32 {sHS}, {128*opts.get('nl', 2)}
    s_cbranch_scc1 L_x3_loop""")
    if opts.get('wb', 0):
        s(f's_cmp_lg_u32 {sH}, 0\ns_cbranch_scc1 {fail}\ns_waitcnt vmcnt(0)\ns_sleep {opts.get("wbs", 8)}\nbuffer_wbl2 sc1\ns_waitcnt vmcnt(0)')
    s(f"""{fail}:
    s_endpgm""")
    return resolve(s)[0] + resolve(tail)[0]

sBI, sBN, sBC, sBL = 's60', 's61', 's62', 's63'
def load_wo(s):
    set_srd(s, 16, 'wo', 512*1024)
    s(f's_lshl_b32 s92, {sBC}, 9\ns_lshl_b32 s31, {sW}, 7\ns_add_u32 s92, s92, s31\ns_lshl_b32 s93, {sW}, 15')
    groups = [(WSR, (32*ks + 8*jp)*1024 + 64*p, [(('a', 16*ks + 8*p + 2*jp + jj), ('a', 16*ks + 8*p + 4 + 2*jp + jj)) for jj in range(2)]) for ks in range(16) for p in range(2) for jp in range(2)]
    load_pairs_lds(s, groups, (16, 4), 1024, 2, 's92', 's93', 32, 14, 16)
    s('s_barrier')

BO_X = 36
sBE, sBR = 's64', 's101'
def role_bo(opts):
    s = S(); fail = 'L_bo_fail'; tl = TL(opts, 'bo')
    sHS, sLB, sA, sX, sT, sF, sM, sHV, sN = 's66', 's67', 's68', 's70', 's71', 's94', 's95', 's96', 's97'
    vL16, vF, vFt, vLR, vOut = 248, 249, 250, 251, 252
    AF, AC, RS, RN = 200, 216, 232, 240
    s(f"""L_bo:
    v_lshlrev_b32 v{vL16}, 4, v0
    v_mov_b32 v{vLR}, v{vL16}
    v_and_b32 v{vF}, 31, v0
    v_lshlrev_b32 v{vF}, 5, v{vF}
    v_lshrrev_b32 v{vFt}, 4, v0
    v_and_b32 v{vOut}, 15, v0
    v_lshlrev_b32 v{vOut}, 10, v{vOut}
    v_lshl_add_u32 v{vOut}, v{vFt}, 4, v{vOut}
    s_mov_b32 {sLB}, {LB0}
    s_add_u32 {sT}, {sBL}, 1
    s_lshl_b32 {sM}, {sW}, 12
    s_mov_b32 {sHS}, {sBI}""")
    set_srd(s, 20, 'out', 2*MB)
    def faddr(t, hs): t(f's_min_u32 {sF}, {hs}, 127\ns_lshr_b32 {sF}, {sF}, 1\ns_lshl_b32 {sF}, {sF}, 10\ns_add_u32 {sF}, {sF}, {F_B}')
    def loads(t, hs):
        t(f"""s_lshl_b32 s30, {hs}, 14
        s_add_u32 s30, s30, {sLB}
        s_lshl_b32 s31, {sW}, 12
        s_add_u32 {sA}, s30, s31
        s_add_u32 {sA}, {sA}, {O_OB}
        s_mov_b32 m0, {sM}
        s_lshl_b32 s31, {sBC}, 13
        s_add_u32 s30, s30, s31""")
        for i in range(4): t(f'buffer_load_dwordx4 v{vL16}, {WS}, {sA} offen offset:{1024*i} sc1 lds')
        t(f's_lshl_b32 s31, {sW}, 11\ns_add_u32 s30, s30, s31\ns_add_u32 s30, s30, {O_X1}\ns_xor_b32 {sM}, {sM}, 0x4000')
        for p in range(2): t(f'buffer_load_dwordx4 {vr(RN+4*p,4)}, v{vL16}, {WS}, s30 offen offset:{1024*p} sc1')
        t(f's_add_u32 s30, {hs}, {sBN}'); faddr(t, 's30')
        t(f'buffer_load_dword v{vFt}, v{vF}, {WS}, {sF} offen sc1')
    faddr(s, sHS); tl(s, 'top'); poll1(s, vF, sF, vFt, sT, fail); s('s_branch L_bo_fetch')
    s(f'L_bo_loop:\ns_cmp_eq_u32 {sHV}, 1\ns_cbranch_scc1 L_bo_have'); faddr(s, sHS); poll(s, vF, sF, vFt, sT, fail)
    s('L_bo_fetch:'); tl(s, 'poll'); loads(s, sHS); s('s_waitcnt vmcnt(0)\ns_branch L_bo_go')
    s(f'L_bo_have:\ns_waitcnt vmcnt(2)\nL_bo_go:\nv_cmp_gt_u32 vcc, {sT}, v{vFt}\ns_barrier'); tl(s, 'bar')
    def rd(ks): s(f'ds_read_b128 {vr(AF+4*(ks%4),4)}, v{vLR} offset:{1024*ks}', f'a{ks}')
    rd(0); rd(1); rd(2)
    for r in range(0, 8, 2): s(f'v_mov_b64 {vr(RS+r,2)}, {vr(RN+r,2)}')
    for ks in range(16):
        s.W('ds', f'a{ks}')
        for t in range(4):
            s(f'v_mfma_f32_16x16x32_bf16 {vr(AC+4*t,4)}, a[{16*ks+4*t}:{16*ks+4*t+3}], {vr(AF+4*(ks%4),4)}, {"0" if ks == 0 else vr(AC+4*t,4)}')
            if t == 0 and ks + 3 < 16: rd(ks + 3)
        if ks == 0:
            s(f's_add_u32 {sN}, {sHS}, {sBN}\ns_mov_b32 {sHV}, 0\ns_cmp_lt_u32 {sN}, {sBE}\ns_cbranch_scc0 L_bo_nopf\ns_cbranch_vccnz L_bo_nopf\ns_mov_b32 {sHV}, 1')
            loads(s, sN); s('L_bo_nopf:')
    s(f'v_xor_b32 v{vLR}, 0x4000, v{vLR}\ns_lshl_b32 s30, {sHS}, 14\ns_nop 2')
    for p in range(2):
        for r in range(4):
            a0, a1, x = AC+8*p+r, AC+8*p+4+r, RS+4*p+r
            s(f'v_lshlrev_b32 v{AF}, 16, v{x}\nv_and_b32 v{AF+1}, 0xffff0000, v{x}\nv_add_f32 v{a0}, v{a0}, v{AF}\nv_add_f32 v{a1}, v{a1}, v{AF+1}\nv_cvt_pk_bf16_f32 v{x}, v{a0}, v{a1}')
    tl(s, 'st')
    s(f"""s_cmp_eq_u32 {sBL}, 0
    s_cbranch_scc1 L_bo_mid
    s_lshl_b32 s31, {sBC}, 9
    s_add_u32 s30, s30, s31
    s_lshl_b32 s31, {sW}, 7
    s_add_u32 s30, s30, s31
    buffer_store_dwordx4 {vr(RS,4)}, v{vOut}, {OUT}, s30 offen {opts.get('ofl', '')}
    buffer_store_dwordx4 {vr(RS+4,4)}, v{vOut}, {OUT}, s30 offen offset:64 {opts.get('ofl', '')}
    s_branch L_bo_next
    L_bo_mid:
    s_lshl_b32 s31, {sBC}, 13
    s_add_u32 s30, s30, s31
    s_lshl_b32 s31, {sW}, 11
    s_add_u32 s30, s30, s31
    s_add_u32 s30, s30, {LB0 + O_X2}
    buffer_store_dwordx4 {vr(RS,4)}, v{vL16}, {WS}, s30 offen sc1
    buffer_store_dwordx4 {vr(RS+4,4)}, v{vL16}, {WS}, s30 offen offset:1024 sc1
    s_lshl_b32 s30, {sHS}, 7
    s_lshl_b32 s31, {sBC}, 2
    s_add_u32 s30, s30, s31
    s_add_u32 s30, s30, {F_O}
    s_cmp_lg_u32 {sW}, 1
    s_waitcnt vmcnt(0)
    s_barrier
    s_cbranch_scc1 L_bo_next""")
    flag(s, AF, 1, vF, 's30')
    s('L_bo_next:'); tl(s, 'end'); tl.dump(s, f's_lshl_b32 s30, {sBL}, 8\ns_add_u32 s30, s30, {sHS}\ns_sub_u32 s30, s30, {sBI}\ns_cmp_eq_u32 s30, {tl.at or 0}', AF)
    if opts.get('trace'):
        s(f's_cmp_eq_u32 {sHS}, {sBI}\ns_cselect_b32 s69, 0, 1\ns_add_u32 s69, s69, 100\ns_lshl_b32 s30, {sBL}, 1\ns_add_u32 s69, s69, s30'); stamp(s, opts, 's69', AF)
    s(f"""s_mov_b32 {sHS}, {sN}
    s_cmp_lt_u32 {sHS}, {sBE}
    s_cbranch_scc1 L_bo_loop
    s_cmp_eq_u32 {sBR}, 1
    s_cbranch_scc1 L_x1_second
    s_cmp_eq_u32 {sBR}, 2
    s_cbranch_scc0 {fail}
    s_branch L_b_second
    {fail}:""")
    if opts.get('dbgt'): s(f's_waitcnt vmcnt(0)\ns_memrealtime s[98:99]\ns_waitcnt lgkmcnt(0)\nv_mov_b32 v2, s98\nv_mov_b32 v3, 44\ns_cmp_lg_u32 {sW}, 0\ns_cbranch_scc1 L_bo_x\ns_mov_b64 exec, 1\nglobal_atomic_umax v3, v2, s[6:7]\nL_bo_x:')
    s(f"""    s_endpgm""")
    return resolve(s)[0]

def role_x1(with_bo, opts):
    s = S(); fail = 'L_x1_fail'; tl = TL(opts, 'x1')
    sR, sJ, sHS, sLB, sHL, sH, sQ, sKM, sO, sT, sFP, sFC, sFO, sPT, sCT, sEND, sPF, sM = [f's{i}' for i in range(32, 50)]; tail = S()
    MK = [f's[{50+2*r}:{51+2*r}]' for r in range(4)]
    vL16, vL8, vF, vZ, vFt, vFP, vKM, vNEG, vKS = range(1, 10); vRT, vF16 = 188, 189
    Q = [16, 32]; V = [48, 80]; K = 112; KM = 144; VM = 160; SD, SP, SMm = 168, 172, 176; PB, PMm = 180, 184; AC = 192; TT = 10
    s('L_role_x1:'); rep_rank(s, sR, sJ, 24)
    s(f'''s_lshl_b32 {sH}, {sJ}, 2
    s_add_u32 {sH}, {sH}, {sW}
    s_lshl_b32 s30, {sR}, 3
    s_add_u32 s30, s30, {sJ}
    s_and_b32 {sBC}, s30, 1
    s_lshr_b32 {sBI}, s30, 1
    s_mov_b32 {sBL}, 0
    s_mov_b32 {sBN}, 12
    s_mov_b32 {sBE}, {BO_X}
    s_mov_b32 {sBR}, {1 if opts.get('nl', 2) == 2 else 0}''')
    if with_bo: load_wo(s)
    xpt(s, opts, 10)
    wait_init(s, 10, 11, fail); die_mode(s, sM, 10, 11)
    s(f'''v_lshlrev_b32 v{vL16}, 4, v0
    v_lshlrev_b32 v{vL8}, 3, v0
    v_and_b32 v{vF}, 7, v0
    v_lshlrev_b32 v{vF}, 2, v{vF}
    v_mov_b32 v{vZ}, 0
    v_mov_b32 v{vNEG}, {f32(-1e30)}
    v_lshrrev_b32 v10, 4, v0
    v_and_b32 v11, 15, v0
    v_lshrrev_b32 v12, 1, v10
    v_and_b32 v13, 1, v10
    v_lshrrev_b32 v14, 2, v11
    v_and_b32 v15, 1, v11
    v_lshlrev_b32 v{vKM}, 8, v12
    v_lshl_add_u32 v{vKM}, v13, 5, v{vKM}
    v_lshl_add_u32 v{vKM}, v14, 6, v{vKM}
    v_lshl_add_u32 v{vKM}, v15, 4, v{vKM}
    v_lshlrev_b32 v{vKS}, 9, v12
    v_lshl_add_u32 v{vKS}, v14, 7, v{vKS}
    v_lshl_add_u32 v{vKS}, v13, 6, v{vKS}
    v_and_b32 v15, 3, v11
    v_lshl_add_u32 v{vKS}, v15, 4, v{vKS}
    v_lshlrev_b32 v{vRT}, 7, v15
    s_lshl_b32 s30, {sH}, 9
    v_add_u32 v{vRT}, s30, v{vRT}
    v_lshlrev_b32 v10, 2, v10''')
    set_srd(s, 12, 'x', 2*MB)
    for r in range(4): s(f'v_add_u32 v12, {r}, v10\nv_cmp_le_u32 {MK[r]}, v12, v11')
    s(f'''s_lshl_b32 s30, {sH}, 7
    s_add_u32 {sFP}, s30, {F_P}
    s_lshl_b32 s30, {sR}, 7
    s_add_u32 {sFC}, s30, {F_X2}
    v_lshlrev_b32 v{vF16}, 2, v11
    s_lshl_b32 s31, {sH}, 2
    s_add_u32 {sFO}, s30, s31
    s_add_u32 {sFO}, {sFO}, {F_X1}
    s_mov_b32 {sHS}, {sR}
    s_branch L_x1_layer
    L_x1_second:
    s_mov_b32 {sBL}, 1
    s_mov_b32 {sBN}, 44
    s_mov_b32 {sBE}, 128
    s_mov_b32 {sBR}, 0
    L_x1_layer:
    v_mov_b32 v{PMm+1}, 0
    v_mov_b32 v{PMm+2}, 0
    s_and_b32 {sEND}, {sHS}, 128
    s_add_u32 {sEND}, {sEND}, 128''')
    def qaddr(t, hs):
        t(f'''s_lshr_b32 s30, {hs}, 7
              s_mov_b32 {sQ}, 0
              s_lshl_b32 {sPT}, s30, 7
              s_bfe_u32 s30, {hs}, 0x60001
              s_add_u32 {sPT}, {sPT}, s30
              s_add_u32 {sPT}, {sPT}, 2
              s_mul_i32 s31, {sH}, {HS}
        s_mul_i32 s30, s30, {SS}
              s_add_u32 s30, s30, s31
              s_mul_i32 s30, s30, {24*1024}
              s_add_u32 {sQ}, {sQ}, s30
              s_add_u32 {sQ}, {sQ}, {LB0 + O_QKV}''')
    def loads(t, u):
        def four(reg, off, step=4, va=vL16):
            t(f's_add_u32 s30, {sQ}, {off}')
            for i in range(4): t(f'buffer_load_dwordx4 {vr(reg+step*i,4)}, v{va}, {WS}, s30 offen offset:{1024*i} sc1', 'pf')
        a, b = L('rt'), L('rt')
        t(f's_lshl_b32 s30, {sHS}, 14\ns_and_b32 s30, s30, {hex(2*MB - 1)}\ns_cmp_ge_u32 {sHS}, 128\ns_cbranch_scc1 {a}')
        t(f'buffer_load_dword v{vFt}, v{vRT}, {XIN}, s30 offen\ns_branch {b}\n{a}:\ns_add_u32 s30, s30, {LB0 + O_X2}')
        t.append(Op(f'buffer_load_dword v{vFt}, v{vRT}, {WS}, s30 offen sc1')); t(f'{b}:')
        four(Q[u], 4096*u); four(K, 8192 + 4096*u, 4, vKS)
        if u: four(K+16, 8192, 4, vKS); four(V[u], 16384, 8); four(V[u]+4, 16384 + 4096, 8)
        else: four(V[u], 16384)
    s('L_x1_pro:'); qaddr(s, sHS); poll(s, vF, sFP, vFP, sPT, fail)
    s(f's_bitcmp1_b32 {sHS}, 0\ns_cbranch_scc1 L_x1_pro1\nL_x1_pro0:')
    loads(s, 0); s('s_waitcnt vmcnt(0)\ns_branch L_x1_task0\nL_x1_pro1:'); loads(s, 1); s('s_waitcnt vmcnt(0)\ns_branch L_x1_task1')
    out = resolve(s)[0]
    for u in range(2):
        s = S()
        s(f'L_x1_task{u}:'); tl(s, 'top')
        for ks in range(4):
            s(f'v_mfma_f32_16x16x32_bf16 {vr(SD,4)}, {vr(K+4*ks,4)}, {vr(Q[u]+4*ks,4)}, {"0" if ks == 0 else vr(SD,4)}')
            if u:
                s(f'v_mfma_f32_16x16x32_bf16 {vr(SP,4)}, {vr(K+16+4*ks,4)}, {vr(Q[u]+4*ks,4)}, {"0" if ks == 0 else vr(SP,4)}')
                s(f'v_swap_b32 v{V[u]+8*ks+2}, v{V[u]+8*ks+4}\nv_swap_b32 v{V[u]+8*ks+3}, v{V[u]+8*ks+5}')
        layer_base(s, sHS, sLB, sHL)
        s(f'''        s_lshr_b32 s30, {sHL}, 1
        s_mul_i32 s31, {sH}, {HS}
        s_mul_i32 s30, s30, {SS}
        s_add_u32 s30, s30, s31
        s_lshl_b32 {sKM}, s30, 12
        s_add_u32 {sKM}, {sKM}, {LB0}
        s_add_u32 {sKM}, {sKM}, {O_KVM}
        s_lshl_b32 {sO}, {sLB}, 17
        s_lshl_b32 s30, {sH}, 12
        s_add_u32 {sO}, {sO}, s30
        s_add_u32 {sO}, {sO}, {LB0 + O_O}
        s_sub_u32 {sCT}, {sHS}, {3*RD - 1}
        s_max_i32 {sCT}, {sCT}, 0
        s_add_u32 {sT}, {sHS}, 1
        s_add_u32 {sHS}, {sHS}, 3''')
        qaddr(s, sHS)
        for r in range(4): s(f'v_cndmask_b32 v{SD+r}, v{vNEG}, v{SD+r}, {MK[r]}')
        m = TT
        s(f'v_max3_f32 v{m}, v{SD}, v{SD+1}, v{SD+2}\nv_max_f32 v{m}, v{m}, v{SD+3}')
        if u: s(f'v_max3_f32 v{m}, v{m}, v{SP}, v{SP+1}\nv_max3_f32 v{m}, v{m}, v{SP+2}, v{SP+3}')
        s(f'''v_cmp_gt_u32 vcc, {sPT}, v{vFP}
        s_mov_b32 {sPF}, 0
        s_cmp_lt_u32 {sHS}, {sEND}
        s_cbranch_scc0 L_x1_nopf{u}
        s_cbranch_vccnz L_x1_nopf{u}
        s_mov_b32 {sPF}, 1''')
        loads(s, 1 - u)
        s(f'L_x1_nopf{u}:')
        tl(s, 'pre'); s(f's_mov_b32 {sSPIN}, 0\nL_x1_kv{u}:')
        for ks in range(4): s(f'buffer_load_dwordx4 {vr(KM+4*ks,4)}, v{vKM}, {WS}, {sKM} offen offset:{512*ks} sc1', f'km{ks}')
        for i in range(4): s(f'buffer_load_dwordx2 {vr(VM+2*i,2)}, v{vL8}, {WS}, {sKM} offen offset:{2048 + 512*i} sc1', 'vm')
        s(f's_add_u32 {sSPIN}, {sSPIN}, 1\ns_cmp_lt_u32 {sSPIN}, {SPIN_MAX}\ns_cbranch_scc0 {fail}')
        for ks in range(4):
            s.W('vm', f'km{ks}')
            s(f'v_mfma_f32_16x16x32_bf16 {vr(SMm,4)}, {vr(KM+4*ks,4)}, {vr(Q[u]+4*ks,4)}, {"0" if ks == 0 else vr(SMm,4)}')
            s(f'v_max3_u32 v{vFt}, v{KM+4*ks}, v{KM+4*ks+1}, {"v" + str(vFt) if ks else 0}\nv_max3_u32 v{vFt}, v{KM+4*ks+2}, v{KM+4*ks+3}, v{vFt}')
        s.W('vm', 'vm')
        for i in range(4): s(f'v_max3_u32 v{vFt}, v{VM+2*i}, v{VM+2*i+1}, v{vFt}')
        s(f'v_cmp_eq_u32 vcc, -1, v{vFt}\ns_cbranch_vccnz L_x1_kw{u}'); tl(s, 'poll')
        tail(f'L_x1_kw{u}:\n{nap((sHL, 118, opts.get("lz1", 0)), 0)}\ns_branch L_x1_kv{u}')
        s(f'buffer_load_dword v{vFt}, v{vF16}, {WS}, {sFC} offen sc1', 'bp'); s(f'buffer_load_dword v{vFP}, v{vF}, {WS}, {sFP} offen sc1')
        tl(s, 'km'); s(f'v_max3_f32 v{m}, v{m}, v{SMm}, v{SMm+1}')
        xreduce(s, m, m+1, 'v_max_f32', dpp=())
        regs = [SMm, SMm+1] + list(range(SD, SD+4)) + (list(range(SP, SP+4)) if u else [])
        for r in regs: s(f'v_sub_f32 v{r}, v{r}, v{m}')
        for r in regs: s(f'v_exp_f32 v{r}, v{r}')
        s(f'v_cvt_pk_bf16_f32 v{PMm}, v{SMm}, v{SMm+1}\nv_cvt_pk_bf16_f32 v{PMm+3}, v{SMm}, v{SMm+1}')
        s(f'v_cvt_pk_bf16_f32 v{PB+2}, v{SD}, v{SD+1}\nv_cvt_pk_bf16_f32 v{PB+3}, v{SD+2}, v{SD+3}')
        if u: s(f'v_cvt_pk_bf16_f32 v{PB}, v{SP}, v{SP+1}\nv_cvt_pk_bf16_f32 v{PB+1}, v{SP+2}, v{SP+3}')
        s('s_nop 1')
        mm = S(); f = S()
        for i in range(8):
            if u: mm(f'v_mfma_f32_16x16x32_bf16 {vr(AC+4*i,4)}, {vr(V[u]+4*i,4)}, {vr(PB,4)}, 0')
            else: mm(f'v_mfma_f32_16x16x16_bf16 {vr(AC+4*i,4)}, {vr(V[u]+2*i,2)}, {vr(PB+2,2)}, 0')
        for i in range(8):
            mm(f'v_mfma_f32_16x16x16_bf16 {vr(AC+4*i,4)}, {vr(VM+2*(i>>1),2)}, {vr(PMm+2*(i&1),2)}, {vr(AC+4*i,4)}')
        f(f'v_add_f32 v{m}, v{regs[0]}, v{regs[1]}')
        for r in regs[2:]: f(f'v_add_f32 v{m}, v{m}, v{r}')
        xreduce(f, m, m+1, 'v_add_f32', dpp=())
        f(f'v_rcp_f32 v{m}, v{m}')
        s.extend(merge(mm, f, 2))
        for b in range(4):
            if b == 0: s.W('vm', 'bp'); s(f'v_cmp_gt_u32 vcc, {sCT}, v{vFt}')
            for r in range(8): s(f'v_mul_f32 v{AC+8*b+r}, v{m}, v{AC+8*b+r}')
            for r in range(4): s(f'v_cvt_pk_bf16_f32 v{AC+8*b+r}, v{AC+8*b+r}, v{AC+8*b+4+r}')
            if b == 0:
                s(f's_cbranch_vccnz L_x1_bp{u}\nL_x1_free{u}:'); tail(f'L_x1_bp{u}:'); poll(tail, vF16, sFC, vFt, sCT, fail); tail(f's_branch L_x1_free{u}')
            dual(s, sM, tail, f'buffer_store_dwordx4 {vr(AC+8*b,4)}, v{vL16}, {WS}, {sO} offen offset:{1024*b} @')
        tl(s, 'st'); s('s_waitcnt vmcnt(0)'); tl(s, 'ack')
        lflag(s, sM, tail, TT, sT, vZ, sFO); tl.dump(s, f's_sub_u32 s30, {sHS}, {(tl.at or 60) + 3}\ns_cmp_lt_u32 s30, 3', TT)
        if opts.get('trace'): s(f's_sub_u32 s31, {sHS}, 3'); tstamp(s, opts, 's31', TT)
        s(f'''s_cmp_eq_u32 {sPF}, 1
        s_cbranch_scc1 L_x1_task{1-u}
        s_cmp_lt_u32 {sHS}, {sEND}
        s_cbranch_scc1 L_x1_pro
        s_branch {"L_bo" if with_bo else fail}''')
        out += resolve(s)[0]
    return out + [f'{fail}:', 's_endpgm'] + resolve(tail)[0]
```

```python
from common import *
LM, LK, LP, LSEL, LQ, LW = 0, 8192, 10240, 11264, 12288, 16384
LO, LMX = LQ, LM + 4096
WSTR = 18 * 2048
vIDX, vG16, vWL, vQW, vKW, vQR, vST, vPUB, vKX, vG8, vF8, vF32, vFV, vFP, vSEN = range(1, 16)
ONES, PM, KX, VX, MA, AQ, AK, AV, SX, SM, POOL = 16, 20, 24, 32, 40, 72, 80, 88, 96, 100, 104
QB, KA, PX, LL, OX = POOL, POOL+16, POOL+24, POOL+28, POOL+32
NWORK = 144
sH, sL, sS, sN, sTAG, sMS, sMC, sG1, sG2, sKV, sKM, sPT, sCV, sC, sFPO, sFCO, sALO, sAL, s4K = [f's{i}' for i in range(32, 51)]
sTCH = 's51'; sTC2 = 's3'; vSEN2 = PM + 3; sKN = 's56'; sMN = 's57'; CH_JUNK = 200*MB; vTC = 0; sH2, sH2O = 's4', 's5'
sPW = 's[20:21]'
sPUBX = 's[52:53]'; sGL, sGH = 's54', 's55'
LDS_Q = [(0,0),(0,1),(1,0),(1,1),(2,0)]
LDS_K = [(1,0),(2,0),(5,1),(6,1),(7,1)]
LDS_O = [(1,2),(1,3),(2,1),(2,2),(2,3),(3,1),(3,2),(3,3)]
home = {}
def _alloc():
    free = [NWORK + 8*i for i in range((256-NWORK)//8)] + [('a', 8*i) for i in range(32)]
    n = 0
    for m, ld in (('q', LDS_Q), ('k', LDS_K), ('v', [])):
        for t in range(8):
            for tau in range(2):
                if (t, tau) in ld: home[m, t, tau] = ('lds', n); n += 1
                else: home[m, t, tau] = free.pop()
    for u in range(4):
        for z in range(4):
            if (u, z) in LDS_O: home['o', u, z] = ('lds', 10 + LDS_O.index((u, z)))
            else: home['o', u, z] = free.pop()
    assert not free
_alloc()
def in_lds(k): return isinstance(home[k], tuple) and home[k][0] == 'lds'
def smf(d, a, b): return f'v_smfmac_f32_16x16x64_bf16 {vr(d,4)}, {vr(a,4)}, {R(b,8)}, v{vIDX}'
def stage(s, key, reg, half, tag):
    s(f'ds_read_b128 {vr(reg+4*half,4)}, v{vWL} offset:{home[key][1]*2048 + 1024*half}', tag)

def setup(s, opts, fail):
    s('L_role_chain:'); stamp(s, opts, 0, 126)
    if opts.get('trace'): s(f's_getreg_b32 s30, hwreg(HW_REG_HW_ID)\nv_mov_b32 v126, s30\nbuffer_store_dword v126, v127, {WS}, 0 offen offset:44')
    s(f'''
    s_mov_b32 {sH}, {sROLE}
    v_lshrrev_b32 v120, 4, v0          ; g
    v_and_b32 v121, 15, v0             ; c
    v_lshlrev_b32 v{vG16}, 4, v0
    s_mul_i32 s30, {sW}, {WSTR}
    s_add_u32 s30, s30, {LW}
    v_add_u32 v{vWL}, s30, v{vG16}
    v_lshrrev_b32 v122, 1, v120
    v_and_b32 v123, 1, v120
    v_lshlrev_b32 v16, 19, v122
    v_lshl_add_u32 v16, v123, 17, v16
    v_lshl_add_u32 v16, v121, 2, v16
    s_lshl_b32 s30, {sH}, 8
    s_lshl_b32 s31, {sW}, 6
    s_add_u32 s30, s30, s31
    v_add_u32 v16, s30, v16
    v_add_u32 v17, 0x2000, v16
    ''')
    TL = 88; TH = 40
    set_srds(s, [(16, 'Wo', 4*MB), (80, 'Wq', 4*MB), (84, 'Wk', 4*MB), (88, 'Wv', 4*MB)])
    s(f's_lshl_b32 s92, {sH}, 8')
    def dst(m, t, tau, jr): return TH + 8*home[m, t, tau][1] + jr if in_lds((m, t, tau)) else radd(home[m, t, tau], jr)
    stages = [(srd, (256*(t & 1) + 2*(t >> 1))*8192, [[(dst(m, t, 0, 2*jp+jj), dst(m, t, 1, 2*jp+jj)) for jj in range(2)] for jp in range(4)])
              for m, srd in (('q', 's[80:83]'), ('k', 's[84:87]'), ('v', 's[88:91]')) for t in range(8)]
    load_pairs_wg(s, stages, (64, 16), (128, 8), 32, 's92', 0, 16, 124)
    stamp(s, opts, 10, 126)
    for i in range(10): s(f'ds_write_b128 v{vWL}, {vr(TH+8*i,4)} offset:{2048*i}\nds_write_b128 v{vWL}, {vr(TH+8*i+4,4)} offset:{2048*i+1024}')
    s('s_waitcnt lgkmcnt(0)')
    s(f'''v_lshlrev_b32 v16, 12, v120
          v_lshl_add_u32 v16, v121, 4, v16
          s_lshl_b32 s30, {sH}, 17
          s_lshl_b32 s31, {sW}, 8
          s_add_u32 s30, s30, s31
          v_add_u32 v16, s30, v16''')
    def oissue(i):
        z, jp = i >> 2, i & 3; b = 24 + 8*(i % 8)
        s(f'''s_add_u32 s30, {sW}, {z}
              s_and_b32 s30, s30, 3
              s_lshl_b32 s30, s30, 15
              s_add_u32 s30, s30, {(16*(jp >> 1) + 2*(jp & 1)) * 1024}
              buffer_load_dwordx4 {vr(b,4)}, v16, {WSR}, s30 offen {opts.get('cfl', '')}
              buffer_load_dwordx4 {vr(b+4,4)}, v16, {WSR}, s30 offen offset:1024 {opts.get('cfl', '')}''', f'wo{i}')
    s('v_mov_b32 v20, 0\nglobal_load_dword v21, v20, s[6:7] offset:64 sc1\nglobal_load_dword v22, v20, s[6:7] sc1', 'ini')
    for i in range(8): oissue(i)
    s(f'''
    v_bfe_u32 v124, v0, 1, 1
    v_mov_b32 v{vIDX}, 0x44444444
    v_mov_b32 v125, 0xeeeeeeee
    v_cmp_eq_u32 vcc, 1, v124
    v_bfe_u32 v126, v0, 2, 1           ; (c>>2)&1
    v_bfe_u32 v127, v0, 3, 1           ; c>>3
    v_cndmask_b32 v{vIDX}, v{vIDX}, v125, vcc
    v_and_b32 v128, 1, v0              ; c&1
    v_and_b32 v129, 3, v0              ; c&3
    v_bfe_u32 v130, v0, 2, 2           ; c>>2
    ; q write: 576w + 144(2(c>>3) + ((c>>1)&1)) + 32g + 8(c&1) + 4((c>>2)&1)
    v_lshl_add_u32 v131, v127, 1, v124
    v_mul_u32_u24 v{vQW}, 144, v131
    v_lshl_add_u32 v{vQW}, v120, 5, v{vQW}
    v_lshl_add_u32 v{vQW}, v128, 3, v{vQW}
    v_lshl_add_u32 v{vQW}, v126, 2, v{vQW}
    s_mul_i32 s30, {sW}, 576
    s_add_u32 s30, s30, {LQ}
    v_add_u32 v{vQW}, s30, v{vQW}
    ; q read: 144g + 16(2(c>>2) + (c&1))
    v_lshl_add_u32 v132, v130, 1, v128          ; row r(c)
    v_mul_u32_u24 v{vQR}, 144, v120
    v_lshl_add_u32 v{vQR}, v132, 4, v{vQR}
    ; k write: 512w + 256(c>>3) + 64g + 32((c>>2)&1) + 4(c&3)
    v_lshlrev_b32 v{vKW}, 8, v127
    v_lshl_add_u32 v{vKW}, v120, 6, v{vKW}
    v_lshl_add_u32 v{vKW}, v126, 5, v{vKW}
    v_lshl_add_u32 v{vKW}, v129, 2, v{vKW}
    s_lshl_b32 s30, {sW}, 9
    s_add_u32 s30, s30, {LK}
    v_add_u32 v{vKW}, s30, v{vKW}
    v_lshrrev_b32 v131, 3, v0
    v_and_b32 v133, 7, v0
    v_lshlrev_b32 v{vST}, 13, v131
    v_lshl_add_u32 v{vST}, v133, 3, v{vST}
    s_lshl_b32 s30, {sW}, 16
    s_lshl_b32 s31, {sH}, 6
    s_add_u32 s30, s30, s31
    s_add_u32 s30, s30, {CH_IN}
    v_add_u32 v{vST}, s30, v{vST}
    v_lshlrev_b32 v{vPUB}, 5, v124
    v_lshl_add_u32 v{vPUB}, v123, 4, v{vPUB}
    v_lshl_add_u32 v{vPUB}, v128, 3, v{vPUB}
    v_lshl_add_u32 v{vPUB}, v122, 2, v{vPUB}
    s_lshr_b32 s30, {sH}, 3
    s_lshl_b32 s30, s30, 9
    s_and_b32 s31, {sH}, 1
    s_lshl_b32 s31, s31, 8
    s_add_u32 s30, s30, s31
    s_bfe_u32 s31, {sH}, 0x20001
    s_lshl_b32 s31, s31, 6
    s_add_u32 s30, s30, s31
    v_add_u32 v{vPUB}, s30, v{vPUB}
    v_lshlrev_b32 v{vKX}, 9, v120
    v_lshl_add_u32 v{vKX}, v124, 6, v{vKX}
    v_lshl_add_u32 v{vKX}, v130, 7, v{vKX}
    v_lshl_add_u32 v{vKX}, v128, 4, v{vKX}
    s_lshr_b32 s30, {sW}, 1
    s_lshl_b32 s30, s30, 12
    s_and_b32 s31, {sW}, 1
    s_lshl_b32 s31, s31, 5
    s_add_u32 s30, s30, s31
    s_add_u32 s30, s30, 8192
    v_add_u32 v{vKX}, s30, v{vKX}
    v_lshlrev_b32 v{vG8}, 3, v0
    v_lshlrev_b32 v{vF8}, 2, v133
    v_and_b32 v{vF32}, 31, v0
    v_lshlrev_b32 v{vF32}, 2, v{vF32}''')
    if opts.get('lc', 0): s(f'v_bfe_u32 v{vF32}, v0, 1, 4\nv_lshlrev_b32 v{vF32}, 2, v{vF32}\nv_lshl_add_u32 v{vF32}, v0, 6, v{vF32}')
    s(f'''
    v_mov_b32 v{vSEN}, -1
    v_mov_b32 v134, 0x3f80
    v_lshlrev_b32 v135, 4, v129
    v_lshlrev_b32 v134, v135, v134
    v_cmp_gt_u32 vcc, 2, v129
    v_mov_b32 v135, 0
    s_nop 0
    v_cndmask_b32 v134, v135, v134, vcc
    ''')
    for r in range(4): s(f'v_cmp_eq_u32 vcc, {r}, v130\ns_nop 1\nv_cndmask_b32 v{136+r}, v135, v134, vcc')
    s(f'ds_write_b128 v{vG16}, v[136:139] offset:{LSEL}')
    s(f'''
    s_mov_b32 s52, 0x000f000f
    s_mov_b32 s53, 0x000f000f
    s_mov_b32 {sC}, {f32(128**-0.5 * LOG2E)}
    s_mov_b32 {s4K}, 4096
    s_mov_b32 {sGL}, 0x17800000
    s_mov_b32 {sGH}, 0x50000000
    s_lshl_b32 s30, {sW}, 11
    s_lshl_b32 {sG1}, {sH}, 13
    s_add_u32 {sG1}, {sG1}, s30
    s_add_u32 {sG1}, {sG1}, {CH_IN}
    s_add_u32 {sG2}, s30, {CH_MEM}
    s_lshl_b32 {sFPO}, {sH}, 7
    s_add_u32 {sFCO}, {sFPO}, {F_C}
    s_add_u32 {sFPO}, {sFPO}, {F_P}
    s_lshl_b32 {sALO}, {sH}, 2
    s_add_u32 {sALO}, {sALO}, {F_AL}
    s_mov_b32 {sAL}, {F_AL}
    s_mov_b32 {sN}, 0
    s_mov_b32 {sL}, 0
    s_mov_b32 {sCV}, 0
    ''')
    set_srd(s, 12, 'mem0', 8192)
    s(f's_lshl_b32 s30, {sW}, 7\ns_add_u32 s30, s30, 128\ns_add_u32 {sH2}, s30, {sAL}\ns_add_u32 {sH2O}, s30, {sALO}')
    s.W('vm', 'ini'); s('v_cmp_gt_u32 vcc, 0x100, v21\ns_cbranch_vccz L_ch_inited')
    x = S(); wait_init(x, 20, 21, fail); x('global_load_dword v22, v20, s[6:7] sc1\ns_waitcnt vmcnt(0)')
    for o in x: s.append(Op(' ' + o.t if not o.t.endswith(':') else o.t))
    s('L_ch_inited:')
    for i in range(2): s(f'buffer_load_dwordx4 v[140:143], v{vG16}, {WS}, {sG1} offen offset:{1024*i} sc1')
    for i in range(4): s(f's_add_u32 s30, {sG2}, {8192*i}\nbuffer_load_dwordx4 v[140:143], v{vG16}, {WS}, s30 offen sc1\nbuffer_load_dwordx4 v[140:143], v{vG16}, {WS}, s30 offen offset:1024 sc1')
    s(f'buffer_load_dword v140, v{vF8}, {WS}, {sH2} offen sc1\nv_lshlrev_b32 v23, 7, v0\nbuffer_load_dword v140, v23, {XIN}, 0 offen')
    if opts.get('tlb', 0):
        s(f's_mul_i32 s30, {sH}, {HS}\nv_and_b32 v23, 1, v0\nv_mul_u32_u24 v23, {HS}, v23\nv_add_u32 v23, s30, v23\nv_add_u32 v23, -1, v23\nv_max_i32 v23, 64, v23\nv_bfe_u32 v124, v0, 1, 1\nv_mul_u32_u24 v125, {20*1024}, v124\nv_sub_u32 v125, {24*1024}, v125\nv_mul_u32_u24 v23, v23, v125\ns_mov_b32 s30, {O_KVM}\nv_mul_lo_u32 v124, v124, s30\nv_add_u32 v23, v23, v124\ns_mov_b32 s30, {LB0}\nbuffer_load_dword v139, v23, {WS}, s30 offen sc1')
    for i in range(16):
        z, jp = i >> 2, i & 3; b = 24 + 8*(i % 8)
        s.W('vm', f'wo{i}')
        if jp == 0: s('s_waitcnt lgkmcnt(0)')
        for u in range(4):
            for f, sel in ((0, sSEL0), (1, sSEL1)):
                d = TL + 8*u + 2*jp + f if in_lds(('o', u, z)) else radd(home['o', u, z], 2*jp + f)
                if isinstance(d, tuple): s(f'v_perm_b32 v{18+f}, v{b+4+u}, v{b+u}, {sel}\nv_accvgpr_write_b32 a{d[1]}, v{18+f}')
                else: s(f'v_perm_b32 v{d}, v{b+4+u}, v{b+u}, {sel}')
        if i + 8 < 16: oissue(i + 8)
        if jp == 3:
            for u in range(4):
                if in_lds(('o', u, z)):
                    slot = home['o', u, z][1]
                    s(f'ds_write_b128 v{vWL}, {vr(TL+8*u,4)} offset:{slot*2048}\nds_write_b128 v{vWL}, {vr(TL+8*u+4,4)} offset:{slot*2048+1024}')
    stamp(s, opts, 1, 126)
    s('v_readfirstlane_b32 s30, v22')
    for r in range(4): s(f'v_mov_b32 v{ONES+r}, 0x3f803f80\nv_mov_b32 v{PM+r}, 0')
    s(f'''s_waitcnt lgkmcnt(0)
          s_cmp_ge_u32 s30, 32
          s_cbranch_scc1 L_ch_initF
          s_branch L_ch_initS''')

def body(mode, opts, fail):
    st = 'sc1' if mode == 'S' else ''
    s = S()
    s(f'L_ch_init{mode}:')
    for w in range(3): s(f's_cmp_eq_u32 {sW}, {w}\ns_cbranch_scc1 L_ch_layer{mode}{w}')
    s(f's_branch L_ch_layer{mode}3')
    out = resolve(s)[0]
    for w in range(4): out += wave(mode, w, opts, fail, st)
    return out

def wave(mode, w, opts, fail, st):
    T = f'{mode}{w}'
    P1 = opts.get('p1', (11, 24, 37, 50)); D2 = opts.get('d2', (48, 54, 48, 43))[w]; AW = 1 if opts.get('align') else -1
    DIR = opts.get('direct', 1)
    DD = opts.get('DD', 2); DD = DD[w] if isinstance(DD, tuple) else DD; HR = VX if DIR else KX
    AN = vFV
    vZ = PM + 1
    tail = S()
    pts = opts.get('tl') or []
    clk = opts.get('clk')
    def P(s, k):
        if clk and k == clk[0]: s('s_memtime s[70:71]\ns_memrealtime s[72:73]')
        if clk and k == clk[1]: s('s_memtime s[74:75]\ns_memrealtime s[76:77]')
        if k in pts: s(f's_memtime s[{70+2*pts.index(k)}:{71+2*pts.index(k)}]')
    def cnt(s, r):
        if opts.get('trace'): s(f's_add_u32 {r}, {r}, 1')
    def zero(s, r, n):
        for i in range(0, n, 2): s(f'v_mov_b64 {vr(r+i,2)}, 0')
    def kxload(s):
        s(f'buffer_load_dwordx4 {vr(KX,4)}, v{vKX}, {WS}, {sKV} offen sc1\nbuffer_load_dwordx4 {vr(KX+4,4)}, v{vKX}, {WS}, {sKV} offen offset:2048 sc1', 'kx')
    def vxload(s):
        s(f's_add_u32 s30, {sKV}, {16384 + 1024*w}\ns_add_u32 s31, s30, 4096')
        s(f'buffer_load_dwordx4 {vr(VX,4)}, v{vG16}, {WS}, s30 offen sc1\nbuffer_load_dwordx4 {vr(VX+4,4)}, v{vG16}, {WS}, s31 offen sc1', 'vx')
    def prestage(s, lo=0, hi=5):
        for i, (t, tau) in list(enumerate(LDS_Q))[lo:hi]:
            for hf in range(2): stage(s, ('q', t, tau), POOL + 8*i, hf, 'pre')
    def kmstore(s):
        if not opts.get('nokv') and not opts.get('nokm'): s(f'buffer_store_dwordx2 {vr(AV+2,2)}, v{vG8}, {WS}, {sKN} offen offset:{512*w} sc1', 'far')
    def vmstore(s):
        if not opts.get('nokv') and not opts.get('novm'): s(f'buffer_store_dwordx2 {vr(AV,2)}, v{vG8}, {WS}, {sKN} offen offset:{2048 + 512*w} sc1', 'far')
    def cflag(s):
        pass
    def touchmask(s):
        if w == 0 and not DIR: s(f's_add_u32 s30, {sPT}, 1\nv_cmp_gt_u32 vcc, s30, v{vFP}\ns_nop 0\ns_cmp_eq_u64 vcc, 0\ns_cselect_b32 s30, {24*1024}, 0\ns_add_u32 {sTCH}, {sKV}, s30\ns_add_u32 {sTC2}, {sTCH}, 8192')
    def book(s):
        s(f"""s_add_u32 {sN}, {sN}, 1
              s_and_b32 {sTAG}, {sN}, 1
              s_xor_b32 {sTAG}, {sTAG}, 1
              s_add_u32 s30, {sN}, 3
              s_and_b32 s30, s30, 3
              s_lshl_b32 s30, s30, 13
              s_add_u32 {sMN}, s30, {sG2}
              s_xor_b32 s30, s30, 0x4000
              s_add_u32 {sMC}, s30, {sG2}""")
        s(f's_add_u32 {sCV}, {sCV}, 1' if not opts.get('lc', 0) else f's_mov_b32 {sSPIN}, 0')
        if DIR: s(f's_add_u32 {sTCH}, {sKV}, {16384 + 1024*w}\ns_add_u32 {sTC2}, {sTCH}, 4096\ns_add_u32 {sKV}, {sKV}, {0 if opts.get("samekv") else 24*1024*SS}\ns_add_u32 {sPT}, {sPT}, 1')
        if w == AW: s(f'v_mov_b32 v{vFV}, {sCV}')
    s = S()
    s(f"""L_ch_layer{T}:
    s_mov_b32 s30, 0
    s_mul_i32 {sKV}, {sH}, {24*1024*HS}
    {'' if opts.get('qre') else f's_add_u32 {sKV}, {sKV}, s30'}
    s_add_u32 {sKV}, {sKV}, {LB0 + O_QKV}
    s_lshl_b32 {sKN}, {sH}, 12
    s_add_u32 {sKN}, {sKN}, {JUNK}
    s_mul_i32 {sKM}, {sH}, {4096*HS}
    s_add_u32 {sKM}, {sKM}, s30
    s_add_u32 {sKM}, {sKM}, {LB0 + O_KVM}
    s_lshl_b32 {sPT}, {sL}, 7
    s_add_u32 {sPT}, {sPT}, 1
    s_mov_b32 {sS}, 0
    s_mov_b32 m0, {LM + 2048*w}""")
    if opts.get('trace'): s('s_mov_b32 s64, 0\ns_mov_b32 s65, 0\ns_mov_b32 s66, 0\ns_mov_b32 s67, 0\ns_mov_b32 s68, 0')
    s(f"""; mem0 gather: row*1024 + 128g + 64f + 4w
    v_bfe_u32 v{MA+8}, v{vG16}, 6, 2
    v_bfe_u32 v{MA+9}, v{vG16}, 4, 1
    v_lshl_add_u32 v{MA+8}, v{MA+8}, 1, v{MA+9}
    v_lshlrev_b32 v{MA+8}, 10, v{MA+8}
    v_lshrrev_b32 v{MA+9}, 8, v{vG16}
    v_lshl_add_u32 v{MA+8}, v{MA+9}, 7, v{MA+8}
    v_bfe_u32 v{MA+9}, v{vG16}, 5, 1
    v_lshl_add_u32 v{MA+8}, v{MA+9}, 6, v{MA+8}
    v_add_u32 v{MA+8}, {4*w}, v{MA+8}""")
    for i in range(8): s(f'buffer_load_dword v{MA+i}, v{MA+8}, {XIN}, 0 offen offset:{512*(i >> 2) + 16*(i & 3)}')
    zero(s, AQ, 32); prestage(s)
    s('s_waitcnt vmcnt(0)')
    for i in range(8): s(f'v_min_u32 v{MA+i}, -2, v{MA+i}')
    s(f'ds_write_b128 v{vG16}, {vr(MA,4)} offset:{LM + 2048*w}\nds_write_b128 v{vG16}, {vr(MA+4,4)} offset:{LM + 2048*w + 1024}')
    poll(s, vF8, sFPO, vFP, sPT, fail)
    if opts.get('trace'): s(f's_lshl_b32 s69, {sL}, 4\ns_add_u32 s69, s69, 2')
    stamp(s, opts, 's69', MA)
    if DIR: kxload(s)
    touchmask(s); book(s)
    s(f'v_mov_b32 v{HR}, -1\ns_waitcnt lgkmcnt(0)\ns_branch L_ch_in{T}')
    pre = resolve(s)[0]
    s = S()
    LC = opts.get('lc', 0)
    EW = opts.get('ew') if w in opts.get('eww', (3,)) else None
    ES = opts.get('es'); LATE = ES is not None and w >= 2
    s(f'L_ch_step{T}:')
    if not LATE:
        if LC: pass
        elif EW:
            s.W('vm', 'early'); s(f'v_cmp_gt_u32 vcc, v{AN}, v{HR+3}\ns_cbranch_vccnz L_ch_warn{T}\nL_ch_hok{T}:')
            tail(f'L_ch_warn{T}:'); cnt(tail, 's67')
            tail(f's_waitcnt vmcnt({3*(DD-1)+2})\nv_cmp_gt_u32 vcc, v{AN}, v{HR}\ns_cbranch_vccnz L_ch_hmiss{T}\ns_waitcnt vmcnt({3*(DD-1)})'); tail.nops(EW[1]); tail(f's_branch L_ch_in{T}')
        else:
            s.W('vm', 'hint'); s(f'v_cmp_gt_u32 vcc, v{AN}, v{HR}\ns_cbranch_vccnz L_ch_hmiss{T}\nL_ch_hok{T}:')
        s.W('vm', 'h2')
        s.append(Op('', 'vm', 'kx0'))
    P(s, 'b0in'); s(f'L_ch_in{T}:\ns_barrier'); P(s, 'b0')
    def rdma(t, x=None): (x or s)(f'ds_read_b128 {vr(MA+4*t,4)}, v{vG16} offset:{LM + 1024*t}', f'ma{t}')
    if LC:
        s(f'L_ch_again{T}:'); rdma(0); rdma(1)
        s(f'ds_read2st64_b32 {vr(AV+4,2)}, v{vF32} offset0:0 offset1:16', 'ck'); rdma(2)
    else: rdma(0); rdma(1); rdma(2)
    PRP = opts.get('prp', ['q5', 'q9', 'q12', 'q15']); CHK = opts.get('chk', 2)
    NQ = len(PRP); PR = AV
    def al(k, x=None):
        if w == AW and k in PRP: r = PRP.index(k); (x or s)(f'buffer_load_dword v{PR+r}, v{vF32}, {WS}, {sAL} offen sc1', f'pr{r}')
    if w == AW: s(f'buffer_store_dword v{vFV}, v{vZ}, {WS}, {sALO} offen {st}')
    if ES: rdma(3)
    elif LC: pass
    elif DIR: s(f'buffer_load_dwordx4 {vr(VX,4)}, v{vG16}, {WS}, {sTCH} offen sc1', 'vx')
    else: kxload(s); s(f's_add_u32 s30, {sKV}, {16384 + 1024*w}\ns_add_u32 s31, s30, 4096')
    def s1(m, i, tt, x=None):
        x = x or s
        t, tau = tt; key = (m, t, tau)
        acc = {'q': AQ, 'k': AK, 'v': AV}[m] + 4*tau
        if in_lds(key):
            j = (LDS_Q if m == 'q' else LDS_K).index((t, tau)); b = POOL + 8*j
            if m == 'k': x.W('ds', f'k{j}')
        else: b = home[key]
        if m == 'q': x.W('ds', f'ma{t}')
        x(smf(acc, MA + 4*t, b))
        if x is s: P(s, f'{m}{i}')
    ORD = [(t, tau) for t in range(4) for tau in range(2)] + [(t, 0) for t in range(4, 8)] + [(t, 1) for t in range(4, 8)]
    def add(d, j): return f'v_add_f32 v{d+j}, v{d+j}, v{d+2+j}'
    def mul(d): return f'v_mul_f32 v{d}, {sC}, v{d}'
    CK = vSEN2
    def sk(x, j, hf): stage(x, ('k',) + LDS_K[j], POOL + 8*j, hf, f'k{j}')
    SG = {n: (j >> 1, j & 1) for j, n in enumerate(opts.get('sg', (7, 9, 11, 12, 14, 16, 18, 21, 22, 23)))}
    NK = 0
    def qpass(x, first):
        rd = dict(zip(opts.get('rd', (0, 1, 3, 4, 6)), range(3, 8)))
        sg = SG
        seq = [('q', i) for i in range(16)] + [('k', 0), ('k', 1)]
        vx2 = opts.get('vxp', (5, 5, 5, 5) if LC else (2, 2, 2, 2))[w]; vms = opts.get('vms', (8, 10, 8, 10))[w]; kms = opts.get('kms', (13, 15, 13, 15))[w]; pc = 4
        if ES:
            e = ES[0]; rd = {e+1: 4, e+2: 5, e+3: 6, e+4: 7}
            sg = {e+7: (0, 0), e+8: (0, 1), e+9: (1, 0), e+10: (1, 1), 15: (2, 0)}
            seq = seq[:8] + seq[16:16+NK] + seq[8:16] + seq[16+NK:]
            vx2 = e+6; vms = -1; kms = -1; pc = 1
        for n, (m, i) in enumerate(seq):
            s1(m, i, ORD[i], x)
            if first and ES:
                if LATE and n == ES[0] - 3: x.W('vm', 'hint'); x(f'v_cmp_gt_u32 vcc, v{AN}, v{HR}')
                if LATE and n == ES[0] - 1: x(f's_cbranch_vccnz L_ch_hmiss{T}\nL_ch_hok{T}:')
                if n == ES[0]:
                    if LATE: x.W('vm', 'h2'); x.append(Op('', 'vm', 'kx0'))
                    x('s_barrier')
                if n == ES[0] + 5: x(f'buffer_load_dwordx4 {vr(VX,4)}, v{vG16}, {WS}, {sTCH} offen sc1', 'vx')
            if n in rd and first: rdma(rd[n], x)
            if first and LC:
                c0 = opts.get('lc0', 0)
                if n == c0: x.W('ds', 'ck'); x(f'v_max_u32 v{AV+4}, v{AV+4}, v{AV+5}\nv_cmp_eq_u32 vcc, -1, v{AV+4}')
                if n == c0 + 2: x(f's_cbranch_vccnz L_ch_hmiss{T}'); x(f'buffer_load_dwordx4 {vr(VX,4)}, v{vG16}, {WS}, {sTCH} offen sc1', 'vx')
            if n in sg: sk(x, *sg[n])
            if first:
                if n == vx2: x(f'buffer_load_dwordx4 {vr(VX+4,4)}, v{vG16}, {WS}, {sTC2} offen sc1', 'vx')
                if n == vms: vmstore(x)
                if n == kms: kmstore(x)
                if n == pc and opts.get('fpw', 0) in (None, w): x(f'v_cmp_gt_u32 {sPW}, {sPT}, v{vFP}')
                if n == 8 and opts.get('fpw', 0) == w: x(f's_cmp_lg_u64 {sPW}, 0')
                if n == 10 and opts.get('fpw', 0) == w: x(f's_cbranch_scc1 L_ch_pwait{T}\nL_ch_pok{T}:')
            if (m, i) == ('q', 13): x(add(AQ, 0))
            if (m, i) == ('q', 14): x(add(AQ, 1))
            if (m, i) == ('q', 15): x(f'v_cmp_u_f32 vcc, v{AQ}, v{AQ+1}')
            if (m, i) == ('k', 0): x(mul(AQ)); x(mul(AQ+1))
    qpass(s, True)
    s(f's_cbranch_vccnz L_ch_missb{T}\nL_ch_okb{T}:')
    if opts.get('fpw', 0) in (None, w): tail(f'L_ch_pwait{T}:'); cnt(tail, 's68'); poll(tail, vF8, sFPO, vFP, sPT, fail, sleep=0); tail(f's_branch L_ch_pok{T}')
    P(s, 'qend')
    ob = [('o',) + x for x in LDS_O]
    sreg = [MA, MA+8, POOL, POOL+8, POOL+16, MA+16, MA+24, POOL+24]
    def so(j, hf): stage(s, ob[j], sreg[j], hf, f'o{j}')
    FW = opts.get('fpw', 0)
    def fpl(k):
        if k != opts.get('fpp', 'k15') or FW not in (None, w): return
        if opts.get('nofp'): s(f'v_mov_b32 v{vFP}, -1')
        else: s(f'buffer_load_dword v{vFP}, v{vF8}, {WS}, {sFPO} offen sc1', 'fp')
    def K(i):
        s1('k', i, ORD[i]); fpl(f'k{i}')
        if 16 + i in SG: sk(s, *SG[16 + i])
        if 16 + i == opts.get('vms', (8, 10, 8, 10))[w]: vmstore(s)
        if 16 + i == opts.get('kms', (13, 15, 13, 15))[w]: kmstore(s)
    def V(i):
        s1('v', i, ORD[i]); fpl(f'v{i}')
        k0 = opts.get('kxp', (0, 0, 0, 0))[w]; k1 = opts.get('kxq', (2, 2, 2, 2))[w]
        if i == k0: s(f'buffer_load_dwordx4 {vr(KX,4)}, v{vKX}, {WS}, {sKV} offen sc1', 'kx')
        if i == k1: s(f'buffer_load_dwordx4 {vr(KX+4,4)}, v{vKX}, {WS}, {sKV} offen offset:2048 sc1', 'kx')
    s(add(AQ+4, 0)); s(add(AQ+4, 1))
    K(2); s(mul(AQ+4)); s(mul(AQ+5))
    K(3)
    if ES: (kmstore if w >= 2 else vmstore)(s)
    s(f'v_cvt_pk_bf16_f32 v{AQ}, v{AQ}, v{AQ+4}\nv_cvt_pk_bf16_f32 v{AQ+1}, v{AQ+1}, v{AQ+5}')
    K(4); s(f'ds_write2_b32 v{vQW}, v{AQ}, v{AQ+1} offset1:4', 'qw')
    K(5); zero(s, AQ+2, 2)
    K(6); zero(s, AQ+4, 2)
    K(7); zero(s, AQ+6, 2)
    K(8)
    if ES and w >= 2: vmstore(s)
    s.W('ds', 'qw'); s('s_barrier'); P(s, 'b1')
    fl = [f'v_mov_b64 {vr(AQ,2)}, 0', f'v_mov_b64 {vr(AV+4,2)}, 0' if LC else '', f'v_mov_b64 {vr(AV,2)}, 0', f'v_mov_b64 {vr(AV+2,2)}, 0']
    def qb(j): s(f'ds_read_b128 {vr(QB+4*j,4)}, v{vQR} offset:{LQ + 576*j}', f'qb{j}')
    QP = opts.get('qp', (9, 10, 11, 12))
    for j in range(4):
        if QP[j] == 8: qb(j)
    for i in range(9, 13):
        K(i)
        for j in range(4):
            if QP[j] == i: qb(j)
        s(fl[i-9])
    K(13); s.W('vm', 'kx0')
    if FW is None: s(f's_cmp_lg_u64 {sPW}, 0')
    s(add(AK, 0))
    K(14)
    if FW is None: s(f's_cbranch_scc1 L_ch_pwait{T}\nL_ch_pok{T}:')
    s(add(AK, 1))
    K(15)
    s(f's_mov_b32 {sKN}, {sKM}')
    s.W('ds', 'qb1'); s(smf(SX, KX, QB)); s(f's_mov_b32 {sMS}, {sMN}')
    s.W('ds', 'qb3'); s(smf(SX, KX+4, QB+8)); s(add(AK+4, 0)); s(add(AK+4, 1))
    V(0); s(f'v_cvt_pk_bf16_f32 v{AK}, v{AK}, v{AK+4}\nv_cvt_pk_bf16_f32 v{AK+1}, v{AK+1}, v{AK+5}')
    V(1); s(f'ds_write2_b32 v{vKW}, v{AK}, v{AK+1} offset1:4', 'kw'); s(add(SX, 0)); s(add(SX, 1))
    V(2); s(f'v_exp_f32 v{SX+2}, v{SX}\nv_exp_f32 v{SX+3}, v{SX+1}'); zero(s, AK+2, 2); s(f'v_cvt_pk_bf16_f32 v{SX+2}, v{SX+2}, v{SX+3}')
    V(3); s(f'ds_write_b32 v{vG16}, v{SX+2} offset:{LP + 4*w}', 'pw')
    V(4); s(f'buffer_store_dword v{vSEN}, v{vPUB}, {WS}, {sMC} offen {st}'); zero(s, AK+4, 2)
    V(5); so(0, 0); zero(s, AK+6, 2)
    V(6); so(0, 1); zero(s, AK, 2)
    V(7); s.W('ds', 'pw'); s('s_barrier'); P(s, 'b2')
    s(f'ds_read_b128 {vr(KA,4)}, v{vG16} offset:{LK}', 'ka0')
    V(8); s(f'ds_read_b128 {vr(KA+4,4)}, v{vG16} offset:{LK + 1024}', 'ka1')
    V(9); s(f'ds_read_b128 {vr(PX,4)}, v{vG16} offset:{LP}', 'px')
    LSW = opts.get('lsw', 1)
    V(10)
    if not LSW: s.W('vm', 'vx'); s(f'v_swap_b32 v{VX+2}, v{VX+4}')
    V(11); so(1, 0)
    if not LSW: s(f'v_swap_b32 v{VX+3}, v{VX+5}')
    s.W('ds', 'ka0'); s(smf(SM, KA, QB)); so(1, 1)
    s.W('ds', 'ka1'); s(smf(SM, KA+4, QB+8))
    fpl('m1')
    s(add(AV, 0))
    s.W('ds', 'px')
    s(f'v_mfma_f32_16x16x32_bf16 {vr(LL,4)}, {vr(ONES,4)}, {vr(PX,4)}, 0'); so(2, 0); s(add(AV, 1)); s(f'v_cvt_pk_bf16_f32 v{AV}, v{AV}, v{AV+1}')
    V(12); so(2, 1); s(add(SM, 0)); s(add(SM, 1))
    V(13); so(3, 0); s(f'v_exp_f32 v{SM+2}, v{SM}')
    V(14); so(3, 1); s(f'v_exp_f32 v{SM+3}, v{SM+1}')
    if not LSW:
        V(15); so(4, 0); s(f's_cmp_eq_u32 {sS}, 63'); s(f'v_cvt_pk_bf16_f32 v{PM}, v{SM+2}, v{SM+3}')
        P(s, 'vend')
        s(f'v_mfma_f32_16x16x32_bf16 {vr(OX,4)}, {vr(VX,4)}, {vr(PX,4)}, 0')
        so(4, 1); s(f'v_mov_b32 v{PM+3}, v{PM}')
        s(f'v_mfma_f32_16x16x32_bf16 {vr(OX+4,4)}, {vr(VX+4,4)}, {vr(PX,4)}, 0')
        s(f's_cselect_b32 s30, 0, {sGH}'); s(add(AV+4, 0)); s(add(AV+4, 1)); s(f'v_cvt_pk_bf16_f32 v{AV+1}, v{AV+4}, v{AV+5}')
        s(f'v_mfma_f32_16x16x16_bf16 {vr(LL,4)}, {vr(ONES,2)}, {vr(PM,2)}, {vr(LL,4)}')
        s('s_nop 0')
        s(f'v_mfma_f32_16x16x16_bf16 {vr(OX,4)}, {vr(AV,2)}, {vr(PM,2)}, {vr(OX,4)}')
        s(f'v_mfma_f32_16x16x16_bf16 {vr(OX+4,4)}, {vr(AV,2)}, {vr(PM+2,2)}, {vr(OX+4,4)}')
    else:
        V(15); s.W('vm', 'vx'); s(f's_cmp_ge_u32 {sS}, {62 if opts.get("e62", 1) else 63}'); s(f'v_cvt_pk_bf16_f32 v{PM}, v{SM+2}, v{SM+3}\nv_swap_b32 v{VX+2}, v{VX+4}\nv_swap_b32 v{VX+3}, v{VX+5}')
        P(s, 'vend')
        s(f'v_mfma_f32_16x16x16_bf16 {vr(LL,4)}, {vr(ONES,2)}, {vr(PM,2)}, {vr(LL,4)}')
        s(f's_cselect_b32 s30, 0, {sGH}'); s(add(AV+4, 0)); s(add(AV+4, 1))
        s(f'v_mfma_f32_16x16x32_bf16 {vr(OX,4)}, {vr(VX,4)}, {vr(PX,4)}, 0')
        so(4, 0); s(f'v_cvt_pk_bf16_f32 v{AV+1}, v{AV+4}, v{AV+5}')
        s(f'v_mfma_f32_16x16x32_bf16 {vr(OX+4,4)}, {vr(VX+4,4)}, {vr(PX,4)}, 0')
        so(4, 1); s(f'v_mov_b32 v{PM+3}, v{PM}\ns_nop 0')
        s(f'v_mfma_f32_16x16x16_bf16 {vr(OX,4)}, {vr(AV,2)}, {vr(PM,2)}, {vr(OX,4)}')
        s('s_nop 1')
        s(f'v_mfma_f32_16x16x16_bf16 {vr(OX+4,4)}, {vr(AV,2)}, {vr(PM+2,2)}, {vr(OX+4,4)}')
    s(f's_nop 0\nv_rcp_f32 v{LL+2}, v{LL}\nv_subrev_u32 v{LL+1}, {sGL}, v{LL}\nv_cmp_le_u32 vcc, s30, v{LL+1}')
    s(f'L_ch_norm{T}:'); P(s, 'norm')
    for r in range(4): s(f'v_mul_f32 v{OX+r}, v{LL+2}, v{OX+r}')
    for r in range(4): s(f'v_mul_f32 v{OX+4+r}, v{LL+2}, v{OX+4+r}')
    for r in range(4): s(f'v_cvt_pk_bf16_f32 v{OX+r}, v{OX+r}, v{OX+4+r}')
    s(f'ds_write_b128 v{vG16}, {vr(OX,4)} offset:{LO + 1024*w}', 'ow')
    P(s, 'ow')
    s(f's_cbranch_vccnz L_ch_safe{T}\nL_ch_fine{T}:')
    AWO = AQ
    NOWN = opts.get('nown', 2)
    for u in range(NOWN):
        s(smf(AWO + 4*u, OX, home['o', u, 0]))
        if u == 0: s(f's_add_u32 {sS}, {sS}, 1\ns_add_u32 {sKM}, {sKM}, {4096*SS}')
    P(s, 'own'); s.W('ds', 'ow'); s('s_barrier'); P(s, 'b3')
    OA = [OX, OX+4, SX, SM]
    for z in (1, 2, 3): s(f'ds_read_b128 {vr(OA[z],4)}, v{vG16} offset:{LO + 1024*((w+z) & 3)}', f'oa{z}')
    for u in range(NOWN, 4): s(smf(AWO + 4*u, OX, home['o', u, 0]))
    def epi(u, part):
        d = AWO + 4*u
        if part == 0: s(f'v_cvt_pk_bf16_f32 v{d}, v{d}, v{d+2}\nv_cvt_pk_bf16_f32 v{d+1}, v{d+1}, v{d+3}\nv_and_or_b32 v{d}, v{d}, -2, {sTAG}')
        else: s(f'buffer_store_dwordx2 {vr(d,2)}, v{vST}, {WS}, {"0" if u < 2 else s4K} offen offset:{2048*(u & 1)} {st}')
    late = {(0,1): (5,0), (0,2): (5,1), (0,3): (6,0), (1,1): (6,1), (1,2): (7,0), (2,1): (7,1)}
    for u in range(4):
        for z in (1, 2, 3):
            key = ('o', u, z)
            if u == 0: s.W('ds', f'oa{z}')
            if in_lds(key): j = ob.index(key); s.W('ds', f'o{j}'); b = sreg[j]
            else: b = home[key]
            s(smf(AWO + 4*u, OA[z], b)); P(s, f'o{u}{z}')
            if (u, z) in late: so(*late[u, z])
            if u > 0 and z == 2: epi(u-1, 0)
            if u > 0 and z == 3: epi(u-1, 1)
    SEL, RA = OX, OX+4
    s(f'ds_read_b128 {vr(SEL,4)}, v{vG16} offset:{LSEL}', 'sel')
    s('s_nop 5')
    epi(3, 0); epi(3, 1); P(s, 'st3')
    idle = S()
    idle(f'v_mov_b32 v{AN}, {sCV}'); zero(idle, AQ, 12); zero(idle, AV+4, 12); zero(idle, AQ+12, 4)
    def fill(n):
        k = min(n, len(idle)); s.extend(idle[:k]); del idle[:k]; s.nops(n - k)
    G = [MA, MA+8, MA+16]
    def h1l(t, r): t(f'buffer_load_dwordx4 {vr(G[r],4)}, v{vG16}, {WS}, {sG1} offen sc1\nbuffer_load_dwordx4 {vr(G[r]+4,4)}, v{vG16}, {WS}, {sG1} offen offset:1024 sc1')
    def h2l(t, r): t(f'buffer_load_dwordx4 {vr(G[r],4)}, v{vG16}, {WS}, {sMS} offen sc1\nbuffer_load_dwordx4 {vr(G[r]+4,4)}, v{vG16}, {WS}, {sMS} offen offset:1024 sc1')
    TM = MA + 30
    def h1f(t, r, out):
        b = G[r]
        t(f"""s_waitcnt vmcnt({out+1})
              v_mfma_f32_16x16x32_bf16 {vr(RA,4)}, {vr(SEL,4)}, {vr(b,4)}, 0
              v_bitop3_b32 v{TM}, v{b}, v{b+2}, {sTAG} bitop3:0x7e
              s_waitcnt vmcnt({out})
              v_mfma_f32_16x16x32_bf16 {vr(RA,4)}, {vr(SEL,4)}, {vr(b+4,4)}, {vr(RA,4)}
              v_bitop3_b32 v{TM+1}, v{b+4}, v{b+6}, {sTAG} bitop3:0x7e
              v_bitop3_b32 v{TM}, v{TM}, v{TM+1}, 1 bitop3:0xa8
              v_cmp_ne_u32 vcc, 0, v{TM}""")
    def h2f(t, r, out):
        b = G[r]
        t(f"""s_waitcnt vmcnt({out})
              v_max3_u32 v{TM+1}, v{b}, v{b+1}, v{b+2}
              v_max3_u32 v{TM+1}, v{TM+1}, v{b+3}, v{b+4}
              v_max3_u32 v{TM+1}, v{TM+1}, v{b+5}, v{b+6}
              v_max_u32 v{TM+1}, v{TM+1}, v{b+7}
              v_cmp_eq_u32 vcc, -1, v{TM+1}
              ds_write_b128 v{vG16}, {vr(b,4)} offset:{LM + 2048*w}
              ds_write_b128 v{vG16}, {vr(b+4,4)} offset:{LM + 2048*w + 1024}""")
    def retry(tag, ld, fin, c):
        tail(f's_mov_b32 {sSPIN}, 0'); cnt(tail, c)
        for r in range(2): ld(tail, r); tail('s_nop 9')
        tail(f'L_ch_poll{tag}{T}:')
        for r in range(3):
            ld(tail, (r+2) % 3); fin(tail, r, 4); tail(f's_cbranch_vccz L_ch_got{tag}{T}')
        tail(f's_add_u32 {sSPIN}, {sSPIN}, 1\ns_cmp_lt_u32 {sSPIN}, {SPIN_MAX}\ns_cbranch_scc1 L_ch_poll{tag}{T}\ns_branch {fail}')
        tail(f'L_ch_got{tag}{T}:')
    if opts.get('solo'):
        s.extend(idle); del idle[:]; prestage(s); book(s); s(f's_waitcnt vmcnt(0)\ns_branch L_ch_solo{T}')
    D1 = opts.get('D1', 2); G1 = opts.get('g1', (42, 40, 38, 36)); G1 = G1[w] if isinstance(G1, tuple) else G1; D1 = D1[w] if isinstance(D1, tuple) else D1
    G2_ = opts.get('g2', (32, 32, 36, 28)); G2_ = G2_[w] if isinstance(G2_, tuple) else G2_
    PW = opts.get('pw', (0, 4, 1, 0)); PW = PW[w] if isinstance(PW[0], tuple) else PW
    if opts.get('pw0'): prestage(s, 0, PW[0])
    if opts.get('sbar', 1): s('s_barrier')
    if not opts.get('pw0'): x = S(); prestage(x, 0, PW[0]); idle[0:0] = x
    fill(P1[w])
    P(s, 'h1'); h1l(s, 0)
    for r in range(1, D1): fill(G1); h1l(s, r)
    s.extend(idle)
    s(f'ds_read_b64 {vr(AV+2,2)}, v{vG8} offset:{LK + 512*w}', 'kre')
    PS = PW[0] + PW[1]; prestage(s, PW[0], PS); s.nops(opts.get('t1', (0, 0, 0, 0))[w]); s.W('ds', 'sel')
    h1f(s, 0, 2*(D1-1)); s(f's_nop 3\ns_cbranch_vccnz L_ch_missa{T}\nL_ch_oka{T}:')
    tail(f'L_ch_missa{T}:\ns_mov_b32 {sSPIN}, 0\nL_ch_polla{T}:')
    for r in list(range(1, D1)) + [0]:
        cnt(tail, 's65'); h1l(tail, (r+D1-1) % D1); h1f(tail, r, 2*(D1-1)); tail(f's_nop 3\ns_cbranch_vccz L_ch_oka{T}')
    tail(f's_add_u32 {sSPIN}, {sSPIN}, 1\ns_cmp_lt_u32 {sSPIN}, {SPIN_MAX}\ns_cbranch_scc1 L_ch_polla{T}\ns_branch {fail}')
    P(s, 'h1ok')
    GATE = opts.get('gate')
    ann = f'buffer_store_dword v{AN}, v{vZ}, {WS}, {sH2O} offen {st}'
    if GATE: s(ann)
    s(f"""v_add_f32_dpp v{RA}, v{RA}, v{RA} row_ror:4 row_mask:0xf bank_mask:0xf
          v_add_f32_dpp v{RA+1}, v{RA+1}, v{RA+1} row_ror:4 row_mask:0xf bank_mask:0xf
          s_nop 0
          v_add_f32_dpp v{RA}, v{RA}, v{RA} row_ror:8 row_mask:0xf bank_mask:0xf
          v_add_f32_dpp v{RA+1}, v{RA+1}, v{RA+1} row_ror:8 row_mask:0xf bank_mask:0xf
          v_cvt_pk_bf16_f32 v{TM}, v{RA}, v{RA+1}
          {f'v_min_u32 v{TM}, -2, v{TM}' if opts.get('vmin', 1) else ''}
          buffer_store_dword v{TM}, v{vPUB}, {WS}, {sMS} offen {st}""")
    def dma(t, tag): t(f'buffer_load_dwordx4 v{vG16}, {WS}, {sMS} offen sc1 lds\nbuffer_load_dwordx4 v{vG16}, {WS}, {sMS} offen offset:1024 sc1 lds', tag)
    def prb(t, r, tag='x'): t(f'buffer_load_dword v{HR+r}, v{vF32}, {WS}, {sH2} offen sc1', tag)
    def clamp(t):
        for r in range(4): t(f'v_min_u32 v{AV+r}, -2, v{AV+r}')
    idle = S(); book(idle); idle.W('ds', 'kre'); clamp(idle)
    if GATE:
        NG, GG = GATE
        fill(D2)
        for r in range(NG):
            prb(s, r, f'g{r}')
            if r == 0: prestage(s, PS, 5)
            if r < NG-1: fill(GG)
        s.extend(idle); P(s, 'pub')
        s.W('vm', 'g0'); s(f'v_cmp_gt_u32 vcc, v{AN}, v{HR}\ns_cbranch_vccnz L_ch_g1{T}'); P(s, 'h2'); dma(s, 'h2'); s(f'L_ch_gok{T}:')
        for r in list(range(1, NG)) + [0]:
            tail(f'L_ch_g{r}{T}:'); cnt(tail, 's66'); prb(tail, (r+NG-1) % NG)
            if r == 0: tail(f's_add_u32 {sSPIN}, {sSPIN}, 1\ns_cmp_lt_u32 {sSPIN}, {SPIN_MAX}\ns_cbranch_scc0 {fail}')
            tail(f's_waitcnt vmcnt({NG-1})\nv_cmp_gt_u32 vcc, v{AN}, v{HR+r}\ns_cbranch_vccnz L_ch_g{(r+1) % NG}{T}'); dma(tail, 'x'); tail(f's_branch L_ch_gok{T}')
        s(f's_mov_b32 {sSPIN}, 0\nv_cmp_gt_u32 vcc, {sPT}, v{vFP}')
    else:
        if not LC: s.nops(opts.get('da', 4)); s(ann)
        P(s, 'pub')
        prestage(s, PS, PS + PW[2]); prestage(idle, PS + PW[2], 5); rest = max(0, D2 - 2*PW[2] - (0 if LC else opts.get('da', 4)))
        if EW: s.nops(rest - EW[0]); prb(s, 3, 'early'); s.nops(EW[0] - 3)
        else: s.nops(rest)
        P(s, 'h2')
        def shot(t, r):
            if not LC: prb(t, r, 'hint' if r == 0 else 'x')
            dma(t, 'h2' if r == 0 else 'x')
        shot(s, 0)
        for r in range(1, DD): fill(G2_); shot(s, r)
        s.extend(idle)
        if LC:
            tail(f'L_ch_hmiss{T}:'); cnt(tail, 's66'); shot(tail, 1)
            tail(f's_add_u32 {sSPIN}, {sSPIN}, 1\ns_cmp_lt_u32 {sSPIN}, {SPIN_MAX}\ns_cbranch_scc0 {fail}\ns_waitcnt lgkmcnt(0)\ns_nop 1'); zero(tail, AQ, 8); tail.nops(opts.get('lcd', 0)); tail(f's_branch L_ch_again{T}')
        else:
            tail(f'L_ch_hmiss{T}:\ns_mov_b32 {sSPIN}, 0\nL_ch_hpoll{T}:')
            for r in list(range(1, DD)) + [0]:
                cnt(tail, 's66'); shot(tail, (r+DD-1) % DD)
                tail(f's_waitcnt vmcnt({3*(DD-1)+2})\nv_cmp_gt_u32 vcc, v{AN}, v{HR+r}\ns_cbranch_vccz L_ch_hok{T}')
            tail(f's_add_u32 {sSPIN}, {sSPIN}, 1\ns_cmp_lt_u32 {sSPIN}, {SPIN_MAX}\ns_cbranch_scc1 L_ch_hpoll{T}\ns_branch {fail}')
    s.nops(opts.get('t2', (0, 0, 0, 0))[w])
    if opts.get('solo'): s(f'L_ch_solo{T}:\nv_mov_b32 v{HR}, -1')
    P(s, 'end')
    if opts.get('trace'):
        s(f's_cmp_eq_u32 {sS}, 13\ns_cbranch_scc1 L_ch_m0{T}\ns_cmp_eq_u32 {sS}, 63\ns_cbranch_scc1 L_ch_m1{T}\nL_ch_mb{T}:')
        tail(f'L_ch_m0{T}:\ns_memtime s[58:59]\ns_memrealtime s[60:61]\ns_mov_b32 s65, 0\ns_mov_b32 s66, 0\ns_mov_b32 s67, 0\ns_mov_b32 s68, 0\ns_branch L_ch_mb{T}')
        tail(f'L_ch_m1{T}:\ns_memtime s[62:63]\ns_memrealtime s[98:99]\ns_waitcnt lgkmcnt(0)\ns_sub_u32 s64, s62, s58\ns_sub_u32 s60, s98, s60\ns_branch L_ch_mb{T}')
    if opts.get('steps') and w == 0: s('s_memrealtime s[78:79]')
    s('s_waitcnt lgkmcnt(0)')
    if opts.get('steps') and w == 0:
        s(f's_lshl_b32 s100, {sROLE}, 9\ns_lshl_b32 s79, {sL}, 7\ns_add_u32 s100, s100, s79\ns_add_u32 s100, s100, {sS}\ns_lshl_b32 s100, s100, 2\ns_add_u32 s100, s100, {TRACE + 128*4 + 32*4}\nv_mov_b32 v{TM-3}, s78')
        s.append(Op(f'buffer_store_dword v{TM-3}, v{vZ}, {WS}, s100 offen'))
    if clk: s('s_sub_u32 s74, s74, s70\ns_sub_u32 s76, s76, s72\ns_add_u32 s67, s67, s74\ns_add_u32 s68, s68, s76')
    if pts:
        s(f's_cmp_eq_u32 {sS}, {opts.get("tls", 41)}\ns_cbranch_scc0 L_ch_step{T}')
        s(f's_lshl_b32 s100, {sROLE}, 2\ns_add_u32 s100, s100, {sW}\ns_lshl_b32 s100, s100, 9\ns_add_u32 s100, s100, {TRACE+256}\nv_mov_b32 v{TM-4}, s100')
        for i in range(len(pts)): s(f'v_mov_b32 v{TM-3}, s{70+2*i}\nbuffer_store_dword v{TM-3}, v{TM-4}, {WS}, 0 offen offset:{4*i}\ns_waitcnt vmcnt(0)')
    s(f's_branch L_ch_step{T}')
    if opts.get('hoist', 1): s = hoist_waits(s)
    for pat in opts.get('drop', []):
        lo = [i for i, o in enumerate(s) if o.t == f'L_ch_in{T}:'][0] + 2; hi = [i for i, o in enumerate(s) if o.tag == 'oa1'][0] - 2
        s = S(o for i, o in enumerate(s) if not (lo <= i < hi and o.t and o.t.startswith(pat) and 'safe' not in o.t))
    step = resolve(s, pre_vm=['h2']*2 if GATE else ['early', 'hint'] + ['h2']*2 + ['x']*((2 if LC else 3)*(DD-1)))[0]
    if opts.get('model') == T: model(step[step.index(f'L_ch_in{T}:'):], True)
    tail(f'L_ch_missb{T}:\ns_mov_b32 {sSPIN}, 0\ns_sub_u32 s30, {sMS}, {2048*w}\ns_add_u32 s31, s30, 4096\ns_waitcnt lgkmcnt(0)'); cnt(tail, 's68')
    for t in range(8): rdma(t, tail)
    tail('s_waitcnt lgkmcnt(0)'); prestage(tail); tail(f's_branch L_ch_chkb{T}\nL_ch_pollb{T}:')
    for t in range(8): tail(f'buffer_load_dwordx4 {vr(MA+4*t,4)}, v{vG16}, {WS}, s3{t >> 2} offen offset:{1024*(t & 3)} sc1')
    tail(f's_add_u32 {sSPIN}, {sSPIN}, 1\ns_cmp_lt_u32 {sSPIN}, {SPIN_MAX}\ns_cbranch_scc0 {fail}\ns_waitcnt vmcnt(0)\nL_ch_chkb{T}:\nv_max_u32 v{CK}, v{MA}, v{MA+1}')
    for r in range(2, 32, 2): tail(f'v_max3_u32 v{CK}, v{CK}, v{MA+r}, v{MA+r+1}')
    tail(f'v_cmp_eq_u32 vcc, -1, v{CK}\ns_cbranch_vccnz L_ch_pollb{T}')
    zero(tail, AQ, 16); tail('s_waitcnt lgkmcnt(0)\ns_nop 0')
    qpass(tail, False); tail(f's_branch L_ch_okb{T}')
    t = tail
    t(f'L_ch_last{T}:')
    t(f'ds_read_b64 {vr(AV+2,2)}, v{vG8} offset:{LK + 512*w}\ns_waitcnt lgkmcnt(0)')
    clamp(t); kmstore(t); vmstore(t)
    t(f's_sub_u32 {sN}, {sN}, 1')
    if opts.get('trace'): t('s_add_u32 s69, s69, 1')
    stamp(t, opts, 's69', MA)
    if opts.get('trace'):
        for i, r in enumerate(('s64', 's65', 's66', 's67', 's68', 's60')):
            t(f'v_mov_b32 v{MA}, {r}\nv_add_u32 v{MA+1}, 4, v{MA+1}\nbuffer_store_dword v{MA}, v{MA+1}, {WS}, 0 offen\ns_nop 1')
    if opts.get('dbgt'): t(f's_lshl_b32 s30, {sL}, 3\ns_add_u32 s30, s30, 48\nv_mov_b32 v{MA+2}, s30\nv_mov_b32 v{MA}, s64\nv_mov_b32 v{MA+1}, s60\nglobal_store_dwordx2 v{MA+2}, v[{MA}:{MA+1}], s[6:7]')
    t(f"""s_waitcnt vmcnt(0) lgkmcnt(0)
          s_barrier
          s_add_u32 {sL}, {sL}, 1
          s_cmp_lt_u32 {sL}, {opts.get('nl', 2)}
          s_cbranch_scc1 L_ch_layer{T}
          s_endpgm""")
    m, m2 = LL + 1, LL + 3
    t(f'L_ch_safe{T}:\ns_cmp_eq_u32 {sS}, 63\ns_cbranch_scc1 L_ch_last{T}')
    if opts.get('e62', 1):
        t(f's_cmp_eq_u32 {sS}, 62\ns_cbranch_scc0 L_ch_max{T}\nds_read_b64 {vr(AV+2,2)}, v{vG8} offset:{LK + 512*w}\nv_cmp_le_u32 vcc, {sGH}, v{LL+1}\ns_waitcnt lgkmcnt(0)')
        clamp(t); kmstore(t); vmstore(t); t(f's_cbranch_vccz L_ch_fine{T}\nL_ch_max{T}:')
    t(f'v_max3_f32 v{m}, v{SX}, v{SX+1}, v{SM}\nv_max_f32 v{m}, v{m}, v{SM+1}')
    xreduce(t, m, m2, 'v_max_f32', dpp=())
    t(f'''ds_write_b32 v{vG16}, v{m} offset:{LMX + 4*w}
          s_waitcnt lgkmcnt(0)
          s_barrier
          ds_read_b128 {vr(PX,4)}, v{vG16} offset:{LMX}
          s_waitcnt lgkmcnt(0)
          v_max3_f32 v{m}, v{PX}, v{PX+1}, v{PX+2}
          v_max_f32 v{m}, v{m}, v{PX+3}''')
    for b in (SX, SM):
        for r in range(2): t(f'v_sub_f32 v{b+2+r}, v{b+r}, v{m}\nv_exp_f32 v{b+2+r}, v{b+2+r}')
    t(f'''s_nop 0
          v_cvt_pk_bf16_f32 v{SX+2}, v{SX+2}, v{SX+3}
          v_cvt_pk_bf16_f32 v{PM}, v{SM+2}, v{SM+3}
          v_cvt_pk_bf16_f32 v{PM+3}, v{SM+2}, v{SM+3}
          ds_write_b32 v{vG16}, v{SX+2} offset:{LP + 4*w}
          s_waitcnt lgkmcnt(0)
          s_barrier
          ds_read_b128 {vr(PX,4)}, v{vG16} offset:{LP}
          s_waitcnt lgkmcnt(0)
          v_mfma_f32_16x16x32_bf16 {vr(LL,4)}, {vr(ONES,4)}, {vr(PX,4)}, 0
          v_mfma_f32_16x16x32_bf16 {vr(OX,4)}, {vr(VX,4)}, {vr(PX,4)}, 0
          v_mfma_f32_16x16x32_bf16 {vr(OX+4,4)}, {vr(VX+4,4)}, {vr(PX,4)}, 0
          s_nop 7
          v_mfma_f32_16x16x16_bf16 {vr(LL,4)}, {vr(ONES,2)}, {vr(PM,2)}, {vr(LL,4)}
          v_mfma_f32_16x16x16_bf16 {vr(OX,4)}, {vr(AV,2)}, {vr(PM,2)}, {vr(OX,4)}
          v_mfma_f32_16x16x16_bf16 {vr(OX+4,4)}, {vr(AV,2)}, {vr(PM+2,2)}, {vr(OX+4,4)}
          s_nop 7
          v_rcp_f32 v{LL+2}, v{LL}
          s_mov_b64 vcc, 0
          s_branch L_ch_norm{T}''')
    return pre + step + resolve(tail)[0]

def role_chain(opts):
    fail = 'L_ch_fail'
    s = S(); setup(s, opts, fail)
    return resolve(s)[0] + body('F', opts, fail) + [f'{fail}:', 's_endpgm'] + (['L_ch_initS:', 's_endpgm'] if opts.get('fastonly') else body('S', opts, fail))
```
